```python
import torch

def _softmax(x, axis=-1):
    return torch.softmax(x, dim=axis)
def _gelu(x):
    return torch.nn.functional.gelu(x, approximate="tanh")
def _silu(x):
    return torch.nn.functional.silu(x)
def _sigmoid(x):
    return torch.sigmoid(x)
def _layernorm(x, axis=-1, eps=1e-5):
    m = x.mean(dim=axis, keepdim=True)
    v = x.var(dim=axis, keepdim=True, unbiased=False)
    return (x - m) / torch.sqrt(v + eps)
def _scatter_add(tgt, idx, src, axis=0):
    return tgt.clone().index_add_(axis, idx, src)
def _segment_sum(src, seg, n):
    out = torch.zeros((n,) + src.shape[1:], dtype=src.dtype)
    return out.index_add_(0, seg, src)
def _pad(x, pw):
    flat = tuple(v for pair in reversed(pw) for v in pair)
    return torch.nn.functional.pad(x, flat)

kernel_name = 'standalone__paged_block_table_kv_radixattention__sampling'

def setup_inputs():

    _w = (lambda a: (lambda t: t.to(torch.bfloat16) if t.is_floating_point() else t)(torch.as_tensor(a)))
    B, H, Hkv, Dh = 8, 16, 8, 256
    Lk = 8192
    bs = 16
    nb = max(2, Lk // bs)
    P = max(1, nb // 2)
    n_phys = P + B * (nb - P)
    shared = torch.arange(P, dtype=torch.int64)
    priv = P + torch.arange(B * (nb - P), dtype=torch.int64).reshape(B, nb - P)
    bt = torch.cat([torch.tile(shared[None, :], (B, 1)), priv], dim=1)
    ctx = nb * bs - (torch.arange(1, B + 1, dtype=torch.int64) * 2654435761) % max(1, (nb * bs - P * bs) // 2)
    return {
        "q": _w((lambda *s: torch.randn(*s, dtype=torch.bfloat16) * 0.8)(B, H, Dh)),
        "k_cache": _w((lambda *s: torch.randn(*s, dtype=torch.bfloat16) * 0.8)(n_phys, bs, Hkv, Dh)),
        "v_cache": _w((lambda *s: torch.randn(*s, dtype=torch.bfloat16) * 0.05)(n_phys, bs, Hkv, Dh)),
        "block_table": _w(bt.to(torch.int64)),
        "ctx_lens": _w(torch.as_tensor(ctx).to(torch.int64)),
    }

def reference(q, k_cache, v_cache, block_table, ctx_lens):
    B, H, Dh = q.shape
    n_phys, bs, Hkv, _ = k_cache.shape
    nb = block_table.shape[1]
    Lk = nb * bs
    rep = H // Hkv
    k = k_cache[block_table].reshape(B, Lk, Hkv, Dh)
    v = v_cache[block_table].reshape(B, Lk, Hkv, Dh)
    k = (lambda x, n, axis: torch.repeat_interleave(x, n, dim=axis))(k, rep, axis=2)
    v = (lambda x, n, axis: torch.repeat_interleave(x, n, dim=axis))(v, rep, axis=2)
    scores = torch.einsum("bhd,bkhd->bhk", q, k) * (Dh ** -0.5)
    pos = torch.arange(Lk)
    valid = pos[None, :] < ctx_lens[:, None]
    scores = torch.where(valid[:, None, :], scores, -1e9)
    p = _softmax(scores, axis=-1)
    return torch.einsum("bhk,bkhd->bhd", p, v)
```

```python
import sys
NAME = "standalone__paged_block_table_kv_radixattention__sampling"
KN = NAME + "_kernel"

class Asm:
    def __init__(self):
        self.L = []
    def __call__(self, s):
        for line in s.strip("\n").split("\n"):
            line = line.strip()
            if not line: continue
            self.L.append(line if line.endswith(":") or line.startswith(".") or line.startswith(";") else "    " + line)
    def text(self): return "\n".join(self.L) + "\n"

HEADER = """; Kernarg layout for this problem (64 bytes, ptrs only, base s[0:1]):
"""

def gen(mode="1k", prof=0, NSH=5, NB=(31, 28, 24, 20, 34, 30, 26, 23), pol="nt", sleep=2):
    NWG = 256
    NSHWG = 8 * NSH
    assert NSHWG + sum(NB) == NWG
    SLOTS = 40
    assert NSH + max(NB) <= SLOTS and NSH + min(NB) >= 24
    ML_OFF = 8 * SLOTS * 16 * 1024
    WS_BYTES = ML_OFF + 8 * SLOTS * 16 * 8
    PROF_OFF = 8 << 20
    WSTRIDE = 16896
    MLL = 4 * WSTRIDE
    LDS = MLL + 512
    KVB = 2304 * 65536
    NEGBIG = 0xFF000000
    CSC = 0x3DB8AA3B
    one = mode == "1k"
    A = Asm()
    vLane, vG, vQi = 0, 1, 2
    vT0, vT1, vT2, vT3 = 3, 4, 5, 6
    vCtx, vC, vM, vL = 7, 8, 9, 10
    vAl = 12
    vP = 14
    vS = 16
    vB = 20
    vLim = 24
    vE = 28
    vKA = 32
    vDO = 36
    vVA = 40
    vX = 48
    vPf = 52
    vQO = 53
    vMLO = 54
    vRO = 55
    vQ = 56
    vKF = 88
    vVF = 120
    vO = 152
    NV = 216
    sQ, sK, sV, sBT, sCTX, sOUT, sDBG, sWS = 4, 6, 8, 10, 12, 14, 16, 18
    rK, rV, rW = 20, 24, 28
    sW = 32; sB = 33; sKk = 34; sR = 35; sSlot = 36; sShared = 37
    sRS = 38; sHI = 39
    sEn = 40
    sT = 45; sTend = 46; sJS = 47; sOM = 48; sOC = 49; sPS = 50; sPB = 51
    sPos = 52; sPosN = 53; sOff = 54; sOff2 = 55; sLB = 56
    sQA = 57; sQB = 58; sTmp = 59; sTmp2 = 60; sPass = 61; sT0 = 62; sNext = 63
    sRow = 64
    sMk = 68
    sF = 76
    sSt = 92
    sCnt = 94; sNinf = 95
    NS = 96
    pidx = [0]
    def stamp():
        if not prof: return
        A(f"s_memrealtime s[{sSt}:{sSt+1}]\ns_waitcnt lgkmcnt(0)\nv_writelane_b32 v{vPf}, s{sSt}, {pidx[0]}")
        pidx[0] += 1

    A(HEADER)
    if prof: A("; prof=1")
    if one:
        A(f"; @launch grid=({NWG},1,1) block=(256,1,1) lds={LDS}")
    else:
        A(f"; @launch kernel={KN} grid=({NWG},1,1) block=(256,1,1) lds={LDS}")
        A(f"; @launch kernel=combine_kernel grid=({NWG},1,1) block=(256,1,1) lds=0")
    A('.amdgcn_target "amdgcn-amd-amdhsa--gfx950"\n.text')
    A(f".globl {KN}\n.p2align 8\n.type {KN},@function\n{KN}:")
    A(f"s_cmp_ge_u32 s2, {NWG}\ns_cbranch_scc1 L_end")
    if prof: A(f"v_mov_b32 v{vPf}, 0")
    stamp()
    A("s_load_dwordx16 s[4:19], s[0:1], 0")
    A(f"""
    v_lshrrev_b32 v{vT0}, 6, v0
    v_and_b32 v{vLane}, 63, v0
    v_readfirstlane_b32 s{sW}, v{vT0}
    v_lshrrev_b32 v{vG}, 4, v{vLane}
    v_and_b32 v{vQi}, 15, v{vLane}
    s_mov_b32 s{sNinf}, 0xff800000
    s_cmp_lt_u32 s2, {NSHWG}
    s_cbranch_scc1 L_role_sh
    """)
    cum = [0]
    for n in NB: cum.append(cum[-1] + n)
    A(f"s_sub_u32 s{sTmp}, s2, {NSHWG}\ns_mov_b32 s{sB}, 0\ns_mov_b32 s{sKk}, 0\ns_mov_b32 s{sR}, {(1<<32)//NB[0]+1}")
    for b in range(1, 8):
        A(f"s_cmp_ge_u32 s{sTmp}, {cum[b]}\ns_cselect_b32 s{sB}, {b}, s{sB}\ns_cselect_b32 s{sKk}, {cum[b]}, s{sKk}\ns_cselect_b32 s{sR}, {(1<<32)//NB[b]+1}, s{sR}")
    A(f"""
    s_sub_u32 s{sKk}, s{sTmp}, s{sKk}
    s_add_u32 s{sSlot}, s{sKk}, {NSH}
    s_mov_b32 s{sShared}, 0
    s_mov_b32 s{sRS}, 9
    s_mov_b32 s{sJS}, 3
    s_mov_b32 s{sOM}, 7
    s_mov_b32 s{sOC}, 0
    s_mov_b32 s{sPS}, 1
    s_mov_b32 s{sPB}, 4096
    s_mov_b32 s{sQA}, 2
    s_lshl_b32 s{sQB}, s{sB}, 4
    s_lshl_b32 s{sTmp2}, s{sB}, 11
    s_add_u32 s{sTmp2}, s{sTmp2}, 1024
    s_branch L_role_done
    L_role_sh:
    s_and_b32 s{sB}, s2, 7
    s_lshr_b32 s{sKk}, s2, 3
    s_mov_b32 s{sR}, {(1<<32)//NSH+1}
    s_mov_b32 s{sSlot}, s{sKk}
    s_mov_b32 s{sShared}, 1
    s_mov_b32 s{sRS}, 12
    s_mov_b32 s{sJS}, 0
    s_mov_b32 s{sOM}, 0
    s_lshl_b32 s{sOC}, s{sB}, 9
    s_mov_b32 s{sPS}, 4
    s_mov_b32 s{sPB}, 0
    s_mov_b32 s{sQA}, 16
    s_lshl_b32 s{sQB}, s{sB}, 1
    s_mov_b32 s{sTmp2}, 0
    L_role_done:
    s_lshl_b32 s{sHI}, 8, s{sRS}
    s_mul_i32 s{sLB}, s{sW}, {WSTRIDE}
    v_lshlrev_b32 v{vRO}, 4, v{vLane}
    v_add_u32 v{vT3}, s{sTmp2}, v{vRO}
    v_lshrrev_b32 v{vT0}, 1, v{vQi}
    v_mul_u32_u24 v{vT0}, s{sQA}, v{vT0}
    v_and_b32 v{vT1}, 1, v{vQi}
    v_add3_u32 v{vT0}, v{vT0}, v{vT1}, s{sQB}
    v_lshrrev_b32 v{vT2}, 4, v{vT0}
    v_lshlrev_b32 v{vT2}, 2, v{vT2}
    v_lshlrev_b32 v{vQO}, 9, v{vT0}
    v_lshl_add_u32 v{vQO}, v{vG}, 4, v{vQO}
    s_waitcnt lgkmcnt(0)
    global_load_dword v{vCtx}, v{vT2}, s[{sCTX}:{sCTX+1}]
    global_load_dwordx4 v[{vE}:{vE+3}], v{vT3}, s[{sBT}:{sBT+1}]
    """)
    stamp()
    for s in range(8):
        A(f"global_load_dwordx4 v[{vQ+4*s}:{vQ+4*s+3}], v{vQO}, s[{sQ}:{sQ+1}] offset:{64*s}")
    for r, p, n in ((rK, sK, KVB), (rV, sV, KVB), (rW, sWS, WS_BYTES if not prof else 16 << 20)):
        A(f"s_mov_b32 s{r}, s{p}\ns_and_b32 s{r+1}, s{p+1}, 0xffff\ns_mov_b32 s{r+2}, {n}\ns_mov_b32 s{r+3}, 0x20000")
    for k in range(4):
        A(f"""
        s_lshl_b32 s{sTmp}, s{sW}, 1
        s_add_u32 s{sTmp}, s{sTmp}, {k>>1}
        s_mul_i32 s{sTmp}, s{sTmp}, s{sQA}
        s_add_u32 s{sTmp}, s{sTmp}, s{sQB}
        s_add_u32 s{sTmp}, s{sTmp}, {k&1}
        s_lshr_b32 s{sTmp2}, s{sTmp}, 4
        s_mul_i32 s{sTmp2}, s{sTmp2}, {SLOTS}
        s_add_u32 s{sTmp2}, s{sTmp2}, s{sSlot}
        s_lshl_b32 s{sTmp2}, s{sTmp2}, 4
        s_and_b32 s{sTmp}, s{sTmp}, 15
        s_add_u32 s{sTmp}, s{sTmp}, s{sTmp2}
        s_lshl_b32 s{sRow+k}, s{sTmp}, 10
        """)
    A(f"""
    v_mov_b32 v{vMLO}, -1
    s_lshr_b32 s{sTmp}, s{sRow}, 7
    s_add_u32 s{sTmp}, s{sTmp}, {ML_OFF}
    v_writelane_b32 v{vMLO}, s{sTmp}, 0
    s_lshr_b32 s{sTmp}, s{sRow+1}, 7
    s_add_u32 s{sTmp}, s{sTmp}, {ML_OFF}
    v_writelane_b32 v{vMLO}, s{sTmp}, 4
    s_lshr_b32 s{sTmp}, s{sRow+2}, 7
    s_add_u32 s{sTmp}, s{sTmp}, {ML_OFF}
    v_writelane_b32 v{vMLO}, s{sTmp}, 8
    s_lshr_b32 s{sTmp}, s{sRow+3}, 7
    s_add_u32 s{sTmp}, s{sTmp}, {ML_OFF}
    v_writelane_b32 v{vMLO}, s{sTmp}, 12
    """)
    nclr = 0
    if one:
        for r in range(4): A(f"v_mov_b32 v{vX+r}, -1")
        for k in range(4):
            A(f"buffer_store_dwordx4 v[{vX}:{vX+3}], v{vRO}, s[{rW}:{rW+3}], s{sRow+k} offen sc1")
        A(f"s_mov_b64 exec, 0x1111\nbuffer_store_dwordx2 v[{vX}:{vX+1}], v{vMLO}, s[{rW}:{rW+3}], 0 offen sc1\ns_mov_b64 exec, -1")
        nclr = 5
    A(f"v_lshrrev_b32 v{vT0}, 5, v{vLane}\nv_and_b32 v{vT1}, 31, v{vLane}")
    for jl in range(4):
        A(f"""
        v_add_u32 v{vT2}, {2*jl}, v{vT0}
        v_lshlrev_b32 v{vT3}, 1, v{vT2}
        v_xor_b32 v{vT3}, v{vT3}, v{vT1}
        v_lshlrev_b32 v{vT2}, s{sRS}, v{vT2}
        v_lshl_add_u32 v{vDO+jl}, v{vT3}, 4, v{vT2}
        """)
        if jl: A(f"v_subrev_u32 v{vDO+jl}, {1024*jl}, v{vDO+jl}")
    A(f"""
    v_and_b32 v{vT0}, 7, v{vQi}
    v_lshlrev_b32 v{vT0}, 1, v{vT0}
    v_lshlrev_b32 v{vT1}, 9, v{vQi}
    v_add_u32 v{vT1}, s{sLB}, v{vT1}
    """)
    for sl in range(4):
        A(f"v_add_u32 v{vT2}, {4*sl}, v{vG}\nv_xor_b32 v{vT2}, v{vT2}, v{vT0}\nv_lshl_add_u32 v{vKA+sl}, v{vT2}, 4, v{vT1}")
    A(f"""
    v_lshrrev_b32 v{vT0}, 2, v{vLane}
    v_and_b32 v{vT1}, 3, v{vLane}
    v_lshlrev_b32 v{vT1}, 3, v{vT1}
    v_lshl_add_u32 v{vT1}, v{vT0}, 9, v{vT1}
    v_add_u32 v{vT1}, s{sLB}, v{vT1}
    v_add_u32 v{vT1}, 8192, v{vT1}
    v_and_b32 v{vT0}, 7, v{vT0}
    """)
    for il in range(8):
        A(f"v_xor_b32 v{vT2}, {il}, v{vT0}\nv_lshl_add_u32 v{vVA+il}, v{vT2}, 5, v{vT1}")
    for i in range(64): A(f"v_mov_b32 v{vO+i}, 0")
    A(f"v_mov_b32 v{vM}, {NEGBIG}\nv_mov_b32 v{vL}, 0\ns_mov_b32 s{sPass}, 8")
    A(f"s_waitcnt vmcnt({8+nclr})")
    stamp()
    A(f"""
    v_cmp_lt_i32 vcc, 0, v{vCtx}
    v_min_i32 v{vCtx}, 0x2000, v{vCtx}
    v_mov_b32 v{vT0}, 0x2000
    v_mov_b32 v{vT1}, {CSC}
    v_cndmask_b32 v{vCtx}, v{vT0}, v{vCtx}, vcc
    v_cndmask_b32 v{vC}, 0, v{vT1}, vcc
    s_cmp_eq_u32 s{sShared}, 1
    v_readfirstlane_b32 s{sTmp}, v{vCtx}
    s_cbranch_scc1 L_sh_setup
    s_sub_i32 s{sTmp}, s{sTmp}, 4095
    s_max_i32 s{sTmp}, s{sTmp}, 0
    s_lshr_b32 s{sTmp}, s{sTmp}, 1
    """)
    A(f"v_lshrrev_b32 v{vT0}, 1, v{vQi}\nv_lshrrev_b32 v{vT1}, 1, v{vG}\nv_sub_u32 v{vT1}, v{vCtx}, v{vT1}\nv_and_b32 v{vT2}, 1, v{vG}")
    for r in range(4):
        A(f"v_lshl_add_u32 v{vT3}, v{vT2}, 2, {r}\nv_cmp_eq_u32 vcc, v{vT3}, v{vT0}\ns_nop 1\nv_cndmask_b32 v{vLim+r}, 0, v{vT1}, vcc")
    A("s_branch L_range")
    A("L_sh_setup:")
    for b in range(1, 8):
        A(f"v_add_u32 v{vT0}, {2048*b}, v{vRO}\nglobal_load_dwordx4 v[{vKF+4*b}:{vKF+4*b+3}], v{vT0}, s[{sBT}:{sBT+1}]")
    for r in range(4):
        A(f"v_lshl_add_u32 v{vT3}, v{vG}, 2, {r}\nv_sub_u32 v{vLim+r}, v{vCtx}, v{vT3}")
    A(f"s_waitcnt vmcnt(0)\nv_mov_b32 v{vT0}, 0")
    for b in range(1, 8):
        for r in range(4):
            A(f"v_xor_b32 v{vT1}, v{vE+r}, v{vKF+4*b+r}\nv_or_b32 v{vT0}, v{vT0}, v{vT1}")
    A(f"""
    v_cmp_ne_u32 vcc, 0, v{vT0}
    s_mov_b32 s{sTmp}, 256
    s_cbranch_vccz L_range
    s_mov_b32 s{sPass}, 0
    """)
    def pass_limits():
        A(f"v_lshrrev_b32 v{vT0}, 1, v{vQi}\nv_cmp_eq_u32 vcc, s{sPass}, v{vT0}")
        for r in range(4):
            A(f"v_lshl_add_u32 v{vT3}, v{vG}, 2, {r}\nv_sub_u32 v{vT3}, v{vCtx}, v{vT3}\nv_cndmask_b32 v{vLim+r}, 0, v{vT3}, vcc")
    pass_limits()
    A("L_range:")
    A(f"""
    s_mul_i32 s{sT0}, s{sKk}, s{sTmp}
    s_add_u32 s{sTend}, s{sT0}, s{sTmp}
    s_mul_hi_u32 s{sT0}, s{sT0}, s{sR}
    s_mul_hi_u32 s{sTend}, s{sTend}, s{sR}
    s_add_u32 s{sT0}, s{sT0}, s{sW}
    s_mov_b32 s{sCnt}, 0
    """)
    def tile_addr():
        A(f"""
        s_lshr_b32 s{sTmp}, s{sT}, s{sJS}
        s_lshr_b32 s{sTmp2}, s{sTmp}, 2
        v_readlane_b32 s{sEn}, v{vE}, s{sTmp2}
        v_readlane_b32 s{sEn+1}, v{vE+1}, s{sTmp2}
        v_readlane_b32 s{sEn+2}, v{vE+2}, s{sTmp2}
        v_readlane_b32 s{sEn+3}, v{vE+3}, s{sTmp2}
        s_and_b32 s{sTmp2}, s{sT}, s{sOM}
        s_lshl_b32 s{sTmp2}, s{sTmp2}, 13
        s_add_u32 s{sTmp2}, s{sTmp2}, s{sOC}
        s_bitcmp1_b32 s{sTmp}, 0
        s_cselect_b32 s{sEn}, s{sEn+1}, s{sEn}
        s_cselect_b32 s{sEn+2}, s{sEn+3}, s{sEn+2}
        s_bitcmp1_b32 s{sTmp}, 1
        s_cselect_b32 s{sEn}, s{sEn+2}, s{sEn}
        s_lshl_b32 s{sOff}, s{sEn}, 16
        s_add_u32 s{sOff}, s{sOff}, s{sTmp2}
        s_add_u32 s{sOff2}, s{sOff}, s{sHI}
        s_lshl_b32 s{sPosN}, s{sT}, s{sPS}
        s_add_u32 s{sPosN}, s{sPosN}, s{sPB}
        """)
    def issue(isv):
        r = rV if isv else rK
        for h in range(2):
            A(f"s_add_u32 m0, s{sLB}, {isv*8192 + h*4096}\ns_nop 0")
            for jl in range(4):
                A(f"buffer_load_dwordx4 v{vDO+jl}, s[{r}:{r+3}], s{sOff2 if h else sOff} offen offset:{1024*jl} {pol} lds")
    A("L_pass:")
    A(f"s_mov_b32 s{sT}, s{sT0}\ns_cmp_lt_u32 s{sT}, s{sTend}\ns_cselect_b32 s{sNext}, 1, 0\ns_cbranch_scc0 L_first_done")
    tile_addr(); issue(0); issue(1)
    A("L_first_done:")
    if one:
        A(f"""
        s_cmp_lg_u32 s{sCnt}, 0
        s_cbranch_scc1 L_hs_done
        s_mov_b32 s{sCnt}, 1
        s_cmp_eq_u32 s{sNext}, 0
        s_cbranch_scc1 L_hs_w0
        s_waitcnt vmcnt(16)
        s_branch L_hs_bar
        L_hs_w0:
        s_waitcnt vmcnt(0)
        L_hs_bar:
        s_barrier
        s_cmp_lg_u32 s{sW}, 0
        s_cbranch_scc1 L_hs_done
        s_and_b32 s{sTmp}, s2, 3
        s_lshl_b32 s{sTmp}, s{sTmp}, 6
        v_mov_b32 v{vT0}, s{sTmp}
        v_mov_b32 v{vT1}, 1
        s_mov_b64 exec, 1
        global_atomic_add v{vT0}, v{vT1}, s[{sDBG}:{sDBG+1}] sc1
        s_mov_b64 exec, -1
        L_hs_done:
        """)
    A(f"s_cmp_eq_u32 s{sNext}, 0\ns_cbranch_scc1 L_pass_end")
    A(".p2align 6\nL_loop:")
    A(f"s_mov_b32 s{sPos}, s{sPosN}\ns_add_u32 s{sT}, s{sT}, 4\ns_cmp_lt_u32 s{sT}, s{sTend}\ns_cselect_b32 s{sNext}, 1, 0")
    A("s_cbranch_scc0 L_na")
    tile_addr()
    A("L_na:")
    for r in range(4):
        A(f"v_cmp_lt_i32 s[{sMk+2*r}:{sMk+2*r+1}], s{sPos}, v{vLim+r}")
    A(f"v_mov_b32 v{vT0}, s{sNinf}")
    A("s_waitcnt vmcnt(8)")
    for s in range(8):
        A(f"ds_read_b128 v[{vKF+4*s}:{vKF+4*s+3}], v{vKA+(s&3)} offset:{256*(s>>2)}")
    for r in range(4):
        A(f"v_cndmask_b32 v{vB+r}, v{vT0}, 0, s[{sMk+2*r}:{sMk+2*r+1}]")
    A(f"s_cmp_eq_u32 s{sNext}, 0\ns_waitcnt lgkmcnt(0)\ns_cbranch_scc1 L_nk")
    issue(0)
    A("L_nk:")
    for s in range(8):
        c = "0" if s == 0 else f"v[{vS}:{vS+3}]"
        A(f"v_mfma_f32_16x16x32_bf16 v[{vS}:{vS+3}], v[{vKF+4*s}:{vKF+4*s+3}], v[{vQ+4*s}:{vQ+4*s+3}], {c}")
    A("s_nop 7")
    for r in range(4):
        A(f"v_fma_f32 v{vX+r}, v{vS+r}, v{vC}, v{vB+r}")
    A(f"""
    v_max3_f32 v{vT0}, v{vX}, v{vX+1}, v{vX+2}
    v_max3_f32 v{vT0}, v{vT0}, v{vX+3}, v{vM}
    v_mov_b32 v{vT1}, v{vT0}
    s_nop 1
    v_permlane32_swap_b32 v{vT0}, v{vT1}
    v_max_f32 v{vT0}, v{vT0}, v{vT1}
    v_mov_b32 v{vT1}, v{vT0}
    s_nop 1
    v_permlane16_swap_b32 v{vT0}, v{vT1}
    v_max_f32 v{vT0}, v{vT0}, v{vT1}
    v_sub_f32 v{vAl}, v{vM}, v{vT0}
    v_cmp_neq_f32 vcc, v{vM}, v{vT0}
    v_mov_b32 v{vM}, v{vT0}
    """)
    for r in range(4): A(f"v_sub_f32 v{vX+r}, v{vX+r}, v{vT0}")
    A(f"v_exp_f32 v{vAl}, v{vAl}")
    for r in range(4): A(f"v_exp_f32 v{vX+r}, v{vX+r}")
    A("s_cbranch_vccz L_nr")
    for i in range(32):
        A(f"v_pk_mul_f32 v[{vO+2*i}:{vO+2*i+1}], v[{vO+2*i}:{vO+2*i+1}], v[{vAl}:{vAl+1}] op_sel_hi:[1,0]")
    A("L_nr:")
    A(f"""
    v_fma_f32 v{vL}, v{vL}, v{vAl}, v{vX}
    v_add_f32 v{vT0}, v{vX+1}, v{vX+2}
    v_add_f32 v{vL}, v{vL}, v{vX+3}
    v_cvt_pk_bf16_f32 v{vP}, v{vX}, v{vX+1}
    v_cvt_pk_bf16_f32 v{vP+1}, v{vX+2}, v{vX+3}
    v_add_f32 v{vL}, v{vL}, v{vT0}
    s_cmp_eq_u32 s{sNext}, 0
    s_cbranch_scc1 L_wl
    s_waitcnt vmcnt(8)
    s_branch L_wd
    L_wl:
    s_waitcnt vmcnt(0)
    L_wd:
    """)
    for i in range(16):
        A(f"ds_read_b64_tr_b16 v[{vVF+2*i}:{vVF+2*i+1}], v{vVA+(i&7)} offset:{256*(i>>3)}")
    A("s_waitcnt lgkmcnt(0)\ns_cbranch_scc1 L_nv")
    issue(1)
    A("L_nv:")
    for i in range(16):
        A(f"v_mfma_f32_16x16x16_bf16 v[{vO+4*i}:{vO+4*i+3}], v[{vVF+2*i}:{vVF+2*i+1}], v[{vP}:{vP+1}], v[{vO+4*i}:{vO+4*i+3}]")
    A(f"s_cmp_eq_u32 s{sNext}, 0\ns_cbranch_scc0 L_loop")
    A("L_pass_end:")
    A(f"""
    s_add_u32 s{sPass}, s{sPass}, 1
    s_cmp_ge_u32 s{sPass}, 8
    s_cbranch_scc1 L_done
    s_lshl_b32 s{sTmp}, s{sPass}, 11
    v_add_u32 v{vT0}, s{sTmp}, v{vRO}
    global_load_dwordx4 v[{vE}:{vE+3}], v{vT0}, s[{sBT}:{sBT+1}]
    """)
    pass_limits()
    A("s_waitcnt vmcnt(0)\ns_branch L_pass")
    A("L_done:")
    stamp()
    vCn = vE
    if one:
        A(f"v_and_b32 v{vT2}, 3, v{vLane}\nv_lshlrev_b32 v{vT2}, 6, v{vT2}\nglobal_load_dword v{vCn}, v{vT2}, s[{sDBG}:{sDBG+1}] sc1")
    A(f"""
    v_mov_b32 v{vT1}, v{vL}
    v_mul_u32_u24 v{vT3}, 1040, v{vQi}
    v_lshl_add_u32 v{vT3}, v{vG}, 4, v{vT3}
    v_permlane32_swap_b32 v{vL}, v{vT1}
    v_add_u32 v{vT3}, s{sLB}, v{vT3}
    v_add_f32 v{vL}, v{vL}, v{vT1}
    v_mov_b32 v{vT1}, v{vL}
    s_lshl_b32 s{sTmp}, s{sW}, 3
    s_add_u32 s{sTmp}, s{sTmp}, {MLL}
    v_permlane16_swap_b32 v{vL}, v{vT1}
    v_lshlrev_b32 v{vT0}, 5, v{vQi}
    v_add_u32 v{vT0}, s{sTmp}, v{vT0}
    v_mov_b32 v{vAl}, v{vM}
    v_add_f32 v{vAl+1}, v{vL}, v{vT1}
    s_waitcnt vmcnt({1 if one else 0})
    """)
    for i in range(16):
        A(f"ds_write_b128 v{vT3}, v[{vO+4*i}:{vO+4*i+3}] offset:{64*i}")
    A(f"ds_write_b64 v{vT0}, v[{vAl}:{vAl+1}]")
    A(f"""
    s_lshl_b32 s{sTmp}, s{sW}, 7
    s_add_u32 s{sTmp}, s{sTmp}, {MLL}
    v_and_b32 v{vT0}, 15, v{vLane}
    v_lshlrev_b32 v{vT0}, 3, v{vT0}
    v_add_u32 v{vT0}, s{sTmp}, v{vT0}
    s_mul_i32 s{sTmp}, s{sW}, {4*1040}
    v_add_u32 v{vT3}, s{sTmp}, v{vRO}
    s_waitcnt lgkmcnt(0)
    s_barrier
    ds_read_b64 v[{vAl}:{vAl+1}], v{vT0}
    """)
    for k in range(4):
        for w in range(4):
            r = vO + 16*k + 4*w
            A(f"ds_read_b128 v[{r}:{r+3}], v{vT3} offset:{w*WSTRIDE + k*1040}")
    A(f"""
    s_waitcnt lgkmcnt(15)
    s_nop 0
    v_max_f32_dpp v{vT0}, v{vAl}, v{vAl} quad_perm:[1,0,3,2] row_mask:0xf bank_mask:0xf
    s_nop 1
    v_max_f32_dpp v{vX}, v{vT0}, v{vT0} quad_perm:[2,3,0,1] row_mask:0xf bank_mask:0xf
    v_sub_f32 v{vT0}, v{vAl}, v{vX}
    v_exp_f32 v{vT0}, v{vT0}
    s_nop 0
    v_mul_f32 v{vT1}, v{vT0}, v{vAl+1}
    """)
    for j in range(16): A(f"v_readlane_b32 s{sF+j}, v{vT0}, {j}")
    A(f"""
    v_add_f32_dpp v{vT2}, v{vT1}, v{vT1} quad_perm:[1,0,3,2] row_mask:0xf bank_mask:0xf
    s_nop 1
    v_add_f32_dpp v{vX+1}, v{vT2}, v{vT2} quad_perm:[2,3,0,1] row_mask:0xf bank_mask:0xf
    """)
    st = "sc1" if one else ""
    for k in range(4):
        r = vO + 16*k
        A(f"s_waitcnt lgkmcnt({12-4*k})")
        for j in range(4): A(f"v_mul_f32 v{r+j}, s{sF+4*k}, v{r+j}")
        for w in range(1, 4):
            for j in range(4): A(f"v_fmac_f32 v{r+j}, s{sF+4*k+w}, v{r+4*w+j}")
        A(f"buffer_store_dwordx4 v[{r}:{r+3}], v{vRO}, s[{rW}:{rW+3}], s{sRow+k} offen {st}")
    A(f"s_mov_b64 exec, 0x1111\nbuffer_store_dwordx2 v[{vX}:{vX+1}], v{vMLO}, s[{rW}:{rW+3}], 0 offen {st}\ns_mov_b64 exec, -1")
    stamp()

    def consumer(poll):
        vD = vQ
        vML = vKF
        vA0, vA3, vA4, vM0, vM3, vM4 = vVF, vVF+1, vVF+2, vVF+3, vVF+4, vVF+5
        packed = 0
        for b in range(8): packed |= (NSH + NB[b]) << (8*b)
        ld = "sc1" if poll else ""
        A(f"""
        s_lshr_b32 s{sB}, s2, 5
        s_lshl_b32 s{sTmp}, s{sB}, 3
        s_mov_b32 s{sF}, {packed & 0xffffffff}
        s_mov_b32 s{sF+1}, {packed >> 32}
        s_lshr_b64 s[{sF}:{sF+1}], s[{sF}:{sF+1}], s{sTmp}
        s_and_b32 s{sF}, s{sF}, 0xff
        s_mul_i32 s{sTmp}, s{sB}, {SLOTS*16}
        s_bfe_u32 s{sTmp2}, s2, 0x40001
        s_add_u32 s{sTmp}, s{sTmp}, s{sTmp2}
        v_lshrrev_b32 v{vT0}, 3, v{vLane}
        v_lshl_add_u32 v{vT1}, v{vT0}, 4, s{sTmp}
        s_and_b32 s{sTmp}, s2, 1
        s_lshl_b32 s{sTmp}, s{sTmp}, 2
        s_add_u32 s{sTmp}, s{sTmp}, s{sW}
        s_lshl_b32 s{sF+1}, s{sTmp}, 7
        v_and_b32 v{vT2}, 7, v{vLane}
        v_lshl_add_u32 v{vT2}, v{vT2}, 4, s{sF+1}
        v_lshl_add_u32 v{vA0}, v{vT1}, 10, v{vT2}
        v_lshlrev_b32 v{vM0}, 3, v{vT1}
        v_add_u32 v{vM0}, {ML_OFF}, v{vM0}
        v_add_u32 v{vT1}, 24, v{vT0}
        v_cmp_gt_u32 s[{sMk}:{sMk+1}], s{sF}, v{vT1}
        v_add_u32 v{vT1}, 32, v{vT0}
        v_cmp_gt_u32 s[{sMk+2}:{sMk+3}], s{sF}, v{vT1}
        v_add_u32 v{vA3}, {3*131072}, v{vA0}
        v_add_u32 v{vA4}, {4*131072}, v{vA0}
        v_add_u32 v{vM3}, {3*1024}, v{vM0}
        v_add_u32 v{vM4}, {4*1024}, v{vM0}
        v_cndmask_b32 v{vA3}, v{vA0}, v{vA3}, s[{sMk}:{sMk+1}]
        v_cndmask_b32 v{vM3}, v{vM0}, v{vM3}, s[{sMk}:{sMk+1}]
        v_cndmask_b32 v{vA4}, v{vA0}, v{vA4}, s[{sMk+2}:{sMk+3}]
        v_cndmask_b32 v{vM4}, v{vM0}, v{vM4}, s[{sMk+2}:{sMk+3}]
        s_mov_b32 s{sF+2}, 131072
        s_mov_b32 s{sF+3}, 262144
        s_mov_b32 s{sCnt}, 0
        """)
        if poll:
            A(f"""
            s_waitcnt vmcnt(5)
            L_cpoll:
            v_cmp_gt_u32 vcc, 64, v{vCn}
            s_cbranch_vccz L_poll
            s_add_u32 s{sCnt}, s{sCnt}, 1
            s_cmp_ge_u32 s{sCnt}, 0x10000
            s_cbranch_scc1 L_poll
            s_sleep 4
            v_and_b32 v{vT2}, 3, v{vLane}
            v_lshlrev_b32 v{vT2}, 6, v{vT2}
            global_load_dword v{vCn}, v{vT2}, s[{sDBG}:{sDBG+1}] sc1
            s_waitcnt vmcnt(0)
            s_branch L_cpoll
            L_poll:
            """)
        addr = [(vA0, "0", vM0, 0), (vA0, f"s{sF+2}", vM0, 1024), (vA0, f"s{sF+3}", vM0, 2048), (vA3, "0", vM3, 0), (vA4, "0", vM4, 0)]
        for k, (a, so, m, mo) in enumerate(addr):
            A(f"buffer_load_dwordx2 v[{vML+2*k}:{vML+2*k+1}], v{m}, s[{rW}:{rW+3}], 0 offen offset:{mo} {ld}")
        for k, (a, so, m, mo) in enumerate(addr):
            A(f"buffer_load_dwordx4 v[{vD+4*k}:{vD+4*k+3}], v{a}, s[{rW}:{rW+3}], {so} offen {ld}")
        A("s_waitcnt vmcnt(0)")
        if poll:
            regs = [vML+i for i in range(10)] + [vD+i for i in range(20)]
            A(f"v_max3_u32 v{vT0}, v{regs[0]}, v{regs[1]}, v{regs[2]}\nv_max3_u32 v{vT1}, v{regs[3]}, v{regs[4]}, v{regs[5]}")
            i = 6; t = 0
            while i < 30:
                A(f"v_max3_u32 v{vT0+t}, v{vT0+t}, v{regs[i]}, v{regs[i+1]}"); i += 2; t ^= 1
            A(f"""
            v_max_u32 v{vT0}, v{vT0}, v{vT1}
            v_cmp_eq_u32 vcc, -1, v{vT0}
            s_cbranch_vccz L_got
            s_add_u32 s{sCnt}, s{sCnt}, 1
            s_cmp_ge_u32 s{sCnt}, 0x10000
            s_cbranch_scc1 L_got
            s_sleep {sleep}
            s_branch L_poll
            L_got:
            """)
        stamp()
        A(f"""
        v_mov_b32 v{vT3}, {NEGBIG}
        v_cndmask_b32 v{vML+6}, v{vT3}, v{vML+6}, s[{sMk}:{sMk+1}]
        v_cndmask_b32 v{vML+8}, v{vT3}, v{vML+8}, s[{sMk+2}:{sMk+3}]
        v_max3_f32 v{vT0}, v{vML}, v{vML+2}, v{vML+4}
        v_max3_f32 v{vT0}, v{vT0}, v{vML+6}, v{vML+8}
        s_nop 1
        v_max_f32_dpp v{vT0}, v{vT0}, v{vT0} row_ror:8 row_mask:0xf bank_mask:0xf
        v_mov_b32 v{vT1}, v{vT0}
        s_nop 1
        v_permlane32_swap_b32 v{vT0}, v{vT1}
        v_max_f32 v{vT0}, v{vT0}, v{vT1}
        v_mov_b32 v{vT1}, v{vT0}
        s_nop 1
        v_permlane16_swap_b32 v{vT0}, v{vT1}
        v_max_f32 v{vT0}, v{vT0}, v{vT1}
        """)
        for k in range(5): A(f"v_sub_f32 v{vML+2*k}, v{vML+2*k}, v{vT0}")
        for k in range(5): A(f"v_exp_f32 v{vML+2*k}, v{vML+2*k}")
        vAc = vO
        for j in range(4): A(f"v_mul_f32 v{vAc+j}, v{vML}, v{vD+j}")
        A(f"v_mul_f32 v{vAc+4}, v{vML}, v{vML+1}")
        for k in range(1, 5):
            for j in range(4): A(f"v_fmac_f32 v{vAc+j}, v{vML+2*k}, v{vD+4*k+j}")
            A(f"v_fmac_f32 v{vAc+4}, v{vML+2*k}, v{vML+2*k+1}")
        for j in range(5): A(f"v_add_f32_dpp v{vAc+j}, v{vAc+j}, v{vAc+j} row_ror:8 row_mask:0xf bank_mask:0xf")
        for op in ("v_permlane32_swap_b32", "v_permlane16_swap_b32"):
            for j in range(5): A(f"v_mov_b32 v{vAc+8+j}, v{vAc+j}")
            for j in range(5): A(f"{op} v{vAc+j}, v{vAc+8+j}")
            for j in range(5): A(f"v_add_f32 v{vAc+j}, v{vAc+j}, v{vAc+8+j}")
        A(f"""
        v_rcp_f32 v{vT0}, v{vAc+4}
        s_lshr_b32 s{sTmp}, s2, 1
        s_lshl_b32 s{sTmp}, s{sTmp}, 9
        s_lshr_b32 s{sTmp2}, s{sF+1}, 1
        s_add_u32 s{sTmp}, s{sTmp}, s{sTmp2}
        v_lshl_add_u32 v{vT1}, v{vLane}, 3, s{sTmp}
        """)
        for j in range(4): A(f"v_mul_f32 v{vAc+j}, v{vAc+j}, v{vT0}")
        A(f"""
        v_cvt_pk_bf16_f32 v{vAc}, v{vAc}, v{vAc+1}
        v_cvt_pk_bf16_f32 v{vAc+1}, v{vAc+2}, v{vAc+3}
        s_mov_b64 exec, 0xff
        global_store_dwordx2 v{vT1}, v[{vAc}:{vAc+1}], s[{sOUT}:{sOUT+1}]
        """)
    if one:
        consumer(True)
    if prof:
        A("s_mov_b64 exec, -1\ns_waitcnt vmcnt(0)")
        stamp()
        A(f"""
        s_getreg_b32 s{sTmp}, hwreg(HW_REG_XCC_ID)
        v_writelane_b32 v{vPf}, s{sTmp}, 62
        v_writelane_b32 v{vPf}, s{sCnt}, 63
        s_lshl_b32 s{sTmp}, s2, 2
        s_add_u32 s{sTmp}, s{sTmp}, s{sW}
        s_lshl_b32 s{sTmp}, s{sTmp}, 8
        s_add_u32 s{sTmp}, s{sTmp}, {PROF_OFF}
        v_lshlrev_b32 v{vT0}, 2, v{vLane}
        buffer_store_dword v{vPf}, v{vT0}, s[{rW}:{rW+3}], s{sTmp} offen
        """)
    A("L_end:\ns_endpgm")
    def kd(name, nv):
        A(f""".section .rodata,"a"
.p2align 6
.amdhsa_kernel {name}
.amdhsa_next_free_vgpr {nv}
.amdhsa_next_free_sgpr {NS}
.amdhsa_accum_offset {(nv+3)//4*4}
.amdhsa_group_segment_fixed_size 0
.amdhsa_kernarg_size 64
.amdhsa_user_sgpr_count 2
.amdhsa_user_sgpr_kernarg_segment_ptr 1
.amdhsa_system_sgpr_workgroup_id_x 1
.end_amdhsa_kernel""")
    if not one:
        prof_save = prof
        A(f".globl combine_kernel\n.p2align 8\n.type combine_kernel,@function\ncombine_kernel:")
        A(f"""
        s_cmp_ge_u32 s2, {NWG}
        s_cbranch_scc1 L_end2
        s_load_dwordx16 s[4:19], s[0:1], 0
        v_lshrrev_b32 v{vT0}, 6, v0
        v_and_b32 v{vLane}, 63, v0
        v_readfirstlane_b32 s{sW}, v{vT0}
        s_waitcnt lgkmcnt(0)
        s_mov_b32 s{rW}, s{sWS}
        s_and_b32 s{rW+1}, s{sWS+1}, 0xffff
        s_mov_b32 s{rW+2}, {WS_BYTES}
        s_mov_b32 s{rW+3}, 0x20000
        """)
        assert not prof
        consumer(False)
        A("L_end2:\ns_endpgm")
    kd(KN, NV)
    if not one: kd("combine_kernel", NV)
    return A.text()

if __name__ == "__main__":
    out = sys.argv[1]
    kw = {}
    for kv in sys.argv[2:]:
        k, v = kv.split("=")
        if "," in v: kw[k] = tuple(int(x) for x in v.split(","))
        else: kw[k] = int(v) if v.lstrip("-").isdigit() else v.replace("+", " ")
    open(out, "w").write(gen(**kw))
```

```python
import sys
NAME = "standalone__paged_block_table_kv_radixattention__sampling"
KN = NAME + "_kernel"

class Asm:
    def __init__(self):
        self.L = []
    def __call__(self, s):
        for line in s.strip("\n").split("\n"):
            line = line.strip()
            if not line: continue
            self.L.append(line if line.endswith(":") or line.startswith(".") or line.startswith(";") else "    " + line)
    def text(self): return "\n".join(self.L) + "\n"

HEADER = """; Kernarg layout for this problem (64 bytes, ptrs only, base s[0:1]):
"""

def gen(mode="1k", prof=0, NSH=5, NB=(31, 28, 24, 20, 34, 30, 26, 23), pol="nt", sleep=2, diag=None, diagwg=-1, diagmul=10):
    NWG = 256
    NSHWG = 8 * NSH
    assert NSHWG + sum(NB) == NWG
    SLOTS = 40
    assert NSH + max(NB) <= SLOTS and NSH + min(NB) >= 24
    ML_OFF = 8 * SLOTS * 16 * 1024
    WS_BYTES = ML_OFF + 8 * SLOTS * 16 * 8
    PROF_OFF = 8 << 20
    WSTRIDE = 16896
    MLL = 4 * WSTRIDE
    LDS = MLL + 512
    KVB = 2304 * 65536
    NEGBIG = 0xFF000000
    CSC = 0x3DB8AA3B
    one = mode == "1k"
    if diag is not None: prof = 2
    A = Asm()
    vLane, vG, vQi = 0, 1, 2
    vT0, vT1, vT2, vT3 = 3, 4, 5, 6
    vCtx, vC, vM, vL = 7, 8, 9, 10
    vAl = 12
    vP = 14
    vS = 16
    vB = 20
    vLim = 24
    vE = 28
    vKA = 32
    vDO = 36
    vVA = 40
    vX = 48
    vPf = 52
    vQO = 53
    vMLO = 54
    vRO = 55
    vQ = 56
    vKF = 88
    vVF = 120
    vO = 152
    NV = 216
    sQ, sK, sV, sBT, sCTX, sOUT, sDBG, sWS = 4, 6, 8, 10, 12, 14, 16, 18
    rK, rV, rW = 20, 24, 28
    sW = 32; sB = 33; sKk = 34; sR = 35; sSlot = 36; sShared = 37
    sRS = 38; sHI = 39
    sEn = 40
    sT = 45; sTend = 46; sJS = 47; sOM = 48; sOC = 49; sPS = 50; sPB = 51
    sPos = 52; sPosN = 53; sOff = 54; sOff2 = 55; sLB = 56
    sQA = 57; sQB = 58; sTmp = 59; sTmp2 = 60; sPass = 61; sT0 = 62; sNext = 63
    sRow = 64
    sMk = 68
    sF = 76
    sSt = 92
    sCnt = 94; sNinf = 95; sIt = 96
    NS = 100
    pidx = [0]
    def stamp():
        if not prof: return
        A(f"s_memrealtime s[{sSt}:{sSt+1}]\ns_waitcnt lgkmcnt(0)\nv_writelane_b32 v{vPf}, s{sSt}, {pidx[0]}")
        pidx[0] += 1

    A(HEADER)
    if prof: A("; prof=1")
    if one:
        A(f"; @launch grid=({NWG},1,1) block=(256,1,1) lds={LDS}")
    else:
        A(f"; @launch kernel={KN} grid=({NWG},1,1) block=(256,1,1) lds={LDS}")
        A(f"; @launch kernel=combine_kernel grid=({NWG},1,1) block=(256,1,1) lds=0")
    A('.amdgcn_target "amdgcn-amd-amdhsa--gfx950"\n.text')
    A(f".globl {KN}\n.p2align 8\n.type {KN},@function\n{KN}:")
    A(f"s_cmp_ge_u32 s2, {NWG}\ns_cbranch_scc1 L_end")
    if prof: A(f"v_mov_b32 v{vPf}, 0\ns_mov_b32 s{sIt}, 16")
    stamp()
    A("s_load_dwordx16 s[4:19], s[0:1], 0")
    A(f"""
    v_lshrrev_b32 v{vT0}, 6, v0
    v_and_b32 v{vLane}, 63, v0
    v_readfirstlane_b32 s{sW}, v{vT0}
    v_lshrrev_b32 v{vG}, 4, v{vLane}
    v_and_b32 v{vQi}, 15, v{vLane}
    s_mov_b32 s{sNinf}, 0xff800000
    s_cmp_lt_u32 s2, {NSHWG}
    s_cbranch_scc1 L_role_sh
    """)
    cum = [0]
    for n in NB: cum.append(cum[-1] + n)
    A(f"s_sub_u32 s{sTmp}, s2, {NSHWG}\ns_mov_b32 s{sB}, 0\ns_mov_b32 s{sKk}, 0\ns_mov_b32 s{sR}, {(1<<32)//NB[0]+1}")
    for b in range(1, 8):
        A(f"s_cmp_ge_u32 s{sTmp}, {cum[b]}\ns_cselect_b32 s{sB}, {b}, s{sB}\ns_cselect_b32 s{sKk}, {cum[b]}, s{sKk}\ns_cselect_b32 s{sR}, {(1<<32)//NB[b]+1}, s{sR}")
    A(f"""
    s_sub_u32 s{sKk}, s{sTmp}, s{sKk}
    s_add_u32 s{sSlot}, s{sKk}, {NSH}
    s_mov_b32 s{sShared}, 0
    s_mov_b32 s{sRS}, 9
    s_mov_b32 s{sJS}, 3
    s_mov_b32 s{sOM}, 7
    s_mov_b32 s{sOC}, 0
    s_mov_b32 s{sPS}, 1
    s_mov_b32 s{sPB}, 4096
    s_mov_b32 s{sQA}, 2
    s_lshl_b32 s{sQB}, s{sB}, 4
    s_lshl_b32 s{sTmp2}, s{sB}, 11
    s_add_u32 s{sTmp2}, s{sTmp2}, 1024
    s_branch L_role_done
    L_role_sh:
    s_and_b32 s{sB}, s2, 7
    s_lshr_b32 s{sKk}, s2, 3
    s_mov_b32 s{sR}, {(1<<32)//NSH+1}
    s_mov_b32 s{sSlot}, s{sKk}
    s_mov_b32 s{sShared}, 1
    s_mov_b32 s{sRS}, 12
    s_mov_b32 s{sJS}, 0
    s_mov_b32 s{sOM}, 0
    s_lshl_b32 s{sOC}, s{sB}, 9
    s_mov_b32 s{sPS}, 4
    s_mov_b32 s{sPB}, 0
    s_mov_b32 s{sQA}, 16
    s_lshl_b32 s{sQB}, s{sB}, 1
    s_mov_b32 s{sTmp2}, 0
    L_role_done:
    s_lshl_b32 s{sHI}, 8, s{sRS}
    s_mul_i32 s{sLB}, s{sW}, {WSTRIDE}
    v_lshlrev_b32 v{vRO}, 4, v{vLane}
    v_add_u32 v{vT3}, s{sTmp2}, v{vRO}
    v_lshrrev_b32 v{vT0}, 1, v{vQi}
    v_mul_u32_u24 v{vT0}, s{sQA}, v{vT0}
    v_and_b32 v{vT1}, 1, v{vQi}
    v_add3_u32 v{vT0}, v{vT0}, v{vT1}, s{sQB}
    v_lshrrev_b32 v{vT2}, 4, v{vT0}
    v_lshlrev_b32 v{vT2}, 2, v{vT2}
    v_lshlrev_b32 v{vQO}, 9, v{vT0}
    v_lshl_add_u32 v{vQO}, v{vG}, 4, v{vQO}
    s_waitcnt lgkmcnt(0)
    global_load_dword v{vCtx}, v{vT2}, s[{sCTX}:{sCTX+1}]
    global_load_dwordx4 v[{vE}:{vE+3}], v{vT3}, s[{sBT}:{sBT+1}]
    """)
    stamp()
    for s in range(8):
        A(f"global_load_dwordx4 v[{vQ+4*s}:{vQ+4*s+3}], v{vQO}, s[{sQ}:{sQ+1}] offset:{64*s}")
    for r, p, n in ((rK, sK, KVB), (rV, sV, KVB), (rW, sWS, WS_BYTES if not prof else 16 << 20)):
        A(f"s_mov_b32 s{r}, s{p}\ns_and_b32 s{r+1}, s{p+1}, 0xffff\ns_mov_b32 s{r+2}, {n}\ns_mov_b32 s{r+3}, 0x20000")
    for k in range(4):
        A(f"""
        s_lshl_b32 s{sTmp}, s{sW}, 1
        s_add_u32 s{sTmp}, s{sTmp}, {k>>1}
        s_mul_i32 s{sTmp}, s{sTmp}, s{sQA}
        s_add_u32 s{sTmp}, s{sTmp}, s{sQB}
        s_add_u32 s{sTmp}, s{sTmp}, {k&1}
        s_lshr_b32 s{sTmp2}, s{sTmp}, 4
        s_mul_i32 s{sTmp2}, s{sTmp2}, {SLOTS}
        s_add_u32 s{sTmp2}, s{sTmp2}, s{sSlot}
        s_lshl_b32 s{sTmp2}, s{sTmp2}, 4
        s_and_b32 s{sTmp}, s{sTmp}, 15
        s_add_u32 s{sTmp}, s{sTmp}, s{sTmp2}
        s_lshl_b32 s{sRow+k}, s{sTmp}, 10
        """)
    A(f"""
    v_mov_b32 v{vMLO}, -1
    s_lshr_b32 s{sTmp}, s{sRow}, 7
    s_add_u32 s{sTmp}, s{sTmp}, {ML_OFF}
    v_writelane_b32 v{vMLO}, s{sTmp}, 0
    s_lshr_b32 s{sTmp}, s{sRow+1}, 7
    s_add_u32 s{sTmp}, s{sTmp}, {ML_OFF}
    v_writelane_b32 v{vMLO}, s{sTmp}, 4
    s_lshr_b32 s{sTmp}, s{sRow+2}, 7
    s_add_u32 s{sTmp}, s{sTmp}, {ML_OFF}
    v_writelane_b32 v{vMLO}, s{sTmp}, 8
    s_lshr_b32 s{sTmp}, s{sRow+3}, 7
    s_add_u32 s{sTmp}, s{sTmp}, {ML_OFF}
    v_writelane_b32 v{vMLO}, s{sTmp}, 12
    """)
    nclr = 0
    if one:
        for r in range(4): A(f"v_mov_b32 v{vX+r}, -1")
        for k in range(4):
            A(f"buffer_store_dwordx4 v[{vX}:{vX+3}], v{vRO}, s[{rW}:{rW+3}], s{sRow+k} offen sc1")
        A(f"s_mov_b64 exec, 0x1111\nbuffer_store_dwordx2 v[{vX}:{vX+1}], v{vMLO}, s[{rW}:{rW+3}], 0 offen sc1\ns_mov_b64 exec, -1")
        nclr = 5
    A(f"v_lshrrev_b32 v{vT0}, 5, v{vLane}\nv_and_b32 v{vT1}, 31, v{vLane}")
    for jl in range(4):
        A(f"""
        v_add_u32 v{vT2}, {2*jl}, v{vT0}
        v_lshlrev_b32 v{vT3}, 1, v{vT2}
        v_xor_b32 v{vT3}, v{vT3}, v{vT1}
        v_lshlrev_b32 v{vT2}, s{sRS}, v{vT2}
        v_lshl_add_u32 v{vDO+jl}, v{vT3}, 4, v{vT2}
        """)
        if jl: A(f"v_subrev_u32 v{vDO+jl}, {1024*jl}, v{vDO+jl}")
    A(f"""
    v_and_b32 v{vT0}, 7, v{vQi}
    v_lshlrev_b32 v{vT0}, 1, v{vT0}
    v_lshlrev_b32 v{vT1}, 9, v{vQi}
    v_add_u32 v{vT1}, s{sLB}, v{vT1}
    """)
    for sl in range(4):
        A(f"v_add_u32 v{vT2}, {4*sl}, v{vG}\nv_xor_b32 v{vT2}, v{vT2}, v{vT0}\nv_lshl_add_u32 v{vKA+sl}, v{vT2}, 4, v{vT1}")
    A(f"""
    v_lshrrev_b32 v{vT0}, 2, v{vLane}
    v_and_b32 v{vT1}, 3, v{vLane}
    v_lshlrev_b32 v{vT1}, 3, v{vT1}
    v_lshl_add_u32 v{vT1}, v{vT0}, 9, v{vT1}
    v_add_u32 v{vT1}, s{sLB}, v{vT1}
    v_add_u32 v{vT1}, 8192, v{vT1}
    v_and_b32 v{vT0}, 7, v{vT0}
    """)
    for il in range(8):
        A(f"v_xor_b32 v{vT2}, {il}, v{vT0}\nv_lshl_add_u32 v{vVA+il}, v{vT2}, 5, v{vT1}")
    for i in range(64): A(f"v_mov_b32 v{vO+i}, 0")
    A(f"v_mov_b32 v{vM}, {NEGBIG}\nv_mov_b32 v{vL}, 0\ns_mov_b32 s{sPass}, 8")
    A(f"s_waitcnt vmcnt({8+nclr})")
    stamp()
    A(f"""
    v_cmp_lt_i32 vcc, 0, v{vCtx}
    v_min_i32 v{vCtx}, 0x2000, v{vCtx}
    v_mov_b32 v{vT0}, 0x2000
    v_mov_b32 v{vT1}, {CSC}
    v_cndmask_b32 v{vCtx}, v{vT0}, v{vCtx}, vcc
    v_cndmask_b32 v{vC}, 0, v{vT1}, vcc
    s_cmp_eq_u32 s{sShared}, 1
    v_readfirstlane_b32 s{sTmp}, v{vCtx}
    s_cbranch_scc1 L_sh_setup
    s_sub_i32 s{sTmp}, s{sTmp}, 4095
    s_max_i32 s{sTmp}, s{sTmp}, 0
    s_lshr_b32 s{sTmp}, s{sTmp}, 1
    """)
    A(f"v_lshrrev_b32 v{vT0}, 1, v{vQi}\nv_lshrrev_b32 v{vT1}, 1, v{vG}\nv_sub_u32 v{vT1}, v{vCtx}, v{vT1}\nv_and_b32 v{vT2}, 1, v{vG}")
    for r in range(4):
        A(f"v_lshl_add_u32 v{vT3}, v{vT2}, 2, {r}\nv_cmp_eq_u32 vcc, v{vT3}, v{vT0}\ns_nop 1\nv_cndmask_b32 v{vLim+r}, 0, v{vT1}, vcc")
    A("s_branch L_range")
    A("L_sh_setup:")
    for b in range(1, 8):
        A(f"v_add_u32 v{vT0}, {2048*b}, v{vRO}\nglobal_load_dwordx4 v[{vKF+4*b}:{vKF+4*b+3}], v{vT0}, s[{sBT}:{sBT+1}]")
    for r in range(4):
        A(f"v_lshl_add_u32 v{vT3}, v{vG}, 2, {r}\nv_sub_u32 v{vLim+r}, v{vCtx}, v{vT3}")
    A(f"s_waitcnt vmcnt(0)\nv_mov_b32 v{vT0}, 0")
    for b in range(1, 8):
        for r in range(4):
            A(f"v_xor_b32 v{vT1}, v{vE+r}, v{vKF+4*b+r}\nv_or_b32 v{vT0}, v{vT0}, v{vT1}")
    A(f"""
    v_cmp_ne_u32 vcc, 0, v{vT0}
    s_mov_b32 s{sTmp}, 256
    s_cbranch_vccz L_range
    s_mov_b32 s{sPass}, 0
    """)
    def pass_limits():
        A(f"v_lshrrev_b32 v{vT0}, 1, v{vQi}\nv_cmp_eq_u32 vcc, s{sPass}, v{vT0}")
        for r in range(4):
            A(f"v_lshl_add_u32 v{vT3}, v{vG}, 2, {r}\nv_sub_u32 v{vT3}, v{vCtx}, v{vT3}\nv_cndmask_b32 v{vLim+r}, 0, v{vT3}, vcc")
    pass_limits()
    A("L_range:")
    A(f"""
    s_mul_i32 s{sT0}, s{sKk}, s{sTmp}
    s_add_u32 s{sTend}, s{sT0}, s{sTmp}
    s_mul_hi_u32 s{sT0}, s{sT0}, s{sR}
    s_mul_hi_u32 s{sTend}, s{sTend}, s{sR}
    s_add_u32 s{sT0}, s{sT0}, s{sW}
    s_mov_b32 s{sCnt}, 0
    """)
    def tile_addr():
        A(f"""
        s_lshr_b32 s{sTmp}, s{sT}, s{sJS}
        s_lshr_b32 s{sTmp2}, s{sTmp}, 2
        v_readlane_b32 s{sEn}, v{vE}, s{sTmp2}
        v_readlane_b32 s{sEn+1}, v{vE+1}, s{sTmp2}
        v_readlane_b32 s{sEn+2}, v{vE+2}, s{sTmp2}
        v_readlane_b32 s{sEn+3}, v{vE+3}, s{sTmp2}
        s_and_b32 s{sTmp2}, s{sT}, s{sOM}
        s_lshl_b32 s{sTmp2}, s{sTmp2}, 13
        s_add_u32 s{sTmp2}, s{sTmp2}, s{sOC}
        s_bitcmp1_b32 s{sTmp}, 0
        s_cselect_b32 s{sEn}, s{sEn+1}, s{sEn}
        s_cselect_b32 s{sEn+2}, s{sEn+3}, s{sEn+2}
        s_bitcmp1_b32 s{sTmp}, 1
        s_cselect_b32 s{sEn}, s{sEn+2}, s{sEn}
        s_lshl_b32 s{sOff}, s{sEn}, 16
        s_add_u32 s{sOff}, s{sOff}, s{sTmp2}
        s_add_u32 s{sOff2}, s{sOff}, s{sHI}
        s_lshl_b32 s{sPosN}, s{sT}, s{sPS}
        s_add_u32 s{sPosN}, s{sPosN}, s{sPB}
        """)
    def issue(isv):
        r = rV if isv else rK
        for h in range(2):
            A(f"s_add_u32 m0, s{sLB}, {isv*8192 + h*4096}\ns_nop 0")
            for jl in range(4):
                A(f"buffer_load_dwordx4 v{vDO+jl}, s[{r}:{r+3}], s{sOff2 if h else sOff} offen offset:{1024*jl} {pol} lds")
    A("L_pass:")
    A(f"s_mov_b32 s{sT}, s{sT0}\ns_cmp_lt_u32 s{sT}, s{sTend}\ns_cselect_b32 s{sNext}, 1, 0\ns_cbranch_scc0 L_first_done")
    tile_addr(); issue(0); issue(1)
    A("L_first_done:")
    if one:
        A(f"""
        s_cmp_lg_u32 s{sCnt}, 0
        s_cbranch_scc1 L_hs_done
        s_mov_b32 s{sCnt}, 1
        s_cmp_eq_u32 s{sNext}, 0
        s_cbranch_scc1 L_hs_w0
        s_waitcnt vmcnt(16)
        s_branch L_hs_bar
        L_hs_w0:
        s_waitcnt vmcnt(0)
        L_hs_bar:
        s_barrier
        s_cmp_lg_u32 s{sW}, 0
        s_cbranch_scc1 L_hs_done
        s_and_b32 s{sTmp}, s2, 3
        s_lshl_b32 s{sTmp}, s{sTmp}, 6
        v_mov_b32 v{vT0}, s{sTmp}
        v_mov_b32 v{vT1}, 1
        s_mov_b64 exec, 1
        global_atomic_add v{vT0}, v{vT1}, s[{sDBG}:{sDBG+1}] sc1
        s_mov_b64 exec, -1
        L_hs_done:
        """)
    A(f"s_cmp_eq_u32 s{sNext}, 0\ns_cbranch_scc1 L_pass_end")
    A(".p2align 6\nL_loop:")
    A(f"s_mov_b32 s{sPos}, s{sPosN}\ns_add_u32 s{sT}, s{sT}, 4\ns_cmp_lt_u32 s{sT}, s{sTend}\ns_cselect_b32 s{sNext}, 1, 0")
    A("s_cbranch_scc0 L_na")
    tile_addr()
    A("L_na:")
    for r in range(4):
        A(f"v_cmp_lt_i32 s[{sMk+2*r}:{sMk+2*r+1}], s{sPos}, v{vLim+r}")
    A(f"v_mov_b32 v{vT0}, s{sNinf}")
    A("s_waitcnt vmcnt(8)")
    if prof:
        A(f"s_memrealtime s[{sSt}:{sSt+1}]\ns_waitcnt lgkmcnt(0)\ns_mov_b32 m0, s{sIt}\ns_add_u32 s{sIt}, s{sIt}, 1\ns_min_u32 s{sIt}, s{sIt}, 60\nv_writelane_b32 v{vPf}, s{sSt}, m0")
    for s in range(8):
        A(f"ds_read_b128 v[{vKF+4*s}:{vKF+4*s+3}], v{vKA+(s&3)} offset:{256*(s>>2)}")
    for r in range(4):
        A(f"v_cndmask_b32 v{vB+r}, v{vT0}, 0, s[{sMk+2*r}:{sMk+2*r+1}]")
    A(f"s_cmp_eq_u32 s{sNext}, 0\ns_waitcnt lgkmcnt(0)\ns_cbranch_scc1 L_nk")
    issue(0)
    A("L_nk:")
    for s in range(8):
        c = "0" if s == 0 else f"v[{vS}:{vS+3}]"
        A(f"v_mfma_f32_16x16x32_bf16 v[{vS}:{vS+3}], v[{vKF+4*s}:{vKF+4*s+3}], v[{vQ+4*s}:{vQ+4*s+3}], {c}")
    A("s_nop 7")
    for r in range(4):
        A(f"v_fma_f32 v{vX+r}, v{vS+r}, v{vC}, v{vB+r}")
    A(f"""
    v_max3_f32 v{vT0}, v{vX}, v{vX+1}, v{vX+2}
    v_max3_f32 v{vT0}, v{vT0}, v{vX+3}, v{vM}
    v_mov_b32 v{vT1}, v{vT0}
    s_nop 1
    v_permlane32_swap_b32 v{vT0}, v{vT1}
    v_max_f32 v{vT0}, v{vT0}, v{vT1}
    v_mov_b32 v{vT1}, v{vT0}
    s_nop 1
    v_permlane16_swap_b32 v{vT0}, v{vT1}
    v_max_f32 v{vT0}, v{vT0}, v{vT1}
    v_sub_f32 v{vAl}, v{vM}, v{vT0}
    v_cmp_neq_f32 vcc, v{vM}, v{vT0}
    v_mov_b32 v{vM}, v{vT0}
    """)
    for r in range(4): A(f"v_sub_f32 v{vX+r}, v{vX+r}, v{vT0}")
    A(f"v_exp_f32 v{vAl}, v{vAl}")
    for r in range(4): A(f"v_exp_f32 v{vX+r}, v{vX+r}")
    A("s_cbranch_vccz L_nr")
    for i in range(32):
        A(f"v_pk_mul_f32 v[{vO+2*i}:{vO+2*i+1}], v[{vO+2*i}:{vO+2*i+1}], v[{vAl}:{vAl+1}] op_sel_hi:[1,0]")
    A("L_nr:")
    A(f"""
    v_fma_f32 v{vL}, v{vL}, v{vAl}, v{vX}
    v_add_f32 v{vT0}, v{vX+1}, v{vX+2}
    v_add_f32 v{vL}, v{vL}, v{vX+3}
    v_cvt_pk_bf16_f32 v{vP}, v{vX}, v{vX+1}
    v_cvt_pk_bf16_f32 v{vP+1}, v{vX+2}, v{vX+3}
    v_add_f32 v{vL}, v{vL}, v{vT0}
    s_cmp_eq_u32 s{sNext}, 0
    s_cbranch_scc1 L_wl
    s_waitcnt vmcnt(8)
    s_branch L_wd
    L_wl:
    s_waitcnt vmcnt(0)
    L_wd:
    """)
    for i in range(16):
        A(f"ds_read_b64_tr_b16 v[{vVF+2*i}:{vVF+2*i+1}], v{vVA+(i&7)} offset:{256*(i>>3)}")
    A("s_waitcnt lgkmcnt(0)\ns_cbranch_scc1 L_nv")
    issue(1)
    A("L_nv:")
    for i in range(16):
        A(f"v_mfma_f32_16x16x16_bf16 v[{vO+4*i}:{vO+4*i+3}], v[{vVF+2*i}:{vVF+2*i+1}], v[{vP}:{vP+1}], v[{vO+4*i}:{vO+4*i+3}]")
    A(f"s_cmp_eq_u32 s{sNext}, 0\ns_cbranch_scc0 L_loop")
    A("L_pass_end:")
    A(f"""
    s_add_u32 s{sPass}, s{sPass}, 1
    s_cmp_ge_u32 s{sPass}, 8
    s_cbranch_scc1 L_done
    s_lshl_b32 s{sTmp}, s{sPass}, 11
    v_add_u32 v{vT0}, s{sTmp}, v{vRO}
    global_load_dwordx4 v[{vE}:{vE+3}], v{vT0}, s[{sBT}:{sBT+1}]
    """)
    pass_limits()
    A("s_waitcnt vmcnt(0)\ns_branch L_pass")
    A("L_done:")
    stamp()
    vCn = vE
    if one:
        A(f"v_and_b32 v{vT2}, 3, v{vLane}\nv_lshlrev_b32 v{vT2}, 6, v{vT2}\nglobal_load_dword v{vCn}, v{vT2}, s[{sDBG}:{sDBG+1}] sc1")
    A(f"""
    v_mov_b32 v{vT1}, v{vL}
    v_mul_u32_u24 v{vT3}, 1040, v{vQi}
    v_lshl_add_u32 v{vT3}, v{vG}, 4, v{vT3}
    v_permlane32_swap_b32 v{vL}, v{vT1}
    v_add_u32 v{vT3}, s{sLB}, v{vT3}
    v_add_f32 v{vL}, v{vL}, v{vT1}
    v_mov_b32 v{vT1}, v{vL}
    s_lshl_b32 s{sTmp}, s{sW}, 3
    s_add_u32 s{sTmp}, s{sTmp}, {MLL}
    v_permlane16_swap_b32 v{vL}, v{vT1}
    v_lshlrev_b32 v{vT0}, 5, v{vQi}
    v_add_u32 v{vT0}, s{sTmp}, v{vT0}
    v_mov_b32 v{vAl}, v{vM}
    v_add_f32 v{vAl+1}, v{vL}, v{vT1}
    s_waitcnt vmcnt({1 if one else 0})
    """)
    for i in range(16):
        A(f"ds_write_b128 v{vT3}, v[{vO+4*i}:{vO+4*i+3}] offset:{64*i}")
    A(f"ds_write_b64 v{vT0}, v[{vAl}:{vAl+1}]")
    A(f"""
    s_lshl_b32 s{sTmp}, s{sW}, 7
    s_add_u32 s{sTmp}, s{sTmp}, {MLL}
    v_and_b32 v{vT0}, 15, v{vLane}
    v_lshlrev_b32 v{vT0}, 3, v{vT0}
    v_add_u32 v{vT0}, s{sTmp}, v{vT0}
    s_mul_i32 s{sTmp}, s{sW}, {4*1040}
    v_add_u32 v{vT3}, s{sTmp}, v{vRO}
    s_waitcnt lgkmcnt(0)
    s_barrier
    ds_read_b64 v[{vAl}:{vAl+1}], v{vT0}
    """)
    for k in range(4):
        for w in range(4):
            r = vO + 16*k + 4*w
            A(f"ds_read_b128 v[{r}:{r+3}], v{vT3} offset:{w*WSTRIDE + k*1040}")
    A(f"""
    s_waitcnt lgkmcnt(15)
    s_nop 0
    v_max_f32_dpp v{vT0}, v{vAl}, v{vAl} quad_perm:[1,0,3,2] row_mask:0xf bank_mask:0xf
    s_nop 1
    v_max_f32_dpp v{vX}, v{vT0}, v{vT0} quad_perm:[2,3,0,1] row_mask:0xf bank_mask:0xf
    v_sub_f32 v{vT0}, v{vAl}, v{vX}
    v_exp_f32 v{vT0}, v{vT0}
    s_nop 0
    v_mul_f32 v{vT1}, v{vT0}, v{vAl+1}
    """)
    for j in range(16): A(f"v_readlane_b32 s{sF+j}, v{vT0}, {j}")
    A(f"""
    v_add_f32_dpp v{vT2}, v{vT1}, v{vT1} quad_perm:[1,0,3,2] row_mask:0xf bank_mask:0xf
    s_nop 1
    v_add_f32_dpp v{vX+1}, v{vT2}, v{vT2} quad_perm:[2,3,0,1] row_mask:0xf bank_mask:0xf
    """)
    st = "sc1" if one else ""
    for k in range(4):
        r = vO + 16*k
        A(f"s_waitcnt lgkmcnt({12-4*k})")
        for j in range(4): A(f"v_mul_f32 v{r+j}, s{sF+4*k}, v{r+j}")
        for w in range(1, 4):
            for j in range(4): A(f"v_fmac_f32 v{r+j}, s{sF+4*k+w}, v{r+4*w+j}")
        A(f"buffer_store_dwordx4 v[{r}:{r+3}], v{vRO}, s[{rW}:{rW+3}], s{sRow+k} offen {st}")
    A(f"s_mov_b64 exec, 0x1111\nbuffer_store_dwordx2 v[{vX}:{vX+1}], v{vMLO}, s[{rW}:{rW+3}], 0 offen {st}\ns_mov_b64 exec, -1")
    stamp()

    def consumer(poll):
        vD = vQ
        vML = vKF
        vA0, vA3, vA4, vM0, vM3, vM4 = vVF, vVF+1, vVF+2, vVF+3, vVF+4, vVF+5
        packed = 0
        for b in range(8): packed |= (NSH + NB[b]) << (8*b)
        ld = "sc1" if poll else ""
        A(f"""
        s_lshr_b32 s{sB}, s2, 5
        s_lshl_b32 s{sTmp}, s{sB}, 3
        s_mov_b32 s{sF}, {packed & 0xffffffff}
        s_mov_b32 s{sF+1}, {packed >> 32}
        s_lshr_b64 s[{sF}:{sF+1}], s[{sF}:{sF+1}], s{sTmp}
        s_and_b32 s{sF}, s{sF}, 0xff
        s_mul_i32 s{sTmp}, s{sB}, {SLOTS*16}
        s_bfe_u32 s{sTmp2}, s2, 0x40001
        s_add_u32 s{sTmp}, s{sTmp}, s{sTmp2}
        v_lshrrev_b32 v{vT0}, 3, v{vLane}
        v_lshl_add_u32 v{vT1}, v{vT0}, 4, s{sTmp}
        s_and_b32 s{sTmp}, s2, 1
        s_lshl_b32 s{sTmp}, s{sTmp}, 2
        s_add_u32 s{sTmp}, s{sTmp}, s{sW}
        s_lshl_b32 s{sF+1}, s{sTmp}, 7
        v_and_b32 v{vT2}, 7, v{vLane}
        v_lshl_add_u32 v{vT2}, v{vT2}, 4, s{sF+1}
        v_lshl_add_u32 v{vA0}, v{vT1}, 10, v{vT2}
        v_lshlrev_b32 v{vM0}, 3, v{vT1}
        v_add_u32 v{vM0}, {ML_OFF}, v{vM0}
        v_add_u32 v{vT1}, 24, v{vT0}
        v_cmp_gt_u32 s[{sMk}:{sMk+1}], s{sF}, v{vT1}
        v_add_u32 v{vT1}, 32, v{vT0}
        v_cmp_gt_u32 s[{sMk+2}:{sMk+3}], s{sF}, v{vT1}
        v_add_u32 v{vA3}, {3*131072}, v{vA0}
        v_add_u32 v{vA4}, {4*131072}, v{vA0}
        v_add_u32 v{vM3}, {3*1024}, v{vM0}
        v_add_u32 v{vM4}, {4*1024}, v{vM0}
        v_cndmask_b32 v{vA3}, v{vA0}, v{vA3}, s[{sMk}:{sMk+1}]
        v_cndmask_b32 v{vM3}, v{vM0}, v{vM3}, s[{sMk}:{sMk+1}]
        v_cndmask_b32 v{vA4}, v{vA0}, v{vA4}, s[{sMk+2}:{sMk+3}]
        v_cndmask_b32 v{vM4}, v{vM0}, v{vM4}, s[{sMk+2}:{sMk+3}]
        s_mov_b32 s{sF+2}, 131072
        s_mov_b32 s{sF+3}, 262144
        s_mov_b32 s{sCnt}, 0
        """)
        if poll:
            A(f"""
            s_waitcnt vmcnt(5)
            L_cpoll:
            v_cmp_gt_u32 vcc, 64, v{vCn}
            s_cbranch_vccz L_poll
            s_add_u32 s{sCnt}, s{sCnt}, 1
            s_cmp_ge_u32 s{sCnt}, 0x10000
            s_cbranch_scc1 L_poll
            s_sleep 4
            v_and_b32 v{vT2}, 3, v{vLane}
            v_lshlrev_b32 v{vT2}, 6, v{vT2}
            global_load_dword v{vCn}, v{vT2}, s[{sDBG}:{sDBG+1}] sc1
            s_waitcnt vmcnt(0)
            s_branch L_cpoll
            L_poll:
            """)
        addr = [(vA0, "0", vM0, 0), (vA0, f"s{sF+2}", vM0, 1024), (vA0, f"s{sF+3}", vM0, 2048), (vA3, "0", vM3, 0), (vA4, "0", vM4, 0)]
        for k, (a, so, m, mo) in enumerate(addr):
            A(f"buffer_load_dwordx2 v[{vML+2*k}:{vML+2*k+1}], v{m}, s[{rW}:{rW+3}], 0 offen offset:{mo} {ld}")
        for k, (a, so, m, mo) in enumerate(addr):
            A(f"buffer_load_dwordx4 v[{vD+4*k}:{vD+4*k+3}], v{a}, s[{rW}:{rW+3}], {so} offen {ld}")
        A("s_waitcnt vmcnt(0)")
        if poll:
            regs = [vML+i for i in range(10)] + [vD+i for i in range(20)]
            A(f"v_max3_u32 v{vT0}, v{regs[0]}, v{regs[1]}, v{regs[2]}\nv_max3_u32 v{vT1}, v{regs[3]}, v{regs[4]}, v{regs[5]}")
            i = 6; t = 0
            while i < 30:
                A(f"v_max3_u32 v{vT0+t}, v{vT0+t}, v{regs[i]}, v{regs[i+1]}"); i += 2; t ^= 1
            A(f"""
            v_max_u32 v{vT0}, v{vT0}, v{vT1}
            v_cmp_eq_u32 vcc, -1, v{vT0}
            s_cbranch_vccz L_got
            s_add_u32 s{sCnt}, s{sCnt}, 1
            s_cmp_ge_u32 s{sCnt}, 0x10000
            s_cbranch_scc1 L_got
            s_sleep {sleep}
            s_branch L_poll
            L_got:
            """)
        stamp()
        A(f"""
        v_mov_b32 v{vT3}, {NEGBIG}
        v_cndmask_b32 v{vML+6}, v{vT3}, v{vML+6}, s[{sMk}:{sMk+1}]
        v_cndmask_b32 v{vML+8}, v{vT3}, v{vML+8}, s[{sMk+2}:{sMk+3}]
        v_max3_f32 v{vT0}, v{vML}, v{vML+2}, v{vML+4}
        v_max3_f32 v{vT0}, v{vT0}, v{vML+6}, v{vML+8}
        s_nop 1
        v_max_f32_dpp v{vT0}, v{vT0}, v{vT0} row_ror:8 row_mask:0xf bank_mask:0xf
        v_mov_b32 v{vT1}, v{vT0}
        s_nop 1
        v_permlane32_swap_b32 v{vT0}, v{vT1}
        v_max_f32 v{vT0}, v{vT0}, v{vT1}
        v_mov_b32 v{vT1}, v{vT0}
        s_nop 1
        v_permlane16_swap_b32 v{vT0}, v{vT1}
        v_max_f32 v{vT0}, v{vT0}, v{vT1}
        """)
        for k in range(5): A(f"v_sub_f32 v{vML+2*k}, v{vML+2*k}, v{vT0}")
        for k in range(5): A(f"v_exp_f32 v{vML+2*k}, v{vML+2*k}")
        vAc = vO
        for j in range(4): A(f"v_mul_f32 v{vAc+j}, v{vML}, v{vD+j}")
        A(f"v_mul_f32 v{vAc+4}, v{vML}, v{vML+1}")
        for k in range(1, 5):
            for j in range(4): A(f"v_fmac_f32 v{vAc+j}, v{vML+2*k}, v{vD+4*k+j}")
            A(f"v_fmac_f32 v{vAc+4}, v{vML+2*k}, v{vML+2*k+1}")
        for j in range(5): A(f"v_add_f32_dpp v{vAc+j}, v{vAc+j}, v{vAc+j} row_ror:8 row_mask:0xf bank_mask:0xf")
        for op in ("v_permlane32_swap_b32", "v_permlane16_swap_b32"):
            for j in range(5): A(f"v_mov_b32 v{vAc+8+j}, v{vAc+j}")
            for j in range(5): A(f"{op} v{vAc+j}, v{vAc+8+j}")
            for j in range(5): A(f"v_add_f32 v{vAc+j}, v{vAc+j}, v{vAc+8+j}")
        A(f"""
        v_rcp_f32 v{vT0}, v{vAc+4}
        s_lshr_b32 s{sTmp}, s2, 1
        s_lshl_b32 s{sTmp}, s{sTmp}, 9
        s_lshr_b32 s{sTmp2}, s{sF+1}, 1
        s_add_u32 s{sTmp}, s{sTmp}, s{sTmp2}
        v_lshl_add_u32 v{vT1}, v{vLane}, 3, s{sTmp}
        """)
        for j in range(4): A(f"v_mul_f32 v{vAc+j}, v{vAc+j}, v{vT0}")
        A(f"""
        v_cvt_pk_bf16_f32 v{vAc}, v{vAc}, v{vAc+1}
        v_cvt_pk_bf16_f32 v{vAc+1}, v{vAc+2}, v{vAc+3}
        s_mov_b64 exec, 0xff
        global_store_dwordx2 v{vT1}, v[{vAc}:{vAc+1}], s[{sOUT}:{sOUT+1}]
        """)
    if one:
        consumer(True)
    if prof == 2:
        A("s_mov_b64 exec, -1\ns_waitcnt vmcnt(0)")
        stamp()
        a, b = diag
        A(f"""
        s_nop 1
        v_readlane_b32 s{sF}, v{vPf}, 0
        v_readlane_b32 s{sF+1}, v{vPf}, {a}
        v_readlane_b32 s{sF+2}, v{vPf}, {b}
        s_sub_u32 s{sF+1}, s{sF+2}, s{sF+1}
        s_min_u32 s{sF+1}, s{sF+1}, 20000
        s_mul_i32 s{sF+1}, s{sF+1}, {diagmul}
        """)
        if diagwg >= 0: A(f"s_cmp_eq_u32 s2, {diagwg}\ns_cselect_b32 s{sF+1}, s{sF+1}, 0")
        A(f"""
        s_add_u32 s{sF+1}, s{sF+1}, 10000
        L_spin:
        s_memrealtime s[{sSt}:{sSt+1}]
        s_waitcnt lgkmcnt(0)
        s_sub_u32 s{sF+2}, s{sSt}, s{sF}
        s_cmp_lt_u32 s{sF+2}, s{sF+1}
        s_cbranch_scc1 L_spin
        """)
    if prof == 1:
        A("s_mov_b64 exec, -1\ns_waitcnt vmcnt(0)")
        stamp()
        A(f"""
        s_getreg_b32 s{sTmp}, hwreg(HW_REG_XCC_ID)
        v_writelane_b32 v{vPf}, s{sTmp}, 62
        v_writelane_b32 v{vPf}, s{sCnt}, 63
        s_lshl_b32 s{sTmp}, s2, 2
        s_add_u32 s{sTmp}, s{sTmp}, s{sW}
        s_lshl_b32 s{sTmp}, s{sTmp}, 8
        s_add_u32 s{sTmp}, s{sTmp}, {PROF_OFF}
        v_lshlrev_b32 v{vT0}, 2, v{vLane}
        buffer_store_dword v{vPf}, v{vT0}, s[{rW}:{rW+3}], s{sTmp} offen
        """)
    A("L_end:\ns_endpgm")
    def kd(name, nv):
        A(f""".section .rodata,"a"
.p2align 6
.amdhsa_kernel {name}
.amdhsa_next_free_vgpr {nv}
.amdhsa_next_free_sgpr {NS}
.amdhsa_accum_offset {(nv+3)//4*4}
.amdhsa_group_segment_fixed_size 0
.amdhsa_kernarg_size 64
.amdhsa_user_sgpr_count 2
.amdhsa_user_sgpr_kernarg_segment_ptr 1
.amdhsa_system_sgpr_workgroup_id_x 1
.end_amdhsa_kernel""")
    if not one:
        prof_save = prof
        A(f".globl combine_kernel\n.p2align 8\n.type combine_kernel,@function\ncombine_kernel:")
        A(f"""
        s_cmp_ge_u32 s2, {NWG}
        s_cbranch_scc1 L_end2
        s_load_dwordx16 s[4:19], s[0:1], 0
        v_lshrrev_b32 v{vT0}, 6, v0
        v_and_b32 v{vLane}, 63, v0
        v_readfirstlane_b32 s{sW}, v{vT0}
        s_waitcnt lgkmcnt(0)
        s_mov_b32 s{rW}, s{sWS}
        s_and_b32 s{rW+1}, s{sWS+1}, 0xffff
        s_mov_b32 s{rW+2}, {WS_BYTES}
        s_mov_b32 s{rW+3}, 0x20000
        """)
        assert not prof
        consumer(False)
        A("L_end2:\ns_endpgm")
    kd(KN, NV)
    if not one: kd("combine_kernel", NV)
    return A.text()

if __name__ == "__main__":
    out = sys.argv[1]
    kw = {}
    for kv in sys.argv[2:]:
        k, v = kv.split("=")
        if "," in v: kw[k] = tuple(int(x) for x in v.split(","))
        else: kw[k] = int(v) if v.lstrip("-").isdigit() else v.replace("+", " ")
    open(out, "w").write(gen(**kw))
```

```python
import sys
NAME = "standalone__paged_block_table_kv_radixattention__sampling"
KN = NAME + "_kernel"

class Asm:
    def __init__(self):
        self.L = []
    def __call__(self, s):
        for line in s.strip("\n").split("\n"):
            line = line.strip()
            if not line: continue
            self.L.append(line if line.endswith(":") or line.startswith(".") or line.startswith(";") else "    " + line)
    def text(self): return "\n".join(self.L) + "\n"

HEADER = """; Kernarg layout for this problem (64 bytes, ptrs only, base s[0:1]):
"""

def gen(mode="1k", prof=0, NSH=5, NB=(31, 28, 24, 20, 34, 30, 26, 23), pol="nt", sleep=2, diag=None, diagwg=-1, diagmul=10, diagglob=0):
    NWG = 256
    NSHWG = 8 * NSH
    assert NSHWG + sum(NB) == NWG
    SLOTS = 40
    assert NSH + max(NB) <= SLOTS and NSH + min(NB) >= 24
    ML_OFF = 8 * SLOTS * 16 * 1024
    WS_BYTES = ML_OFF + 8 * SLOTS * 16 * 8
    PROF_OFF = 8 << 20
    WSTRIDE = 16896
    MLL = 4 * WSTRIDE
    LDS = MLL + 512
    KVB = 2304 * 65536
    NEGBIG = 0xFF000000
    CSC = 0x3DB8AA3B
    one = mode == "1k"
    if diag is not None: prof = 2
    A = Asm()
    vLane, vG, vQi = 0, 1, 2
    vT0, vT1, vT2, vT3 = 3, 4, 5, 6
    vCtx, vC, vM, vL = 7, 8, 9, 10
    vAl = 12
    vP = 14
    vS = 16
    vB = 20
    vLim = 24
    vE = 28
    vKA = 32
    vDO = 36
    vVA = 40
    vX = 48
    vPf = 52
    vQO = 53
    vMLO = 54
    vRO = 55
    vQ = 56
    vKF = 88
    vVF = 120
    vO = 152
    NV = 216
    sQ, sK, sV, sBT, sCTX, sOUT, sDBG, sWS = 4, 6, 8, 10, 12, 14, 16, 18
    rK, rV, rW = 20, 24, 28
    sW = 32; sB = 33; sKk = 34; sR = 35; sSlot = 36; sShared = 37
    sRS = 38; sHI = 39
    sEn = 40
    sT = 45; sTend = 46; sJS = 47; sOM = 48; sOC = 49; sPS = 50; sPB = 51
    sPos = 52; sPosN = 53; sOff = 54; sOff2 = 55; sLB = 56
    sQA = 57; sQB = 58; sTmp = 59; sTmp2 = 60; sPass = 61; sT0 = 62; sNext = 63
    sRow = 64
    sMk = 68
    sF = 76
    sSt = 92
    sCnt = 94; sNinf = 95; sIt = 96
    NS = 100
    pidx = [0]
    def stamp():
        if not prof: return
        A(f"s_memrealtime s[{sSt}:{sSt+1}]\ns_waitcnt lgkmcnt(0)\nv_writelane_b32 v{vPf}, s{sSt}, {pidx[0]}")
        pidx[0] += 1

    A(HEADER)
    if prof: A("; prof=1")
    if one:
        A(f"; @launch grid=({NWG},1,1) block=(256,1,1) lds={LDS}")
    else:
        A(f"; @launch kernel={KN} grid=({NWG},1,1) block=(256,1,1) lds={LDS}")
        A(f"; @launch kernel=combine_kernel grid=({NWG},1,1) block=(256,1,1) lds=0")
    A('.amdgcn_target "amdgcn-amd-amdhsa--gfx950"\n.text')
    A(f".globl {KN}\n.p2align 8\n.type {KN},@function\n{KN}:")
    A(f"s_cmp_ge_u32 s2, {NWG}\ns_cbranch_scc1 L_end")
    if prof: A(f"v_mov_b32 v{vPf}, 0\ns_mov_b32 s{sIt}, 16")
    stamp()
    A("s_load_dwordx16 s[4:19], s[0:1], 0")
    A(f"""
    v_lshrrev_b32 v{vT0}, 6, v0
    v_and_b32 v{vLane}, 63, v0
    v_readfirstlane_b32 s{sW}, v{vT0}
    v_lshrrev_b32 v{vG}, 4, v{vLane}
    v_and_b32 v{vQi}, 15, v{vLane}
    s_mov_b32 s{sNinf}, 0xff800000
    s_cmp_lt_u32 s2, {NSHWG}
    s_cbranch_scc1 L_role_sh
    """)
    cum = [0]
    for n in NB: cum.append(cum[-1] + n)
    A(f"s_sub_u32 s{sTmp}, s2, {NSHWG}\ns_mov_b32 s{sB}, 0\ns_mov_b32 s{sKk}, 0\ns_mov_b32 s{sR}, {(1<<32)//NB[0]+1}")
    for b in range(1, 8):
        A(f"s_cmp_ge_u32 s{sTmp}, {cum[b]}\ns_cselect_b32 s{sB}, {b}, s{sB}\ns_cselect_b32 s{sKk}, {cum[b]}, s{sKk}\ns_cselect_b32 s{sR}, {(1<<32)//NB[b]+1}, s{sR}")
    A(f"""
    s_sub_u32 s{sKk}, s{sTmp}, s{sKk}
    s_add_u32 s{sSlot}, s{sKk}, {NSH}
    s_mov_b32 s{sShared}, 0
    s_mov_b32 s{sRS}, 9
    s_mov_b32 s{sJS}, 3
    s_mov_b32 s{sOM}, 7
    s_mov_b32 s{sOC}, 0
    s_mov_b32 s{sPS}, 1
    s_mov_b32 s{sPB}, 4096
    s_mov_b32 s{sQA}, 2
    s_lshl_b32 s{sQB}, s{sB}, 4
    s_lshl_b32 s{sTmp2}, s{sB}, 11
    s_add_u32 s{sTmp2}, s{sTmp2}, 1024
    s_branch L_role_done
    L_role_sh:
    s_and_b32 s{sB}, s2, 7
    s_lshr_b32 s{sKk}, s2, 3
    s_mov_b32 s{sR}, {(1<<32)//NSH+1}
    s_mov_b32 s{sSlot}, s{sKk}
    s_mov_b32 s{sShared}, 1
    s_mov_b32 s{sRS}, 12
    s_mov_b32 s{sJS}, 0
    s_mov_b32 s{sOM}, 0
    s_lshl_b32 s{sOC}, s{sB}, 9
    s_mov_b32 s{sPS}, 4
    s_mov_b32 s{sPB}, 0
    s_mov_b32 s{sQA}, 16
    s_lshl_b32 s{sQB}, s{sB}, 1
    s_mov_b32 s{sTmp2}, 0
    L_role_done:
    s_lshl_b32 s{sHI}, 8, s{sRS}
    s_mul_i32 s{sLB}, s{sW}, {WSTRIDE}
    v_lshlrev_b32 v{vRO}, 4, v{vLane}
    v_add_u32 v{vT3}, s{sTmp2}, v{vRO}
    v_lshrrev_b32 v{vT0}, 1, v{vQi}
    v_mul_u32_u24 v{vT0}, s{sQA}, v{vT0}
    v_and_b32 v{vT1}, 1, v{vQi}
    v_add3_u32 v{vT0}, v{vT0}, v{vT1}, s{sQB}
    v_lshrrev_b32 v{vT2}, 4, v{vT0}
    v_lshlrev_b32 v{vT2}, 2, v{vT2}
    v_lshlrev_b32 v{vQO}, 9, v{vT0}
    v_lshl_add_u32 v{vQO}, v{vG}, 4, v{vQO}
    s_waitcnt lgkmcnt(0)
    global_load_dword v{vCtx}, v{vT2}, s[{sCTX}:{sCTX+1}]
    global_load_dwordx4 v[{vE}:{vE+3}], v{vT3}, s[{sBT}:{sBT+1}]
    """)
    stamp()
    for s in range(8):
        A(f"global_load_dwordx4 v[{vQ+4*s}:{vQ+4*s+3}], v{vQO}, s[{sQ}:{sQ+1}] offset:{64*s}")
    for r, p, n in ((rK, sK, KVB), (rV, sV, KVB), (rW, sWS, WS_BYTES if not prof else 16 << 20)):
        A(f"s_mov_b32 s{r}, s{p}\ns_and_b32 s{r+1}, s{p+1}, 0xffff\ns_mov_b32 s{r+2}, {n}\ns_mov_b32 s{r+3}, 0x20000")
    for k in range(4):
        A(f"""
        s_lshl_b32 s{sTmp}, s{sW}, 1
        s_add_u32 s{sTmp}, s{sTmp}, {k>>1}
        s_mul_i32 s{sTmp}, s{sTmp}, s{sQA}
        s_add_u32 s{sTmp}, s{sTmp}, s{sQB}
        s_add_u32 s{sTmp}, s{sTmp}, {k&1}
        s_lshr_b32 s{sTmp2}, s{sTmp}, 4
        s_mul_i32 s{sTmp2}, s{sTmp2}, {SLOTS}
        s_add_u32 s{sTmp2}, s{sTmp2}, s{sSlot}
        s_lshl_b32 s{sTmp2}, s{sTmp2}, 4
        s_and_b32 s{sTmp}, s{sTmp}, 15
        s_add_u32 s{sTmp}, s{sTmp}, s{sTmp2}
        s_lshl_b32 s{sRow+k}, s{sTmp}, 10
        """)
    A(f"""
    v_mov_b32 v{vMLO}, -1
    s_lshr_b32 s{sTmp}, s{sRow}, 7
    s_add_u32 s{sTmp}, s{sTmp}, {ML_OFF}
    v_writelane_b32 v{vMLO}, s{sTmp}, 0
    s_lshr_b32 s{sTmp}, s{sRow+1}, 7
    s_add_u32 s{sTmp}, s{sTmp}, {ML_OFF}
    v_writelane_b32 v{vMLO}, s{sTmp}, 4
    s_lshr_b32 s{sTmp}, s{sRow+2}, 7
    s_add_u32 s{sTmp}, s{sTmp}, {ML_OFF}
    v_writelane_b32 v{vMLO}, s{sTmp}, 8
    s_lshr_b32 s{sTmp}, s{sRow+3}, 7
    s_add_u32 s{sTmp}, s{sTmp}, {ML_OFF}
    v_writelane_b32 v{vMLO}, s{sTmp}, 12
    """)
    nclr = 0
    if one:
        for r in range(4): A(f"v_mov_b32 v{vX+r}, -1")
        for k in range(4):
            A(f"buffer_store_dwordx4 v[{vX}:{vX+3}], v{vRO}, s[{rW}:{rW+3}], s{sRow+k} offen sc1")
        A(f"s_mov_b64 exec, 0x1111\nbuffer_store_dwordx2 v[{vX}:{vX+1}], v{vMLO}, s[{rW}:{rW+3}], 0 offen sc1\ns_mov_b64 exec, -1")
        nclr = 5
    A(f"v_lshrrev_b32 v{vT0}, 5, v{vLane}\nv_and_b32 v{vT1}, 31, v{vLane}")
    for jl in range(4):
        A(f"""
        v_add_u32 v{vT2}, {2*jl}, v{vT0}
        v_lshlrev_b32 v{vT3}, 1, v{vT2}
        v_xor_b32 v{vT3}, v{vT3}, v{vT1}
        v_lshlrev_b32 v{vT2}, s{sRS}, v{vT2}
        v_lshl_add_u32 v{vDO+jl}, v{vT3}, 4, v{vT2}
        """)
        if jl: A(f"v_subrev_u32 v{vDO+jl}, {1024*jl}, v{vDO+jl}")
    A(f"""
    v_and_b32 v{vT0}, 7, v{vQi}
    v_lshlrev_b32 v{vT0}, 1, v{vT0}
    v_lshlrev_b32 v{vT1}, 9, v{vQi}
    v_add_u32 v{vT1}, s{sLB}, v{vT1}
    """)
    for sl in range(4):
        A(f"v_add_u32 v{vT2}, {4*sl}, v{vG}\nv_xor_b32 v{vT2}, v{vT2}, v{vT0}\nv_lshl_add_u32 v{vKA+sl}, v{vT2}, 4, v{vT1}")
    A(f"""
    v_lshrrev_b32 v{vT0}, 2, v{vLane}
    v_and_b32 v{vT1}, 3, v{vLane}
    v_lshlrev_b32 v{vT1}, 3, v{vT1}
    v_lshl_add_u32 v{vT1}, v{vT0}, 9, v{vT1}
    v_add_u32 v{vT1}, s{sLB}, v{vT1}
    v_add_u32 v{vT1}, 8192, v{vT1}
    v_and_b32 v{vT0}, 7, v{vT0}
    """)
    for il in range(8):
        A(f"v_xor_b32 v{vT2}, {il}, v{vT0}\nv_lshl_add_u32 v{vVA+il}, v{vT2}, 5, v{vT1}")
    for i in range(64): A(f"v_mov_b32 v{vO+i}, 0")
    A(f"v_mov_b32 v{vM}, {NEGBIG}\nv_mov_b32 v{vL}, 0\ns_mov_b32 s{sPass}, 8")
    A(f"s_waitcnt vmcnt({8+nclr})")
    stamp()
    A(f"""
    v_cmp_lt_i32 vcc, 0, v{vCtx}
    v_min_i32 v{vCtx}, 0x2000, v{vCtx}
    v_mov_b32 v{vT0}, 0x2000
    v_mov_b32 v{vT1}, {CSC}
    v_cndmask_b32 v{vCtx}, v{vT0}, v{vCtx}, vcc
    v_cndmask_b32 v{vC}, 0, v{vT1}, vcc
    s_cmp_eq_u32 s{sShared}, 1
    v_readfirstlane_b32 s{sTmp}, v{vCtx}
    s_cbranch_scc1 L_sh_setup
    s_sub_i32 s{sTmp}, s{sTmp}, 4095
    s_max_i32 s{sTmp}, s{sTmp}, 0
    s_lshr_b32 s{sTmp}, s{sTmp}, 1
    """)
    A(f"v_lshrrev_b32 v{vT0}, 1, v{vQi}\nv_lshrrev_b32 v{vT1}, 1, v{vG}\nv_sub_u32 v{vT1}, v{vCtx}, v{vT1}\nv_and_b32 v{vT2}, 1, v{vG}")
    for r in range(4):
        A(f"v_lshl_add_u32 v{vT3}, v{vT2}, 2, {r}\nv_cmp_eq_u32 vcc, v{vT3}, v{vT0}\ns_nop 1\nv_cndmask_b32 v{vLim+r}, 0, v{vT1}, vcc")
    A("s_branch L_range")
    A("L_sh_setup:")
    for b in range(1, 8):
        A(f"v_add_u32 v{vT0}, {2048*b}, v{vRO}\nglobal_load_dwordx4 v[{vKF+4*b}:{vKF+4*b+3}], v{vT0}, s[{sBT}:{sBT+1}]")
    for r in range(4):
        A(f"v_lshl_add_u32 v{vT3}, v{vG}, 2, {r}\nv_sub_u32 v{vLim+r}, v{vCtx}, v{vT3}")
    A(f"s_waitcnt vmcnt(0)\nv_mov_b32 v{vT0}, 0")
    for b in range(1, 8):
        for r in range(4):
            A(f"v_xor_b32 v{vT1}, v{vE+r}, v{vKF+4*b+r}\nv_or_b32 v{vT0}, v{vT0}, v{vT1}")
    A(f"""
    v_cmp_ne_u32 vcc, 0, v{vT0}
    s_mov_b32 s{sTmp}, 256
    s_cbranch_vccz L_range
    s_mov_b32 s{sPass}, 0
    """)
    def pass_limits():
        A(f"v_lshrrev_b32 v{vT0}, 1, v{vQi}\nv_cmp_eq_u32 vcc, s{sPass}, v{vT0}")
        for r in range(4):
            A(f"v_lshl_add_u32 v{vT3}, v{vG}, 2, {r}\nv_sub_u32 v{vT3}, v{vCtx}, v{vT3}\nv_cndmask_b32 v{vLim+r}, 0, v{vT3}, vcc")
    pass_limits()
    A("L_range:")
    A(f"""
    s_mul_i32 s{sT0}, s{sKk}, s{sTmp}
    s_add_u32 s{sTend}, s{sT0}, s{sTmp}
    s_mul_hi_u32 s{sT0}, s{sT0}, s{sR}
    s_mul_hi_u32 s{sTend}, s{sTend}, s{sR}
    s_add_u32 s{sT0}, s{sT0}, s{sW}
    s_mov_b32 s{sCnt}, 0
    """)
    def tile_addr():
        A(f"""
        s_lshr_b32 s{sTmp}, s{sT}, s{sJS}
        s_lshr_b32 s{sTmp2}, s{sTmp}, 2
        v_readlane_b32 s{sEn}, v{vE}, s{sTmp2}
        v_readlane_b32 s{sEn+1}, v{vE+1}, s{sTmp2}
        v_readlane_b32 s{sEn+2}, v{vE+2}, s{sTmp2}
        v_readlane_b32 s{sEn+3}, v{vE+3}, s{sTmp2}
        s_and_b32 s{sTmp2}, s{sT}, s{sOM}
        s_lshl_b32 s{sTmp2}, s{sTmp2}, 13
        s_add_u32 s{sTmp2}, s{sTmp2}, s{sOC}
        s_bitcmp1_b32 s{sTmp}, 0
        s_cselect_b32 s{sEn}, s{sEn+1}, s{sEn}
        s_cselect_b32 s{sEn+2}, s{sEn+3}, s{sEn+2}
        s_bitcmp1_b32 s{sTmp}, 1
        s_cselect_b32 s{sEn}, s{sEn+2}, s{sEn}
        s_lshl_b32 s{sOff}, s{sEn}, 16
        s_add_u32 s{sOff}, s{sOff}, s{sTmp2}
        s_add_u32 s{sOff2}, s{sOff}, s{sHI}
        s_lshl_b32 s{sPosN}, s{sT}, s{sPS}
        s_add_u32 s{sPosN}, s{sPosN}, s{sPB}
        """)
    def issue(isv):
        r = rV if isv else rK
        for h in range(2):
            A(f"s_add_u32 m0, s{sLB}, {isv*8192 + h*4096}\ns_nop 0")
            for jl in range(4):
                A(f"buffer_load_dwordx4 v{vDO+jl}, s[{r}:{r+3}], s{sOff2 if h else sOff} offen offset:{1024*jl} {pol} lds")
    A("L_pass:")
    A(f"s_mov_b32 s{sT}, s{sT0}\ns_cmp_lt_u32 s{sT}, s{sTend}\ns_cselect_b32 s{sNext}, 1, 0\ns_cbranch_scc0 L_first_done")
    tile_addr(); issue(0); issue(1)
    A("L_first_done:")
    if one:
        A(f"""
        s_cmp_lg_u32 s{sCnt}, 0
        s_cbranch_scc1 L_hs_done
        s_mov_b32 s{sCnt}, 1
        s_cmp_eq_u32 s{sNext}, 0
        s_cbranch_scc1 L_hs_w0
        s_waitcnt vmcnt(16)
        s_branch L_hs_bar
        L_hs_w0:
        s_waitcnt vmcnt(0)
        L_hs_bar:
        s_barrier
        s_cmp_lg_u32 s{sW}, 0
        s_cbranch_scc1 L_hs_done
        s_and_b32 s{sTmp}, s2, 3
        s_lshl_b32 s{sTmp}, s{sTmp}, 6
        v_mov_b32 v{vT0}, s{sTmp}
        v_mov_b32 v{vT1}, 1
        s_mov_b64 exec, 1
        global_atomic_add v{vT0}, v{vT1}, s[{sDBG}:{sDBG+1}] sc1
        s_mov_b64 exec, -1
        L_hs_done:
        """)
    A(f"s_cmp_eq_u32 s{sNext}, 0\ns_cbranch_scc1 L_pass_end")
    A(".p2align 6\nL_loop:")
    A(f"s_mov_b32 s{sPos}, s{sPosN}\ns_add_u32 s{sT}, s{sT}, 4\ns_cmp_lt_u32 s{sT}, s{sTend}\ns_cselect_b32 s{sNext}, 1, 0")
    A("s_cbranch_scc0 L_na")
    tile_addr()
    A("L_na:")
    for r in range(4):
        A(f"v_cmp_lt_i32 s[{sMk+2*r}:{sMk+2*r+1}], s{sPos}, v{vLim+r}")
    A(f"v_mov_b32 v{vT0}, s{sNinf}")
    A("s_waitcnt vmcnt(8)")
    if prof:
        A(f"s_memrealtime s[{sSt}:{sSt+1}]\ns_waitcnt lgkmcnt(0)\ns_mov_b32 m0, s{sIt}\ns_add_u32 s{sIt}, s{sIt}, 1\ns_min_u32 s{sIt}, s{sIt}, 60\nv_writelane_b32 v{vPf}, s{sSt}, m0")
    for s in range(8):
        A(f"ds_read_b128 v[{vKF+4*s}:{vKF+4*s+3}], v{vKA+(s&3)} offset:{256*(s>>2)}")
    for r in range(4):
        A(f"v_cndmask_b32 v{vB+r}, v{vT0}, 0, s[{sMk+2*r}:{sMk+2*r+1}]")
    A(f"s_cmp_eq_u32 s{sNext}, 0\ns_waitcnt lgkmcnt(0)\ns_cbranch_scc1 L_nk")
    issue(0)
    A("L_nk:")
    for s in range(8):
        c = "0" if s == 0 else f"v[{vS}:{vS+3}]"
        A(f"v_mfma_f32_16x16x32_bf16 v[{vS}:{vS+3}], v[{vKF+4*s}:{vKF+4*s+3}], v[{vQ+4*s}:{vQ+4*s+3}], {c}")
    A("s_nop 7")
    for r in range(4):
        A(f"v_fma_f32 v{vX+r}, v{vS+r}, v{vC}, v{vB+r}")
    A(f"""
    v_max3_f32 v{vT0}, v{vX}, v{vX+1}, v{vX+2}
    v_max3_f32 v{vT0}, v{vT0}, v{vX+3}, v{vM}
    v_mov_b32 v{vT1}, v{vT0}
    s_nop 1
    v_permlane32_swap_b32 v{vT0}, v{vT1}
    v_max_f32 v{vT0}, v{vT0}, v{vT1}
    v_mov_b32 v{vT1}, v{vT0}
    s_nop 1
    v_permlane16_swap_b32 v{vT0}, v{vT1}
    v_max_f32 v{vT0}, v{vT0}, v{vT1}
    v_sub_f32 v{vAl}, v{vM}, v{vT0}
    v_cmp_neq_f32 vcc, v{vM}, v{vT0}
    v_mov_b32 v{vM}, v{vT0}
    """)
    for r in range(4): A(f"v_sub_f32 v{vX+r}, v{vX+r}, v{vT0}")
    A(f"v_exp_f32 v{vAl}, v{vAl}")
    for r in range(4): A(f"v_exp_f32 v{vX+r}, v{vX+r}")
    A("s_cbranch_vccz L_nr")
    for i in range(32):
        A(f"v_pk_mul_f32 v[{vO+2*i}:{vO+2*i+1}], v[{vO+2*i}:{vO+2*i+1}], v[{vAl}:{vAl+1}] op_sel_hi:[1,0]")
    A("L_nr:")
    A(f"""
    v_fma_f32 v{vL}, v{vL}, v{vAl}, v{vX}
    v_add_f32 v{vT0}, v{vX+1}, v{vX+2}
    v_add_f32 v{vL}, v{vL}, v{vX+3}
    v_cvt_pk_bf16_f32 v{vP}, v{vX}, v{vX+1}
    v_cvt_pk_bf16_f32 v{vP+1}, v{vX+2}, v{vX+3}
    v_add_f32 v{vL}, v{vL}, v{vT0}
    s_cmp_eq_u32 s{sNext}, 0
    s_cbranch_scc1 L_wl
    s_waitcnt vmcnt(8)
    s_branch L_wd
    L_wl:
    s_waitcnt vmcnt(0)
    L_wd:
    """)
    for i in range(16):
        A(f"ds_read_b64_tr_b16 v[{vVF+2*i}:{vVF+2*i+1}], v{vVA+(i&7)} offset:{256*(i>>3)}")
    A("s_waitcnt lgkmcnt(0)\ns_cbranch_scc1 L_nv")
    issue(1)
    A("L_nv:")
    for i in range(16):
        A(f"v_mfma_f32_16x16x16_bf16 v[{vO+4*i}:{vO+4*i+3}], v[{vVF+2*i}:{vVF+2*i+1}], v[{vP}:{vP+1}], v[{vO+4*i}:{vO+4*i+3}]")
    A(f"s_cmp_eq_u32 s{sNext}, 0\ns_cbranch_scc0 L_loop")
    A("L_pass_end:")
    A(f"""
    s_add_u32 s{sPass}, s{sPass}, 1
    s_cmp_ge_u32 s{sPass}, 8
    s_cbranch_scc1 L_done
    s_lshl_b32 s{sTmp}, s{sPass}, 11
    v_add_u32 v{vT0}, s{sTmp}, v{vRO}
    global_load_dwordx4 v[{vE}:{vE+3}], v{vT0}, s[{sBT}:{sBT+1}]
    """)
    pass_limits()
    A("s_waitcnt vmcnt(0)\ns_branch L_pass")
    A("L_done:")
    stamp()
    vCn = vE
    if one:
        A(f"v_and_b32 v{vT2}, 3, v{vLane}\nv_lshlrev_b32 v{vT2}, 6, v{vT2}\nglobal_load_dword v{vCn}, v{vT2}, s[{sDBG}:{sDBG+1}] sc1")
    A(f"""
    v_mov_b32 v{vT1}, v{vL}
    v_mul_u32_u24 v{vT3}, 1040, v{vQi}
    v_lshl_add_u32 v{vT3}, v{vG}, 4, v{vT3}
    v_permlane32_swap_b32 v{vL}, v{vT1}
    v_add_u32 v{vT3}, s{sLB}, v{vT3}
    v_add_f32 v{vL}, v{vL}, v{vT1}
    v_mov_b32 v{vT1}, v{vL}
    s_lshl_b32 s{sTmp}, s{sW}, 3
    s_add_u32 s{sTmp}, s{sTmp}, {MLL}
    v_permlane16_swap_b32 v{vL}, v{vT1}
    v_lshlrev_b32 v{vT0}, 5, v{vQi}
    v_add_u32 v{vT0}, s{sTmp}, v{vT0}
    v_mov_b32 v{vAl}, v{vM}
    v_add_f32 v{vAl+1}, v{vL}, v{vT1}
    s_waitcnt vmcnt({1 if one else 0})
    """)
    for i in range(16):
        A(f"ds_write_b128 v{vT3}, v[{vO+4*i}:{vO+4*i+3}] offset:{64*i}")
    A(f"ds_write_b64 v{vT0}, v[{vAl}:{vAl+1}]")
    A(f"""
    s_lshl_b32 s{sTmp}, s{sW}, 7
    s_add_u32 s{sTmp}, s{sTmp}, {MLL}
    v_and_b32 v{vT0}, 15, v{vLane}
    v_lshlrev_b32 v{vT0}, 3, v{vT0}
    v_add_u32 v{vT0}, s{sTmp}, v{vT0}
    s_mul_i32 s{sTmp}, s{sW}, {4*1040}
    v_add_u32 v{vT3}, s{sTmp}, v{vRO}
    s_waitcnt lgkmcnt(0)
    s_barrier
    ds_read_b64 v[{vAl}:{vAl+1}], v{vT0}
    """)
    for k in range(4):
        for w in range(4):
            r = vO + 16*k + 4*w
            A(f"ds_read_b128 v[{r}:{r+3}], v{vT3} offset:{w*WSTRIDE + k*1040}")
    A(f"""
    s_waitcnt lgkmcnt(15)
    s_nop 0
    v_max_f32_dpp v{vT0}, v{vAl}, v{vAl} quad_perm:[1,0,3,2] row_mask:0xf bank_mask:0xf
    s_nop 1
    v_max_f32_dpp v{vX}, v{vT0}, v{vT0} quad_perm:[2,3,0,1] row_mask:0xf bank_mask:0xf
    v_sub_f32 v{vT0}, v{vAl}, v{vX}
    v_exp_f32 v{vT0}, v{vT0}
    s_nop 0
    v_mul_f32 v{vT1}, v{vT0}, v{vAl+1}
    """)
    for j in range(16): A(f"v_readlane_b32 s{sF+j}, v{vT0}, {j}")
    A(f"""
    v_add_f32_dpp v{vT2}, v{vT1}, v{vT1} quad_perm:[1,0,3,2] row_mask:0xf bank_mask:0xf
    s_nop 1
    v_add_f32_dpp v{vX+1}, v{vT2}, v{vT2} quad_perm:[2,3,0,1] row_mask:0xf bank_mask:0xf
    """)
    st = "sc1" if one else ""
    for k in range(4):
        r = vO + 16*k
        A(f"s_waitcnt lgkmcnt({12-4*k})")
        for j in range(4): A(f"v_mul_f32 v{r+j}, s{sF+4*k}, v{r+j}")
        for w in range(1, 4):
            for j in range(4): A(f"v_fmac_f32 v{r+j}, s{sF+4*k+w}, v{r+4*w+j}")
        A(f"buffer_store_dwordx4 v[{r}:{r+3}], v{vRO}, s[{rW}:{rW+3}], s{sRow+k} offen {st}")
    A(f"s_mov_b64 exec, 0x1111\nbuffer_store_dwordx2 v[{vX}:{vX+1}], v{vMLO}, s[{rW}:{rW+3}], 0 offen {st}\ns_mov_b64 exec, -1")
    stamp()

    def consumer(poll):
        vD = vQ
        vML = vKF
        vA0, vA3, vA4, vM0, vM3, vM4 = vVF, vVF+1, vVF+2, vVF+3, vVF+4, vVF+5
        packed = 0
        for b in range(8): packed |= (NSH + NB[b]) << (8*b)
        ld = "sc1" if poll else ""
        A(f"""
        s_lshr_b32 s{sB}, s2, 5
        s_lshl_b32 s{sTmp}, s{sB}, 3
        s_mov_b32 s{sF}, {packed & 0xffffffff}
        s_mov_b32 s{sF+1}, {packed >> 32}
        s_lshr_b64 s[{sF}:{sF+1}], s[{sF}:{sF+1}], s{sTmp}
        s_and_b32 s{sF}, s{sF}, 0xff
        s_mul_i32 s{sTmp}, s{sB}, {SLOTS*16}
        s_bfe_u32 s{sTmp2}, s2, 0x40001
        s_add_u32 s{sTmp}, s{sTmp}, s{sTmp2}
        v_lshrrev_b32 v{vT0}, 3, v{vLane}
        v_lshl_add_u32 v{vT1}, v{vT0}, 4, s{sTmp}
        s_and_b32 s{sTmp}, s2, 1
        s_lshl_b32 s{sTmp}, s{sTmp}, 2
        s_add_u32 s{sTmp}, s{sTmp}, s{sW}
        s_lshl_b32 s{sF+1}, s{sTmp}, 7
        v_and_b32 v{vT2}, 7, v{vLane}
        v_lshl_add_u32 v{vT2}, v{vT2}, 4, s{sF+1}
        v_lshl_add_u32 v{vA0}, v{vT1}, 10, v{vT2}
        v_lshlrev_b32 v{vM0}, 3, v{vT1}
        v_add_u32 v{vM0}, {ML_OFF}, v{vM0}
        v_add_u32 v{vT1}, 24, v{vT0}
        v_cmp_gt_u32 s[{sMk}:{sMk+1}], s{sF}, v{vT1}
        v_add_u32 v{vT1}, 32, v{vT0}
        v_cmp_gt_u32 s[{sMk+2}:{sMk+3}], s{sF}, v{vT1}
        v_add_u32 v{vA3}, {3*131072}, v{vA0}
        v_add_u32 v{vA4}, {4*131072}, v{vA0}
        v_add_u32 v{vM3}, {3*1024}, v{vM0}
        v_add_u32 v{vM4}, {4*1024}, v{vM0}
        v_cndmask_b32 v{vA3}, v{vA0}, v{vA3}, s[{sMk}:{sMk+1}]
        v_cndmask_b32 v{vM3}, v{vM0}, v{vM3}, s[{sMk}:{sMk+1}]
        v_cndmask_b32 v{vA4}, v{vA0}, v{vA4}, s[{sMk+2}:{sMk+3}]
        v_cndmask_b32 v{vM4}, v{vM0}, v{vM4}, s[{sMk+2}:{sMk+3}]
        s_mov_b32 s{sF+2}, 131072
        s_mov_b32 s{sF+3}, 262144
        s_mov_b32 s{sCnt}, 0
        """)
        if poll:
            A(f"""
            s_waitcnt vmcnt(5)
            L_cpoll:
            v_cmp_gt_u32 vcc, 64, v{vCn}
            s_cbranch_vccz L_poll
            s_add_u32 s{sCnt}, s{sCnt}, 1
            s_cmp_ge_u32 s{sCnt}, 0x10000
            s_cbranch_scc1 L_poll
            s_sleep 4
            v_and_b32 v{vT2}, 3, v{vLane}
            v_lshlrev_b32 v{vT2}, 6, v{vT2}
            global_load_dword v{vCn}, v{vT2}, s[{sDBG}:{sDBG+1}] sc1
            s_waitcnt vmcnt(0)
            s_branch L_cpoll
            L_poll:
            """)
        addr = [(vA0, "0", vM0, 0), (vA0, f"s{sF+2}", vM0, 1024), (vA0, f"s{sF+3}", vM0, 2048), (vA3, "0", vM3, 0), (vA4, "0", vM4, 0)]
        for k, (a, so, m, mo) in enumerate(addr):
            A(f"buffer_load_dwordx2 v[{vML+2*k}:{vML+2*k+1}], v{m}, s[{rW}:{rW+3}], 0 offen offset:{mo} {ld}")
        for k, (a, so, m, mo) in enumerate(addr):
            A(f"buffer_load_dwordx4 v[{vD+4*k}:{vD+4*k+3}], v{a}, s[{rW}:{rW+3}], {so} offen {ld}")
        A("s_waitcnt vmcnt(0)")
        if poll:
            regs = [vML+i for i in range(10)] + [vD+i for i in range(20)]
            A(f"v_max3_u32 v{vT0}, v{regs[0]}, v{regs[1]}, v{regs[2]}\nv_max3_u32 v{vT1}, v{regs[3]}, v{regs[4]}, v{regs[5]}")
            i = 6; t = 0
            while i < 30:
                A(f"v_max3_u32 v{vT0+t}, v{vT0+t}, v{regs[i]}, v{regs[i+1]}"); i += 2; t ^= 1
            A(f"""
            v_max_u32 v{vT0}, v{vT0}, v{vT1}
            v_cmp_eq_u32 vcc, -1, v{vT0}
            s_cbranch_vccz L_got
            s_add_u32 s{sCnt}, s{sCnt}, 1
            s_cmp_ge_u32 s{sCnt}, 0x10000
            s_cbranch_scc1 L_got
            s_sleep {sleep}
            s_branch L_poll
            L_got:
            """)
        stamp()
        A(f"""
        v_mov_b32 v{vT3}, {NEGBIG}
        v_cndmask_b32 v{vML+6}, v{vT3}, v{vML+6}, s[{sMk}:{sMk+1}]
        v_cndmask_b32 v{vML+8}, v{vT3}, v{vML+8}, s[{sMk+2}:{sMk+3}]
        v_max3_f32 v{vT0}, v{vML}, v{vML+2}, v{vML+4}
        v_max3_f32 v{vT0}, v{vT0}, v{vML+6}, v{vML+8}
        s_nop 1
        v_max_f32_dpp v{vT0}, v{vT0}, v{vT0} row_ror:8 row_mask:0xf bank_mask:0xf
        v_mov_b32 v{vT1}, v{vT0}
        s_nop 1
        v_permlane32_swap_b32 v{vT0}, v{vT1}
        v_max_f32 v{vT0}, v{vT0}, v{vT1}
        v_mov_b32 v{vT1}, v{vT0}
        s_nop 1
        v_permlane16_swap_b32 v{vT0}, v{vT1}
        v_max_f32 v{vT0}, v{vT0}, v{vT1}
        """)
        for k in range(5): A(f"v_sub_f32 v{vML+2*k}, v{vML+2*k}, v{vT0}")
        for k in range(5): A(f"v_exp_f32 v{vML+2*k}, v{vML+2*k}")
        vAc = vO
        for j in range(4): A(f"v_mul_f32 v{vAc+j}, v{vML}, v{vD+j}")
        A(f"v_mul_f32 v{vAc+4}, v{vML}, v{vML+1}")
        for k in range(1, 5):
            for j in range(4): A(f"v_fmac_f32 v{vAc+j}, v{vML+2*k}, v{vD+4*k+j}")
            A(f"v_fmac_f32 v{vAc+4}, v{vML+2*k}, v{vML+2*k+1}")
        for j in range(5): A(f"v_add_f32_dpp v{vAc+j}, v{vAc+j}, v{vAc+j} row_ror:8 row_mask:0xf bank_mask:0xf")
        for op in ("v_permlane32_swap_b32", "v_permlane16_swap_b32"):
            for j in range(5): A(f"v_mov_b32 v{vAc+8+j}, v{vAc+j}")
            for j in range(5): A(f"{op} v{vAc+j}, v{vAc+8+j}")
            for j in range(5): A(f"v_add_f32 v{vAc+j}, v{vAc+j}, v{vAc+8+j}")
        A(f"""
        v_rcp_f32 v{vT0}, v{vAc+4}
        s_lshr_b32 s{sTmp}, s2, 1
        s_lshl_b32 s{sTmp}, s{sTmp}, 9
        s_lshr_b32 s{sTmp2}, s{sF+1}, 1
        s_add_u32 s{sTmp}, s{sTmp}, s{sTmp2}
        v_lshl_add_u32 v{vT1}, v{vLane}, 3, s{sTmp}
        """)
        for j in range(4): A(f"v_mul_f32 v{vAc+j}, v{vAc+j}, v{vT0}")
        A(f"""
        v_cvt_pk_bf16_f32 v{vAc}, v{vAc}, v{vAc+1}
        v_cvt_pk_bf16_f32 v{vAc+1}, v{vAc+2}, v{vAc+3}
        s_mov_b64 exec, 0xff
        global_store_dwordx2 v{vT1}, v[{vAc}:{vAc+1}], s[{sOUT}:{sOUT+1}]
        """)
    if one:
        consumer(True)
    if prof == 2:
        A("s_mov_b64 exec, -1\ns_waitcnt vmcnt(0)")
        stamp()
        a, b = diag
        A(f"""
        s_nop 1
        v_readlane_b32 s{sF}, v{vPf}, 0
        v_readlane_b32 s{sF+1}, v{vPf}, {a}
        v_readlane_b32 s{sF+2}, v{vPf}, {b}
        s_sub_u32 s{sF+1}, s{sF+2}, s{sF+1}
        s_min_u32 s{sF+1}, s{sF+1}, 20000
        s_mul_i32 s{sF+1}, s{sF+1}, {diagmul}
        """)
        if diagglob:
            A(f"""
            s_not_b32 s{sF+3}, s{sF}
            v_mov_b32 v{vT0}, 32
            v_mov_b32 v{vT1}, s{sF+3}
            s_mov_b64 exec, 1
            global_atomic_umax v{vT0}, v{vT1}, s[{sDBG}:{sDBG+1}] sc1
            s_waitcnt vmcnt(0)
            L_spin0:
            s_memrealtime s[{sSt}:{sSt+1}]
            s_waitcnt lgkmcnt(0)
            s_sub_u32 s{sF+2}, s{sSt}, s{sF}
            s_cmp_lt_u32 s{sF+2}, 8000
            s_cbranch_scc1 L_spin0
            global_load_dword v{vT1}, v{vT0}, s[{sDBG}:{sDBG+1}] sc1
            s_waitcnt vmcnt(0)
            v_readfirstlane_b32 s{sF+3}, v{vT1}
            s_not_b32 s{sF+3}, s{sF+3}
            s_sub_u32 s{sF+4}, s{sF}, s{sF+3}
            s_cmp_lt_u32 s{sF+4}, 3000
            s_cselect_b32 s{sF}, s{sF+3}, s{sF}
            """)
            if diagglob == 2:
                A(f"v_readlane_b32 s{sF+2}, v{vPf}, {b}\ns_sub_u32 s{sF+1}, s{sF+2}, s{sF}\ns_min_u32 s{sF+1}, s{sF+1}, 20000\ns_mul_i32 s{sF+1}, s{sF+1}, {diagmul}")
        if diagwg >= 0: A(f"s_cmp_eq_u32 s2, {diagwg}\ns_cselect_b32 s{sF+1}, s{sF+1}, 0")
        A(f"""
        s_add_u32 s{sF+1}, s{sF+1}, 10000
        L_spin:
        s_memrealtime s[{sSt}:{sSt+1}]
        s_waitcnt lgkmcnt(0)
        s_sub_u32 s{sF+2}, s{sSt}, s{sF}
        s_cmp_lt_u32 s{sF+2}, s{sF+1}
        s_cbranch_scc1 L_spin
        """)
    if prof == 1:
        A("s_mov_b64 exec, -1\ns_waitcnt vmcnt(0)")
        stamp()
        A(f"""
        s_getreg_b32 s{sTmp}, hwreg(HW_REG_XCC_ID)
        v_writelane_b32 v{vPf}, s{sTmp}, 62
        v_writelane_b32 v{vPf}, s{sCnt}, 63
        s_lshl_b32 s{sTmp}, s2, 2
        s_add_u32 s{sTmp}, s{sTmp}, s{sW}
        s_lshl_b32 s{sTmp}, s{sTmp}, 8
        s_add_u32 s{sTmp}, s{sTmp}, {PROF_OFF}
        v_lshlrev_b32 v{vT0}, 2, v{vLane}
        buffer_store_dword v{vPf}, v{vT0}, s[{rW}:{rW+3}], s{sTmp} offen
        """)
    A("L_end:\ns_endpgm")
    def kd(name, nv):
        A(f""".section .rodata,"a"
.p2align 6
.amdhsa_kernel {name}
.amdhsa_next_free_vgpr {nv}
.amdhsa_next_free_sgpr {NS}
.amdhsa_accum_offset {(nv+3)//4*4}
.amdhsa_group_segment_fixed_size 0
.amdhsa_kernarg_size 64
.amdhsa_user_sgpr_count 2
.amdhsa_user_sgpr_kernarg_segment_ptr 1
.amdhsa_system_sgpr_workgroup_id_x 1
.end_amdhsa_kernel""")
    if not one:
        prof_save = prof
        A(f".globl combine_kernel\n.p2align 8\n.type combine_kernel,@function\ncombine_kernel:")
        A(f"""
        s_cmp_ge_u32 s2, {NWG}
        s_cbranch_scc1 L_end2
        s_load_dwordx16 s[4:19], s[0:1], 0
        v_lshrrev_b32 v{vT0}, 6, v0
        v_and_b32 v{vLane}, 63, v0
        v_readfirstlane_b32 s{sW}, v{vT0}
        s_waitcnt lgkmcnt(0)
        s_mov_b32 s{rW}, s{sWS}
        s_and_b32 s{rW+1}, s{sWS+1}, 0xffff
        s_mov_b32 s{rW+2}, {WS_BYTES}
        s_mov_b32 s{rW+3}, 0x20000
        """)
        assert not prof
        consumer(False)
        A("L_end2:\ns_endpgm")
    kd(KN, NV)
    if not one: kd("combine_kernel", NV)
    return A.text()

if __name__ == "__main__":
    out = sys.argv[1]
    kw = {}
    for kv in sys.argv[2:]:
        k, v = kv.split("=")
        if "," in v: kw[k] = tuple(int(x) for x in v.split(","))
        else: kw[k] = int(v) if v.lstrip("-").isdigit() else v.replace("+", " ")
    open(out, "w").write(gen(**kw))
```

```python
import sys
NAME = "standalone__paged_block_table_kv_radixattention__sampling"
KN = NAME + "_kernel"

class Asm:
    def __init__(self):
        self.L = []
    def __call__(self, s):
        for line in s.strip("\n").split("\n"):
            line = line.strip()
            if not line: continue
            self.L.append(line if line.endswith(":") or line.startswith(".") or line.startswith(";") else "    " + line)
    def text(self): return "\n".join(self.L) + "\n"

HEADER = """; Kernarg layout for this problem (64 bytes, ptrs only, base s[0:1]):
"""

def gen(mode="1k", prof=0, NSH=5, NB=(31, 28, 24, 20, 34, 30, 26, 23), pol="nt", sleep=2, diag=None, diagwg=-1, diagmul=10, diagglob=0, stpol=None, noclear=0, nohs=0):
    NWG = 256
    NSHWG = 8 * NSH
    assert NSHWG + sum(NB) == NWG
    SLOTS = 40
    assert NSH + max(NB) <= SLOTS and NSH + min(NB) >= 24
    ML_OFF = 8 * SLOTS * 16 * 1024
    WS_BYTES = ML_OFF + 8 * SLOTS * 16 * 8
    PROF_OFF = 8 << 20
    WSTRIDE = 16896
    MLL = 4 * WSTRIDE
    LDS = MLL + 512
    KVB = 2304 * 65536
    NEGBIG = 0xFF000000
    CSC = 0x3DB8AA3B
    one = mode == "1k"
    if diag is not None: prof = 2
    A = Asm()
    vLane, vG, vQi = 0, 1, 2
    vT0, vT1, vT2, vT3 = 3, 4, 5, 6
    vCtx, vC, vM, vL = 7, 8, 9, 10
    vAl = 12
    vP = 14
    vS = 16
    vB = 20
    vLim = 24
    vE = 28
    vKA = 32
    vDO = 36
    vVA = 40
    vX = 48
    vPf = 52
    vQO = 53
    vMLO = 54
    vRO = 55
    vQ = 56
    vKF = 88
    vVF = 120
    vO = 152
    NV = 216
    sQ, sK, sV, sBT, sCTX, sOUT, sDBG, sWS = 4, 6, 8, 10, 12, 14, 16, 18
    rK, rV, rW = 20, 24, 28
    sW = 32; sB = 33; sKk = 34; sR = 35; sSlot = 36; sShared = 37
    sRS = 38; sHI = 39
    sEn = 40
    sT = 45; sTend = 46; sJS = 47; sOM = 48; sOC = 49; sPS = 50; sPB = 51
    sPos = 52; sPosN = 53; sOff = 54; sOff2 = 55; sLB = 56
    sQA = 57; sQB = 58; sTmp = 59; sTmp2 = 60; sPass = 61; sT0 = 62; sNext = 63
    sRow = 64
    sMk = 68
    sF = 76
    sSt = 92
    sCnt = 94; sNinf = 95; sIt = 96
    NS = 100
    pidx = [0]
    def profon(): return prof
    def stamp():
        if not profon(): return
        A(f"s_memrealtime s[{sSt}:{sSt+1}]\ns_waitcnt lgkmcnt(0)\nv_writelane_b32 v{vPf}, s{sSt}, {pidx[0]}")
        pidx[0] += 1

    A(HEADER)
    if prof == 1: A("; prof=1")
    if one:
        A(f"; @launch grid=({NWG},1,1) block=(256,1,1) lds={LDS}")
    else:
        A(f"; @launch kernel={KN} grid=({NWG},1,1) block=(256,1,1) lds={LDS}")
        A(f"; @launch kernel=combine_kernel grid=({NWG},1,1) block=(256,1,1) lds=0")
    A('.amdgcn_target "amdgcn-amd-amdhsa--gfx950"\n.text')
    A(f".globl {KN}\n.p2align 8\n.type {KN},@function\n{KN}:")
    A(f"s_cmp_ge_u32 s2, {NWG}\ns_cbranch_scc1 L_end")
    if prof: A(f"v_mov_b32 v{vPf}, 0\ns_mov_b32 s{sIt}, 16")
    stamp()
    A("s_load_dwordx16 s[4:19], s[0:1], 0")
    A(f"""
    v_lshrrev_b32 v{vT0}, 6, v0
    v_and_b32 v{vLane}, 63, v0
    v_readfirstlane_b32 s{sW}, v{vT0}
    v_lshrrev_b32 v{vG}, 4, v{vLane}
    v_and_b32 v{vQi}, 15, v{vLane}
    s_mov_b32 s{sNinf}, 0xff800000
    s_cmp_lt_u32 s2, {NSHWG}
    s_cbranch_scc1 L_role_sh
    """)
    cum = [0]
    for n in NB: cum.append(cum[-1] + n)
    A(f"s_sub_u32 s{sTmp}, s2, {NSHWG}\ns_mov_b32 s{sB}, 0\ns_mov_b32 s{sKk}, 0\ns_mov_b32 s{sR}, {(1<<32)//NB[0]+1}")
    for b in range(1, 8):
        A(f"s_cmp_ge_u32 s{sTmp}, {cum[b]}\ns_cselect_b32 s{sB}, {b}, s{sB}\ns_cselect_b32 s{sKk}, {cum[b]}, s{sKk}\ns_cselect_b32 s{sR}, {(1<<32)//NB[b]+1}, s{sR}")
    A(f"""
    s_sub_u32 s{sKk}, s{sTmp}, s{sKk}
    s_add_u32 s{sSlot}, s{sKk}, {NSH}
    s_mov_b32 s{sShared}, 0
    s_mov_b32 s{sRS}, 9
    s_mov_b32 s{sJS}, 3
    s_mov_b32 s{sOM}, 7
    s_mov_b32 s{sOC}, 0
    s_mov_b32 s{sPS}, 1
    s_mov_b32 s{sPB}, 4096
    s_mov_b32 s{sQA}, 2
    s_lshl_b32 s{sQB}, s{sB}, 4
    s_lshl_b32 s{sTmp2}, s{sB}, 11
    s_add_u32 s{sTmp2}, s{sTmp2}, 1024
    s_branch L_role_done
    L_role_sh:
    s_and_b32 s{sB}, s2, 7
    s_lshr_b32 s{sKk}, s2, 3
    s_mov_b32 s{sR}, {(1<<32)//NSH+1}
    s_mov_b32 s{sSlot}, s{sKk}
    s_mov_b32 s{sShared}, 1
    s_mov_b32 s{sRS}, 12
    s_mov_b32 s{sJS}, 0
    s_mov_b32 s{sOM}, 0
    s_lshl_b32 s{sOC}, s{sB}, 9
    s_mov_b32 s{sPS}, 4
    s_mov_b32 s{sPB}, 0
    s_mov_b32 s{sQA}, 16
    s_lshl_b32 s{sQB}, s{sB}, 1
    s_mov_b32 s{sTmp2}, 0
    L_role_done:
    s_lshl_b32 s{sHI}, 8, s{sRS}
    s_mul_i32 s{sLB}, s{sW}, {WSTRIDE}
    v_lshlrev_b32 v{vRO}, 4, v{vLane}
    v_add_u32 v{vT3}, s{sTmp2}, v{vRO}
    v_lshrrev_b32 v{vT0}, 1, v{vQi}
    v_mul_u32_u24 v{vT0}, s{sQA}, v{vT0}
    v_and_b32 v{vT1}, 1, v{vQi}
    v_add3_u32 v{vT0}, v{vT0}, v{vT1}, s{sQB}
    v_lshrrev_b32 v{vT2}, 4, v{vT0}
    v_lshlrev_b32 v{vT2}, 2, v{vT2}
    v_lshlrev_b32 v{vQO}, 9, v{vT0}
    v_lshl_add_u32 v{vQO}, v{vG}, 4, v{vQO}
    s_waitcnt lgkmcnt(0)
    global_load_dword v{vCtx}, v{vT2}, s[{sCTX}:{sCTX+1}]
    global_load_dwordx4 v[{vE}:{vE+3}], v{vT3}, s[{sBT}:{sBT+1}]
    """)
    stamp()
    for s in range(8):
        A(f"global_load_dwordx4 v[{vQ+4*s}:{vQ+4*s+3}], v{vQO}, s[{sQ}:{sQ+1}] offset:{64*s}")
    for r, p, n in ((rK, sK, KVB), (rV, sV, KVB), (rW, sWS, WS_BYTES if not prof else 16 << 20)):
        A(f"s_mov_b32 s{r}, s{p}\ns_and_b32 s{r+1}, s{p+1}, 0xffff\ns_mov_b32 s{r+2}, {n}\ns_mov_b32 s{r+3}, 0x20000")
    for k in range(4):
        A(f"""
        s_lshl_b32 s{sTmp}, s{sW}, 1
        s_add_u32 s{sTmp}, s{sTmp}, {k>>1}
        s_mul_i32 s{sTmp}, s{sTmp}, s{sQA}
        s_add_u32 s{sTmp}, s{sTmp}, s{sQB}
        s_add_u32 s{sTmp}, s{sTmp}, {k&1}
        s_lshr_b32 s{sTmp2}, s{sTmp}, 4
        s_mul_i32 s{sTmp2}, s{sTmp2}, {SLOTS}
        s_add_u32 s{sTmp2}, s{sTmp2}, s{sSlot}
        s_lshl_b32 s{sTmp2}, s{sTmp2}, 4
        s_and_b32 s{sTmp}, s{sTmp}, 15
        s_add_u32 s{sTmp}, s{sTmp}, s{sTmp2}
        s_lshl_b32 s{sRow+k}, s{sTmp}, 10
        """)
    A(f"""
    v_mov_b32 v{vMLO}, -1
    s_lshr_b32 s{sTmp}, s{sRow}, 7
    s_add_u32 s{sTmp}, s{sTmp}, {ML_OFF}
    v_writelane_b32 v{vMLO}, s{sTmp}, 0
    s_lshr_b32 s{sTmp}, s{sRow+1}, 7
    s_add_u32 s{sTmp}, s{sTmp}, {ML_OFF}
    v_writelane_b32 v{vMLO}, s{sTmp}, 4
    s_lshr_b32 s{sTmp}, s{sRow+2}, 7
    s_add_u32 s{sTmp}, s{sTmp}, {ML_OFF}
    v_writelane_b32 v{vMLO}, s{sTmp}, 8
    s_lshr_b32 s{sTmp}, s{sRow+3}, 7
    s_add_u32 s{sTmp}, s{sTmp}, {ML_OFF}
    v_writelane_b32 v{vMLO}, s{sTmp}, 12
    """)
    nclr = 0
    if one and not noclear:
        for r in range(4): A(f"v_mov_b32 v{vX+r}, -1")
        for k in range(4):
            A(f"buffer_store_dwordx4 v[{vX}:{vX+3}], v{vRO}, s[{rW}:{rW+3}], s{sRow+k} offen sc1")
        A(f"s_mov_b64 exec, 0x1111\nbuffer_store_dwordx2 v[{vX}:{vX+1}], v{vMLO}, s[{rW}:{rW+3}], 0 offen sc1\ns_mov_b64 exec, -1")
        nclr = 5
    A(f"v_lshrrev_b32 v{vT0}, 5, v{vLane}\nv_and_b32 v{vT1}, 31, v{vLane}")
    for jl in range(4):
        A(f"""
        v_add_u32 v{vT2}, {2*jl}, v{vT0}
        v_lshlrev_b32 v{vT3}, 1, v{vT2}
        v_xor_b32 v{vT3}, v{vT3}, v{vT1}
        v_lshlrev_b32 v{vT2}, s{sRS}, v{vT2}
        v_lshl_add_u32 v{vDO+jl}, v{vT3}, 4, v{vT2}
        """)
        if jl: A(f"v_subrev_u32 v{vDO+jl}, {1024*jl}, v{vDO+jl}")
    A(f"""
    v_and_b32 v{vT0}, 7, v{vQi}
    v_lshlrev_b32 v{vT0}, 1, v{vT0}
    v_lshlrev_b32 v{vT1}, 9, v{vQi}
    v_add_u32 v{vT1}, s{sLB}, v{vT1}
    """)
    for sl in range(4):
        A(f"v_add_u32 v{vT2}, {4*sl}, v{vG}\nv_xor_b32 v{vT2}, v{vT2}, v{vT0}\nv_lshl_add_u32 v{vKA+sl}, v{vT2}, 4, v{vT1}")
    A(f"""
    v_lshrrev_b32 v{vT0}, 2, v{vLane}
    v_and_b32 v{vT1}, 3, v{vLane}
    v_lshlrev_b32 v{vT1}, 3, v{vT1}
    v_lshl_add_u32 v{vT1}, v{vT0}, 9, v{vT1}
    v_add_u32 v{vT1}, s{sLB}, v{vT1}
    v_add_u32 v{vT1}, 8192, v{vT1}
    v_and_b32 v{vT0}, 7, v{vT0}
    """)
    for il in range(8):
        A(f"v_xor_b32 v{vT2}, {il}, v{vT0}\nv_lshl_add_u32 v{vVA+il}, v{vT2}, 5, v{vT1}")
    for i in range(64): A(f"v_mov_b32 v{vO+i}, 0")
    A(f"v_mov_b32 v{vM}, {NEGBIG}\nv_mov_b32 v{vL}, 0\ns_mov_b32 s{sPass}, 8")
    A(f"s_waitcnt vmcnt({8+nclr})")
    stamp()
    A(f"""
    v_cmp_lt_i32 vcc, 0, v{vCtx}
    v_min_i32 v{vCtx}, 0x2000, v{vCtx}
    v_mov_b32 v{vT0}, 0x2000
    v_mov_b32 v{vT1}, {CSC}
    v_cndmask_b32 v{vCtx}, v{vT0}, v{vCtx}, vcc
    v_cndmask_b32 v{vC}, 0, v{vT1}, vcc
    s_cmp_eq_u32 s{sShared}, 1
    v_readfirstlane_b32 s{sTmp}, v{vCtx}
    s_cbranch_scc1 L_sh_setup
    s_sub_i32 s{sTmp}, s{sTmp}, 4095
    s_max_i32 s{sTmp}, s{sTmp}, 0
    s_lshr_b32 s{sTmp}, s{sTmp}, 1
    """)
    A(f"v_lshrrev_b32 v{vT0}, 1, v{vQi}\nv_lshrrev_b32 v{vT1}, 1, v{vG}\nv_sub_u32 v{vT1}, v{vCtx}, v{vT1}\nv_and_b32 v{vT2}, 1, v{vG}")
    for r in range(4):
        A(f"v_lshl_add_u32 v{vT3}, v{vT2}, 2, {r}\nv_cmp_eq_u32 vcc, v{vT3}, v{vT0}\ns_nop 1\nv_cndmask_b32 v{vLim+r}, 0, v{vT1}, vcc")
    A("s_branch L_range")
    A("L_sh_setup:")
    for b in range(1, 8):
        A(f"v_add_u32 v{vT0}, {2048*b}, v{vRO}\nglobal_load_dwordx4 v[{vKF+4*b}:{vKF+4*b+3}], v{vT0}, s[{sBT}:{sBT+1}]")
    for r in range(4):
        A(f"v_lshl_add_u32 v{vT3}, v{vG}, 2, {r}\nv_sub_u32 v{vLim+r}, v{vCtx}, v{vT3}")
    A(f"s_waitcnt vmcnt(0)\nv_mov_b32 v{vT0}, 0")
    for b in range(1, 8):
        for r in range(4):
            A(f"v_xor_b32 v{vT1}, v{vE+r}, v{vKF+4*b+r}\nv_or_b32 v{vT0}, v{vT0}, v{vT1}")
    A(f"""
    v_cmp_ne_u32 vcc, 0, v{vT0}
    s_mov_b32 s{sTmp}, 256
    s_cbranch_vccz L_range
    s_mov_b32 s{sPass}, 0
    """)
    def pass_limits():
        A(f"v_lshrrev_b32 v{vT0}, 1, v{vQi}\nv_cmp_eq_u32 vcc, s{sPass}, v{vT0}")
        for r in range(4):
            A(f"v_lshl_add_u32 v{vT3}, v{vG}, 2, {r}\nv_sub_u32 v{vT3}, v{vCtx}, v{vT3}\nv_cndmask_b32 v{vLim+r}, 0, v{vT3}, vcc")
    pass_limits()
    A("L_range:")
    A(f"""
    s_mul_i32 s{sT0}, s{sKk}, s{sTmp}
    s_add_u32 s{sTend}, s{sT0}, s{sTmp}
    s_mul_hi_u32 s{sT0}, s{sT0}, s{sR}
    s_mul_hi_u32 s{sTend}, s{sTend}, s{sR}
    s_add_u32 s{sT0}, s{sT0}, s{sW}
    s_mov_b32 s{sCnt}, 0
    """)
    def tile_addr():
        A(f"""
        s_lshr_b32 s{sTmp}, s{sT}, s{sJS}
        s_lshr_b32 s{sTmp2}, s{sTmp}, 2
        v_readlane_b32 s{sEn}, v{vE}, s{sTmp2}
        v_readlane_b32 s{sEn+1}, v{vE+1}, s{sTmp2}
        v_readlane_b32 s{sEn+2}, v{vE+2}, s{sTmp2}
        v_readlane_b32 s{sEn+3}, v{vE+3}, s{sTmp2}
        s_and_b32 s{sTmp2}, s{sT}, s{sOM}
        s_lshl_b32 s{sTmp2}, s{sTmp2}, 13
        s_add_u32 s{sTmp2}, s{sTmp2}, s{sOC}
        s_bitcmp1_b32 s{sTmp}, 0
        s_cselect_b32 s{sEn}, s{sEn+1}, s{sEn}
        s_cselect_b32 s{sEn+2}, s{sEn+3}, s{sEn+2}
        s_bitcmp1_b32 s{sTmp}, 1
        s_cselect_b32 s{sEn}, s{sEn+2}, s{sEn}
        s_lshl_b32 s{sOff}, s{sEn}, 16
        s_add_u32 s{sOff}, s{sOff}, s{sTmp2}
        s_add_u32 s{sOff2}, s{sOff}, s{sHI}
        s_lshl_b32 s{sPosN}, s{sT}, s{sPS}
        s_add_u32 s{sPosN}, s{sPosN}, s{sPB}
        """)
    def issue(isv):
        r = rV if isv else rK
        for h in range(2):
            A(f"s_add_u32 m0, s{sLB}, {isv*8192 + h*4096}\ns_nop 0")
            for jl in range(4):
                A(f"buffer_load_dwordx4 v{vDO+jl}, s[{r}:{r+3}], s{sOff2 if h else sOff} offen offset:{1024*jl} {pol} lds")
    A("L_pass:")
    A(f"s_mov_b32 s{sT}, s{sT0}\ns_cmp_lt_u32 s{sT}, s{sTend}\ns_cselect_b32 s{sNext}, 1, 0\ns_cbranch_scc0 L_first_done")
    tile_addr(); issue(0); issue(1)
    A("L_first_done:")
    if one and not nohs:
        A(f"""
        s_cmp_lg_u32 s{sCnt}, 0
        s_cbranch_scc1 L_hs_done
        s_mov_b32 s{sCnt}, 1
        s_cmp_eq_u32 s{sNext}, 0
        s_cbranch_scc1 L_hs_w0
        s_waitcnt vmcnt(16)
        s_branch L_hs_bar
        L_hs_w0:
        s_waitcnt vmcnt(0)
        L_hs_bar:
        s_barrier
        s_cmp_lg_u32 s{sW}, 0
        s_cbranch_scc1 L_hs_done
        s_and_b32 s{sTmp}, s2, 3
        s_lshl_b32 s{sTmp}, s{sTmp}, 6
        v_mov_b32 v{vT0}, s{sTmp}
        v_mov_b32 v{vT1}, 1
        s_mov_b64 exec, 1
        global_atomic_add v{vT0}, v{vT1}, s[{sDBG}:{sDBG+1}] sc1
        s_mov_b64 exec, -1
        L_hs_done:
        """)
    A(f"s_cmp_eq_u32 s{sNext}, 0\ns_cbranch_scc1 L_pass_end")
    A(".p2align 6\nL_loop:")
    A(f"s_mov_b32 s{sPos}, s{sPosN}\ns_add_u32 s{sT}, s{sT}, 4\ns_cmp_lt_u32 s{sT}, s{sTend}\ns_cselect_b32 s{sNext}, 1, 0")
    A("s_cbranch_scc0 L_na")
    tile_addr()
    A("L_na:")
    for r in range(4):
        A(f"v_cmp_lt_i32 s[{sMk+2*r}:{sMk+2*r+1}], s{sPos}, v{vLim+r}")
    A(f"v_mov_b32 v{vT0}, s{sNinf}")
    A("s_waitcnt vmcnt(8)")
    if prof:
        A(f"s_memrealtime s[{sSt}:{sSt+1}]\ns_waitcnt lgkmcnt(0)\ns_mov_b32 m0, s{sIt}\ns_add_u32 s{sIt}, s{sIt}, 1\ns_min_u32 s{sIt}, s{sIt}, 60\nv_writelane_b32 v{vPf}, s{sSt}, m0")
    for s in range(8):
        A(f"ds_read_b128 v[{vKF+4*s}:{vKF+4*s+3}], v{vKA+(s&3)} offset:{256*(s>>2)}")
    for r in range(4):
        A(f"v_cndmask_b32 v{vB+r}, v{vT0}, 0, s[{sMk+2*r}:{sMk+2*r+1}]")
    A(f"s_cmp_eq_u32 s{sNext}, 0\ns_waitcnt lgkmcnt(0)\ns_cbranch_scc1 L_nk")
    issue(0)
    A("L_nk:")
    for s in range(8):
        c = "0" if s == 0 else f"v[{vS}:{vS+3}]"
        A(f"v_mfma_f32_16x16x32_bf16 v[{vS}:{vS+3}], v[{vKF+4*s}:{vKF+4*s+3}], v[{vQ+4*s}:{vQ+4*s+3}], {c}")
    A("s_nop 7")
    for r in range(4):
        A(f"v_fma_f32 v{vX+r}, v{vS+r}, v{vC}, v{vB+r}")
    A(f"""
    v_max3_f32 v{vT0}, v{vX}, v{vX+1}, v{vX+2}
    v_max3_f32 v{vT0}, v{vT0}, v{vX+3}, v{vM}
    v_mov_b32 v{vT1}, v{vT0}
    s_nop 1
    v_permlane32_swap_b32 v{vT0}, v{vT1}
    v_max_f32 v{vT0}, v{vT0}, v{vT1}
    v_mov_b32 v{vT1}, v{vT0}
    s_nop 1
    v_permlane16_swap_b32 v{vT0}, v{vT1}
    v_max_f32 v{vT0}, v{vT0}, v{vT1}
    v_sub_f32 v{vAl}, v{vM}, v{vT0}
    v_cmp_neq_f32 vcc, v{vM}, v{vT0}
    v_mov_b32 v{vM}, v{vT0}
    """)
    for r in range(4): A(f"v_sub_f32 v{vX+r}, v{vX+r}, v{vT0}")
    A(f"v_exp_f32 v{vAl}, v{vAl}")
    for r in range(4): A(f"v_exp_f32 v{vX+r}, v{vX+r}")
    A("s_cbranch_vccz L_nr")
    for i in range(32):
        A(f"v_pk_mul_f32 v[{vO+2*i}:{vO+2*i+1}], v[{vO+2*i}:{vO+2*i+1}], v[{vAl}:{vAl+1}] op_sel_hi:[1,0]")
    A("L_nr:")
    A(f"""
    v_fma_f32 v{vL}, v{vL}, v{vAl}, v{vX}
    v_add_f32 v{vT0}, v{vX+1}, v{vX+2}
    v_add_f32 v{vL}, v{vL}, v{vX+3}
    v_cvt_pk_bf16_f32 v{vP}, v{vX}, v{vX+1}
    v_cvt_pk_bf16_f32 v{vP+1}, v{vX+2}, v{vX+3}
    v_add_f32 v{vL}, v{vL}, v{vT0}
    s_cmp_eq_u32 s{sNext}, 0
    s_cbranch_scc1 L_wl
    s_waitcnt vmcnt(8)
    s_branch L_wd
    L_wl:
    s_waitcnt vmcnt(0)
    L_wd:
    """)
    for i in range(16):
        A(f"ds_read_b64_tr_b16 v[{vVF+2*i}:{vVF+2*i+1}], v{vVA+(i&7)} offset:{256*(i>>3)}")
    A("s_waitcnt lgkmcnt(0)\ns_cbranch_scc1 L_nv")
    issue(1)
    A("L_nv:")
    for i in range(16):
        A(f"v_mfma_f32_16x16x16_bf16 v[{vO+4*i}:{vO+4*i+3}], v[{vVF+2*i}:{vVF+2*i+1}], v[{vP}:{vP+1}], v[{vO+4*i}:{vO+4*i+3}]")
    A(f"s_cmp_eq_u32 s{sNext}, 0\ns_cbranch_scc0 L_loop")
    A("L_pass_end:")
    A(f"""
    s_add_u32 s{sPass}, s{sPass}, 1
    s_cmp_ge_u32 s{sPass}, 8
    s_cbranch_scc1 L_done
    s_lshl_b32 s{sTmp}, s{sPass}, 11
    v_add_u32 v{vT0}, s{sTmp}, v{vRO}
    global_load_dwordx4 v[{vE}:{vE+3}], v{vT0}, s[{sBT}:{sBT+1}]
    """)
    pass_limits()
    A("s_waitcnt vmcnt(0)\ns_branch L_pass")
    A("L_done:")
    stamp()
    vCn = vE
    if one:
        A(f"v_and_b32 v{vT2}, 3, v{vLane}\nv_lshlrev_b32 v{vT2}, 6, v{vT2}\nglobal_load_dword v{vCn}, v{vT2}, s[{sDBG}:{sDBG+1}] sc1")
    A(f"""
    v_mov_b32 v{vT1}, v{vL}
    v_mul_u32_u24 v{vT3}, 1040, v{vQi}
    v_lshl_add_u32 v{vT3}, v{vG}, 4, v{vT3}
    v_permlane32_swap_b32 v{vL}, v{vT1}
    v_add_u32 v{vT3}, s{sLB}, v{vT3}
    v_add_f32 v{vL}, v{vL}, v{vT1}
    v_mov_b32 v{vT1}, v{vL}
    s_lshl_b32 s{sTmp}, s{sW}, 3
    s_add_u32 s{sTmp}, s{sTmp}, {MLL}
    v_permlane16_swap_b32 v{vL}, v{vT1}
    v_lshlrev_b32 v{vT0}, 5, v{vQi}
    v_add_u32 v{vT0}, s{sTmp}, v{vT0}
    v_mov_b32 v{vAl}, v{vM}
    v_add_f32 v{vAl+1}, v{vL}, v{vT1}
    s_waitcnt vmcnt({1 if one else 0})
    """)
    for i in range(16):
        A(f"ds_write_b128 v{vT3}, v[{vO+4*i}:{vO+4*i+3}] offset:{64*i}")
    A(f"ds_write_b64 v{vT0}, v[{vAl}:{vAl+1}]")
    A(f"""
    s_lshl_b32 s{sTmp}, s{sW}, 7
    s_add_u32 s{sTmp}, s{sTmp}, {MLL}
    v_and_b32 v{vT0}, 15, v{vLane}
    v_lshlrev_b32 v{vT0}, 3, v{vT0}
    v_add_u32 v{vT0}, s{sTmp}, v{vT0}
    s_mul_i32 s{sTmp}, s{sW}, {4*1040}
    v_add_u32 v{vT3}, s{sTmp}, v{vRO}
    s_waitcnt lgkmcnt(0)
    s_barrier
    ds_read_b64 v[{vAl}:{vAl+1}], v{vT0}
    """)
    for k in range(4):
        for w in range(4):
            r = vO + 16*k + 4*w
            A(f"ds_read_b128 v[{r}:{r+3}], v{vT3} offset:{w*WSTRIDE + k*1040}")
    A(f"""
    s_waitcnt lgkmcnt(15)
    s_nop 0
    v_max_f32_dpp v{vT0}, v{vAl}, v{vAl} quad_perm:[1,0,3,2] row_mask:0xf bank_mask:0xf
    s_nop 1
    v_max_f32_dpp v{vX}, v{vT0}, v{vT0} quad_perm:[2,3,0,1] row_mask:0xf bank_mask:0xf
    v_sub_f32 v{vT0}, v{vAl}, v{vX}
    v_exp_f32 v{vT0}, v{vT0}
    s_nop 0
    v_mul_f32 v{vT1}, v{vT0}, v{vAl+1}
    """)
    for j in range(16): A(f"v_readlane_b32 s{sF+j}, v{vT0}, {j}")
    A(f"""
    v_add_f32_dpp v{vT2}, v{vT1}, v{vT1} quad_perm:[1,0,3,2] row_mask:0xf bank_mask:0xf
    s_nop 1
    v_add_f32_dpp v{vX+1}, v{vT2}, v{vT2} quad_perm:[2,3,0,1] row_mask:0xf bank_mask:0xf
    """)
    st = "sc1" if one else ""
    if stpol is not None: st = stpol
    for k in range(4):
        r = vO + 16*k
        A(f"s_waitcnt lgkmcnt({12-4*k})")
        for j in range(4): A(f"v_mul_f32 v{r+j}, s{sF+4*k}, v{r+j}")
        for w in range(1, 4):
            for j in range(4): A(f"v_fmac_f32 v{r+j}, s{sF+4*k+w}, v{r+4*w+j}")
        A(f"buffer_store_dwordx4 v[{r}:{r+3}], v{vRO}, s[{rW}:{rW+3}], s{sRow+k} offen {st}")
    A(f"s_mov_b64 exec, 0x1111\nbuffer_store_dwordx2 v[{vX}:{vX+1}], v{vMLO}, s[{rW}:{rW+3}], 0 offen {st}\ns_mov_b64 exec, -1")
    stamp()

    def consumer(poll):
        vD = vQ
        vML = vKF
        vA0, vA3, vA4, vM0, vM3, vM4 = vVF, vVF+1, vVF+2, vVF+3, vVF+4, vVF+5
        packed = 0
        for b in range(8): packed |= (NSH + NB[b]) << (8*b)
        ld = "sc1" if poll else ""
        A(f"""
        s_lshr_b32 s{sB}, s2, 5
        s_lshl_b32 s{sTmp}, s{sB}, 3
        s_mov_b32 s{sF}, {packed & 0xffffffff}
        s_mov_b32 s{sF+1}, {packed >> 32}
        s_lshr_b64 s[{sF}:{sF+1}], s[{sF}:{sF+1}], s{sTmp}
        s_and_b32 s{sF}, s{sF}, 0xff
        s_mul_i32 s{sTmp}, s{sB}, {SLOTS*16}
        s_bfe_u32 s{sTmp2}, s2, 0x40001
        s_add_u32 s{sTmp}, s{sTmp}, s{sTmp2}
        v_lshrrev_b32 v{vT0}, 3, v{vLane}
        v_lshl_add_u32 v{vT1}, v{vT0}, 4, s{sTmp}
        s_and_b32 s{sTmp}, s2, 1
        s_lshl_b32 s{sTmp}, s{sTmp}, 2
        s_add_u32 s{sTmp}, s{sTmp}, s{sW}
        s_lshl_b32 s{sF+1}, s{sTmp}, 7
        v_and_b32 v{vT2}, 7, v{vLane}
        v_lshl_add_u32 v{vT2}, v{vT2}, 4, s{sF+1}
        v_lshl_add_u32 v{vA0}, v{vT1}, 10, v{vT2}
        v_lshlrev_b32 v{vM0}, 3, v{vT1}
        v_add_u32 v{vM0}, {ML_OFF}, v{vM0}
        v_add_u32 v{vT1}, 24, v{vT0}
        v_cmp_gt_u32 s[{sMk}:{sMk+1}], s{sF}, v{vT1}
        v_add_u32 v{vT1}, 32, v{vT0}
        v_cmp_gt_u32 s[{sMk+2}:{sMk+3}], s{sF}, v{vT1}
        v_add_u32 v{vA3}, {3*131072}, v{vA0}
        v_add_u32 v{vA4}, {4*131072}, v{vA0}
        v_add_u32 v{vM3}, {3*1024}, v{vM0}
        v_add_u32 v{vM4}, {4*1024}, v{vM0}
        v_cndmask_b32 v{vA3}, v{vA0}, v{vA3}, s[{sMk}:{sMk+1}]
        v_cndmask_b32 v{vM3}, v{vM0}, v{vM3}, s[{sMk}:{sMk+1}]
        v_cndmask_b32 v{vA4}, v{vA0}, v{vA4}, s[{sMk+2}:{sMk+3}]
        v_cndmask_b32 v{vM4}, v{vM0}, v{vM4}, s[{sMk+2}:{sMk+3}]
        s_mov_b32 s{sF+2}, 131072
        s_mov_b32 s{sF+3}, 262144
        s_mov_b32 s{sCnt}, 0
        """)
        if poll:
            A(f"""
            s_waitcnt vmcnt(5)
            L_cpoll:
            v_cmp_gt_u32 vcc, {0 if nohs else 64}, v{vCn}
            s_cbranch_vccz L_poll
            s_add_u32 s{sCnt}, s{sCnt}, 1
            s_cmp_ge_u32 s{sCnt}, 0x10000
            s_cbranch_scc1 L_poll
            s_sleep 4
            v_and_b32 v{vT2}, 3, v{vLane}
            v_lshlrev_b32 v{vT2}, 6, v{vT2}
            global_load_dword v{vCn}, v{vT2}, s[{sDBG}:{sDBG+1}] sc1
            s_waitcnt vmcnt(0)
            s_branch L_cpoll
            L_poll:
            """)
        addr = [(vA0, "0", vM0, 0), (vA0, f"s{sF+2}", vM0, 1024), (vA0, f"s{sF+3}", vM0, 2048), (vA3, "0", vM3, 0), (vA4, "0", vM4, 0)]
        for k, (a, so, m, mo) in enumerate(addr):
            A(f"buffer_load_dwordx2 v[{vML+2*k}:{vML+2*k+1}], v{m}, s[{rW}:{rW+3}], 0 offen offset:{mo} {ld}")
        for k, (a, so, m, mo) in enumerate(addr):
            A(f"buffer_load_dwordx4 v[{vD+4*k}:{vD+4*k+3}], v{a}, s[{rW}:{rW+3}], {so} offen {ld}")
        A("s_waitcnt vmcnt(0)")
        if poll:
            regs = [vML+i for i in range(10)] + [vD+i for i in range(20)]
            A(f"v_max3_u32 v{vT0}, v{regs[0]}, v{regs[1]}, v{regs[2]}\nv_max3_u32 v{vT1}, v{regs[3]}, v{regs[4]}, v{regs[5]}")
            i = 6; t = 0
            while i < 30:
                A(f"v_max3_u32 v{vT0+t}, v{vT0+t}, v{regs[i]}, v{regs[i+1]}"); i += 2; t ^= 1
            A(f"""
            v_max_u32 v{vT0}, v{vT0}, v{vT1}
            v_cmp_eq_u32 vcc, -1, v{vT0}
            s_cbranch_vccz L_got
            s_add_u32 s{sCnt}, s{sCnt}, 1
            s_cmp_ge_u32 s{sCnt}, 0x10000
            s_cbranch_scc1 L_got
            s_sleep {sleep}
            s_branch L_poll
            L_got:
            """)
        stamp()
        A(f"""
        v_mov_b32 v{vT3}, {NEGBIG}
        v_cndmask_b32 v{vML+6}, v{vT3}, v{vML+6}, s[{sMk}:{sMk+1}]
        v_cndmask_b32 v{vML+8}, v{vT3}, v{vML+8}, s[{sMk+2}:{sMk+3}]
        v_max3_f32 v{vT0}, v{vML}, v{vML+2}, v{vML+4}
        v_max3_f32 v{vT0}, v{vT0}, v{vML+6}, v{vML+8}
        s_nop 1
        v_max_f32_dpp v{vT0}, v{vT0}, v{vT0} row_ror:8 row_mask:0xf bank_mask:0xf
        v_mov_b32 v{vT1}, v{vT0}
        s_nop 1
        v_permlane32_swap_b32 v{vT0}, v{vT1}
        v_max_f32 v{vT0}, v{vT0}, v{vT1}
        v_mov_b32 v{vT1}, v{vT0}
        s_nop 1
        v_permlane16_swap_b32 v{vT0}, v{vT1}
        v_max_f32 v{vT0}, v{vT0}, v{vT1}
        """)
        for k in range(5): A(f"v_sub_f32 v{vML+2*k}, v{vML+2*k}, v{vT0}")
        for k in range(5): A(f"v_exp_f32 v{vML+2*k}, v{vML+2*k}")
        vAc = vO
        for j in range(4): A(f"v_mul_f32 v{vAc+j}, v{vML}, v{vD+j}")
        A(f"v_mul_f32 v{vAc+4}, v{vML}, v{vML+1}")
        for k in range(1, 5):
            for j in range(4): A(f"v_fmac_f32 v{vAc+j}, v{vML+2*k}, v{vD+4*k+j}")
            A(f"v_fmac_f32 v{vAc+4}, v{vML+2*k}, v{vML+2*k+1}")
        for j in range(5): A(f"v_add_f32_dpp v{vAc+j}, v{vAc+j}, v{vAc+j} row_ror:8 row_mask:0xf bank_mask:0xf")
        for op in ("v_permlane32_swap_b32", "v_permlane16_swap_b32"):
            for j in range(5): A(f"v_mov_b32 v{vAc+8+j}, v{vAc+j}")
            for j in range(5): A(f"{op} v{vAc+j}, v{vAc+8+j}")
            for j in range(5): A(f"v_add_f32 v{vAc+j}, v{vAc+j}, v{vAc+8+j}")
        A(f"""
        v_rcp_f32 v{vT0}, v{vAc+4}
        s_lshr_b32 s{sTmp}, s2, 1
        s_lshl_b32 s{sTmp}, s{sTmp}, 9
        s_lshr_b32 s{sTmp2}, s{sF+1}, 1
        s_add_u32 s{sTmp}, s{sTmp}, s{sTmp2}
        v_lshl_add_u32 v{vT1}, v{vLane}, 3, s{sTmp}
        """)
        for j in range(4): A(f"v_mul_f32 v{vAc+j}, v{vAc+j}, v{vT0}")
        A(f"""
        v_cvt_pk_bf16_f32 v{vAc}, v{vAc}, v{vAc+1}
        v_cvt_pk_bf16_f32 v{vAc+1}, v{vAc+2}, v{vAc+3}
        s_mov_b64 exec, 0xff
        global_store_dwordx2 v{vT1}, v[{vAc}:{vAc+1}], s[{sOUT}:{sOUT+1}]
        """)
    if one:
        consumer(True)
    if prof == 2:
        A("s_mov_b64 exec, -1\ns_waitcnt vmcnt(0)")
        stamp()
        a, b = diag
        A(f"""
        s_nop 1
        v_readlane_b32 s{sF}, v{vPf}, 0
        v_readlane_b32 s{sF+1}, v{vPf}, {a}
        v_readlane_b32 s{sF+2}, v{vPf}, {b}
        s_sub_u32 s{sF+1}, s{sF+2}, s{sF+1}
        s_min_u32 s{sF+1}, s{sF+1}, 20000
        s_mul_i32 s{sF+1}, s{sF+1}, {diagmul}
        """)
        if diagglob:
            A(f"""
            s_not_b32 s{sF+3}, s{sF}
            v_mov_b32 v{vT0}, 32
            v_mov_b32 v{vT1}, s{sF+3}
            s_mov_b64 exec, 1
            global_atomic_umax v{vT0}, v{vT1}, s[{sDBG}:{sDBG+1}] sc1
            s_waitcnt vmcnt(0)
            L_spin0:
            s_memrealtime s[{sSt}:{sSt+1}]
            s_waitcnt lgkmcnt(0)
            s_sub_u32 s{sF+2}, s{sSt}, s{sF}
            s_cmp_lt_u32 s{sF+2}, 8000
            s_cbranch_scc1 L_spin0
            global_load_dword v{vT1}, v{vT0}, s[{sDBG}:{sDBG+1}] sc1
            s_waitcnt vmcnt(0)
            v_readfirstlane_b32 s{sF+3}, v{vT1}
            s_not_b32 s{sF+3}, s{sF+3}
            s_sub_u32 s{sF+4}, s{sF}, s{sF+3}
            s_cmp_lt_u32 s{sF+4}, 3000
            s_cselect_b32 s{sF}, s{sF+3}, s{sF}
            """)
            if diagglob == 2:
                A(f"v_readlane_b32 s{sF+2}, v{vPf}, {b}\ns_sub_u32 s{sF+1}, s{sF+2}, s{sF}\ns_min_u32 s{sF+1}, s{sF+1}, 20000\ns_mul_i32 s{sF+1}, s{sF+1}, {diagmul}")
        if diagwg >= 0: A(f"s_cmp_eq_u32 s2, {diagwg}\ns_cselect_b32 s{sF+1}, s{sF+1}, 0")
        A(f"""
        s_add_u32 s{sF+1}, s{sF+1}, 10000
        L_spin:
        s_memrealtime s[{sSt}:{sSt+1}]
        s_waitcnt lgkmcnt(0)
        s_sub_u32 s{sF+2}, s{sSt}, s{sF}
        s_cmp_lt_u32 s{sF+2}, s{sF+1}
        s_cbranch_scc1 L_spin
        """)
    if prof == 1:
        A("s_mov_b64 exec, -1\ns_waitcnt vmcnt(0)")
        stamp()
        A(f"""
        s_getreg_b32 s{sTmp}, hwreg(HW_REG_XCC_ID)
        v_writelane_b32 v{vPf}, s{sTmp}, 62
        v_writelane_b32 v{vPf}, s{sCnt}, 63
        s_lshl_b32 s{sTmp}, s2, 2
        s_add_u32 s{sTmp}, s{sTmp}, s{sW}
        s_lshl_b32 s{sTmp}, s{sTmp}, 8
        s_add_u32 s{sTmp}, s{sTmp}, {PROF_OFF}
        v_lshlrev_b32 v{vT0}, 2, v{vLane}
        buffer_store_dword v{vPf}, v{vT0}, s[{rW}:{rW+3}], s{sTmp} offen
        """)
    A("L_end:\ns_endpgm")
    def kd(name, nv):
        A(f""".section .rodata,"a"
.p2align 6
.amdhsa_kernel {name}
.amdhsa_next_free_vgpr {nv}
.amdhsa_next_free_sgpr {NS}
.amdhsa_accum_offset {(nv+3)//4*4}
.amdhsa_group_segment_fixed_size 0
.amdhsa_kernarg_size 64
.amdhsa_user_sgpr_count 2
.amdhsa_user_sgpr_kernarg_segment_ptr 1
.amdhsa_system_sgpr_workgroup_id_x 1
.end_amdhsa_kernel""")
    if not one:
        prof_save = prof
        A(f".globl combine_kernel\n.p2align 8\n.type combine_kernel,@function\ncombine_kernel:")
        A(f"""
        s_cmp_ge_u32 s2, {NWG}
        s_cbranch_scc1 L_end2
        s_load_dwordx16 s[4:19], s[0:1], 0
        v_lshrrev_b32 v{vT0}, 6, v0
        v_and_b32 v{vLane}, 63, v0
        v_readfirstlane_b32 s{sW}, v{vT0}
        s_waitcnt lgkmcnt(0)
        s_mov_b32 s{rW}, s{sWS}
        s_and_b32 s{rW+1}, s{sWS+1}, 0xffff
        s_mov_b32 s{rW+2}, {WS_BYTES}
        s_mov_b32 s{rW+3}, 0x20000
        """)
        prof = 0
        consumer(False)
        A("L_end2:\ns_endpgm")
    kd(KN, NV)
    if not one: kd("combine_kernel", NV)
    return A.text()

if __name__ == "__main__":
    out = sys.argv[1]
    kw = {}
    for kv in sys.argv[2:]:
        k, v = kv.split("=")
        if "," in v: kw[k] = tuple(int(x) for x in v.split(","))
        else: kw[k] = int(v) if v.lstrip("-").isdigit() else v.replace("+", " ")
    open(out, "w").write(gen(**kw))
```

```python
import sys
from gen import Asm, HEADER, NAME, KN

def gen(mode="2k", prof=0, NSH=5, NB=(31, 28, 24, 20, 34, 30, 26, 23), pol="nt", R=2, pf="bf16", stpol="",
        diag=None, diagwg=-1, diagmul=10, dmafirst=0):
    NWG = 256
    NSHWG = 8 * NSH
    assert NSHWG + sum(NB) == NWG
    SLOTS = 40
    assert NSH + max(NB) <= SLOTS and NSH + min(NB) >= 24
    bf = pf == "bf16"
    SB = 8192 if bf else 16384
    ML_OFF = 8 * SLOTS * SB
    WS_BYTES = ML_OFF + 8 * SLOTS * 128
    PROF_OFF = 8 << 20
    LDS = R * 32768
    KVB = 2304 * 65536
    NEGBIG = 0xFF000000
    CSC = 0x3DB8AA3B
    if diag is not None: prof = 2
    A = Asm()
    vLane, vG, vQi = 0, 1, 2
    vT0, vT1, vT2, vT3 = 3, 4, 5, 6
    vCtx, vC, vM, vL = 7, 8, 9, 10
    vPf = 11
    vAl = 12
    vQO = 14; vRO = 15
    vP = 16
    vS = 20
    vB = 28
    vX = 36
    vLim = 44
    vE = 48
    vKA = 52
    vDO = 56
    vVA = 60
    vSO = 62; vMO = 63
    vQ = 64
    vKF = 96
    vVF = 160
    vO = 176
    NV = 192
    sQ, sK, sV, sBT, sCTX, sOUT, sDBG, sWS = 4, 6, 8, 10, 12, 14, 16, 18
    rK, rV, rW = 20, 24, 28
    sW = 32; sB = 33; sKk = 34; sR = 35; sSlot = 36; sShared = 37
    sRS = 38; sOS = 39
    sEn = 40
    sU = 44; sU0 = 45; sUend = 46; sJS = 47; sOM = 48; sOC = 49; sPS = 50; sPB = 51
    sPos = 52; sPos2 = 53; sPst = 54; sLB = 55; sN = 56
    sQA = 57; sQB = 58; sTmp = 59; sTmp2 = 60; sPass = 61; sNinf = 62; sIt = 63
    sOff = 64
    sNr = 68
    sMk = 72
    sF = 72
    sSt = 88
    sCnt = 90
    NS = 96
    pidx = [0]
    pr = [prof]
    def stamp():
        if not pr[0]: return
        A(f"s_memrealtime s[{sSt}:{sSt+1}]\ns_waitcnt lgkmcnt(0)\nv_writelane_b32 v{vPf}, s{sSt}, {pidx[0]}")
        pidx[0] += 1

    A(HEADER)
    if prof == 1: A("; prof=1\n; proftile=8192")
    A(f"; @launch kernel={KN} grid=({NWG},1,1) block=(256,1,1) lds={LDS}")
    A(f"; @launch kernel=combine_kernel grid=({NWG},1,1) block=(256,1,1) lds=0")
    A('.amdgcn_target "amdgcn-amd-amdhsa--gfx950"\n.text')
    A(f".globl {KN}\n.p2align 8\n.type {KN},@function\n{KN}:")
    A(f"s_cmp_ge_u32 s2, {NWG}\ns_cbranch_scc1 L_end")
    if prof: A(f"v_mov_b32 v{vPf}, 0\ns_mov_b32 s{sIt}, 16")
    stamp()
    A("s_load_dwordx16 s[4:19], s[0:1], 0")
    A(f"""
    v_lshrrev_b32 v{vT0}, 6, v0
    v_and_b32 v{vLane}, 63, v0
    v_readfirstlane_b32 s{sW}, v{vT0}
    v_lshrrev_b32 v{vG}, 4, v{vLane}
    v_and_b32 v{vQi}, 15, v{vLane}
    s_mov_b32 s{sNinf}, 0xff800000
    s_cmp_lt_u32 s2, {NSHWG}
    s_cbranch_scc1 L_role_sh
    """)
    cum = [0]
    for n in NB: cum.append(cum[-1] + n)
    A(f"s_sub_u32 s{sTmp}, s2, {NSHWG}\ns_mov_b32 s{sB}, 0\ns_mov_b32 s{sKk}, 0\ns_mov_b32 s{sR}, {(1<<32)//NB[0]+1}")
    for b in range(1, 8):
        A(f"s_cmp_ge_u32 s{sTmp}, {cum[b]}\ns_cselect_b32 s{sB}, {b}, s{sB}\ns_cselect_b32 s{sKk}, {cum[b]}, s{sKk}\ns_cselect_b32 s{sR}, {(1<<32)//NB[b]+1}, s{sR}")
    A(f"""
    s_sub_u32 s{sKk}, s{sTmp}, s{sKk}
    s_add_u32 s{sSlot}, s{sKk}, {NSH}
    s_mov_b32 s{sShared}, 0
    s_mov_b32 s{sRS}, 9
    s_mov_b32 s{sJS}, 4
    s_mov_b32 s{sOM}, 15
    s_mov_b32 s{sOS}, 12
    s_mov_b32 s{sOC}, 0
    s_mov_b32 s{sPS}, 0
    s_mov_b32 s{sPB}, 4096
    s_mov_b32 s{sQA}, 2
    s_lshl_b32 s{sQB}, s{sB}, 4
    s_lshl_b32 s{sTmp2}, s{sB}, 11
    s_add_u32 s{sTmp2}, s{sTmp2}, 1024
    s_branch L_role_done
    L_role_sh:
    s_and_b32 s{sB}, s2, 7
    s_lshr_b32 s{sKk}, s2, 3
    s_mov_b32 s{sR}, {(1<<32)//NSH+1}
    s_mov_b32 s{sSlot}, s{sKk}
    s_mov_b32 s{sShared}, 1
    s_mov_b32 s{sRS}, 12
    s_mov_b32 s{sJS}, 1
    s_mov_b32 s{sOM}, 1
    s_mov_b32 s{sOS}, 15
    s_lshl_b32 s{sOC}, s{sB}, 9
    s_mov_b32 s{sPS}, 3
    s_mov_b32 s{sPB}, 0
    s_mov_b32 s{sQA}, 16
    s_lshl_b32 s{sQB}, s{sB}, 1
    s_mov_b32 s{sTmp2}, 0
    L_role_done:
    s_lshl_b32 s{sPst}, 2, s{sPS}
    s_lshl_b32 s{sLB}, s{sW}, 12
    v_lshlrev_b32 v{vRO}, 4, v{vLane}
    v_add_u32 v{vT3}, s{sTmp2}, v{vRO}
    v_lshrrev_b32 v{vT0}, 1, v{vQi}
    v_mul_u32_u24 v{vT0}, s{sQA}, v{vT0}
    v_and_b32 v{vT1}, 1, v{vQi}
    v_add3_u32 v{vT0}, v{vT0}, v{vT1}, s{sQB}
    v_lshrrev_b32 v{vT1}, 4, v{vT0}
    v_lshlrev_b32 v{vT2}, 2, v{vT1}
    v_lshlrev_b32 v{vQO}, 9, v{vT0}
    v_lshl_add_u32 v{vQO}, v{vG}, 4, v{vQO}
    s_waitcnt lgkmcnt(0)
    global_load_dword v{vCtx}, v{vT2}, s[{sCTX}:{sCTX+1}]
    global_load_dwordx4 v[{vE}:{vE+3}], v{vT3}, s[{sBT}:{sBT+1}]
    """)
    stamp()
    for s in range(8):
        A(f"global_load_dwordx4 v[{vQ+4*s}:{vQ+4*s+3}], v{vQO}, s[{sQ}:{sQ+1}] offset:{64*s}")
    for r, p, n in ((rK, sK, KVB), (rV, sV, KVB), (rW, sWS, WS_BYTES if not prof else 16 << 20)):
        A(f"s_mov_b32 s{r}, s{p}\ns_and_b32 s{r+1}, s{p+1}, 0xffff\ns_mov_b32 s{r+2}, {n}\ns_mov_b32 s{r+3}, 0x20000")
    A(f"""
    v_mul_u32_u24 v{vT1}, {SLOTS}, v{vT1}
    v_add_u32 v{vT1}, s{sSlot}, v{vT1}
    v_and_b32 v{vT0}, 15, v{vT0}
    v_lshlrev_b32 v{vMO}, 3, v{vT0}
    v_lshl_add_u32 v{vMO}, v{vT1}, 7, v{vMO}
    v_add_u32 v{vMO}, {ML_OFF}, v{vMO}
    v_lshlrev_b32 v{vSO}, 6, v{vT0}
    v_lshl_add_u32 v{vSO}, v{vG}, 4, v{vSO}
    v_lshl_add_u32 v{vSO}, v{vT1}, {SB.bit_length()-1}, v{vSO}
    s_lshl_b32 s{sTmp}, s{sW}, {SB.bit_length()-3}
    v_add_u32 v{vSO}, s{sTmp}, v{vSO}
    """)
    A(f"v_lshrrev_b32 v{vT0}, 5, v{vLane}\nv_and_b32 v{vT1}, 31, v{vLane}")
    for jl in range(4):
        A(f"""
        v_add_u32 v{vT2}, {2*jl}, v{vT0}
        v_lshlrev_b32 v{vT3}, 1, v{vT2}
        v_xor_b32 v{vT3}, v{vT3}, v{vT1}
        v_lshlrev_b32 v{vT2}, s{sRS}, v{vT2}
        v_lshl_add_u32 v{vDO+jl}, v{vT3}, 4, v{vT2}
        """)
        if jl: A(f"v_subrev_u32 v{vDO+jl}, {1024*jl}, v{vDO+jl}")
    A(f"""
    v_and_b32 v{vT0}, 7, v{vQi}
    v_lshlrev_b32 v{vT0}, 1, v{vT0}
    v_lshlrev_b32 v{vT1}, 9, v{vQi}
    """)
    for sl in range(4):
        A(f"v_add_u32 v{vT2}, {4*sl}, v{vG}\nv_xor_b32 v{vT2}, v{vT2}, v{vT0}\nv_lshl_add_u32 v{vKA+sl}, v{vT2}, 4, v{vT1}")
    A(f"""
    v_lshrrev_b32 v{vT0}, 2, v{vLane}
    v_lshlrev_b32 v{vT1}, 9, v{vT0}
    v_and_b32 v{vT0}, 7, v{vT0}
    v_lshlrev_b32 v{vT0}, 1, v{vT0}
    v_and_b32 v{vT2}, 3, v{vLane}
    s_lshl_b32 s{sTmp}, s{sW}, 3
    v_add_u32 v{vT2}, s{sTmp}, v{vT2}
    v_xor_b32 v{vT3}, v{vT2}, v{vT0}
    v_lshl_add_u32 v{vVA}, v{vT3}, 4, v{vT1}
    v_xor_b32 v{vVA+1}, 64, v{vVA}
    """)
    if R > 2:
        pass
    for i in range(16): A(f"v_mov_b32 v{vO+i}, 0")
    A(f"v_mov_b32 v{vM}, {NEGBIG}\nv_mov_b32 v{vL}, 0\ns_mov_b32 s{sPass}, 8")
    A(f"s_waitcnt vmcnt(8)")
    stamp()
    A(f"""
    v_cmp_lt_i32 vcc, 0, v{vCtx}
    v_min_i32 v{vCtx}, 0x2000, v{vCtx}
    v_mov_b32 v{vT0}, 0x2000
    v_mov_b32 v{vT1}, {CSC}
    v_cndmask_b32 v{vCtx}, v{vT0}, v{vCtx}, vcc
    v_cndmask_b32 v{vC}, 0, v{vT1}, vcc
    s_cmp_eq_u32 s{sShared}, 1
    v_readfirstlane_b32 s{sTmp}, v{vCtx}
    s_cbranch_scc1 L_sh_setup
    s_sub_i32 s{sTmp}, s{sTmp}, 4096
    s_max_i32 s{sTmp}, s{sTmp}, 0
    s_branch L_range
    L_sh_setup:
    """)
    for b in range(1, 8):
        A(f"v_add_u32 v{vT0}, {2048*b}, v{vRO}\nglobal_load_dwordx4 v[{vKF+4*b}:{vKF+4*b+3}], v{vT0}, s[{sBT}:{sBT+1}]")
    A(f"s_waitcnt vmcnt(0)\nv_mov_b32 v{vT0}, 0")
    for b in range(1, 8):
        for r in range(4):
            A(f"v_xor_b32 v{vT1}, v{vE+r}, v{vKF+4*b+r}\nv_or_b32 v{vT0}, v{vT0}, v{vT1}")
    A(f"""
    v_cmp_ne_u32 vcc, 0, v{vT0}
    s_mov_b32 s{sTmp}, 512
    s_cbranch_vccz L_range
    s_mov_b32 s{sPass}, 0
    L_range:
    s_mul_i32 s{sU0}, s{sKk}, s{sTmp}
    s_add_u32 s{sUend}, s{sU0}, s{sTmp}
    s_mul_hi_u32 s{sU0}, s{sU0}, s{sR}
    s_mul_hi_u32 s{sUend}, s{sUend}, s{sR}
    """)
    def tile_addr(slot):
        A(f"""
        s_lshr_b32 s{sTmp}, s{sU}, s{sJS}
        s_lshr_b32 s{sTmp2}, s{sTmp}, 2
        v_readlane_b32 s{sEn}, v{vE}, s{sTmp2}
        v_readlane_b32 s{sEn+1}, v{vE+1}, s{sTmp2}
        v_readlane_b32 s{sEn+2}, v{vE+2}, s{sTmp2}
        v_readlane_b32 s{sEn+3}, v{vE+3}, s{sTmp2}
        s_and_b32 s{sTmp2}, s{sU}, s{sOM}
        s_lshl_b32 s{sTmp2}, s{sTmp2}, s{sOS}
        s_add_u32 s{sTmp2}, s{sTmp2}, s{sOC}
        s_bitcmp1_b32 s{sTmp}, 0
        s_cselect_b32 s{sEn}, s{sEn+1}, s{sEn}
        s_cselect_b32 s{sEn+2}, s{sEn+3}, s{sEn+2}
        s_bitcmp1_b32 s{sTmp}, 1
        s_cselect_b32 s{sEn}, s{sEn+2}, s{sEn}
        s_lshl_b32 s{sEn}, s{sEn}, 16
        s_add_u32 s{sEn}, s{sEn}, s{sTmp2}
        s_cmp_lt_u32 s{sU}, s{sUend}
        s_cselect_b32 s{sOff+slot}, s{sEn}, 0
        s_cselect_b32 s{sNr+slot}, {KVB}, 0
        s_add_u32 s{sU}, s{sU}, 4
        """)
    def issue(isv, slot):
        r = rV if isv else rK
        A(f"s_add_u32 m0, s{sLB}, {slot*32768 + isv*16384}\ns_mov_b32 s{r+2}, s{sNr+slot}")
        for jl in range(4):
            A(f"buffer_load_dwordx4 v{vDO+jl}, s[{r}:{r+3}], s{sOff+slot} offen offset:{1024*jl} {pol} lds")
    A("L_pass:")
    A(f"s_add_u32 s{sU}, s{sU0}, s{sW}")
    for t in range(R):
        tile_addr(t); issue(0, t)
        if t < R-1: issue(1, t)
    A(f"""
    s_lshl_b32 s{sTmp}, s{sUend}, s{sPS}
    s_add_u32 s{sTmp}, s{sTmp}, s{sPB}
    v_min_i32 v{vT1}, s{sTmp}, v{vCtx}
    v_lshrrev_b32 v{vT0}, 1, v{vQi}
    s_lshl_b32 s{sPos}, s{sU0}, s{sPS}
    s_add_u32 s{sPos}, s{sPos}, s{sPB}
    s_sub_u32 s{sN}, s{sUend}, s{sU0}
    s_add_u32 s{sN}, s{sN}, 3
    s_lshr_b32 s{sN}, s{sN}, 2
    s_cmp_eq_u32 s{sShared}, 1
    s_cbranch_scc1 L_lim_sh
    v_lshrrev_b32 v{vT2}, 1, v{vG}
    v_sub_u32 v{vT1}, v{vT1}, v{vT2}
    v_and_b32 v{vT2}, 1, v{vG}
    """)
    for r in range(4):
        A(f"v_lshl_add_u32 v{vT3}, v{vT2}, 2, {r}\nv_cmp_eq_u32 vcc, v{vT3}, v{vT0}\ns_nop 1\nv_cndmask_b32 v{vLim+r}, 0, v{vT1}, vcc")
    A(f"""
    s_branch L_lim_done
    L_lim_sh:
    v_cmp_eq_u32 vcc, s{sPass}, v{vT0}
    s_cmp_eq_u32 s{sPass}, 8
    s_cselect_b64 vcc, -1, vcc
    """)
    for r in range(4):
        A(f"v_lshl_add_u32 v{vT3}, v{vG}, 2, {r}\nv_sub_u32 v{vT3}, v{vT1}, v{vT3}\nv_cndmask_b32 v{vLim+r}, 0, v{vT3}, vcc")
    A("L_lim_done:")
    A(f"s_cmp_eq_u32 s{sN}, 0\ns_cbranch_scc1 L_pass_end")
    WN = 4 * (2*R - 2)
    A(".p2align 6\nL_loop:")
    for p in range(R):
        base = p * 32768
        big = base >= 65536
        def ko(o): return o + base - (65536 if big else 0)
        if big:
            for j in range(4): A(f"v_add_u32 v{vKA+j}, 0x10000, v{vKA+j}")
            for j in range(2): A(f"v_add_u32 v{vVA+j}, 0x10000, v{vVA+j}")
        A(f"s_add_u32 s{sPos2}, s{sPos}, s{sPst}")
        for r in range(4): A(f"v_cmp_lt_i32 s[{sMk+2*r}:{sMk+2*r+1}], s{sPos}, v{vLim+r}")
        for r in range(4): A(f"v_cmp_lt_i32 s[{sMk+8+2*r}:{sMk+8+2*r+1}], s{sPos2}, v{vLim+r}")
        A(f"s_add_u32 s{sPos}, s{sPos2}, s{sPst}\nv_mov_b32 v{vT0}, s{sNinf}")
        A(f"s_waitcnt vmcnt({WN})\ns_barrier")
        if prof:
            A(f"s_memrealtime s[{sSt}:{sSt+1}]\ns_waitcnt lgkmcnt(0)\ns_mov_b32 m0, s{sIt}\ns_add_u32 s{sIt}, s{sIt}, 1\ns_min_u32 s{sIt}, s{sIt}, 60\nv_writelane_b32 v{vPf}, s{sSt}, m0")
        if dmafirst: issue(1, (p + R - 1) % R)
        for s in range(8):
            for h in range(2):
                r = vKF + 8*s + 4*h
                A(f"ds_read_b128 v[{r}:{r+3}], v{vKA+(s&3)} offset:{ko(256*(s>>2) + 8192*h)}")
        if not dmafirst: issue(1, (p + R - 1) % R)
        for r in range(8):
            A(f"v_cndmask_b32 v{vB+r}, v{vT0}, 0, s[{sMk+2*r}:{sMk+2*r+1}]")
        for s in range(8):
            A(f"s_waitcnt lgkmcnt({14-2*s})")
            for h in range(2):
                c = "0" if s == 0 else f"v[{vS+4*h}:{vS+4*h+3}]"
                r = vKF + 8*s + 4*h
                A(f"v_mfma_f32_16x16x32_bf16 v[{vS+4*h}:{vS+4*h+3}], v[{r}:{r+3}], v[{vQ+4*s}:{vQ+4*s+3}], {c}")
        tile_addr(p)
        for r in range(8):
            A(f"v_fma_f32 v{vX+r}, v{vS+r}, v{vC}, v{vB+r}")
        A(f"""
        v_max3_f32 v{vT0}, v{vX}, v{vX+1}, v{vX+2}
        v_max3_f32 v{vT1}, v{vX+3}, v{vX+4}, v{vX+5}
        v_max3_f32 v{vT0}, v{vT0}, v{vX+6}, v{vX+7}
        v_max3_f32 v{vT0}, v{vT0}, v{vT1}, v{vM}
        v_mov_b32 v{vT1}, v{vT0}
        s_nop 1
        v_permlane32_swap_b32 v{vT0}, v{vT1}
        v_max_f32 v{vT0}, v{vT0}, v{vT1}
        v_mov_b32 v{vT1}, v{vT0}
        s_nop 1
        v_permlane16_swap_b32 v{vT0}, v{vT1}
        v_max_f32 v{vT0}, v{vT0}, v{vT1}
        v_sub_f32 v{vAl}, v{vM}, v{vT0}
        v_mov_b32 v{vM}, v{vT0}
        """)
        for r in range(8): A(f"v_sub_f32 v{vX+r}, v{vX+r}, v{vT0}")
        A(f"v_exp_f32 v{vAl}, v{vAl}")
        for r in range(8): A(f"v_exp_f32 v{vX+r}, v{vX+r}")
        for i in range(8):
            A(f"v_pk_mul_f32 v[{vO+2*i}:{vO+2*i+1}], v[{vO+2*i}:{vO+2*i+1}], v[{vAl}:{vAl+1}] op_sel_hi:[1,0]")
        for j in range(4): A(f"v_cvt_pk_bf16_f32 v{vP+j}, v{vX+2*j}, v{vX+2*j+1}")
        A(f"s_waitcnt vmcnt({WN})\ns_barrier")
        if dmafirst: issue(0, p)
        for i in range(4):
            for h in range(2):
                r = vVF + 4*i + 2*h
                A(f"ds_read_b64_tr_b16 v[{r}:{r+1}], v{vVA+(i>>1)} offset:{ko(16384 + 8192*h + 8*(i&1))}")
        if not dmafirst: issue(0, p)
        A(f"""
        v_fma_f32 v{vL}, v{vL}, v{vAl}, v{vX}
        v_add_f32 v{vT0}, v{vX+1}, v{vX+2}
        v_add_f32 v{vT1}, v{vX+3}, v{vX+4}
        v_add_f32 v{vT2}, v{vX+5}, v{vX+6}
        v_add_f32 v{vL}, v{vL}, v{vX+7}
        v_add_f32 v{vT0}, v{vT0}, v{vT1}
        v_add_f32 v{vL}, v{vL}, v{vT2}
        v_add_f32 v{vL}, v{vL}, v{vT0}
        """)
        if big:
            for j in range(4): A(f"v_subrev_u32 v{vKA+j}, 0x10000, v{vKA+j}")
            for j in range(2): A(f"v_subrev_u32 v{vVA+j}, 0x10000, v{vVA+j}")
        A(f"s_sub_u32 s{sN}, s{sN}, 1\ns_cmp_eq_u32 s{sN}, 0")
        for i in range(4):
            A(f"s_waitcnt lgkmcnt({6-2*i})")
            A(f"v_mfma_f32_16x16x32_bf16 v[{vO+4*i}:{vO+4*i+3}], v[{vVF+4*i}:{vVF+4*i+3}], v[{vP}:{vP+3}], v[{vO+4*i}:{vO+4*i+3}]")
        if p < R-1: A("s_cbranch_scc1 L_pass_end")
        else: A("s_cbranch_scc0 L_loop")
    A("L_pass_end:")
    A(f"""
    s_add_u32 s{sPass}, s{sPass}, 1
    s_cmp_ge_u32 s{sPass}, 8
    s_cbranch_scc1 L_done
    s_lshl_b32 s{sTmp}, s{sPass}, 11
    v_add_u32 v{vT0}, s{sTmp}, v{vRO}
    global_load_dwordx4 v[{vE}:{vE+3}], v{vT0}, s[{sBT}:{sBT+1}]
    s_waitcnt vmcnt(0)
    s_barrier
    s_branch L_pass
    L_done:
    """)
    stamp()
    A(f"""
    v_mov_b32 v{vT1}, v{vL}
    v_mov_b32 v{vAl}, v{vM}
    s_nop 0
    v_permlane32_swap_b32 v{vL}, v{vT1}
    v_add_f32 v{vL}, v{vL}, v{vT1}
    v_mov_b32 v{vT1}, v{vL}
    s_nop 1
    v_permlane16_swap_b32 v{vL}, v{vT1}
    v_add_f32 v{vAl+1}, v{vL}, v{vT1}
    """)
    if bf:
        for j in range(8): A(f"v_cvt_pk_bf16_f32 v{vX+j}, v{vO+2*j}, v{vO+2*j+1}")
        for ih in range(2):
            A(f"buffer_store_dwordx4 v[{vX+4*ih}:{vX+4*ih+3}], v{vSO}, s[{rW}:{rW+3}], 0 offen offset:{1024*ih} {stpol}")
    else:
        for i in range(4):
            A(f"buffer_store_dwordx4 v[{vO+4*i}:{vO+4*i+3}], v{vSO}, s[{rW}:{rW+3}], 0 offen offset:{1024*i} {stpol}")
    A(f"""
    s_cmp_lg_u32 s{sW}, 0
    s_cbranch_scc1 L_noml
    s_mov_b64 exec, 0xffff
    buffer_store_dwordx2 v[{vAl}:{vAl+1}], v{vMO}, s[{rW}:{rW+3}], 0 offen {stpol}
    s_mov_b64 exec, -1
    L_noml:
    """)
    stamp()
    A("s_waitcnt vmcnt(0)")
    if prof == 2:
        stamp()
        a, b = diag
        A(f"""
        s_nop 1
        v_readlane_b32 s{sF}, v{vPf}, 0
        v_readlane_b32 s{sF+1}, v{vPf}, {a}
        v_readlane_b32 s{sF+2}, v{vPf}, {b}
        s_sub_u32 s{sF+1}, s{sF+2}, s{sF+1}
        s_min_u32 s{sF+1}, s{sF+1}, 20000
        s_mul_i32 s{sF+1}, s{sF+1}, {diagmul}
        """)
        if diagwg >= 0: A(f"s_cmp_eq_u32 s2, {diagwg}\ns_cselect_b32 s{sF+1}, s{sF+1}, 0")
        A(f"""
        s_add_u32 s{sF+1}, s{sF+1}, 10000
        L_spin:
        s_memrealtime s[{sSt}:{sSt+1}]
        s_waitcnt lgkmcnt(0)
        s_sub_u32 s{sF+2}, s{sSt}, s{sF}
        s_cmp_lt_u32 s{sF+2}, s{sF+1}
        s_cbranch_scc1 L_spin
        """)
    if prof == 1:
        stamp()
        A(f"""
        s_getreg_b32 s{sTmp}, hwreg(HW_REG_XCC_ID)
        v_writelane_b32 v{vPf}, s{sTmp}, 62
        s_lshl_b32 s{sTmp}, s2, 2
        s_add_u32 s{sTmp}, s{sTmp}, s{sW}
        s_lshl_b32 s{sTmp}, s{sTmp}, 8
        s_add_u32 s{sTmp}, s{sTmp}, {PROF_OFF}
        v_lshlrev_b32 v{vT0}, 2, v{vLane}
        buffer_store_dword v{vPf}, v{vT0}, s[{rW}:{rW+3}], s{sTmp} offen
        """)
    A("L_end:\ns_endpgm")
    pr[0] = 0

    A(f".globl combine_kernel\n.p2align 8\n.type combine_kernel,@function\ncombine_kernel:")
    LB = 2 if bf else 3
    NG = 64 >> LB
    NK = -(-SLOTS // NG)
    NFULL = (NSH + min(NB)) // NG
    vD = 16; vML = 40; vAd = 52; vMd = 58; vAc = 64
    packed = 0
    for b in range(8): packed |= (NSH + NB[b]) << (8*b)
    A(f"""
    s_cmp_ge_u32 s2, {NWG}
    s_cbranch_scc1 L_end2
    s_load_dwordx2 s[{sOUT}:{sOUT+1}], s[0:1], 40
    s_load_dwordx2 s[{rW}:{rW+1}], s[0:1], 56
    v_lshrrev_b32 v{vT0}, 6, v0
    v_and_b32 v{vLane}, 63, v0
    v_readfirstlane_b32 s{sW}, v{vT0}
    s_lshr_b32 s{sB}, s2, 5
    s_lshl_b32 s{sTmp}, s{sB}, 3
    s_mov_b32 s{sOff}, {packed & 0xffffffff}
    s_mov_b32 s{sOff+1}, {packed >> 32}
    s_lshr_b64 s[{sOff}:{sOff+1}], s[{sOff}:{sOff+1}], s{sTmp}
    s_and_b32 s{sOff}, s{sOff}, 0xff
    s_mul_i32 s{sB}, s{sB}, {SLOTS}
    s_bfe_u32 s{sTmp2}, s2, 0x40001
    s_and_b32 s{sTmp}, s2, 1
    s_lshl_b32 s{sTmp}, s{sTmp}, 2
    s_add_u32 s{sOff+1}, s{sTmp}, s{sW}
    v_lshrrev_b32 v{vT0}, {LB}, v{vLane}
    v_add_u32 v{vT1}, s{sB}, v{vT0}
    s_lshl_b32 s{sTmp}, s{sTmp2}, 3
    s_add_u32 s{sTmp}, s{sTmp}, {ML_OFF}
    v_lshl_add_u32 v{vMd}, v{vT1}, 7, s{sTmp}
    s_lshl_b32 s{sTmp}, s{sOff+1}, {10 if bf else 11}
    s_lshl_b32 s{sTmp2}, s{sTmp2}, 6
    s_add_u32 s{sTmp}, s{sTmp}, s{sTmp2}
    v_lshl_add_u32 v{vAd}, v{vT1}, {SB.bit_length()-1}, s{sTmp}
    """)
    if bf:
        A(f"v_and_b32 v{vT2}, 3, v{vLane}\nv_lshl_add_u32 v{vAd}, v{vT2}, 4, v{vAd}")
    else:
        A(f"v_and_b32 v{vT2}, 1, v{vLane}\nv_lshl_add_u32 v{vAd}, v{vT2}, 10, v{vAd}\nv_bfe_u32 v{vT2}, v{vLane}, 1, 2\nv_lshl_add_u32 v{vAd}, v{vT2}, 4, v{vAd}")
    for k in range(1, NK):
        if k >= NFULL:
            A(f"v_add_u32 v{vT1}, {NG*k}, v{vT0}\nv_cmp_gt_u32 s[{sMk+2*k}:{sMk+2*k+1}], s{sOff}, v{vT1}")
        A(f"v_add_u32 v{vAd+k}, {k*NG*SB}, v{vAd}\nv_add_u32 v{vMd+k}, {k*NG*128}, v{vMd}")
        if k >= NFULL:
            A(f"v_cndmask_b32 v{vAd+k}, v{vAd}, v{vAd+k}, s[{sMk+2*k}:{sMk+2*k+1}]\nv_cndmask_b32 v{vMd+k}, v{vMd}, v{vMd+k}, s[{sMk+2*k}:{sMk+2*k+1}]")
    A("s_waitcnt lgkmcnt(0)")
    for k in range(NK):
        A(f"global_load_dwordx2 v[{vML+2*k}:{vML+2*k+1}], v{vMd+k}, s[{rW}:{rW+1}]")
    for k in range(NK):
        A(f"global_load_dwordx4 v[{vD+4*k}:{vD+4*k+3}], v{vAd+k}, s[{rW}:{rW+1}]")
    A(f"""
    s_lshr_b32 s{sTmp}, s2, 1
    s_lshl_b32 s{sTmp}, s{sTmp}, 9
    s_lshl_b32 s{sTmp2}, s{sOff+1}, 6
    s_add_u32 s{sTmp}, s{sTmp}, s{sTmp2}
    v_lshl_add_u32 v{vQi}, v{vLane}, {4 if bf else 3}, s{sTmp}
    v_mov_b32 v{vT3}, {NEGBIG}
    s_waitcnt vmcnt({NK})
    """)
    for k in range(NFULL, NK):
        A(f"v_cndmask_b32 v{vML+2*k}, v{vT3}, v{vML+2*k}, s[{sMk+2*k}:{sMk+2*k+1}]")
    A(f"v_max3_f32 v{vT0}, v{vML}, v{vML+2}, v{vML+4}")
    if NK == 5: A(f"v_max3_f32 v{vT0}, v{vT0}, v{vML+6}, v{vML+8}")
    else: assert NK == 3
    rors = [4, 8] if bf else [8]
    for ro in rors:
        A(f"s_nop 1\nv_max_f32_dpp v{vT0}, v{vT0}, v{vT0} row_ror:{ro} row_mask:0xf bank_mask:0xf")
    A(f"""
    v_mov_b32 v{vT1}, v{vT0}
    s_nop 1
    v_permlane32_swap_b32 v{vT0}, v{vT1}
    v_max_f32 v{vT0}, v{vT0}, v{vT1}
    v_mov_b32 v{vT1}, v{vT0}
    s_nop 1
    v_permlane16_swap_b32 v{vT0}, v{vT1}
    v_max_f32 v{vT0}, v{vT0}, v{vT1}
    """)
    for k in range(NK): A(f"v_sub_f32 v{vML+2*k}, v{vML+2*k}, v{vT0}")
    for k in range(NK): A(f"v_exp_f32 v{vML+2*k}, v{vML+2*k}")
    NE = 8 if bf else 4
    A(f"s_nop 0\nv_mul_f32 v{vAc+NE}, v{vML}, v{vML+1}")
    for k in range(1, NK): A(f"v_fmac_f32 v{vAc+NE}, v{vML+2*k}, v{vML+2*k+1}")
    for k in range(NK):
        A(f"s_waitcnt vmcnt({NK-1-k})")
        op = "v_mul_f32" if k == 0 else "v_fmac_f32"
        if bf:
            for j in range(4):
                A(f"v_lshlrev_b32 v{vT1}, 16, v{vD+4*k+j}\nv_and_b32 v{vT2}, 0xffff0000, v{vD+4*k+j}")
                A(f"{op} v{vAc+2*j}, v{vML+2*k}, v{vT1}\n{op} v{vAc+2*j+1}, v{vML+2*k}, v{vT2}")
        else:
            for j in range(4): A(f"{op} v{vAc+j}, v{vML+2*k}, v{vD+4*k+j}")
    order = [NE] + list(range(NE))
    for ro in rors:
        for j in order: A(f"v_add_f32_dpp v{vAc+j}, v{vAc+j}, v{vAc+j} row_ror:{ro} row_mask:0xf bank_mask:0xf")
    for op in ("v_permlane32_swap_b32", "v_permlane16_swap_b32"):
        for j in order: A(f"v_mov_b32 v{vAc+16+j}, v{vAc+j}")
        for j in order: A(f"{op} v{vAc+j}, v{vAc+16+j}")
        for j in order: A(f"v_add_f32 v{vAc+j}, v{vAc+j}, v{vAc+16+j}")
    A(f"v_rcp_f32 v{vT0}, v{vAc+NE}\ns_mov_b64 exec, {15 if bf else 255}")
    for j in range(NE): A(f"v_mul_f32 v{vAc+j}, v{vAc+j}, v{vT0}")
    for j in range(NE//2): A(f"v_cvt_pk_bf16_f32 v{vAc+j}, v{vAc+2*j}, v{vAc+2*j+1}")
    if bf: A(f"global_store_dwordx4 v{vQi}, v[{vAc}:{vAc+3}], s[{sOUT}:{sOUT+1}]")
    else: A(f"global_store_dwordx2 v{vQi}, v[{vAc}:{vAc+1}], s[{sOUT}:{sOUT+1}]")
    A("L_end2:\ns_endpgm")
    def kd(name, nv):
        A(f""".section .rodata,"a"
.p2align 6
.amdhsa_kernel {name}
.amdhsa_next_free_vgpr {nv}
.amdhsa_next_free_sgpr {NS}
.amdhsa_accum_offset {(nv+3)//4*4}
.amdhsa_group_segment_fixed_size 0
.amdhsa_kernarg_size 64
.amdhsa_user_sgpr_count 2
.amdhsa_user_sgpr_kernarg_segment_ptr 1
.amdhsa_system_sgpr_workgroup_id_x 1
.end_amdhsa_kernel""")
    kd(KN, NV)
    kd("combine_kernel", 96)
    return A.text()

if __name__ == "__main__":
    out = sys.argv[1]
    kw = {}
    for kv in sys.argv[2:]:
        k, v = kv.split("=")
        if "," in v: kw[k] = tuple(int(x) for x in v.split(","))
        else: kw[k] = int(v) if v.lstrip("-").isdigit() else v.replace("+", " ")
    open(out, "w").write(gen(**kw))
```

```python
import sys
from gen import Asm, HEADER, NAME, KN

def gen(prof=0, pol="nt", stpol="", diag=None, diagwg=-1, diagmul=10, X=2, spec=1, cmap=1, ldpol="", pfi=1, diagx=0):
    NWG = 256
    SB = 8192
    ML_OFF = NWG * SB
    WS_BYTES = ML_OFF + NWG * 128
    PROF_OFF = 8 << 20
    QL = 65536
    TL = QL + 8192
    LDS = TL + 16384
    KVB = 2304 * 65536
    NEGBIG = 0xFF000000
    CSC = 0x3DB8AA3B
    if diag is not None: prof = 2
    A = Asm()
    vLane, vG, vQi = 0, 1, 2
    vT0, vT1, vT2, vT3 = 3, 4, 5, 6
    vCtx, vC, vM, vL = 7, 8, 9, 10
    vPf = 11
    vAl = 12
    vOf = 14; vRO = 15
    vP = 16
    vS = 20
    vB = 28
    vX = 36
    vLim = 44
    vDs = 48
    vQD = 50
    vKA = 52
    vDO = 56
    vVA = 60
    vSO = 62; vMO = 63
    vQ = 64
    vKF = 96
    vVF = 160
    vO = 176
    NV = 192
    sQ, sK, sV, sBT, sCTX, sOUT, sDBG, sWS = 4, 6, 8, 10, 12, 14, 16, 18
    rK, rV, rW, rQ, rT = 20, 24, 28, 32, 36
    sCx = 40
    sCm = 48
    sPos = 52
    sC3 = 54
    sN = 56; sI = 57; sLB = 58; sTmp = 59; sTmp2 = 60; sS = 61; sNinf = 62; sIt = 63
    sOff = 64
    sPr = 66
    sNr = 68
    sH = 70; sJ0 = 71
    sMk = 72
    sF = 72
    sSt = 88
    sW = 90; sB = 91; sTot = 92; sMx = 93
    NS = 96
    pidx = [0]
    pr = [prof]
    def stamp():
        if not pr[0]: return
        A(f"s_memrealtime s[{sSt}:{sSt+1}]\ns_waitcnt lgkmcnt(0)\nv_writelane_b32 v{vPf}, s{sSt}, {pidx[0]}")
        pidx[0] += 1

    A(HEADER)
    if prof == 1: A("; prof=1\n; proftile=8192")
    A(f"; @launch kernel={KN} grid=({NWG},1,1) block=(256,1,1) lds={LDS}")
    A(f"; @launch kernel=combine_kernel grid=({NWG},1,1) block=(256,1,1) lds=0")
    A('.amdgcn_target "amdgcn-amd-amdhsa--gfx950"\n.text')
    A(f".globl {KN}\n.p2align 8\n.type {KN},@function\n{KN}:")
    A(f"s_cmp_ge_u32 s2, {NWG}\ns_cbranch_scc1 L_end")
    if prof: A(f"v_mov_b32 v{vPf}, 0\ns_mov_b32 s{sIt}, 16")
    stamp()
    A("s_load_dwordx16 s[4:19], s[0:1], 0")
    def prefetch_code(lab, endlab):
        A(f"""
        s_getpc_b64 s[{sCm}:{sCm+1}]
        {lab}:
        v_lshlrev_b32 v{vT3}, 7, v0
        v_min_u32 v{vT3}, {endlab}-{lab}, v{vT3}
        global_load_dword v{vAl}, v{vT3}, s[{sCm}:{sCm+1}]
        """)
    if pfi: prefetch_code("L_pf1", "L_end2")
    A(f"""
    v_lshrrev_b32 v{vT0}, 6, v0
    v_and_b32 v{vLane}, 63, v0
    v_readfirstlane_b32 s{sW}, v{vT0}
    v_lshrrev_b32 v{vG}, 4, v{vLane}
    v_and_b32 v{vQi}, 15, v{vLane}
    s_and_b32 s{sH}, s2, 7
    s_lshr_b32 s{sJ0}, s2, 3
    s_lshl_b32 s{sLB}, s{sW}, 12
    s_lshl2_add_u32 s{sTmp}, s{sJ0}, s{sW}
    s_lshl_b32 s{sTmp}, s{sTmp}, 15
    s_lshl_b32 s{sTmp2}, s{sH}, 9
    s_add_u32 s{sPr}, s{sTmp}, s{sTmp2}
    s_add_u32 s{sPr+1}, s{sPr}, {64*65536}
    v_lshlrev_b32 v{vRO}, 4, v{vLane}
    v_lshrrev_b32 v{vT0}, 5, v{vLane}
    v_and_b32 v{vT1}, 31, v{vLane}
    s_and_b32 s{sTmp}, s{sW}, 1
    s_lshl_b32 s{sTmp}, s{sTmp}, 7
    """)
    for jl in range(4):
        A(f"""
        v_add_u32 v{vT2}, {2*jl}, v{vT0}
        v_lshlrev_b32 v{vT3}, 1, v{vT2}
        v_xor_b32 v{vT3}, v{vT3}, v{vT1}
        v_lshlrev_b32 v{vT3}, 4, v{vT3}
        v_lshl_add_u32 v{vDO+jl}, v{vT2}, 12, v{vT3}
        """)
        if jl: A(f"v_subrev_u32 v{vDO+jl}, {1024*jl}, v{vDO+jl}")
        if jl < 2: A(f"v_xor_b32 v{vT3}, s{sTmp}, v{vT3}\nv_lshl_add_u32 v{vQD+jl}, v{vT0}, 9, v{vT3}")
    A(f"v_add_u32 v{vQD+1}, {8192-1024}, v{vQD+1}")
    A(f"v_lshrrev_b32 v{vT2}, 1, v{vQi}\nv_lshlrev_b32 v{vT2}, 2, v{vT2}")
    for r, n in ((rK, KVB), (rV, KVB), (rW, WS_BYTES if not prof else 16 << 20), (rQ, 65536), (rT, 16384)):
        A(f"s_mov_b32 s{r+2}, {n}\ns_mov_b32 s{r+3}, 0x20000")
    A(f"""
    s_lshl_b32 s{sS}, s{sW}, 14
    s_lshl_b32 s{sTmp}, s{sH}, 10
    s_add_u32 s{sS}, s{sS}, s{sTmp}
    s_add_u32 m0, s{sLB}, {TL}
    s_waitcnt lgkmcnt(0)
    s_mov_b32 s{rT}, s{sBT}
    s_and_b32 s{rT+1}, s{sBT+1}, 0xffff
    s_load_dwordx8 s[{sCx}:{sCx+7}], s[{sCTX}:{sCTX+1}], 0
    """)
    for j in range(4):
        A(f"buffer_load_dwordx4 v{vRO}, s[{rT}:{rT+3}], s{sLB} offen offset:{1024*j} lds")
    A(f"global_load_dword v{vCtx}, v{vT2}, s[{sCTX}:{sCTX+1}]")
    for r, p in ((rK, sK), (rV, sV), (rQ, sQ)):
        A(f"s_mov_b32 s{r}, s{p}\ns_and_b32 s{r+1}, s{p+1}, 0xffff")
    def issue(isv, slot, js=range(4), off=None, setnr=True):
        r = rV if isv else rK
        if not len(js): return
        A(f"s_add_u32 m0, s{sLB}, {slot*32768 + isv*16384}")
        A(f"s_mov_b32 s{r+2}, s{sNr+slot}" if setnr else "s_nop 0")
        for jl in js:
            A(f"buffer_load_dwordx4 v{vDO+jl}, s[{r}:{r+3}], s{(sOff if off is None else off)+slot} offen offset:{1024*jl} {pol} lds")
    if spec: issue(0, 0, off=sPr, setnr=False)
    A(f"""
    s_lshr_b32 s{sTmp}, s{sLB}, 1
    s_add_u32 m0, s{sTmp}, {QL}
    s_nop 0
    buffer_load_dwordx4 v{vQD}, s[{rQ}:{rQ+3}], s{sS} offen lds
    buffer_load_dwordx4 v{vQD+1}, s[{rQ}:{rQ+3}], s{sS} offen offset:1024 lds
    """)
    if spec:
        issue(1, 0, off=sPr, setnr=False); issue(0, 1, range(X), off=sPr, setnr=False)
    if prof: pidx[0] = 1; stamp()
    A(f"""
    s_mov_b32 s{rW}, s{sWS}
    s_and_b32 s{rW+1}, s{sWS+1}, 0xffff
    s_mov_b32 s{sNinf}, 0xff800000
    s_mov_b32 s{sC3}, 0x00030003
    s_mov_b32 s{sC3+1}, 0x00030003
    s_lshl_b32 s{sTmp}, s{sH}, 5
    s_add_u32 s{sTmp}, s{sTmp}, s{sJ0}
    s_lshl_b32 s{sTmp2}, s{sTmp}, 7
    s_add_u32 s{sTmp2}, s{sTmp2}, {ML_OFF}
    v_lshl_add_u32 v{vMO}, v{vQi}, 3, s{sTmp2}
    s_lshl2_add_u32 s{sTmp}, s{sTmp}, s{sW}
    s_lshl_b32 s{sTmp}, s{sTmp}, 11
    v_lshl_add_u32 v{vSO}, v{vQi}, 6, s{sTmp}
    v_lshl_add_u32 v{vSO}, v{vG}, 4, v{vSO}
    v_and_b32 v{vT0}, 7, v{vQi}
    v_lshlrev_b32 v{vT0}, 1, v{vT0}
    v_lshlrev_b32 v{vT1}, 9, v{vQi}
    """)
    vQA = vVF
    for sl in range(4):
        A(f"v_add_u32 v{vT2}, {4*sl}, v{vG}\nv_xor_b32 v{vT2}, v{vT2}, v{vT0}\nv_lshl_add_u32 v{vKA+sl}, v{vT2}, 4, v{vT1}\nv_add_u32 v{vQA+sl}, {QL}, v{vKA+sl}")
    A(f"""
    v_lshrrev_b32 v{vT0}, 2, v{vLane}
    v_lshlrev_b32 v{vT1}, 9, v{vT0}
    v_and_b32 v{vT0}, 7, v{vT0}
    v_lshlrev_b32 v{vT0}, 1, v{vT0}
    v_and_b32 v{vT2}, 3, v{vLane}
    s_lshl_b32 s{sTmp}, s{sW}, 3
    v_add_u32 v{vT2}, s{sTmp}, v{vT2}
    v_xor_b32 v{vT3}, v{vT2}, v{vT0}
    v_lshl_add_u32 v{vVA}, v{vT3}, 4, v{vT1}
    v_xor_b32 v{vVA+1}, 64, v{vVA}
    v_add_u32 v{vOf}, {TL}, v{vRO}
    s_lshl_b32 s{sTmp}, s{sJ0}, 1
    v_lshl_add_u32 v{vS}, v{vLane}, 6, s{sTmp}
    v_add_u32 v{vS+1}, 1, v{vS}
    v_mov_b32 v{vDs}, 0x80000
    v_mov_b32 v{vDs+1}, 0x80000
    """)
    for i in range(16): A(f"v_mov_b32 v{vO+i}, 0")
    A(f"v_mov_b32 v{vM}, {NEGBIG}\nv_mov_b32 v{vL}, 0\ns_mov_b32 s{sMx}, 0\ns_waitcnt lgkmcnt(0)")
    for b in range(8):
        A(f"""
        s_cmp_gt_i32 s{sCx+b}, 0
        s_cselect_b32 s{sCx+b}, s{sCx+b}, 0x2000
        s_min_u32 s{sCx+b}, s{sCx+b}, 0x2000
        s_add_u32 s{sCx+b}, s{sCx+b}, 15
        s_lshr_b32 s{sCx+b}, s{sCx+b}, 4
        s_max_u32 s{sMx}, s{sMx}, s{sCx+b}
        """)
    A(f"s_waitcnt vmcnt({10+X if spec else 2})\ns_barrier")
    pidx[0] = 2; stamp()
    for hf in range(2):
        for b in range(8):
            r = vKF + 32*hf + 4*b
            A(f"ds_read_b128 v[{r}:{r+3}], v{vOf} offset:{2048*b + 1024*hf}")
    A(f"""
    v_cmp_lt_i32 vcc, 0, v{vCtx}
    v_min_i32 v{vCtx}, 0x2000, v{vCtx}
    v_mov_b32 v{vT0}, 0x2000
    v_mov_b32 v{vT1}, {CSC}
    v_cndmask_b32 v{vCtx}, v{vT0}, v{vCtx}, vcc
    v_cndmask_b32 v{vC}, 0, v{vT1}, vcc
    v_lshlrev_b32 v{vT0}, 2, v{vG}
    v_sub_u32 v{vLim}, v{vCtx}, v{vT0}
    v_subrev_u32 v{vLim+1}, 1, v{vLim}
    v_subrev_u32 v{vLim+2}, 2, v{vLim}
    v_subrev_u32 v{vLim+3}, 3, v{vLim}
    s_mov_b32 s{sS}, s{sMx}
    """)
    for hf in range(2):
        A(f"s_waitcnt lgkmcnt({8 if hf == 0 else 0})")
        for c in range(4):
            r = lambda b: vKF + 32*hf + 4*b + c
            A(f"""
            v_min3_u32 v{vT0}, v{r(0)}, v{r(1)}, v{r(2)}
            v_max3_u32 v{vT1}, v{r(0)}, v{r(1)}, v{r(2)}
            v_min3_u32 v{vT0}, v{vT0}, v{r(3)}, v{r(4)}
            v_max3_u32 v{vT1}, v{vT1}, v{r(3)}, v{r(4)}
            v_min3_u32 v{vT0}, v{vT0}, v{r(5)}, v{r(6)}
            v_max3_u32 v{vT1}, v{vT1}, v{r(5)}, v{r(6)}
            v_min_u32 v{vT0}, v{vT0}, v{r(7)}
            v_max_u32 v{vT1}, v{vT1}, v{r(7)}
            v_cmp_ne_u32 vcc, v{vT0}, v{vT1}
            s_ff1_i32_b64 s{sTmp}, vcc
            s_min_u32 s{sTmp}, s{sTmp}, 128
            s_lshl2_add_u32 s{sTmp}, s{sTmp}, {256*hf + c}
            s_min_u32 s{sS}, s{sS}, s{sTmp}
            """)
    A(f"s_mov_b32 s{sTot}, s{sS}")
    for b in range(8):
        A(f"""
        s_sub_u32 s{sTmp}, s{sS}, s{sTot}
        v_cmp_le_u32 vcc, s{sTot}, v{vS}
        v_cmp_le_u32 s[{sMk}:{sMk+1}], s{sTot}, v{vS+1}
        s_add_u32 s{sTmp}, s{sTmp}, {b << 16}
        v_mov_b32 v{vT0}, s{sTmp}
        s_max_u32 s{sTmp2}, s{sCx+b}, s{sS}
        s_sub_u32 s{sTmp2}, s{sTmp2}, s{sS}
        s_add_u32 s{sTot}, s{sTot}, s{sTmp2}
        v_cndmask_b32 v{vDs}, v{vDs}, v{vT0}, vcc
        v_cndmask_b32 v{vDs+1}, v{vDs+1}, v{vT0}, s[{sMk}:{sMk+1}]
        """)
    A(f"""
    v_cmp_gt_u32 vcc, s{sTot}, v{vS}
    v_cmp_gt_u32 s[{sMk}:{sMk+1}], s{sTot}, v{vS+1}
    v_add_u32 v{vDs}, v{vDs}, v{vS}
    v_add_u32 v{vDs+1}, v{vDs+1}, v{vS+1}
    v_mov_b32 v{vT0}, 0x807ff
    s_bcnt1_i32_b64 s{sN}, vcc
    v_cndmask_b32 v{vDs}, v{vT0}, v{vDs}, vcc
    v_cndmask_b32 v{vDs+1}, v{vT0}, v{vDs+1}, s[{sMk}:{sMk+1}]
    s_bitcmp1_b32 s{sW}, 1
    s_cselect_b64 s[{sMk}:{sMk+1}], s[{sMk}:{sMk+1}], vcc
    s_cselect_b64 vcc, -1, 0
    v_cndmask_b32 v{vT0}, v{vDs}, v{vDs+1}, vcc
    v_bfe_u32 v{vT1}, v{vT0}, 16, 3
    v_and_b32 v{vT0}, 0x1ff, v{vT0}
    v_lshl_add_u32 v{vT0}, v{vT1}, 9, v{vT0}
    v_lshlrev_b32 v{vT0}, 2, v{vT0}
    v_add_u32 v{vT0}, {TL}, v{vT0}
    ds_read_b32 v{vOf}, v{vT0}
    s_and_b32 s{sTmp}, s{sPr}, 0xffff
    s_waitcnt lgkmcnt(0)
    v_lshl_add_u32 v{vOf}, v{vOf}, 16, s{sTmp}
    v_cndmask_b32 v{vOf}, 1, v{vOf}, s[{sMk}:{sMk+1}]
    s_mov_b32 s{sI}, 0
    """)
    def tile_addr(slot, ahead):
        A(f"""
        s_add_u32 s{sTmp}, s{sI}, {ahead}
        v_readlane_b32 s{sTmp2}, v{vOf}, s{sTmp}
        s_cmp_lt_u32 s{sTmp}, s{sN}
        s_cselect_b32 s{sTmp2}, s{sTmp2}, 1
        s_bitcmp0_b32 s{sTmp2}, 0
        s_cselect_b32 s{sOff+slot}, s{sTmp2}, 0
        s_cselect_b32 s{sNr+slot}, {KVB}, 0
        """)
    def issue1(p): issue(0, 1-p, range(X, 4)); issue(1, 1-p, range(X))
    def issue2(p): issue(1, 1-p, range(X, 4)); issue(0, p, range(X))
    tile_addr(0, 0); tile_addr(1, 1)
    if spec:
        A(f"s_cmp_eq_u64 s[{sOff}:{sOff+1}], s[{sPr}:{sPr+1}]\ns_cbranch_scc1 L_spec_ok\ns_waitcnt vmcnt(0)")
    issue(0, 0); issue(1, 0); issue(0, 1, range(X))
    WN = 4 + X
    A("L_spec_ok:")
    A(f"s_cmp_eq_u32 s{sN}, 0\ns_cbranch_scc1 L_done")
    A(f"s_waitcnt vmcnt({WN})\ns_barrier")
    for s in range(8):
        A(f"ds_read_b128 v[{vQ+4*s}:{vQ+4*s+3}], v{vQA+(s&3)} offset:{256*(s>>2)}")
    A(".p2align 6\nL_loop:")
    for p in range(2):
        base = p * 32768
        for hf in range(2): A(f"v_readlane_b32 s{sPos+hf}, v{vDs+hf}, s{sI}")
        for hf in range(2):
            A(f"""
            s_lshr_b32 s{sTmp}, s{sPos+hf}, 15
            s_lshl_b64 s[{sCm+2*hf}:{sCm+2*hf+1}], s[{sC3}:{sC3+1}], s{sTmp}
            s_bitcmp1_b32 s{sPos+hf}, 19
            s_cselect_b64 s[{sCm+2*hf}:{sCm+2*hf+1}], -1, s[{sCm+2*hf}:{sCm+2*hf+1}]
            s_and_b32 s{sPos+hf}, s{sPos+hf}, 0x7ff
            s_lshl_b32 s{sPos+hf}, s{sPos+hf}, 4
            """)
        for hf in range(2):
            for r in range(4): A(f"v_cmp_lt_i32 s[{sMk+8*hf+2*r}:{sMk+8*hf+2*r+1}], s{sPos+hf}, v{vLim+r}")
        A(f"v_mov_b32 v{vT0}, s{sNinf}")
        for hf in range(2):
            for r in range(4): A(f"s_and_b64 s[{sMk+8*hf+2*r}:{sMk+8*hf+2*r+1}], s[{sMk+8*hf+2*r}:{sMk+8*hf+2*r+1}], s[{sCm+2*hf}:{sCm+2*hf+1}]")
        A(f"s_waitcnt vmcnt({WN})\ns_barrier")
        if prof:
            A(f"s_memrealtime s[{sSt}:{sSt+1}]\ns_waitcnt lgkmcnt(0)\ns_mov_b32 m0, s{sIt}\ns_add_u32 s{sIt}, s{sIt}, 1\ns_min_u32 s{sIt}, s{sIt}, 60\nv_writelane_b32 v{vPf}, s{sSt}, m0")
        issue1(p)
        for s in range(8):
            for h in range(2):
                r = vKF + 8*s + 4*h
                A(f"ds_read_b128 v[{r}:{r+3}], v{vKA+(s&3)} offset:{base + 256*(s>>2) + 8192*h}")
        for r in range(8):
            A(f"v_cndmask_b32 v{vB+r}, v{vT0}, 0, s[{sMk+2*r}:{sMk+2*r+1}]")
        for s in range(8):
            A(f"s_waitcnt lgkmcnt({14-2*s})")
            for h in range(2):
                c = "0" if s == 0 else f"v[{vS+4*h}:{vS+4*h+3}]"
                r = vKF + 8*s + 4*h
                A(f"v_mfma_f32_16x16x32_bf16 v[{vS+4*h}:{vS+4*h+3}], v[{r}:{r+3}], v[{vQ+4*s}:{vQ+4*s+3}], {c}")
        tile_addr(p, 2)
        A(f"s_add_u32 s{sI}, s{sI}, 1")
        for r in range(8):
            A(f"v_fma_f32 v{vX+r}, v{vS+r}, v{vC}, v{vB+r}")
        A(f"""
        v_max3_f32 v{vT0}, v{vX}, v{vX+1}, v{vX+2}
        v_max3_f32 v{vT1}, v{vX+3}, v{vX+4}, v{vX+5}
        v_max3_f32 v{vT0}, v{vT0}, v{vX+6}, v{vX+7}
        v_max3_f32 v{vT0}, v{vT0}, v{vT1}, v{vM}
        v_mov_b32 v{vT1}, v{vT0}
        s_nop 1
        v_permlane32_swap_b32 v{vT0}, v{vT1}
        v_max_f32 v{vT0}, v{vT0}, v{vT1}
        v_mov_b32 v{vT1}, v{vT0}
        s_nop 1
        v_permlane16_swap_b32 v{vT0}, v{vT1}
        v_max_f32 v{vT0}, v{vT0}, v{vT1}
        v_sub_f32 v{vAl}, v{vM}, v{vT0}
        v_mov_b32 v{vM}, v{vT0}
        """)
        for r in range(8): A(f"v_sub_f32 v{vX+r}, v{vX+r}, v{vT0}")
        A(f"v_exp_f32 v{vAl}, v{vAl}")
        for r in range(8): A(f"v_exp_f32 v{vX+r}, v{vX+r}")
        for i in range(8):
            A(f"v_pk_mul_f32 v[{vO+2*i}:{vO+2*i+1}], v[{vO+2*i}:{vO+2*i+1}], v[{vAl}:{vAl+1}] op_sel_hi:[1,0]")
        for j in range(4): A(f"v_cvt_pk_bf16_f32 v{vP+j}, v{vX+2*j}, v{vX+2*j+1}")
        A(f"s_waitcnt vmcnt({WN})\ns_barrier")
        for i in range(4):
            for h in range(2):
                r = vVF + 4*i + 2*h
                A(f"ds_read_b64_tr_b16 v[{r}:{r+1}], v{vVA+(i>>1)} offset:{base + 16384 + 8192*h + 8*(i&1)}")
        issue2(p)
        A(f"""
        v_fma_f32 v{vL}, v{vL}, v{vAl}, v{vX}
        v_add_f32 v{vT0}, v{vX+1}, v{vX+2}
        v_add_f32 v{vT1}, v{vX+3}, v{vX+4}
        v_add_f32 v{vT2}, v{vX+5}, v{vX+6}
        v_add_f32 v{vL}, v{vL}, v{vX+7}
        v_add_f32 v{vT0}, v{vT0}, v{vT1}
        v_add_f32 v{vL}, v{vL}, v{vT2}
        v_add_f32 v{vL}, v{vL}, v{vT0}
        s_cmp_ge_u32 s{sI}, s{sN}
        """)
        for i in range(4):
            A(f"s_waitcnt lgkmcnt({6-2*i})")
            A(f"v_mfma_f32_16x16x32_bf16 v[{vO+4*i}:{vO+4*i+3}], v[{vVF+4*i}:{vVF+4*i+3}], v[{vP}:{vP+3}], v[{vO+4*i}:{vO+4*i+3}]")
        if p == 0: A("s_cbranch_scc1 L_done")
        else: A("s_cbranch_scc0 L_loop")
    A("L_done:")
    pidx[0] = 3; stamp()
    A(f"""
    v_mov_b32 v{vT1}, v{vL}
    v_mov_b32 v{vAl}, v{vM}
    s_nop 0
    v_permlane32_swap_b32 v{vL}, v{vT1}
    v_add_f32 v{vL}, v{vL}, v{vT1}
    v_mov_b32 v{vT1}, v{vL}
    s_nop 1
    v_permlane16_swap_b32 v{vL}, v{vT1}
    v_add_f32 v{vAl+1}, v{vL}, v{vT1}
    """)
    for j in range(8): A(f"v_cvt_pk_bf16_f32 v{vX+j}, v{vO+2*j}, v{vO+2*j+1}")
    for ih in range(2):
        A(f"buffer_store_dwordx4 v[{vX+4*ih}:{vX+4*ih+3}], v{vSO}, s[{rW}:{rW+3}], 0 offen offset:{1024*ih} {stpol}")
    A(f"""
    s_cmp_lg_u32 s{sW}, 0
    s_cbranch_scc1 L_noml
    s_mov_b64 exec, 0xffff
    buffer_store_dwordx2 v[{vAl}:{vAl+1}], v{vMO}, s[{rW}:{rW+3}], 0 offen {stpol}
    s_mov_b64 exec, -1
    L_noml:
    """)
    stamp()
    A("s_waitcnt vmcnt(0)")
    if prof == 2:
        stamp()
        a, b = diag
        A(f"""
        s_nop 1
        v_readlane_b32 s{sF}, v{vPf}, 0
        v_readlane_b32 s{sF+1}, v{vPf}, {a}
        v_readlane_b32 s{sF+2}, v{vPf}, {b}
        s_sub_u32 s{sF+1}, s{sF+2}, s{sF+1}
        s_min_u32 s{sF+1}, s{sF+1}, 20000
        s_mul_i32 s{sF+1}, s{sF+1}, {diagmul}
        """)
        if diagx:
            A(f"s_getreg_b32 s{sF+1}, hwreg(HW_REG_XCC_ID)\ns_sub_u32 s{sF+1}, s{sF+1}, s2\ns_and_b32 s{sF+1}, s{sF+1}, 7\ns_mul_i32 s{sF+1}, s{sF+1}, 1000")
        if diagwg >= 0: A(f"s_cmp_eq_u32 s2, {diagwg}\ns_cselect_b32 s{sF+1}, s{sF+1}, 0")
        A(f"""
        s_add_u32 s{sF+1}, s{sF+1}, 10000
        L_spin:
        s_memrealtime s[{sSt}:{sSt+1}]
        s_waitcnt lgkmcnt(0)
        s_sub_u32 s{sF+2}, s{sSt}, s{sF}
        s_cmp_lt_u32 s{sF+2}, s{sF+1}
        s_cbranch_scc1 L_spin
        """)
    if prof == 1:
        stamp()
        A(f"""
        s_getreg_b32 s{sTmp}, hwreg(HW_REG_XCC_ID)
        v_writelane_b32 v{vPf}, s{sTmp}, 62
        s_lshl_b32 s{sTmp}, s2, 2
        s_add_u32 s{sTmp}, s{sTmp}, s{sW}
        s_lshl_b32 s{sTmp}, s{sTmp}, 8
        s_add_u32 s{sTmp}, s{sTmp}, {PROF_OFF}
        v_lshlrev_b32 v{vT0}, 2, v{vLane}
        buffer_store_dword v{vPf}, v{vT0}, s[{rW}:{rW+3}], s{sTmp} offen
        """)
    A("L_end:\ns_endpgm")
    pr[0] = 1 if prof == 1 else 0
    pidx[0] = 8

    A(f".globl combine_kernel\n.p2align 8\n.type combine_kernel,@function\ncombine_kernel:")
    NK = 2
    vD = 16; vML = 24; vAd = 28; vMd = 30; vAc = 32
    A(f"s_cmp_ge_u32 s2, {NWG}\ns_cbranch_scc1 L_end2")
    stamp()
    A(f"""
    s_load_dwordx2 s[{sOUT}:{sOUT+1}], s[0:1], 40
    s_load_dwordx2 s[{rW}:{rW+1}], s[0:1], 56
    """)
    if pfi > 1: prefetch_code("L_pf2", "L_end2")
    A(f"""
    v_lshrrev_b32 v{vT0}, 6, v0
    v_and_b32 v{vLane}, 63, v0
    v_readfirstlane_b32 s{sW}, v{vT0}
    """)
    if cmap: A(f"s_and_b32 s{sH}, s2, 7\ns_lshr_b32 s{sJ0}, s2, 3")
    else: A(f"s_lshr_b32 s{sH}, s2, 5\ns_and_b32 s{sJ0}, s2, 31")
    A(f"""
    s_lshr_b32 s{sB}, s{sJ0}, 2
    s_and_b32 s{sTmp}, s{sW}, 1
    s_lshl1_add_u32 s{sS}, s{sB}, s{sTmp}
    s_lshl1_add_u32 s{sI}, s{sH}, s{sTmp}
    s_and_b32 s{sTmp}, s{sJ0}, 3
    s_lshr_b32 s{sTmp2}, s{sW}, 1
    s_lshl1_add_u32 s{sN}, s{sTmp}, s{sTmp2}
    v_lshrrev_b32 v{vT0}, 2, v{vLane}
    s_lshl_b32 s{sTmp}, s{sH}, 12
    s_lshl3_add_u32 s{sTmp}, s{sS}, s{sTmp}
    s_add_u32 s{sTmp}, s{sTmp}, {ML_OFF}
    v_lshl_add_u32 v{vMd}, v{vT0}, 7, s{sTmp}
    s_lshl_b32 s{sTmp}, s{sH}, 18
    s_lshl4_add_u32 s{sTmp2}, s{sN}, s{sS}
    s_lshl_b32 s{sTmp2}, s{sTmp2}, 6
    s_add_u32 s{sTmp}, s{sTmp}, s{sTmp2}
    v_and_b32 v{vT3}, 3, v{vLane}
    v_lshl_add_u32 v{vAd}, v{vT3}, 4, s{sTmp}
    v_lshl_add_u32 v{vAd}, v{vT0}, 13, v{vAd}
    v_add_u32 v{vAd+1}, {16*SB}, v{vAd}
    s_waitcnt lgkmcnt(0)
    """)
    stamp()
    for k in range(NK):
        A(f"global_load_dwordx2 v[{vML+2*k}:{vML+2*k+1}], v{vMd}, s[{rW}:{rW+1}] offset:{2048*k} {ldpol}")
    for k in range(NK):
        A(f"global_load_dwordx4 v[{vD+4*k}:{vD+4*k+3}], v{vAd+k}, s[{rW}:{rW+1}] {ldpol}")
    A(f"""
    s_lshl4_add_u32 s{sTmp}, s{sB}, s{sI}
    s_lshl3_add_u32 s{sTmp}, s{sTmp}, s{sN}
    s_lshl_b32 s{sTmp}, s{sTmp}, 6
    v_lshl_add_u32 v{vQi}, v{vT3}, 4, s{sTmp}
    v_lshrrev_b32 v{vG}, 4, v{vLane}
    v_lshl_add_u32 v{vQi}, v{vG}, 2, v{vQi}
    s_waitcnt vmcnt({NK})
    v_max_f32 v{vT0}, v{vML}, v{vML+2}
    """)
    for ro in (4, 8):
        A(f"s_nop 1\nv_max_f32_dpp v{vT0}, v{vT0}, v{vT0} row_ror:{ro} row_mask:0xf bank_mask:0xf")
    A(f"""
    v_mov_b32 v{vT1}, v{vT0}
    s_nop 1
    v_permlane32_swap_b32 v{vT0}, v{vT1}
    v_max_f32 v{vT0}, v{vT0}, v{vT1}
    v_mov_b32 v{vT1}, v{vT0}
    s_nop 1
    v_permlane16_swap_b32 v{vT0}, v{vT1}
    v_max_f32 v{vT0}, v{vT0}, v{vT1}
    """)
    for k in range(NK): A(f"v_sub_f32 v{vML+2*k}, v{vML+2*k}, v{vT0}")
    for k in range(NK): A(f"v_exp_f32 v{vML+2*k}, v{vML+2*k}")
    vLs = vAc + 8
    A(f"v_mul_f32 v{vLs}, v{vML}, v{vML+1}")
    for k in range(1, NK): A(f"v_fmac_f32 v{vLs}, v{vML+2*k}, v{vML+2*k+1}")
    for ro in (4, 8):
        A(f"s_nop 1\nv_add_f32_dpp v{vLs}, v{vLs}, v{vLs} row_ror:{ro} row_mask:0xf bank_mask:0xf")
    A(f"""
    v_mov_b32 v{vT1}, v{vLs}
    s_nop 1
    v_permlane32_swap_b32 v{vLs}, v{vT1}
    v_add_f32 v{vLs}, v{vLs}, v{vT1}
    v_mov_b32 v{vT1}, v{vLs}
    s_nop 1
    v_permlane16_swap_b32 v{vLs}, v{vT1}
    v_add_f32 v{vLs}, v{vLs}, v{vT1}
    v_rcp_f32 v{vLs}, v{vLs}
    """)
    for k in range(NK):
        A(f"s_waitcnt vmcnt({NK-1-k})")
        op = "v_mul_f32" if k == 0 else "v_fmac_f32"
        for j in range(4):
            A(f"v_lshlrev_b32 v{vT1}, 16, v{vD+4*k+j}\nv_and_b32 v{vT2}, 0xffff0000, v{vD+4*k+j}")
            A(f"{op} v{vAc+2*j}, v{vML+2*k}, v{vT1}\n{op} v{vAc+2*j+1}, v{vML+2*k}, v{vT2}")
    stamp()
    A("s_nop 0")
    for j in range(4): A(f"v_permlane32_swap_b32 v{vAc+j}, v{vAc+4+j}")
    for j in range(4): A(f"v_add_f32 v{vAc+j}, v{vAc+j}, v{vAc+4+j}")
    A("s_nop 1")
    for j in range(2): A(f"v_permlane16_swap_b32 v{vAc+j}, v{vAc+2+j}")
    for j in range(2): A(f"v_add_f32 v{vAc+j}, v{vAc+j}, v{vAc+2+j}")
    for ro in (4, 8):
        A("s_nop 0")
        for j in range(2): A(f"v_add_f32_dpp v{vAc+j}, v{vAc+j}, v{vAc+j} row_ror:{ro} row_mask:0xf bank_mask:0xf")
    A(f"""
    s_mov_b32 exec_lo, 0x000f000f
    s_mov_b32 exec_hi, 0x000f000f
    v_mul_f32 v{vAc}, v{vAc}, v{vLs}
    v_mul_f32 v{vAc+1}, v{vAc+1}, v{vLs}
    v_cvt_pk_bf16_f32 v{vAc}, v{vAc}, v{vAc+1}
    global_store_dword v{vQi}, v{vAc}, s[{sOUT}:{sOUT+1}]
    """)
    if prof == 1:
        A("s_waitcnt vmcnt(0)")
        stamp()
        A(f"""
        s_mov_b64 exec, 0xf00
        s_lshl_b32 s{sTmp}, s2, 2
        s_add_u32 s{sTmp}, s{sTmp}, s{sW}
        s_lshl_b32 s{sTmp}, s{sTmp}, 8
        s_add_u32 s{sTmp}, s{sTmp}, {PROF_OFF}
        v_lshl_add_u32 v{vT0}, v{vLane}, 2, s{sTmp}
        global_store_dword v{vT0}, v{vPf}, s[{rW}:{rW+1}]
        """)
    A("L_end2:\ns_endpgm")
    def kd(name, nv):
        A(f""".section .rodata,"a"
.p2align 6
.amdhsa_kernel {name}
.amdhsa_next_free_vgpr {nv}
.amdhsa_next_free_sgpr {NS}
.amdhsa_accum_offset {(nv+3)//4*4}
.amdhsa_group_segment_fixed_size 0
.amdhsa_kernarg_size 64
.amdhsa_user_sgpr_count 2
.amdhsa_user_sgpr_kernarg_segment_ptr 1
.amdhsa_system_sgpr_workgroup_id_x 1
.end_amdhsa_kernel""")
    kd(KN, NV)
    kd("combine_kernel", 48)
    return A.text()

if __name__ == "__main__":
    out = sys.argv[1]
    kw = {}
    for kv in sys.argv[2:]:
        k, v = kv.split("=")
        if "," in v: kw[k] = tuple(int(x) for x in v.split(","))
        else: kw[k] = int(v) if v.lstrip("-").isdigit() else v.replace("+", " ")
    open(out, "w").write(gen(**kw))
```

```python
import sys
from gen import Asm, HEADER, NAME, KN

def gen(prof=0, pol="nt", stpol="", diag=None, diagwg=-1, diagmul=10, X=2, spec=1, cmap=1, ldpol="", pfi=1, diagx=0, diagg=0):
    NWG = 256
    SB = 8192
    ML_OFF = NWG * SB
    WS_BYTES = ML_OFF + NWG * 128
    PROF_OFF = 8 << 20
    QL = 65536
    TL = QL + 8192
    LDS = TL + 16384
    KVB = 2304 * 65536
    NEGBIG = 0xFF000000
    CSC = 0x3DB8AA3B
    if diag is not None: prof = 2
    A = Asm()
    vLane, vG, vQi = 0, 1, 2
    vT0, vT1, vT2, vT3 = 3, 4, 5, 6
    vCtx, vC, vM, vL = 7, 8, 9, 10
    vPf = 11
    vAl = 12
    vOf = 14; vRO = 15
    vP = 16
    vS = 20
    vB = 28
    vX = 36
    vLim = 44
    vDs = 48
    vQD = 50
    vKA = 52
    vDO = 56
    vVA = 60
    vSO = 62; vMO = 63
    vQ = 64
    vKF = 96
    vVF = 160
    vO = 176
    NV = 192
    sQ, sK, sV, sBT, sCTX, sOUT, sDBG, sWS = 4, 6, 8, 10, 12, 14, 16, 18
    rK, rV, rW, rQ, rT = 20, 24, 28, 32, 36
    sCx = 40
    sCm = 48
    sPos = 52
    sC3 = 54
    sN = 56; sI = 57; sLB = 58; sTmp = 59; sTmp2 = 60; sS = 61; sNinf = 62; sIt = 63
    sOff = 64
    sPr = 66
    sNr = 68
    sH = 70; sJ0 = 71
    sMk = 72
    sF = 72
    sSt = 88
    sW = 90; sB = 91; sTot = 92; sMx = 93
    sPv = 94; sGap = 95; sGapT = 96
    NS = 100
    pidx = [0]
    pr = [prof]
    def stamp():
        if not pr[0]: return
        A(f"s_memrealtime s[{sSt}:{sSt+1}]\ns_waitcnt lgkmcnt(0)\nv_writelane_b32 v{vPf}, s{sSt}, {pidx[0]}")
        pidx[0] += 1

    A(HEADER)
    if prof == 1: A("; prof=1\n; proftile=8192")
    A(f"; @launch kernel={KN} grid=({NWG},1,1) block=(256,1,1) lds={LDS}")
    A(f"; @launch kernel=combine_kernel grid=({NWG},1,1) block=(256,1,1) lds=0")
    A('.amdgcn_target "amdgcn-amd-amdhsa--gfx950"\n.text')
    A(f".globl {KN}\n.p2align 8\n.type {KN},@function\n{KN}:")
    A(f"s_cmp_ge_u32 s2, {NWG}\ns_cbranch_scc1 L_end")
    if prof: A(f"v_mov_b32 v{vPf}, 0\ns_mov_b32 s{sIt}, 16\ns_mov_b32 s{sPv}, 0\ns_mov_b32 s{sGap}, 0\ns_mov_b32 s{sGapT}, 0")
    stamp()
    A("s_load_dwordx16 s[4:19], s[0:1], 0")
    def prefetch_code(lab, endlab):
        A(f"""
        s_getpc_b64 s[{sCm}:{sCm+1}]
        {lab}:
        v_lshlrev_b32 v{vT3}, 7, v0
        v_min_u32 v{vT3}, {endlab}-{lab}, v{vT3}
        global_load_dword v{vAl}, v{vT3}, s[{sCm}:{sCm+1}]
        """)
    if pfi: prefetch_code("L_pf1", "L_end2")
    A(f"""
    v_lshrrev_b32 v{vT0}, 6, v0
    v_and_b32 v{vLane}, 63, v0
    v_readfirstlane_b32 s{sW}, v{vT0}
    v_lshrrev_b32 v{vG}, 4, v{vLane}
    v_and_b32 v{vQi}, 15, v{vLane}
    s_and_b32 s{sH}, s2, 7
    s_lshr_b32 s{sJ0}, s2, 3
    s_lshl_b32 s{sLB}, s{sW}, 12
    s_lshl2_add_u32 s{sTmp}, s{sJ0}, s{sW}
    s_lshl_b32 s{sTmp}, s{sTmp}, 15
    s_lshl_b32 s{sTmp2}, s{sH}, 9
    s_add_u32 s{sPr}, s{sTmp}, s{sTmp2}
    s_add_u32 s{sPr+1}, s{sPr}, {64*65536}
    v_lshlrev_b32 v{vRO}, 4, v{vLane}
    v_lshrrev_b32 v{vT0}, 5, v{vLane}
    v_and_b32 v{vT1}, 31, v{vLane}
    s_and_b32 s{sTmp}, s{sW}, 1
    s_lshl_b32 s{sTmp}, s{sTmp}, 7
    """)
    for jl in range(4):
        A(f"""
        v_add_u32 v{vT2}, {2*jl}, v{vT0}
        v_lshlrev_b32 v{vT3}, 1, v{vT2}
        v_xor_b32 v{vT3}, v{vT3}, v{vT1}
        v_lshlrev_b32 v{vT3}, 4, v{vT3}
        v_lshl_add_u32 v{vDO+jl}, v{vT2}, 12, v{vT3}
        """)
        if jl: A(f"v_subrev_u32 v{vDO+jl}, {1024*jl}, v{vDO+jl}")
        if jl < 2: A(f"v_xor_b32 v{vT3}, s{sTmp}, v{vT3}\nv_lshl_add_u32 v{vQD+jl}, v{vT0}, 9, v{vT3}")
    A(f"v_add_u32 v{vQD+1}, {8192-1024}, v{vQD+1}")
    A(f"v_lshrrev_b32 v{vT2}, 1, v{vQi}\nv_lshlrev_b32 v{vT2}, 2, v{vT2}")
    for r, n in ((rK, KVB), (rV, KVB), (rW, WS_BYTES if not prof else 16 << 20), (rQ, 65536), (rT, 16384)):
        A(f"s_mov_b32 s{r+2}, {n}\ns_mov_b32 s{r+3}, 0x20000")
    A(f"""
    s_lshl_b32 s{sS}, s{sW}, 14
    s_lshl_b32 s{sTmp}, s{sH}, 10
    s_add_u32 s{sS}, s{sS}, s{sTmp}
    s_add_u32 m0, s{sLB}, {TL}
    s_waitcnt lgkmcnt(0)
    s_mov_b32 s{rT}, s{sBT}
    s_and_b32 s{rT+1}, s{sBT+1}, 0xffff
    s_load_dwordx8 s[{sCx}:{sCx+7}], s[{sCTX}:{sCTX+1}], 0
    """)
    for j in range(4):
        A(f"buffer_load_dwordx4 v{vRO}, s[{rT}:{rT+3}], s{sLB} offen offset:{1024*j} lds")
    A(f"global_load_dword v{vCtx}, v{vT2}, s[{sCTX}:{sCTX+1}]")
    for r, p in ((rK, sK), (rV, sV), (rQ, sQ)):
        A(f"s_mov_b32 s{r}, s{p}\ns_and_b32 s{r+1}, s{p+1}, 0xffff")
    def issue(isv, slot, js=range(4), off=None, setnr=True):
        r = rV if isv else rK
        if not len(js): return
        A(f"s_add_u32 m0, s{sLB}, {slot*32768 + isv*16384}")
        A(f"s_mov_b32 s{r+2}, s{sNr+slot}" if setnr else "s_nop 0")
        for jl in js:
            A(f"buffer_load_dwordx4 v{vDO+jl}, s[{r}:{r+3}], s{(sOff if off is None else off)+slot} offen offset:{1024*jl} {pol} lds")
    if spec: issue(0, 0, off=sPr, setnr=False)
    A(f"""
    s_lshr_b32 s{sTmp}, s{sLB}, 1
    s_add_u32 m0, s{sTmp}, {QL}
    s_nop 0
    buffer_load_dwordx4 v{vQD}, s[{rQ}:{rQ+3}], s{sS} offen lds
    buffer_load_dwordx4 v{vQD+1}, s[{rQ}:{rQ+3}], s{sS} offen offset:1024 lds
    """)
    if spec:
        issue(1, 0, off=sPr, setnr=False); issue(0, 1, range(X), off=sPr, setnr=False)
    if prof: pidx[0] = 1; stamp()
    A(f"""
    s_mov_b32 s{rW}, s{sWS}
    s_and_b32 s{rW+1}, s{sWS+1}, 0xffff
    s_mov_b32 s{sNinf}, 0xff800000
    s_mov_b32 s{sC3}, 0x00030003
    s_mov_b32 s{sC3+1}, 0x00030003
    s_lshl_b32 s{sTmp}, s{sH}, 5
    s_add_u32 s{sTmp}, s{sTmp}, s{sJ0}
    s_lshl_b32 s{sTmp2}, s{sTmp}, 7
    s_add_u32 s{sTmp2}, s{sTmp2}, {ML_OFF}
    v_lshl_add_u32 v{vMO}, v{vQi}, 3, s{sTmp2}
    s_lshl2_add_u32 s{sTmp}, s{sTmp}, s{sW}
    s_lshl_b32 s{sTmp}, s{sTmp}, 11
    v_lshl_add_u32 v{vSO}, v{vQi}, 6, s{sTmp}
    v_lshl_add_u32 v{vSO}, v{vG}, 4, v{vSO}
    v_and_b32 v{vT0}, 7, v{vQi}
    v_lshlrev_b32 v{vT0}, 1, v{vT0}
    v_lshlrev_b32 v{vT1}, 9, v{vQi}
    """)
    vQA = vVF
    for sl in range(4):
        A(f"v_add_u32 v{vT2}, {4*sl}, v{vG}\nv_xor_b32 v{vT2}, v{vT2}, v{vT0}\nv_lshl_add_u32 v{vKA+sl}, v{vT2}, 4, v{vT1}\nv_add_u32 v{vQA+sl}, {QL}, v{vKA+sl}")
    A(f"""
    v_lshrrev_b32 v{vT0}, 2, v{vLane}
    v_lshlrev_b32 v{vT1}, 9, v{vT0}
    v_and_b32 v{vT0}, 7, v{vT0}
    v_lshlrev_b32 v{vT0}, 1, v{vT0}
    v_and_b32 v{vT2}, 3, v{vLane}
    s_lshl_b32 s{sTmp}, s{sW}, 3
    v_add_u32 v{vT2}, s{sTmp}, v{vT2}
    v_xor_b32 v{vT3}, v{vT2}, v{vT0}
    v_lshl_add_u32 v{vVA}, v{vT3}, 4, v{vT1}
    v_xor_b32 v{vVA+1}, 64, v{vVA}
    v_add_u32 v{vOf}, {TL}, v{vRO}
    s_lshl_b32 s{sTmp}, s{sJ0}, 1
    v_lshl_add_u32 v{vS}, v{vLane}, 6, s{sTmp}
    v_add_u32 v{vS+1}, 1, v{vS}
    v_mov_b32 v{vDs}, 0x80000
    v_mov_b32 v{vDs+1}, 0x80000
    """)
    for i in range(16): A(f"v_mov_b32 v{vO+i}, 0")
    A(f"v_mov_b32 v{vM}, {NEGBIG}\nv_mov_b32 v{vL}, 0\ns_mov_b32 s{sMx}, 0\ns_waitcnt lgkmcnt(0)")
    for b in range(8):
        A(f"""
        s_cmp_gt_i32 s{sCx+b}, 0
        s_cselect_b32 s{sCx+b}, s{sCx+b}, 0x2000
        s_min_u32 s{sCx+b}, s{sCx+b}, 0x2000
        s_add_u32 s{sCx+b}, s{sCx+b}, 15
        s_lshr_b32 s{sCx+b}, s{sCx+b}, 4
        s_max_u32 s{sMx}, s{sMx}, s{sCx+b}
        """)
    A(f"s_waitcnt vmcnt({10+X if spec else 2})\ns_barrier")
    pidx[0] = 2; stamp()
    for hf in range(2):
        for b in range(8):
            r = vKF + 32*hf + 4*b
            A(f"ds_read_b128 v[{r}:{r+3}], v{vOf} offset:{2048*b + 1024*hf}")
    A(f"""
    v_cmp_lt_i32 vcc, 0, v{vCtx}
    v_min_i32 v{vCtx}, 0x2000, v{vCtx}
    v_mov_b32 v{vT0}, 0x2000
    v_mov_b32 v{vT1}, {CSC}
    v_cndmask_b32 v{vCtx}, v{vT0}, v{vCtx}, vcc
    v_cndmask_b32 v{vC}, 0, v{vT1}, vcc
    v_lshlrev_b32 v{vT0}, 2, v{vG}
    v_sub_u32 v{vLim}, v{vCtx}, v{vT0}
    v_subrev_u32 v{vLim+1}, 1, v{vLim}
    v_subrev_u32 v{vLim+2}, 2, v{vLim}
    v_subrev_u32 v{vLim+3}, 3, v{vLim}
    s_mov_b32 s{sS}, s{sMx}
    """)
    for hf in range(2):
        A(f"s_waitcnt lgkmcnt({8 if hf == 0 else 0})")
        for c in range(4):
            r = lambda b: vKF + 32*hf + 4*b + c
            A(f"""
            v_min3_u32 v{vT0}, v{r(0)}, v{r(1)}, v{r(2)}
            v_max3_u32 v{vT1}, v{r(0)}, v{r(1)}, v{r(2)}
            v_min3_u32 v{vT0}, v{vT0}, v{r(3)}, v{r(4)}
            v_max3_u32 v{vT1}, v{vT1}, v{r(3)}, v{r(4)}
            v_min3_u32 v{vT0}, v{vT0}, v{r(5)}, v{r(6)}
            v_max3_u32 v{vT1}, v{vT1}, v{r(5)}, v{r(6)}
            v_min_u32 v{vT0}, v{vT0}, v{r(7)}
            v_max_u32 v{vT1}, v{vT1}, v{r(7)}
            v_cmp_ne_u32 vcc, v{vT0}, v{vT1}
            s_ff1_i32_b64 s{sTmp}, vcc
            s_min_u32 s{sTmp}, s{sTmp}, 128
            s_lshl2_add_u32 s{sTmp}, s{sTmp}, {256*hf + c}
            s_min_u32 s{sS}, s{sS}, s{sTmp}
            """)
    A(f"s_mov_b32 s{sTot}, s{sS}")
    for b in range(8):
        A(f"""
        s_sub_u32 s{sTmp}, s{sS}, s{sTot}
        v_cmp_le_u32 vcc, s{sTot}, v{vS}
        v_cmp_le_u32 s[{sMk}:{sMk+1}], s{sTot}, v{vS+1}
        s_add_u32 s{sTmp}, s{sTmp}, {b << 16}
        v_mov_b32 v{vT0}, s{sTmp}
        s_max_u32 s{sTmp2}, s{sCx+b}, s{sS}
        s_sub_u32 s{sTmp2}, s{sTmp2}, s{sS}
        s_add_u32 s{sTot}, s{sTot}, s{sTmp2}
        v_cndmask_b32 v{vDs}, v{vDs}, v{vT0}, vcc
        v_cndmask_b32 v{vDs+1}, v{vDs+1}, v{vT0}, s[{sMk}:{sMk+1}]
        """)
    A(f"""
    v_cmp_gt_u32 vcc, s{sTot}, v{vS}
    v_cmp_gt_u32 s[{sMk}:{sMk+1}], s{sTot}, v{vS+1}
    v_add_u32 v{vDs}, v{vDs}, v{vS}
    v_add_u32 v{vDs+1}, v{vDs+1}, v{vS+1}
    v_mov_b32 v{vT0}, 0x807ff
    s_bcnt1_i32_b64 s{sN}, vcc
    v_cndmask_b32 v{vDs}, v{vT0}, v{vDs}, vcc
    v_cndmask_b32 v{vDs+1}, v{vT0}, v{vDs+1}, s[{sMk}:{sMk+1}]
    s_bitcmp1_b32 s{sW}, 1
    s_cselect_b64 s[{sMk}:{sMk+1}], s[{sMk}:{sMk+1}], vcc
    s_cselect_b64 vcc, -1, 0
    v_cndmask_b32 v{vT0}, v{vDs}, v{vDs+1}, vcc
    v_bfe_u32 v{vT1}, v{vT0}, 16, 3
    v_and_b32 v{vT0}, 0x1ff, v{vT0}
    v_lshl_add_u32 v{vT0}, v{vT1}, 9, v{vT0}
    v_lshlrev_b32 v{vT0}, 2, v{vT0}
    v_add_u32 v{vT0}, {TL}, v{vT0}
    ds_read_b32 v{vOf}, v{vT0}
    s_and_b32 s{sTmp}, s{sPr}, 0xffff
    s_waitcnt lgkmcnt(0)
    v_lshl_add_u32 v{vOf}, v{vOf}, 16, s{sTmp}
    v_cndmask_b32 v{vOf}, 1, v{vOf}, s[{sMk}:{sMk+1}]
    s_mov_b32 s{sI}, 0
    """)
    def tile_addr(slot, ahead):
        A(f"""
        s_add_u32 s{sTmp}, s{sI}, {ahead}
        v_readlane_b32 s{sTmp2}, v{vOf}, s{sTmp}
        s_cmp_lt_u32 s{sTmp}, s{sN}
        s_cselect_b32 s{sTmp2}, s{sTmp2}, 1
        s_bitcmp0_b32 s{sTmp2}, 0
        s_cselect_b32 s{sOff+slot}, s{sTmp2}, 0
        s_cselect_b32 s{sNr+slot}, {KVB}, 0
        """)
    def issue1(p): issue(0, 1-p, range(X, 4)); issue(1, 1-p, range(X))
    def issue2(p): issue(1, 1-p, range(X, 4)); issue(0, p, range(X))
    tile_addr(0, 0); tile_addr(1, 1)
    if spec:
        A(f"s_cmp_eq_u64 s[{sOff}:{sOff+1}], s[{sPr}:{sPr+1}]\ns_cbranch_scc1 L_spec_ok\ns_waitcnt vmcnt(0)")
    issue(0, 0); issue(1, 0); issue(0, 1, range(X))
    WN = 4 + X
    A("L_spec_ok:")
    A(f"s_cmp_eq_u32 s{sN}, 0\ns_cbranch_scc1 L_done")
    A(f"s_waitcnt vmcnt({WN})\ns_barrier")
    for s in range(8):
        A(f"ds_read_b128 v[{vQ+4*s}:{vQ+4*s+3}], v{vQA+(s&3)} offset:{256*(s>>2)}")
    A(".p2align 6\nL_loop:")
    for p in range(2):
        base = p * 32768
        for hf in range(2): A(f"v_readlane_b32 s{sPos+hf}, v{vDs+hf}, s{sI}")
        for hf in range(2):
            A(f"""
            s_lshr_b32 s{sTmp}, s{sPos+hf}, 15
            s_lshl_b64 s[{sCm+2*hf}:{sCm+2*hf+1}], s[{sC3}:{sC3+1}], s{sTmp}
            s_bitcmp1_b32 s{sPos+hf}, 19
            s_cselect_b64 s[{sCm+2*hf}:{sCm+2*hf+1}], -1, s[{sCm+2*hf}:{sCm+2*hf+1}]
            s_and_b32 s{sPos+hf}, s{sPos+hf}, 0x7ff
            s_lshl_b32 s{sPos+hf}, s{sPos+hf}, 4
            """)
        for hf in range(2):
            for r in range(4): A(f"v_cmp_lt_i32 s[{sMk+8*hf+2*r}:{sMk+8*hf+2*r+1}], s{sPos+hf}, v{vLim+r}")
        A(f"v_mov_b32 v{vT0}, s{sNinf}")
        for hf in range(2):
            for r in range(4): A(f"s_and_b64 s[{sMk+8*hf+2*r}:{sMk+8*hf+2*r+1}], s[{sMk+8*hf+2*r}:{sMk+8*hf+2*r+1}], s[{sCm+2*hf}:{sCm+2*hf+1}]")
        A(f"s_waitcnt vmcnt({WN})\ns_barrier")
        if prof:
            A(f"s_memrealtime s[{sSt}:{sSt+1}]\ns_waitcnt lgkmcnt(0)\ns_mov_b32 m0, s{sIt}\ns_add_u32 s{sIt}, s{sIt}, 1\ns_min_u32 s{sIt}, s{sIt}, 60\nv_writelane_b32 v{vPf}, s{sSt}, m0")
            if diagg:
                A(f"s_sub_u32 s{sTmp}, s{sSt}, s{sPv}\ns_cmp_eq_u32 s{sPv}, 0\ns_cselect_b32 s{sTmp}, 0, s{sTmp}\ns_mov_b32 s{sPv}, s{sSt}\ns_cmp_gt_u32 s{sTmp}, s{sGap}\ns_cselect_b32 s{sGap}, s{sTmp}, s{sGap}\ns_cselect_b32 s{sGapT}, s{sSt}, s{sGapT}")
        issue1(p)
        for s in range(8):
            for h in range(2):
                r = vKF + 8*s + 4*h
                A(f"ds_read_b128 v[{r}:{r+3}], v{vKA+(s&3)} offset:{base + 256*(s>>2) + 8192*h}")
        for r in range(8):
            A(f"v_cndmask_b32 v{vB+r}, v{vT0}, 0, s[{sMk+2*r}:{sMk+2*r+1}]")
        for s in range(8):
            A(f"s_waitcnt lgkmcnt({14-2*s})")
            for h in range(2):
                c = "0" if s == 0 else f"v[{vS+4*h}:{vS+4*h+3}]"
                r = vKF + 8*s + 4*h
                A(f"v_mfma_f32_16x16x32_bf16 v[{vS+4*h}:{vS+4*h+3}], v[{r}:{r+3}], v[{vQ+4*s}:{vQ+4*s+3}], {c}")
        tile_addr(p, 2)
        A(f"s_add_u32 s{sI}, s{sI}, 1")
        for r in range(8):
            A(f"v_fma_f32 v{vX+r}, v{vS+r}, v{vC}, v{vB+r}")
        A(f"""
        v_max3_f32 v{vT0}, v{vX}, v{vX+1}, v{vX+2}
        v_max3_f32 v{vT1}, v{vX+3}, v{vX+4}, v{vX+5}
        v_max3_f32 v{vT0}, v{vT0}, v{vX+6}, v{vX+7}
        v_max3_f32 v{vT0}, v{vT0}, v{vT1}, v{vM}
        v_mov_b32 v{vT1}, v{vT0}
        s_nop 1
        v_permlane32_swap_b32 v{vT0}, v{vT1}
        v_max_f32 v{vT0}, v{vT0}, v{vT1}
        v_mov_b32 v{vT1}, v{vT0}
        s_nop 1
        v_permlane16_swap_b32 v{vT0}, v{vT1}
        v_max_f32 v{vT0}, v{vT0}, v{vT1}
        v_sub_f32 v{vAl}, v{vM}, v{vT0}
        v_mov_b32 v{vM}, v{vT0}
        """)
        for r in range(8): A(f"v_sub_f32 v{vX+r}, v{vX+r}, v{vT0}")
        A(f"v_exp_f32 v{vAl}, v{vAl}")
        for r in range(8): A(f"v_exp_f32 v{vX+r}, v{vX+r}")
        for i in range(8):
            A(f"v_pk_mul_f32 v[{vO+2*i}:{vO+2*i+1}], v[{vO+2*i}:{vO+2*i+1}], v[{vAl}:{vAl+1}] op_sel_hi:[1,0]")
        for j in range(4): A(f"v_cvt_pk_bf16_f32 v{vP+j}, v{vX+2*j}, v{vX+2*j+1}")
        A(f"s_waitcnt vmcnt({WN})\ns_barrier")
        for i in range(4):
            for h in range(2):
                r = vVF + 4*i + 2*h
                A(f"ds_read_b64_tr_b16 v[{r}:{r+1}], v{vVA+(i>>1)} offset:{base + 16384 + 8192*h + 8*(i&1)}")
        issue2(p)
        A(f"""
        v_fma_f32 v{vL}, v{vL}, v{vAl}, v{vX}
        v_add_f32 v{vT0}, v{vX+1}, v{vX+2}
        v_add_f32 v{vT1}, v{vX+3}, v{vX+4}
        v_add_f32 v{vT2}, v{vX+5}, v{vX+6}
        v_add_f32 v{vL}, v{vL}, v{vX+7}
        v_add_f32 v{vT0}, v{vT0}, v{vT1}
        v_add_f32 v{vL}, v{vL}, v{vT2}
        v_add_f32 v{vL}, v{vL}, v{vT0}
        s_cmp_ge_u32 s{sI}, s{sN}
        """)
        for i in range(4):
            A(f"s_waitcnt lgkmcnt({6-2*i})")
            A(f"v_mfma_f32_16x16x32_bf16 v[{vO+4*i}:{vO+4*i+3}], v[{vVF+4*i}:{vVF+4*i+3}], v[{vP}:{vP+3}], v[{vO+4*i}:{vO+4*i+3}]")
        if p == 0: A("s_cbranch_scc1 L_done")
        else: A("s_cbranch_scc0 L_loop")
    A("L_done:")
    pidx[0] = 3; stamp()
    A(f"""
    v_mov_b32 v{vT1}, v{vL}
    v_mov_b32 v{vAl}, v{vM}
    s_nop 0
    v_permlane32_swap_b32 v{vL}, v{vT1}
    v_add_f32 v{vL}, v{vL}, v{vT1}
    v_mov_b32 v{vT1}, v{vL}
    s_nop 1
    v_permlane16_swap_b32 v{vL}, v{vT1}
    v_add_f32 v{vAl+1}, v{vL}, v{vT1}
    """)
    for j in range(8): A(f"v_cvt_pk_bf16_f32 v{vX+j}, v{vO+2*j}, v{vO+2*j+1}")
    for ih in range(2):
        A(f"buffer_store_dwordx4 v[{vX+4*ih}:{vX+4*ih+3}], v{vSO}, s[{rW}:{rW+3}], 0 offen offset:{1024*ih} {stpol}")
    A(f"""
    s_cmp_lg_u32 s{sW}, 0
    s_cbranch_scc1 L_noml
    s_mov_b64 exec, 0xffff
    buffer_store_dwordx2 v[{vAl}:{vAl+1}], v{vMO}, s[{rW}:{rW+3}], 0 offen {stpol}
    s_mov_b64 exec, -1
    L_noml:
    """)
    stamp()
    A("s_waitcnt vmcnt(0)")
    if prof == 2:
        stamp()
        a, b = diag
        A(f"""
        s_nop 1
        v_readlane_b32 s{sF}, v{vPf}, 0
        v_readlane_b32 s{sF+1}, v{vPf}, {a}
        v_readlane_b32 s{sF+2}, v{vPf}, {b}
        s_sub_u32 s{sF+1}, s{sF+2}, s{sF+1}
        s_min_u32 s{sF+1}, s{sF+1}, 20000
        s_mul_i32 s{sF+1}, s{sF+1}, {diagmul}
        """)
        if diagg == 1: A(f"s_mul_i32 s{sF+1}, s{sGap}, {diagmul}")
        if diagg == 2: A(f"s_sub_u32 s{sF+1}, s{sGapT}, s{sF}\ns_min_u32 s{sF+1}, s{sF+1}, 20000\ns_mul_i32 s{sF+1}, s{sF+1}, {diagmul}")
        if diagx:
            A(f"s_getreg_b32 s{sF+1}, hwreg(HW_REG_XCC_ID)\ns_sub_u32 s{sF+1}, s{sF+1}, s2\ns_and_b32 s{sF+1}, s{sF+1}, 7\ns_mul_i32 s{sF+1}, s{sF+1}, 1000")
        if diagwg >= 0: A(f"s_cmp_eq_u32 s2, {diagwg}\ns_cselect_b32 s{sF+1}, s{sF+1}, 0")
        A(f"""
        s_add_u32 s{sF+1}, s{sF+1}, 10000
        L_spin:
        s_memrealtime s[{sSt}:{sSt+1}]
        s_waitcnt lgkmcnt(0)
        s_sub_u32 s{sF+2}, s{sSt}, s{sF}
        s_cmp_lt_u32 s{sF+2}, s{sF+1}
        s_cbranch_scc1 L_spin
        """)
    if prof == 1:
        stamp()
        A(f"""
        s_getreg_b32 s{sTmp}, hwreg(HW_REG_XCC_ID)
        v_writelane_b32 v{vPf}, s{sTmp}, 62
        s_lshl_b32 s{sTmp}, s2, 2
        s_add_u32 s{sTmp}, s{sTmp}, s{sW}
        s_lshl_b32 s{sTmp}, s{sTmp}, 8
        s_add_u32 s{sTmp}, s{sTmp}, {PROF_OFF}
        v_lshlrev_b32 v{vT0}, 2, v{vLane}
        buffer_store_dword v{vPf}, v{vT0}, s[{rW}:{rW+3}], s{sTmp} offen
        """)
    A("L_end:\ns_endpgm")
    pr[0] = 1 if prof == 1 else 0
    pidx[0] = 8

    A(f".globl combine_kernel\n.p2align 8\n.type combine_kernel,@function\ncombine_kernel:")
    NK = 2
    vD = 16; vML = 24; vAd = 28; vMd = 30; vAc = 32
    A(f"s_cmp_ge_u32 s2, {NWG}\ns_cbranch_scc1 L_end2")
    stamp()
    A(f"""
    s_load_dwordx2 s[{sOUT}:{sOUT+1}], s[0:1], 40
    s_load_dwordx2 s[{rW}:{rW+1}], s[0:1], 56
    """)
    if pfi > 1: prefetch_code("L_pf2", "L_end2")
    A(f"""
    v_lshrrev_b32 v{vT0}, 6, v0
    v_and_b32 v{vLane}, 63, v0
    v_readfirstlane_b32 s{sW}, v{vT0}
    """)
    if cmap: A(f"s_and_b32 s{sH}, s2, 7\ns_lshr_b32 s{sJ0}, s2, 3")
    else: A(f"s_lshr_b32 s{sH}, s2, 5\ns_and_b32 s{sJ0}, s2, 31")
    A(f"""
    s_lshr_b32 s{sB}, s{sJ0}, 2
    s_and_b32 s{sTmp}, s{sW}, 1
    s_lshl1_add_u32 s{sS}, s{sB}, s{sTmp}
    s_lshl1_add_u32 s{sI}, s{sH}, s{sTmp}
    s_and_b32 s{sTmp}, s{sJ0}, 3
    s_lshr_b32 s{sTmp2}, s{sW}, 1
    s_lshl1_add_u32 s{sN}, s{sTmp}, s{sTmp2}
    v_lshrrev_b32 v{vT0}, 2, v{vLane}
    s_lshl_b32 s{sTmp}, s{sH}, 12
    s_lshl3_add_u32 s{sTmp}, s{sS}, s{sTmp}
    s_add_u32 s{sTmp}, s{sTmp}, {ML_OFF}
    v_lshl_add_u32 v{vMd}, v{vT0}, 7, s{sTmp}
    s_lshl_b32 s{sTmp}, s{sH}, 18
    s_lshl4_add_u32 s{sTmp2}, s{sN}, s{sS}
    s_lshl_b32 s{sTmp2}, s{sTmp2}, 6
    s_add_u32 s{sTmp}, s{sTmp}, s{sTmp2}
    v_and_b32 v{vT3}, 3, v{vLane}
    v_lshl_add_u32 v{vAd}, v{vT3}, 4, s{sTmp}
    v_lshl_add_u32 v{vAd}, v{vT0}, 13, v{vAd}
    v_add_u32 v{vAd+1}, {16*SB}, v{vAd}
    s_waitcnt lgkmcnt(0)
    """)
    stamp()
    for k in range(NK):
        A(f"global_load_dwordx2 v[{vML+2*k}:{vML+2*k+1}], v{vMd}, s[{rW}:{rW+1}] offset:{2048*k} {ldpol}")
    for k in range(NK):
        A(f"global_load_dwordx4 v[{vD+4*k}:{vD+4*k+3}], v{vAd+k}, s[{rW}:{rW+1}] {ldpol}")
    A(f"""
    s_lshl4_add_u32 s{sTmp}, s{sB}, s{sI}
    s_lshl3_add_u32 s{sTmp}, s{sTmp}, s{sN}
    s_lshl_b32 s{sTmp}, s{sTmp}, 6
    v_lshl_add_u32 v{vQi}, v{vT3}, 4, s{sTmp}
    v_lshrrev_b32 v{vG}, 4, v{vLane}
    v_lshl_add_u32 v{vQi}, v{vG}, 2, v{vQi}
    s_waitcnt vmcnt({NK})
    v_max_f32 v{vT0}, v{vML}, v{vML+2}
    """)
    for ro in (4, 8):
        A(f"s_nop 1\nv_max_f32_dpp v{vT0}, v{vT0}, v{vT0} row_ror:{ro} row_mask:0xf bank_mask:0xf")
    A(f"""
    v_mov_b32 v{vT1}, v{vT0}
    s_nop 1
    v_permlane32_swap_b32 v{vT0}, v{vT1}
    v_max_f32 v{vT0}, v{vT0}, v{vT1}
    v_mov_b32 v{vT1}, v{vT0}
    s_nop 1
    v_permlane16_swap_b32 v{vT0}, v{vT1}
    v_max_f32 v{vT0}, v{vT0}, v{vT1}
    """)
    for k in range(NK): A(f"v_sub_f32 v{vML+2*k}, v{vML+2*k}, v{vT0}")
    for k in range(NK): A(f"v_exp_f32 v{vML+2*k}, v{vML+2*k}")
    vLs = vAc + 8
    A(f"v_mul_f32 v{vLs}, v{vML}, v{vML+1}")
    for k in range(1, NK): A(f"v_fmac_f32 v{vLs}, v{vML+2*k}, v{vML+2*k+1}")
    for ro in (4, 8):
        A(f"s_nop 1\nv_add_f32_dpp v{vLs}, v{vLs}, v{vLs} row_ror:{ro} row_mask:0xf bank_mask:0xf")
    A(f"""
    v_mov_b32 v{vT1}, v{vLs}
    s_nop 1
    v_permlane32_swap_b32 v{vLs}, v{vT1}
    v_add_f32 v{vLs}, v{vLs}, v{vT1}
    v_mov_b32 v{vT1}, v{vLs}
    s_nop 1
    v_permlane16_swap_b32 v{vLs}, v{vT1}
    v_add_f32 v{vLs}, v{vLs}, v{vT1}
    v_rcp_f32 v{vLs}, v{vLs}
    """)
    for k in range(NK):
        A(f"s_waitcnt vmcnt({NK-1-k})")
        op = "v_mul_f32" if k == 0 else "v_fmac_f32"
        for j in range(4):
            A(f"v_lshlrev_b32 v{vT1}, 16, v{vD+4*k+j}\nv_and_b32 v{vT2}, 0xffff0000, v{vD+4*k+j}")
            A(f"{op} v{vAc+2*j}, v{vML+2*k}, v{vT1}\n{op} v{vAc+2*j+1}, v{vML+2*k}, v{vT2}")
    stamp()
    A("s_nop 0")
    for j in range(4): A(f"v_permlane32_swap_b32 v{vAc+j}, v{vAc+4+j}")
    for j in range(4): A(f"v_add_f32 v{vAc+j}, v{vAc+j}, v{vAc+4+j}")
    A("s_nop 1")
    for j in range(2): A(f"v_permlane16_swap_b32 v{vAc+j}, v{vAc+2+j}")
    for j in range(2): A(f"v_add_f32 v{vAc+j}, v{vAc+j}, v{vAc+2+j}")
    for ro in (4, 8):
        A("s_nop 0")
        for j in range(2): A(f"v_add_f32_dpp v{vAc+j}, v{vAc+j}, v{vAc+j} row_ror:{ro} row_mask:0xf bank_mask:0xf")
    A(f"""
    s_mov_b32 exec_lo, 0x000f000f
    s_mov_b32 exec_hi, 0x000f000f
    v_mul_f32 v{vAc}, v{vAc}, v{vLs}
    v_mul_f32 v{vAc+1}, v{vAc+1}, v{vLs}
    v_cvt_pk_bf16_f32 v{vAc}, v{vAc}, v{vAc+1}
    global_store_dword v{vQi}, v{vAc}, s[{sOUT}:{sOUT+1}]
    """)
    if prof == 1:
        A("s_waitcnt vmcnt(0)")
        stamp()
        A(f"""
        s_mov_b64 exec, 0xf00
        s_lshl_b32 s{sTmp}, s2, 2
        s_add_u32 s{sTmp}, s{sTmp}, s{sW}
        s_lshl_b32 s{sTmp}, s{sTmp}, 8
        s_add_u32 s{sTmp}, s{sTmp}, {PROF_OFF}
        v_lshl_add_u32 v{vT0}, v{vLane}, 2, s{sTmp}
        global_store_dword v{vT0}, v{vPf}, s[{rW}:{rW+1}]
        """)
    A("L_end2:\ns_endpgm")
    def kd(name, nv):
        A(f""".section .rodata,"a"
.p2align 6
.amdhsa_kernel {name}
.amdhsa_next_free_vgpr {nv}
.amdhsa_next_free_sgpr {NS}
.amdhsa_accum_offset {(nv+3)//4*4}
.amdhsa_group_segment_fixed_size 0
.amdhsa_kernarg_size 64
.amdhsa_user_sgpr_count 2
.amdhsa_user_sgpr_kernarg_segment_ptr 1
.amdhsa_system_sgpr_workgroup_id_x 1
.end_amdhsa_kernel""")
    kd(KN, NV)
    kd("combine_kernel", 48)
    return A.text()

if __name__ == "__main__":
    out = sys.argv[1]
    kw = {}
    for kv in sys.argv[2:]:
        k, v = kv.split("=")
        if "," in v: kw[k] = tuple(int(x) for x in v.split(","))
        else: kw[k] = int(v) if v.lstrip("-").isdigit() else v.replace("+", " ")
    open(out, "w").write(gen(**kw))
```

```python
import sys
from gen import Asm, HEADER, NAME, KN

def gen(prof=0, pol="nt", stpol="", diag=None, diagwg=-1, diagmul=10, X=2, spec=1, cmap=1, ldpol="", pfi=1, diagx=0, diagg=0, pre=0, prex=8, dumpptr=0):
    NWG = 256
    SB = 8192
    ML_OFF = NWG * SB
    WS_BYTES = ML_OFF + NWG * 128
    PROF_OFF = 8 << 20
    QL = 65536
    TL = QL + 8192
    LDS = TL + 16384
    KVB = 2304 * 65536
    NEGBIG = 0xFF000000
    CSC = 0x3DB8AA3B
    if diag is not None: prof = 2
    A = Asm()
    vLane, vG, vQi = 0, 1, 2
    vT0, vT1, vT2, vT3 = 3, 4, 5, 6
    vCtx, vC, vM, vL = 7, 8, 9, 10
    vPf = 11
    vAl = 12
    vOf = 14; vRO = 15
    vP = 16
    vS = 20
    vB = 28
    vX = 36
    vLim = 44
    vDs = 48
    vQD = 50
    vKA = 52
    vDO = 56
    vVA = 60
    vSO = 62; vMO = 63
    vQ = 64
    vKF = 96
    vVF = 160
    vO = 176
    NV = 192
    sQ, sK, sV, sBT, sCTX, sOUT, sDBG, sWS = 4, 6, 8, 10, 12, 14, 16, 18
    rK, rV, rW, rQ, rT = 20, 24, 28, 32, 36
    sCx = 40
    sCm = 48
    sPos = 52
    sC3 = 54
    sN = 56; sI = 57; sLB = 58; sTmp = 59; sTmp2 = 60; sS = 61; sNinf = 62; sIt = 63
    sOff = 64
    sPr = 66
    sNr = 68
    sH = 70; sJ0 = 71
    sMk = 72
    sF = 72
    sSt = 88
    sW = 90; sB = 91; sTot = 92; sMx = 93
    sPv = 94; sGap = 95; sGapT = 96
    NS = 100
    pidx = [0]
    pr = [prof]
    def stamp():
        if not pr[0]: return
        A(f"s_memrealtime s[{sSt}:{sSt+1}]\ns_waitcnt lgkmcnt(0)\nv_writelane_b32 v{vPf}, s{sSt}, {pidx[0]}")
        pidx[0] += 1

    A(HEADER)
    if prof == 1: A("; prof=1\n; proftile=8192")
    if pre: A(f"; @launch kernel=touch_kernel grid=({prex},1,1) block=(256,1,1) lds=0")
    A(f"; @launch kernel={KN} grid=({NWG},1,1) block=(256,1,1) lds={LDS}")
    A(f"; @launch kernel=combine_kernel grid=({NWG},1,1) block=(256,1,1) lds=0")
    A('.amdgcn_target "amdgcn-amd-amdhsa--gfx950"\n.text')
    A(f".globl {KN}\n.p2align 8\n.type {KN},@function\n{KN}:")
    A(f"s_cmp_ge_u32 s2, {NWG}\ns_cbranch_scc1 L_end")
    if prof: A(f"v_mov_b32 v{vPf}, 0\ns_mov_b32 s{sIt}, 16\ns_mov_b32 s{sPv}, 0\ns_mov_b32 s{sGap}, 0\ns_mov_b32 s{sGapT}, 0")
    stamp()
    A("s_load_dwordx16 s[4:19], s[0:1], 0")
    def prefetch_code(lab, endlab):
        A(f"""
        s_getpc_b64 s[{sCm}:{sCm+1}]
        {lab}:
        v_lshlrev_b32 v{vT3}, 7, v0
        v_min_u32 v{vT3}, {endlab}-{lab}, v{vT3}
        global_load_dword v{vAl}, v{vT3}, s[{sCm}:{sCm+1}]
        """)
    if pfi: prefetch_code("L_pf1", "L_end2")
    A(f"""
    v_lshrrev_b32 v{vT0}, 6, v0
    v_and_b32 v{vLane}, 63, v0
    v_readfirstlane_b32 s{sW}, v{vT0}
    v_lshrrev_b32 v{vG}, 4, v{vLane}
    v_and_b32 v{vQi}, 15, v{vLane}
    s_and_b32 s{sH}, s2, 7
    s_lshr_b32 s{sJ0}, s2, 3
    s_lshl_b32 s{sLB}, s{sW}, 12
    s_lshl2_add_u32 s{sTmp}, s{sJ0}, s{sW}
    s_lshl_b32 s{sTmp}, s{sTmp}, 15
    s_lshl_b32 s{sTmp2}, s{sH}, 9
    s_add_u32 s{sPr}, s{sTmp}, s{sTmp2}
    s_add_u32 s{sPr+1}, s{sPr}, {64*65536}
    v_lshlrev_b32 v{vRO}, 4, v{vLane}
    v_lshrrev_b32 v{vT0}, 5, v{vLane}
    v_and_b32 v{vT1}, 31, v{vLane}
    s_and_b32 s{sTmp}, s{sW}, 1
    s_lshl_b32 s{sTmp}, s{sTmp}, 7
    """)
    for jl in range(4):
        A(f"""
        v_add_u32 v{vT2}, {2*jl}, v{vT0}
        v_lshlrev_b32 v{vT3}, 1, v{vT2}
        v_xor_b32 v{vT3}, v{vT3}, v{vT1}
        v_lshlrev_b32 v{vT3}, 4, v{vT3}
        v_lshl_add_u32 v{vDO+jl}, v{vT2}, 12, v{vT3}
        """)
        if jl: A(f"v_subrev_u32 v{vDO+jl}, {1024*jl}, v{vDO+jl}")
        if jl < 2: A(f"v_xor_b32 v{vT3}, s{sTmp}, v{vT3}\nv_lshl_add_u32 v{vQD+jl}, v{vT0}, 9, v{vT3}")
    A(f"v_add_u32 v{vQD+1}, {8192-1024}, v{vQD+1}")
    A(f"v_lshrrev_b32 v{vT2}, 1, v{vQi}\nv_lshlrev_b32 v{vT2}, 2, v{vT2}")
    for r, n in ((rK, KVB), (rV, KVB), (rW, WS_BYTES if not prof else 16 << 20), (rQ, 65536), (rT, 16384)):
        A(f"s_mov_b32 s{r+2}, {n}\ns_mov_b32 s{r+3}, 0x20000")
    A(f"""
    s_lshl_b32 s{sS}, s{sW}, 14
    s_lshl_b32 s{sTmp}, s{sH}, 10
    s_add_u32 s{sS}, s{sS}, s{sTmp}
    s_add_u32 m0, s{sLB}, {TL}
    s_waitcnt lgkmcnt(0)
    s_mov_b32 s{rT}, s{sBT}
    s_and_b32 s{rT+1}, s{sBT+1}, 0xffff
    s_load_dwordx8 s[{sCx}:{sCx+7}], s[{sCTX}:{sCTX+1}], 0
    """)
    for j in range(4):
        A(f"buffer_load_dwordx4 v{vRO}, s[{rT}:{rT+3}], s{sLB} offen offset:{1024*j} lds")
    A(f"global_load_dword v{vCtx}, v{vT2}, s[{sCTX}:{sCTX+1}]")
    for r, p in ((rK, sK), (rV, sV), (rQ, sQ)):
        A(f"s_mov_b32 s{r}, s{p}\ns_and_b32 s{r+1}, s{p+1}, 0xffff")
    def issue(isv, slot, js=range(4), off=None, setnr=True):
        r = rV if isv else rK
        if not len(js): return
        A(f"s_add_u32 m0, s{sLB}, {slot*32768 + isv*16384}")
        A(f"s_mov_b32 s{r+2}, s{sNr+slot}" if setnr else "s_nop 0")
        for jl in js:
            A(f"buffer_load_dwordx4 v{vDO+jl}, s[{r}:{r+3}], s{(sOff if off is None else off)+slot} offen offset:{1024*jl} {pol} lds")
    if spec: issue(0, 0, off=sPr, setnr=False)
    A(f"""
    s_lshr_b32 s{sTmp}, s{sLB}, 1
    s_add_u32 m0, s{sTmp}, {QL}
    s_nop 0
    buffer_load_dwordx4 v{vQD}, s[{rQ}:{rQ+3}], s{sS} offen lds
    buffer_load_dwordx4 v{vQD+1}, s[{rQ}:{rQ+3}], s{sS} offen offset:1024 lds
    """)
    if spec:
        issue(1, 0, off=sPr, setnr=False); issue(0, 1, range(X), off=sPr, setnr=False)
    if prof: pidx[0] = 1; stamp()
    A(f"""
    s_mov_b32 s{rW}, s{sWS}
    s_and_b32 s{rW+1}, s{sWS+1}, 0xffff
    s_mov_b32 s{sNinf}, 0xff800000
    s_mov_b32 s{sC3}, 0x00030003
    s_mov_b32 s{sC3+1}, 0x00030003
    s_lshl_b32 s{sTmp}, s{sH}, 5
    s_add_u32 s{sTmp}, s{sTmp}, s{sJ0}
    s_lshl_b32 s{sTmp2}, s{sTmp}, 7
    s_add_u32 s{sTmp2}, s{sTmp2}, {ML_OFF}
    v_lshl_add_u32 v{vMO}, v{vQi}, 3, s{sTmp2}
    s_lshl2_add_u32 s{sTmp}, s{sTmp}, s{sW}
    s_lshl_b32 s{sTmp}, s{sTmp}, 11
    v_lshl_add_u32 v{vSO}, v{vQi}, 6, s{sTmp}
    v_lshl_add_u32 v{vSO}, v{vG}, 4, v{vSO}
    v_and_b32 v{vT0}, 7, v{vQi}
    v_lshlrev_b32 v{vT0}, 1, v{vT0}
    v_lshlrev_b32 v{vT1}, 9, v{vQi}
    """)
    vQA = vVF
    for sl in range(4):
        A(f"v_add_u32 v{vT2}, {4*sl}, v{vG}\nv_xor_b32 v{vT2}, v{vT2}, v{vT0}\nv_lshl_add_u32 v{vKA+sl}, v{vT2}, 4, v{vT1}\nv_add_u32 v{vQA+sl}, {QL}, v{vKA+sl}")
    A(f"""
    v_lshrrev_b32 v{vT0}, 2, v{vLane}
    v_lshlrev_b32 v{vT1}, 9, v{vT0}
    v_and_b32 v{vT0}, 7, v{vT0}
    v_lshlrev_b32 v{vT0}, 1, v{vT0}
    v_and_b32 v{vT2}, 3, v{vLane}
    s_lshl_b32 s{sTmp}, s{sW}, 3
    v_add_u32 v{vT2}, s{sTmp}, v{vT2}
    v_xor_b32 v{vT3}, v{vT2}, v{vT0}
    v_lshl_add_u32 v{vVA}, v{vT3}, 4, v{vT1}
    v_xor_b32 v{vVA+1}, 64, v{vVA}
    v_add_u32 v{vOf}, {TL}, v{vRO}
    s_lshl_b32 s{sTmp}, s{sJ0}, 1
    v_lshl_add_u32 v{vS}, v{vLane}, 6, s{sTmp}
    v_add_u32 v{vS+1}, 1, v{vS}
    v_mov_b32 v{vDs}, 0x80000
    v_mov_b32 v{vDs+1}, 0x80000
    """)
    for i in range(16): A(f"v_mov_b32 v{vO+i}, 0")
    A(f"v_mov_b32 v{vM}, {NEGBIG}\nv_mov_b32 v{vL}, 0\ns_mov_b32 s{sMx}, 0\ns_waitcnt lgkmcnt(0)")
    for b in range(8):
        A(f"""
        s_cmp_gt_i32 s{sCx+b}, 0
        s_cselect_b32 s{sCx+b}, s{sCx+b}, 0x2000
        s_min_u32 s{sCx+b}, s{sCx+b}, 0x2000
        s_add_u32 s{sCx+b}, s{sCx+b}, 15
        s_lshr_b32 s{sCx+b}, s{sCx+b}, 4
        s_max_u32 s{sMx}, s{sMx}, s{sCx+b}
        """)
    A(f"s_waitcnt vmcnt({10+X if spec else 2})\ns_barrier")
    pidx[0] = 2; stamp()
    for hf in range(2):
        for b in range(8):
            r = vKF + 32*hf + 4*b
            A(f"ds_read_b128 v[{r}:{r+3}], v{vOf} offset:{2048*b + 1024*hf}")
    A(f"""
    v_cmp_lt_i32 vcc, 0, v{vCtx}
    v_min_i32 v{vCtx}, 0x2000, v{vCtx}
    v_mov_b32 v{vT0}, 0x2000
    v_mov_b32 v{vT1}, {CSC}
    v_cndmask_b32 v{vCtx}, v{vT0}, v{vCtx}, vcc
    v_cndmask_b32 v{vC}, 0, v{vT1}, vcc
    v_lshlrev_b32 v{vT0}, 2, v{vG}
    v_sub_u32 v{vLim}, v{vCtx}, v{vT0}
    v_subrev_u32 v{vLim+1}, 1, v{vLim}
    v_subrev_u32 v{vLim+2}, 2, v{vLim}
    v_subrev_u32 v{vLim+3}, 3, v{vLim}
    s_mov_b32 s{sS}, s{sMx}
    """)
    for hf in range(2):
        A(f"s_waitcnt lgkmcnt({8 if hf == 0 else 0})")
        for c in range(4):
            r = lambda b: vKF + 32*hf + 4*b + c
            A(f"""
            v_min3_u32 v{vT0}, v{r(0)}, v{r(1)}, v{r(2)}
            v_max3_u32 v{vT1}, v{r(0)}, v{r(1)}, v{r(2)}
            v_min3_u32 v{vT0}, v{vT0}, v{r(3)}, v{r(4)}
            v_max3_u32 v{vT1}, v{vT1}, v{r(3)}, v{r(4)}
            v_min3_u32 v{vT0}, v{vT0}, v{r(5)}, v{r(6)}
            v_max3_u32 v{vT1}, v{vT1}, v{r(5)}, v{r(6)}
            v_min_u32 v{vT0}, v{vT0}, v{r(7)}
            v_max_u32 v{vT1}, v{vT1}, v{r(7)}
            v_cmp_ne_u32 vcc, v{vT0}, v{vT1}
            s_ff1_i32_b64 s{sTmp}, vcc
            s_min_u32 s{sTmp}, s{sTmp}, 128
            s_lshl2_add_u32 s{sTmp}, s{sTmp}, {256*hf + c}
            s_min_u32 s{sS}, s{sS}, s{sTmp}
            """)
    A(f"s_mov_b32 s{sTot}, s{sS}")
    for b in range(8):
        A(f"""
        s_sub_u32 s{sTmp}, s{sS}, s{sTot}
        v_cmp_le_u32 vcc, s{sTot}, v{vS}
        v_cmp_le_u32 s[{sMk}:{sMk+1}], s{sTot}, v{vS+1}
        s_add_u32 s{sTmp}, s{sTmp}, {b << 16}
        v_mov_b32 v{vT0}, s{sTmp}
        s_max_u32 s{sTmp2}, s{sCx+b}, s{sS}
        s_sub_u32 s{sTmp2}, s{sTmp2}, s{sS}
        s_add_u32 s{sTot}, s{sTot}, s{sTmp2}
        v_cndmask_b32 v{vDs}, v{vDs}, v{vT0}, vcc
        v_cndmask_b32 v{vDs+1}, v{vDs+1}, v{vT0}, s[{sMk}:{sMk+1}]
        """)
    A(f"""
    v_cmp_gt_u32 vcc, s{sTot}, v{vS}
    v_cmp_gt_u32 s[{sMk}:{sMk+1}], s{sTot}, v{vS+1}
    v_add_u32 v{vDs}, v{vDs}, v{vS}
    v_add_u32 v{vDs+1}, v{vDs+1}, v{vS+1}
    v_mov_b32 v{vT0}, 0x807ff
    s_bcnt1_i32_b64 s{sN}, vcc
    v_cndmask_b32 v{vDs}, v{vT0}, v{vDs}, vcc
    v_cndmask_b32 v{vDs+1}, v{vT0}, v{vDs+1}, s[{sMk}:{sMk+1}]
    s_bitcmp1_b32 s{sW}, 1
    s_cselect_b64 s[{sMk}:{sMk+1}], s[{sMk}:{sMk+1}], vcc
    s_cselect_b64 vcc, -1, 0
    v_cndmask_b32 v{vT0}, v{vDs}, v{vDs+1}, vcc
    v_bfe_u32 v{vT1}, v{vT0}, 16, 3
    v_and_b32 v{vT0}, 0x1ff, v{vT0}
    v_lshl_add_u32 v{vT0}, v{vT1}, 9, v{vT0}
    v_lshlrev_b32 v{vT0}, 2, v{vT0}
    v_add_u32 v{vT0}, {TL}, v{vT0}
    ds_read_b32 v{vOf}, v{vT0}
    s_and_b32 s{sTmp}, s{sPr}, 0xffff
    s_waitcnt lgkmcnt(0)
    v_lshl_add_u32 v{vOf}, v{vOf}, 16, s{sTmp}
    v_cndmask_b32 v{vOf}, 1, v{vOf}, s[{sMk}:{sMk+1}]
    s_mov_b32 s{sI}, 0
    """)
    def tile_addr(slot, ahead):
        A(f"""
        s_add_u32 s{sTmp}, s{sI}, {ahead}
        v_readlane_b32 s{sTmp2}, v{vOf}, s{sTmp}
        s_cmp_lt_u32 s{sTmp}, s{sN}
        s_cselect_b32 s{sTmp2}, s{sTmp2}, 1
        s_bitcmp0_b32 s{sTmp2}, 0
        s_cselect_b32 s{sOff+slot}, s{sTmp2}, 0
        s_cselect_b32 s{sNr+slot}, {KVB}, 0
        """)
    def issue1(p): issue(0, 1-p, range(X, 4)); issue(1, 1-p, range(X))
    def issue2(p): issue(1, 1-p, range(X, 4)); issue(0, p, range(X))
    tile_addr(0, 0); tile_addr(1, 1)
    if spec:
        A(f"s_cmp_eq_u64 s[{sOff}:{sOff+1}], s[{sPr}:{sPr+1}]\ns_cbranch_scc1 L_spec_ok\ns_waitcnt vmcnt(0)")
    issue(0, 0); issue(1, 0); issue(0, 1, range(X))
    WN = 4 + X
    A("L_spec_ok:")
    A(f"s_cmp_eq_u32 s{sN}, 0\ns_cbranch_scc1 L_done")
    A(f"s_waitcnt vmcnt({WN})\ns_barrier")
    for s in range(8):
        A(f"ds_read_b128 v[{vQ+4*s}:{vQ+4*s+3}], v{vQA+(s&3)} offset:{256*(s>>2)}")
    A(".p2align 6\nL_loop:")
    for p in range(2):
        base = p * 32768
        for hf in range(2): A(f"v_readlane_b32 s{sPos+hf}, v{vDs+hf}, s{sI}")
        for hf in range(2):
            A(f"""
            s_lshr_b32 s{sTmp}, s{sPos+hf}, 15
            s_lshl_b64 s[{sCm+2*hf}:{sCm+2*hf+1}], s[{sC3}:{sC3+1}], s{sTmp}
            s_bitcmp1_b32 s{sPos+hf}, 19
            s_cselect_b64 s[{sCm+2*hf}:{sCm+2*hf+1}], -1, s[{sCm+2*hf}:{sCm+2*hf+1}]
            s_and_b32 s{sPos+hf}, s{sPos+hf}, 0x7ff
            s_lshl_b32 s{sPos+hf}, s{sPos+hf}, 4
            """)
        for hf in range(2):
            for r in range(4): A(f"v_cmp_lt_i32 s[{sMk+8*hf+2*r}:{sMk+8*hf+2*r+1}], s{sPos+hf}, v{vLim+r}")
        A(f"v_mov_b32 v{vT0}, s{sNinf}")
        for hf in range(2):
            for r in range(4): A(f"s_and_b64 s[{sMk+8*hf+2*r}:{sMk+8*hf+2*r+1}], s[{sMk+8*hf+2*r}:{sMk+8*hf+2*r+1}], s[{sCm+2*hf}:{sCm+2*hf+1}]")
        A(f"s_waitcnt vmcnt({WN})\ns_barrier")
        if prof:
            A(f"s_memrealtime s[{sSt}:{sSt+1}]\ns_waitcnt lgkmcnt(0)\ns_mov_b32 m0, s{sIt}\ns_add_u32 s{sIt}, s{sIt}, 1\ns_min_u32 s{sIt}, s{sIt}, 60\nv_writelane_b32 v{vPf}, s{sSt}, m0")
            if diagg:
                A(f"s_sub_u32 s{sTmp}, s{sSt}, s{sPv}\ns_cmp_eq_u32 s{sPv}, 0\ns_cselect_b32 s{sTmp}, 0, s{sTmp}\ns_mov_b32 s{sPv}, s{sSt}\ns_cmp_gt_u32 s{sTmp}, s{sGap}\ns_cselect_b32 s{sGap}, s{sTmp}, s{sGap}\ns_cselect_b32 s{sGapT}, s{sSt}, s{sGapT}")
        issue1(p)
        for s in range(8):
            for h in range(2):
                r = vKF + 8*s + 4*h
                A(f"ds_read_b128 v[{r}:{r+3}], v{vKA+(s&3)} offset:{base + 256*(s>>2) + 8192*h}")
        for r in range(8):
            A(f"v_cndmask_b32 v{vB+r}, v{vT0}, 0, s[{sMk+2*r}:{sMk+2*r+1}]")
        for s in range(8):
            A(f"s_waitcnt lgkmcnt({14-2*s})")
            for h in range(2):
                c = "0" if s == 0 else f"v[{vS+4*h}:{vS+4*h+3}]"
                r = vKF + 8*s + 4*h
                A(f"v_mfma_f32_16x16x32_bf16 v[{vS+4*h}:{vS+4*h+3}], v[{r}:{r+3}], v[{vQ+4*s}:{vQ+4*s+3}], {c}")
        tile_addr(p, 2)
        A(f"s_add_u32 s{sI}, s{sI}, 1")
        for r in range(8):
            A(f"v_fma_f32 v{vX+r}, v{vS+r}, v{vC}, v{vB+r}")
        A(f"""
        v_max3_f32 v{vT0}, v{vX}, v{vX+1}, v{vX+2}
        v_max3_f32 v{vT1}, v{vX+3}, v{vX+4}, v{vX+5}
        v_max3_f32 v{vT0}, v{vT0}, v{vX+6}, v{vX+7}
        v_max3_f32 v{vT0}, v{vT0}, v{vT1}, v{vM}
        v_mov_b32 v{vT1}, v{vT0}
        s_nop 1
        v_permlane32_swap_b32 v{vT0}, v{vT1}
        v_max_f32 v{vT0}, v{vT0}, v{vT1}
        v_mov_b32 v{vT1}, v{vT0}
        s_nop 1
        v_permlane16_swap_b32 v{vT0}, v{vT1}
        v_max_f32 v{vT0}, v{vT0}, v{vT1}
        v_sub_f32 v{vAl}, v{vM}, v{vT0}
        v_mov_b32 v{vM}, v{vT0}
        """)
        for r in range(8): A(f"v_sub_f32 v{vX+r}, v{vX+r}, v{vT0}")
        A(f"v_exp_f32 v{vAl}, v{vAl}")
        for r in range(8): A(f"v_exp_f32 v{vX+r}, v{vX+r}")
        for i in range(8):
            A(f"v_pk_mul_f32 v[{vO+2*i}:{vO+2*i+1}], v[{vO+2*i}:{vO+2*i+1}], v[{vAl}:{vAl+1}] op_sel_hi:[1,0]")
        for j in range(4): A(f"v_cvt_pk_bf16_f32 v{vP+j}, v{vX+2*j}, v{vX+2*j+1}")
        A(f"s_waitcnt vmcnt({WN})\ns_barrier")
        for i in range(4):
            for h in range(2):
                r = vVF + 4*i + 2*h
                A(f"ds_read_b64_tr_b16 v[{r}:{r+1}], v{vVA+(i>>1)} offset:{base + 16384 + 8192*h + 8*(i&1)}")
        issue2(p)
        A(f"""
        v_fma_f32 v{vL}, v{vL}, v{vAl}, v{vX}
        v_add_f32 v{vT0}, v{vX+1}, v{vX+2}
        v_add_f32 v{vT1}, v{vX+3}, v{vX+4}
        v_add_f32 v{vT2}, v{vX+5}, v{vX+6}
        v_add_f32 v{vL}, v{vL}, v{vX+7}
        v_add_f32 v{vT0}, v{vT0}, v{vT1}
        v_add_f32 v{vL}, v{vL}, v{vT2}
        v_add_f32 v{vL}, v{vL}, v{vT0}
        s_cmp_ge_u32 s{sI}, s{sN}
        """)
        for i in range(4):
            A(f"s_waitcnt lgkmcnt({6-2*i})")
            A(f"v_mfma_f32_16x16x32_bf16 v[{vO+4*i}:{vO+4*i+3}], v[{vVF+4*i}:{vVF+4*i+3}], v[{vP}:{vP+3}], v[{vO+4*i}:{vO+4*i+3}]")
        if p == 0: A("s_cbranch_scc1 L_done")
        else: A("s_cbranch_scc0 L_loop")
    A("L_done:")
    pidx[0] = 3; stamp()
    A(f"""
    v_mov_b32 v{vT1}, v{vL}
    v_mov_b32 v{vAl}, v{vM}
    s_nop 0
    v_permlane32_swap_b32 v{vL}, v{vT1}
    v_add_f32 v{vL}, v{vL}, v{vT1}
    v_mov_b32 v{vT1}, v{vL}
    s_nop 1
    v_permlane16_swap_b32 v{vL}, v{vT1}
    v_add_f32 v{vAl+1}, v{vL}, v{vT1}
    """)
    for j in range(8): A(f"v_cvt_pk_bf16_f32 v{vX+j}, v{vO+2*j}, v{vO+2*j+1}")
    for ih in range(2):
        A(f"buffer_store_dwordx4 v[{vX+4*ih}:{vX+4*ih+3}], v{vSO}, s[{rW}:{rW+3}], 0 offen offset:{1024*ih} {stpol}")
    A(f"""
    s_cmp_lg_u32 s{sW}, 0
    s_cbranch_scc1 L_noml
    s_mov_b64 exec, 0xffff
    buffer_store_dwordx2 v[{vAl}:{vAl+1}], v{vMO}, s[{rW}:{rW+3}], 0 offen {stpol}
    s_mov_b64 exec, -1
    L_noml:
    """)
    stamp()
    if dumpptr:
        for i in range(16): A(f"v_writelane_b32 v{vT0}, s{4+i}, {i}")
        A(f"v_lshlrev_b32 v{vT1}, 2, v{vLane}\ns_mov_b64 exec, 0xffff\nglobal_store_dword v{vT1}, v{vT0}, s[{sDBG}:{sDBG+1}]\ns_mov_b64 exec, -1")
    A("s_waitcnt vmcnt(0)")
    if prof == 2:
        stamp()
        a, b = diag
        A(f"""
        s_nop 1
        v_readlane_b32 s{sF}, v{vPf}, 0
        v_readlane_b32 s{sF+1}, v{vPf}, {a}
        v_readlane_b32 s{sF+2}, v{vPf}, {b}
        s_sub_u32 s{sF+1}, s{sF+2}, s{sF+1}
        s_min_u32 s{sF+1}, s{sF+1}, 20000
        s_mul_i32 s{sF+1}, s{sF+1}, {diagmul}
        """)
        if diagg == 1: A(f"s_mul_i32 s{sF+1}, s{sGap}, {diagmul}")
        if diagg == 2: A(f"s_sub_u32 s{sF+1}, s{sGapT}, s{sF}\ns_min_u32 s{sF+1}, s{sF+1}, 20000\ns_mul_i32 s{sF+1}, s{sF+1}, {diagmul}")
        if diagx:
            A(f"s_getreg_b32 s{sF+1}, hwreg(HW_REG_XCC_ID)\ns_sub_u32 s{sF+1}, s{sF+1}, s2\ns_and_b32 s{sF+1}, s{sF+1}, 7\ns_mul_i32 s{sF+1}, s{sF+1}, 1000")
        if diagwg >= 0: A(f"s_cmp_eq_u32 s2, {diagwg}\ns_cselect_b32 s{sF+1}, s{sF+1}, 0")
        A(f"""
        s_add_u32 s{sF+1}, s{sF+1}, 10000
        L_spin:
        s_memrealtime s[{sSt}:{sSt+1}]
        s_waitcnt lgkmcnt(0)
        s_sub_u32 s{sF+2}, s{sSt}, s{sF}
        s_cmp_lt_u32 s{sF+2}, s{sF+1}
        s_cbranch_scc1 L_spin
        """)
    if prof == 1:
        stamp()
        A(f"""
        s_getreg_b32 s{sTmp}, hwreg(HW_REG_XCC_ID)
        v_writelane_b32 v{vPf}, s{sTmp}, 62
        s_lshl_b32 s{sTmp}, s2, 2
        s_add_u32 s{sTmp}, s{sTmp}, s{sW}
        s_lshl_b32 s{sTmp}, s{sTmp}, 8
        s_add_u32 s{sTmp}, s{sTmp}, {PROF_OFF}
        v_lshlrev_b32 v{vT0}, 2, v{vLane}
        buffer_store_dword v{vPf}, v{vT0}, s[{rW}:{rW+3}], s{sTmp} offen
        """)
    A("L_end:\ns_endpgm")
    pr[0] = 1 if prof == 1 else 0
    pidx[0] = 8

    A(f".globl combine_kernel\n.p2align 8\n.type combine_kernel,@function\ncombine_kernel:")
    NK = 2
    vD = 16; vML = 24; vAd = 28; vMd = 30; vAc = 32
    A(f"s_cmp_ge_u32 s2, {NWG}\ns_cbranch_scc1 L_end2")
    stamp()
    A(f"""
    s_load_dwordx2 s[{sOUT}:{sOUT+1}], s[0:1], 40
    s_load_dwordx2 s[{rW}:{rW+1}], s[0:1], 56
    """)
    if pfi > 1: prefetch_code("L_pf2", "L_end2")
    A(f"""
    v_lshrrev_b32 v{vT0}, 6, v0
    v_and_b32 v{vLane}, 63, v0
    v_readfirstlane_b32 s{sW}, v{vT0}
    """)
    if cmap: A(f"s_and_b32 s{sH}, s2, 7\ns_lshr_b32 s{sJ0}, s2, 3")
    else: A(f"s_lshr_b32 s{sH}, s2, 5\ns_and_b32 s{sJ0}, s2, 31")
    A(f"""
    s_lshr_b32 s{sB}, s{sJ0}, 2
    s_and_b32 s{sTmp}, s{sW}, 1
    s_lshl1_add_u32 s{sS}, s{sB}, s{sTmp}
    s_lshl1_add_u32 s{sI}, s{sH}, s{sTmp}
    s_and_b32 s{sTmp}, s{sJ0}, 3
    s_lshr_b32 s{sTmp2}, s{sW}, 1
    s_lshl1_add_u32 s{sN}, s{sTmp}, s{sTmp2}
    v_lshrrev_b32 v{vT0}, 2, v{vLane}
    s_lshl_b32 s{sTmp}, s{sH}, 12
    s_lshl3_add_u32 s{sTmp}, s{sS}, s{sTmp}
    s_add_u32 s{sTmp}, s{sTmp}, {ML_OFF}
    v_lshl_add_u32 v{vMd}, v{vT0}, 7, s{sTmp}
    s_lshl_b32 s{sTmp}, s{sH}, 18
    s_lshl4_add_u32 s{sTmp2}, s{sN}, s{sS}
    s_lshl_b32 s{sTmp2}, s{sTmp2}, 6
    s_add_u32 s{sTmp}, s{sTmp}, s{sTmp2}
    v_and_b32 v{vT3}, 3, v{vLane}
    v_lshl_add_u32 v{vAd}, v{vT3}, 4, s{sTmp}
    v_lshl_add_u32 v{vAd}, v{vT0}, 13, v{vAd}
    v_add_u32 v{vAd+1}, {16*SB}, v{vAd}
    s_waitcnt lgkmcnt(0)
    """)
    stamp()
    for k in range(NK):
        A(f"global_load_dwordx2 v[{vML+2*k}:{vML+2*k+1}], v{vMd}, s[{rW}:{rW+1}] offset:{2048*k} {ldpol}")
    for k in range(NK):
        A(f"global_load_dwordx4 v[{vD+4*k}:{vD+4*k+3}], v{vAd+k}, s[{rW}:{rW+1}] {ldpol}")
    A(f"""
    s_lshl4_add_u32 s{sTmp}, s{sB}, s{sI}
    s_lshl3_add_u32 s{sTmp}, s{sTmp}, s{sN}
    s_lshl_b32 s{sTmp}, s{sTmp}, 6
    v_lshl_add_u32 v{vQi}, v{vT3}, 4, s{sTmp}
    v_lshrrev_b32 v{vG}, 4, v{vLane}
    v_lshl_add_u32 v{vQi}, v{vG}, 2, v{vQi}
    s_waitcnt vmcnt({NK})
    v_max_f32 v{vT0}, v{vML}, v{vML+2}
    """)
    for ro in (4, 8):
        A(f"s_nop 1\nv_max_f32_dpp v{vT0}, v{vT0}, v{vT0} row_ror:{ro} row_mask:0xf bank_mask:0xf")
    A(f"""
    v_mov_b32 v{vT1}, v{vT0}
    s_nop 1
    v_permlane32_swap_b32 v{vT0}, v{vT1}
    v_max_f32 v{vT0}, v{vT0}, v{vT1}
    v_mov_b32 v{vT1}, v{vT0}
    s_nop 1
    v_permlane16_swap_b32 v{vT0}, v{vT1}
    v_max_f32 v{vT0}, v{vT0}, v{vT1}
    """)
    for k in range(NK): A(f"v_sub_f32 v{vML+2*k}, v{vML+2*k}, v{vT0}")
    for k in range(NK): A(f"v_exp_f32 v{vML+2*k}, v{vML+2*k}")
    vLs = vAc + 8
    A(f"v_mul_f32 v{vLs}, v{vML}, v{vML+1}")
    for k in range(1, NK): A(f"v_fmac_f32 v{vLs}, v{vML+2*k}, v{vML+2*k+1}")
    for ro in (4, 8):
        A(f"s_nop 1\nv_add_f32_dpp v{vLs}, v{vLs}, v{vLs} row_ror:{ro} row_mask:0xf bank_mask:0xf")
    A(f"""
    v_mov_b32 v{vT1}, v{vLs}
    s_nop 1
    v_permlane32_swap_b32 v{vLs}, v{vT1}
    v_add_f32 v{vLs}, v{vLs}, v{vT1}
    v_mov_b32 v{vT1}, v{vLs}
    s_nop 1
    v_permlane16_swap_b32 v{vLs}, v{vT1}
    v_add_f32 v{vLs}, v{vLs}, v{vT1}
    v_rcp_f32 v{vLs}, v{vLs}
    """)
    for k in range(NK):
        A(f"s_waitcnt vmcnt({NK-1-k})")
        op = "v_mul_f32" if k == 0 else "v_fmac_f32"
        for j in range(4):
            A(f"v_lshlrev_b32 v{vT1}, 16, v{vD+4*k+j}\nv_and_b32 v{vT2}, 0xffff0000, v{vD+4*k+j}")
            A(f"{op} v{vAc+2*j}, v{vML+2*k}, v{vT1}\n{op} v{vAc+2*j+1}, v{vML+2*k}, v{vT2}")
    stamp()
    A("s_nop 0")
    for j in range(4): A(f"v_permlane32_swap_b32 v{vAc+j}, v{vAc+4+j}")
    for j in range(4): A(f"v_add_f32 v{vAc+j}, v{vAc+j}, v{vAc+4+j}")
    A("s_nop 1")
    for j in range(2): A(f"v_permlane16_swap_b32 v{vAc+j}, v{vAc+2+j}")
    for j in range(2): A(f"v_add_f32 v{vAc+j}, v{vAc+j}, v{vAc+2+j}")
    for ro in (4, 8):
        A("s_nop 0")
        for j in range(2): A(f"v_add_f32_dpp v{vAc+j}, v{vAc+j}, v{vAc+j} row_ror:{ro} row_mask:0xf bank_mask:0xf")
    A(f"""
    s_mov_b32 exec_lo, 0x000f000f
    s_mov_b32 exec_hi, 0x000f000f
    v_mul_f32 v{vAc}, v{vAc}, v{vLs}
    v_mul_f32 v{vAc+1}, v{vAc+1}, v{vLs}
    v_cvt_pk_bf16_f32 v{vAc}, v{vAc}, v{vAc+1}
    global_store_dword v{vQi}, v{vAc}, s[{sOUT}:{sOUT+1}]
    """)
    if prof == 1:
        A("s_waitcnt vmcnt(0)")
        stamp()
        A(f"""
        s_mov_b64 exec, 0xf00
        s_lshl_b32 s{sTmp}, s2, 2
        s_add_u32 s{sTmp}, s{sTmp}, s{sW}
        s_lshl_b32 s{sTmp}, s{sTmp}, 8
        s_add_u32 s{sTmp}, s{sTmp}, {PROF_OFF}
        v_lshl_add_u32 v{vT0}, v{vLane}, 2, s{sTmp}
        global_store_dword v{vT0}, v{vPf}, s[{rW}:{rW+1}]
        """)
    A("L_end2:\ns_endpgm")
    if pre:
        A(f""".globl touch_kernel
        .p2align 8
        .type touch_kernel,@function
        touch_kernel:
        s_cmp_ge_u32 s2, {prex}
        s_cbranch_scc1 L_end3
        s_load_dwordx4 s[4:7], s[0:1], 8
        v_lshlrev_b32 v1, {pre}, v0
        s_mov_b32 s10, {KVB}
        s_mov_b32 s11, 0x20000
        s_mov_b32 s14, {KVB}
        s_mov_b32 s15, 0x20000
        s_waitcnt lgkmcnt(0)
        s_mov_b32 s8, s4
        s_and_b32 s9, s5, 0xffff
        s_mov_b32 s12, s6
        s_and_b32 s13, s7, 0xffff
        s_mov_b32 s16, 0
        L_t:
        buffer_load_dword v2, v1, s[8:11], 0 offen nt
        buffer_load_dword v3, v1, s[12:15], 0 offen nt
        v_add_u32 v1, {256 << pre}, v1
        s_add_u32 s16, s16, 1
        s_cmp_lt_u32 s16, {-(-KVB // (256 << pre))}
        s_waitcnt vmcnt(30)
        s_cbranch_scc1 L_t
        s_waitcnt vmcnt(0)
        L_end3:
        s_endpgm
        """)
    def kd(name, nv):
        A(f""".section .rodata,"a"
.p2align 6
.amdhsa_kernel {name}
.amdhsa_next_free_vgpr {nv}
.amdhsa_next_free_sgpr {NS}
.amdhsa_accum_offset {(nv+3)//4*4}
.amdhsa_group_segment_fixed_size 0
.amdhsa_kernarg_size 64
.amdhsa_user_sgpr_count 2
.amdhsa_user_sgpr_kernarg_segment_ptr 1
.amdhsa_system_sgpr_workgroup_id_x 1
.end_amdhsa_kernel""")
    kd(KN, NV)
    kd("combine_kernel", 48)
    if pre: kd("touch_kernel", 8)
    return A.text()

if __name__ == "__main__":
    out = sys.argv[1]
    kw = {}
    for kv in sys.argv[2:]:
        k, v = kv.split("=")
        if "," in v: kw[k] = tuple(int(x) for x in v.split(","))
        else: kw[k] = int(v) if v.lstrip("-").isdigit() else v.replace("+", " ")
    open(out, "w").write(gen(**kw))
```

```python
import sys
from gen import Asm, HEADER, NAME, KN

def gen(prof=0, pol="nt", diag=None, diagwg=-1, diagmul=10, X=0, spec=1, pfi=1, remap=0, sleep=0, outpol="", ldpol="sc1", stp="", pre=1, lin=0, pat=3, pst=0, k1=1, stag=1):
    NWG = 256
    SB = 8192
    ML_OFF = NWG * SB
    REG = ML_OFF + 32 * 4096
    FL_OFF = 2 * REG
    WS_BYTES = FL_OFF + 32 * 256
    PROF_OFF = 8 << 20
    QL = 49152
    XL = QL + 8192
    TL = 65536
    LDS = TL + 16384
    KVB = 2304 * 65536
    NEGBIG = 0xFF000000
    CSC = 0x3DB8AA3B
    if diag is not None: prof = 2
    A = Asm()
    vLane, vG, vQi = 0, 1, 2
    vT0, vT1, vT2, vT3 = 3, 4, 5, 6
    vCtx, vC, vM, vL = 7, 8, 9, 10
    vPf = 11
    vAl = 12
    vOf = 14; vNb = 15
    vP = 16
    vS = 20
    vB = 28
    vX = 36
    vLim = 44
    vDs = 48
    vQD = 50
    vKA = 52
    vDO = 56
    vVA = 60
    vSO = 62; vMO = 63
    vQ = 64
    vKF = 96
    vVF = 160
    vO = 176
    vAd = 192
    vMd = 194; vFa = 195; vOA = 196; vFo = 197; vRd = 198
    vJk = 200
    NV = 204
    sQ, sK, sV, sBT, sCTX, sOUT, sDBG, sWS = 4, 6, 8, 10, 12, 14, 16, 18
    rK, rV, rW, rQ, rT = 20, 24, 28, 32, 36
    sWG = 40; sReg = 41; sCnt = 42; sPl = 43
    sCm = 48
    sPos = 52
    sC3 = 54
    sN = 56; sI = 57; sLB = 58; sTmp = 59; sTmp2 = 60; sS = 61; sNinf = 62; sIt = 63
    sOff = 64
    sPr = 66
    sNr = 68
    sH = 70; sJ0 = 71
    sMk = 72
    sF = 72
    sSt = 88
    sW = 90; sB = 91; sTot = 92; sWb = 93
    NS = 96
    pidx = [0]
    def stamp(i, grp=0):
        if not prof: return
        if i >= 7 and grp != pst: return
        A(f"s_memrealtime s[{sSt}:{sSt+1}]\ns_waitcnt lgkmcnt(0)\nv_writelane_b32 v{vPf}, s{sSt}, {i}")

    A(HEADER)
    if prof == 1: A("; prof=1\n; proftile=8192")
    A(f"; @launch grid=({NWG},1,1) block=(256,1,1) lds={LDS}")
    A('.amdgcn_target "amdgcn-amd-amdhsa--gfx950"\n.text')
    A(f".globl {KN}\n.p2align 8\n.type {KN},@function\n{KN}:")
    A(f"s_cmp_ge_u32 s2, {NWG}\ns_cbranch_scc1 L_end")
    if prof: A(f"v_mov_b32 v{vPf}, 0\ns_mov_b32 s{sIt}, 16")
    stamp(0)
    A("s_load_dwordx16 s[4:19], s[0:1], 0")
    if pfi:
        A(f"""
        s_getpc_b64 s[{sCm}:{sCm+1}]
        L_pf1:
        v_lshlrev_b32 v{vJk+2}, 7, v0
        v_min_u32 v{vJk+2}, L_end-L_pf1, v{vJk+2}
        global_load_dword v{vJk}, v{vJk+2}, s[{sCm}:{sCm+1}]
        """)
    if remap == 1:
        A("s_lshr_b32 s3, s2, 3\ns_cmp_eq_u32 s3, 5\ns_cselect_b32 s3, 1, 0\ns_xor_b32 s2, s2, s3")
    if remap == 2:
        A("s_lshr_b32 s3, s2, 3\ns_and_b32 s3, s3, 7\ns_xor_b32 s2, s2, s3")
    if remap == 3:
        A("s_xor_b32 s2, s2, 3")
    A(f"""
    v_readfirstlane_b32 s{sW}, v0
    v_bfe_u32 v{vT0}, v0, 5, 1
    v_and_b32 v{vT1}, 31, v0
    v_lshlrev_b32 v{vT1}, 4, v{vT1}
    v_lshl_add_u32 v{vS}, v{vT0}, 11, v{vT1}
    v_lshlrev_b32 v{vT2}, 5, v{vT0}
    v_xor_b32 v{vT1}, v{vT1}, v{vT2}
    v_lshl_add_u32 v{vDO}, v{vT0}, 12, v{vT1}
    s_lshl_b32 s{sLB}, s{sW}, 6
    s_lshr_b32 s{sW}, s{sW}, 6
    s_and_b32 s{sH}, s2, 7
    s_lshr_b32 s{sJ0}, s2, 3
    s_lshl2_add_u32 s{sB}, s{sJ0}, s{sW}
    s_lshl_b32 s{sPr}, s{sB}, 6
    s_add_u32 s{sPr}, s{sPr}, s{sH}
    s_lshl_b32 s{sPr}, s{sPr}, 9
    s_lshl_b32 s{sMk}, s{sW}, 9
    s_add_u32 s{sMk+1}, s{sMk}, {3072}
    s_add_u32 s{sMk+2}, s{sMk}, {2*3072}
    s_add_u32 s{sMk+3}, s{sMk}, {3*3072}
    s_add_u32 m0, s{sLB}, {TL}
    s_mov_b32 s{rT+2}, 16384
    s_mov_b32 s{rT+3}, 0x20000
    s_mov_b32 s{rK+2}, {KVB}
    s_mov_b32 s{rK+3}, 0x20000
    """)
    for jl in range(1, 4):
        A(f"v_xor_b32 v{vDO+jl}, {64*jl}, v{vDO}\nv_add_u32 v{vDO+jl}, {7168*jl}, v{vDO+jl}")
    A(f"""
    v_and_b32 v{vT2}, 14, v0
    v_lshlrev_b32 v{vT2}, 1, v{vT2}
    s_waitcnt lgkmcnt(0)
    s_mov_b32 s{rT}, s{sBT}
    s_and_b32 s{rT+1}, s{sBT+1}, 0xffff
    """)
    stamp(7, 1)
    for j in range(4):
        A(f"buffer_load_dwordx4 v{vS}, s[{rT}:{rT+3}], s{sMk+j} offen offset:{1024*j} lds")
    A(f"global_load_dword v{vCtx}, v{vT2}, s[{sCTX}:{sCTX+1}]")
    stamp(8, 1)
    def issue(isv, slot, js=range(4), off=None, setnr=True):
        r = rV if isv else rK
        if not len(js): return
        A(f"s_add_u32 m0, s{sLB}, {slot*32768 + isv*16384}")
        A(f"s_mov_b32 s{r+2}, s{sNr+slot}" if setnr else "s_nop 0")
        for jl in js:
            A(f"buffer_load_dwordx4 v{vDO+jl}, s[{r}:{r+3}], s{(sOff if off is None else off)+slot} offen offset:{1024*jl} {pol} lds")
    A(f"s_mov_b32 s{rK}, s{sK}\ns_and_b32 s{rK+1}, s{sK+1}, 0xffff")
    issue(0, 0, off=sPr, setnr=False)
    stamp(9, 1)
    A(f"""
    s_mov_b32 s{rQ}, s{sQ}
    s_and_b32 s{rQ+1}, s{sQ+1}, 0xffff
    s_mov_b32 s{rQ+2}, 65536
    s_mov_b32 s{rQ+3}, 0x20000
    s_and_b32 s{sTmp}, s{sW}, 1
    s_lshl_b32 s{sTmp}, s{sTmp}, 7
    v_xor_b32 v{vT1}, s{sTmp}, v{vT1}
    v_lshl_add_u32 v{vQD}, v{vT0}, 9, v{vT1}
    v_xor_b32 v{vQD+1}, 64, v{vQD}
    s_lshl4_add_u32 s{sS}, s{sW}, s{sH}
    s_lshl_b32 s{sS}, s{sS}, 10
    s_add_u32 s{sTmp2}, s{sS}, {8192-1024}
    s_lshr_b32 s{sTmp}, s{sLB}, 1
    s_add_u32 m0, s{sTmp}, {QL}
    s_mov_b32 s{rV}, s{sV}
    buffer_load_dwordx4 v{vQD}, s[{rQ}:{rQ+3}], s{sS} offen lds
    buffer_load_dwordx4 v{vQD+1}, s[{rQ}:{rQ+3}], s{sTmp2} offen offset:1024 lds
    s_and_b32 s{rV+1}, s{sV+1}, 0xffff
    s_mov_b32 s{rV+2}, {KVB}
    s_mov_b32 s{rV+3}, 0x20000
    s_add_u32 s{sPr+1}, s{sPr}, {64*65536}
    """)
    stamp(10, 1)
    issue(1, 0, off=sPr, setnr=False)
    if k1 == 0: issue(0, 1, off=sPr, setnr=False)
    stamp(1)
    A(f"""
    v_and_b32 v{vLane}, 63, v0
    s_add_u32 s{sTmp}, s{sLB}, {TL}
    v_lshl_add_u32 v{vOf}, v{vLane}, 3, s{sTmp}
    v_lshrrev_b32 v{vG}, 4, v{vLane}
    v_and_b32 v{vQi}, 15, v{vLane}
    v_mov_b32 v{vT2}, 0x2000
    v_mov_b32 v{vT3}, {CSC}
    s_lshl2_add_u32 s{sTmp}, s{sW}, {XL}
    v_mov_b32 v{vB+2}, s{sTmp}
    v_mov_b32 v{vB+3}, {XL}
    s_lshl_b32 s{sWb}, s{sW}, 6
    v_lshl_add_u32 v{vS}, v{vLane}, 5, s{sJ0}
    v_mov_b32 v{vDs}, 0x80000
    v_not_b32 v{vS+1}, v{vS}
    v_mov_b32 v{vDs+1}, 0x7fff0000
    v_lshrrev_b32 v{vB}, 1, v{vQi}
    v_lshlrev_b32 v{vB}, 16, v{vB}
    """)
    stamp(7, 2)
    A(f"s_waitcnt vmcnt({14 if k1 == 0 else 10})")
    stamp(2)
    for b in range(8):
        A(f"ds_read_b64 v[{vKF+2*b}:{vKF+2*b+1}], v{vOf} offset:{512*b}")
    A(f"""
    v_cmp_lt_i32 vcc, 0, v{vCtx}
    v_min_i32 v{vCtx}, 0x2000, v{vCtx}
    v_lshlrev_b32 v{vT0}, 2, v{vG}
    v_cndmask_b32 v{vCtx}, v{vT2}, v{vCtx}, vcc
    v_cndmask_b32 v{vC}, 0, v{vT3}, vcc
    v_add_u32 v{vNb}, 31, v{vCtx}
    v_lshrrev_b32 v{vNb}, 5, v{vNb}
    v_sub_u32 v{vLim}, v{vCtx}, v{vT0}
    v_subrev_u32 v{vLim+1}, 1, v{vLim}
    v_max_u32_dpp v{vT2}, v{vNb}, v{vNb} row_ror:2 row_mask:0xf bank_mask:0xf
    v_subrev_u32 v{vLim+2}, 2, v{vLim}
    v_subrev_u32 v{vLim+3}, 3, v{vLim}
    v_max_u32_dpp v{vT2}, v{vT2}, v{vT2} row_ror:4 row_mask:0xf bank_mask:0xf
    s_waitcnt lgkmcnt(0)
    """)
    for b in range(1, 8):
        A(f"v_cmp_ne_u64 s[{sMk+2*b}:{sMk+2*b+1}], v[{vKF}:{vKF+1}], v[{vKF+2*b}:{vKF+2*b+1}]")
    A(f"v_max_u32_dpp v{vT2}, v{vT2}, v{vT2} row_ror:8 row_mask:0xf bank_mask:0xf")
    for b in range(2, 8):
        A(f"s_or_b64 s[{sMk+2}:{sMk+3}], s[{sMk+2}:{sMk+3}], s[{sMk+2*b}:{sMk+2*b+1}]")
    A(f"""
    s_ff1_i32_b64 s{sTmp}, s[{sMk+2}:{sMk+3}]
    s_min_u32 s{sTmp}, s{sTmp}, 256
    s_add_u32 s{sTmp}, s{sTmp}, s{sWb}
    v_min_u32 v{vT2}, s{sTmp}, v{vT2}
    ds_write_b32 v{vB+2}, v{vT2}
    v_and_b32 v{vT0}, 7, v{vQi}
    v_lshlrev_b32 v{vT0}, 1, v{vT0}
    v_xor_b32 v{vT0}, v{vT0}, v{vG}
    v_lshlrev_b32 v{vT0}, 4, v{vT0}
    v_lshl_add_u32 v{vKA}, v{vQi}, 9, v{vT0}
    v_xor_b32 v{vKA+1}, 64, v{vKA}
    v_xor_b32 v{vKA+2}, 128, v{vKA}
    v_xor_b32 v{vKA+3}, 192, v{vKA}
    s_waitcnt lgkmcnt(0)
    """)
    stamp(8, 2)
    A("s_barrier")
    if k1 == 1: issue(0, 1, off=sPr, setnr=False)
    stamp(9, 2)
    A(f"""
    ds_read_b128 v[{vX}:{vX+3}], v{vB+3}
    v_lshrrev_b32 v{vT0}, 2, v{vLane}
    v_lshlrev_b32 v{vT1}, 9, v{vT0}
    v_and_b32 v{vT0}, 7, v{vT0}
    v_lshlrev_b32 v{vT0}, 1, v{vT0}
    v_and_b32 v{vT2}, 3, v{vLane}
    s_lshl_b32 s{sTmp}, s{sW}, 3
    v_add_u32 v{vT2}, s{sTmp}, v{vT2}
    v_xor_b32 v{vT3}, v{vT2}, v{vT0}
    v_lshl_add_u32 v{vVA}, v{vT3}, 4, v{vT1}
    v_xor_b32 v{vVA+1}, 64, v{vVA}
    s_waitcnt lgkmcnt(0)
    v_min3_u32 v{vT0}, v{vX}, v{vX+1}, v{vX+2}
    v_min_u32 v{vT0}, v{vT0}, v{vX+3}
    v_max_u32 v{vNb}, v{vNb}, v{vT0}
    v_sub_u32 v{vNb}, v{vNb}, v{vT0}
    v_mov_b32 v{vO}, 0
    v_mov_b32 v{vO+1}, 0
    v_add_u32_dpp v{vT1}, v{vNb}, v{vNb} row_shr:2 row_mask:0xf bank_mask:0xf bound_ctrl:0
    v_mov_b32 v{vO+2}, 0
    v_mov_b32 v{vO+3}, 0
    v_add_u32_dpp v{vT1}, v{vT1}, v{vT1} row_shr:4 row_mask:0xf bank_mask:0xf bound_ctrl:0
    v_mov_b32 v{vM}, {NEGBIG}
    v_mov_b32 v{vL}, 0
    v_add_u32_dpp v{vT1}, v{vT1}, v{vT1} row_shr:8 row_mask:0xf bank_mask:0xf bound_ctrl:0
    v_add_u32 v{vT2}, v{vT1}, v{vT0}
    v_sub_u32 v{vT1}, v{vT1}, v{vNb}
    v_readlane_b32 s{sTot}, v{vT2}, 15
    v_sub_u32 v{vT2}, v{vT2}, v{vNb}
    v_sub_u32 v{vT1}, v{vB}, v{vT1}
    s_mov_b32 s{sI}, 0
    """)
    fill = [f"v_mov_b32 v{vO+i}, 0" for i in range(4, 16)] + [f"v_mov_b32 v{vQD}, 0xff800000", f"s_mov_b32 s{sC3}, 0x00030003", f"s_mov_b32 s{sC3+1}, 0x00030003", f"s_mov_b32 s{sWG}, 0"]
    for b in range(8):
        A(f"v_add_co_u32_dpp v{vT3}, vcc, v{vT2}, v{vS+1} row_newbcast:{2*b} row_mask:0xf bank_mask:0xf")
        A(fill[2*b]); A(fill[2*b+1])
        A(f"v_cndmask_b32_dpp v{vDs}, v{vT1}, v{vDs}, vcc row_newbcast:{2*b} row_mask:0xf bank_mask:0xf")
    if k1 == 2: issue(0, 1, off=sPr, setnr=False)
    stamp(10, 2)
    A(f"""
    v_cmp_gt_u32 vcc, s{sTot}, v{vS}
    v_add_u32 v{vDs}, v{vDs}, v{vS}
    v_bfe_u32 v{vT1}, v{vDs}, 16, 3
    v_bfe_u32 v{vT2}, v{vDs}, 6, 2
    v_and_b32 v{vT0}, 0x3f, v{vDs}
    v_lshl_add_u32 v{vT2}, v{vT2}, 3, v{vT1}
    v_lshl_add_u32 v{vT0}, v{vT2}, 6, v{vT0}
    s_and_b32 s{sTmp}, s{sW}, 2
    s_lshl1_add_u32 s{sTmp}, s{sTmp}, {TL}
    v_lshl_add_u32 v{vT0}, v{vT0}, 3, s{sTmp}
    v_lshlrev_b32 v{vT1}, 3, v{vT1}
    ds_read_b32 v{vOf}, v{vT0}
    ds_bpermute_b32 v{vT1}, v{vT1}, v{vCtx}
    s_bcnt1_i32_b64 s{sN}, vcc
    v_and_b32 v{vT0}, 0xff, v{vDs}
    s_lshl_b32 s{sTmp2}, s{sW}, 3
    v_lshl_add_u32 v{vT0}, v{vT0}, 5, s{sTmp2}
    v_cmp_le_u32 vcc, 0x80000, v{vDs}
    s_and_b32 s{sTmp}, s{sPr}, 0xffff
    s_waitcnt lgkmcnt(0)
    v_cmp_lt_u32 s[{sMk}:{sMk+1}], v{vT0}, v{vT1}
    v_lshl_add_u32 v{vOf}, v{vOf}, 16, s{sTmp}
    s_or_b64 vcc, vcc, s[{sMk}:{sMk+1}]
    v_cndmask_b32 v{vOf}, 1, v{vOf}, vcc
    """)
    def tile_addr(slot, ahead):
        A(f"""
        s_add_u32 s{sTmp}, s{sI}, {ahead}
        v_readlane_b32 s{sTmp2}, v{vOf}, s{sTmp}
        s_cmp_lt_u32 s{sTmp}, s{sN}
        s_cselect_b32 s{sTmp2}, s{sTmp2}, 1
        s_bitcmp0_b32 s{sTmp2}, 0
        s_cselect_b32 s{sOff+slot}, s{sTmp2}, 0
        s_cselect_b32 s{sNr+slot}, {KVB}, 0
        """)
    def issue1(p): issue(0, 1-p, range(X, 4)); issue(1, 1-p, range(X))
    WN = 4 + X
    tile_addr(0, 0); tile_addr(1, 1)
    A(f"""
    s_cmp_eq_u64 s[{sOff}:{sOff+1}], s[{sPr}:{sPr+1}]
    s_cselect_b32 s{sTmp}, s{sNr}, 0
    s_cmp_lg_u32 s{sTmp}, 0
    s_cbranch_scc0 L_misspec
    L_spec_ok:
    """)
    stamp(11, 2)
    A(f"""
    s_and_b32 s{sNinf}, s{sJ0}, {7 if stag else 0}
    s_lshl1_add_u32 s{sNinf}, s{sNinf}, {pat}
    s_cmp_eq_u32 s{sN}, 0
    s_cbranch_scc1 L_done
    s_waitcnt vmcnt(8)
    s_barrier
    """)
    for s in range(8):
        A(f"ds_read_b128 v[{vQ+4*s}:{vQ+4*s+3}], v{vKA+(s&3)} offset:{QL + 256*(s>>2)}")
    A("s_waitcnt lgkmcnt(0)\ns_barrier")
    issue(1, 1)
    if prof: A(f"s_memrealtime s[{sSt}:{sSt+1}]\ns_waitcnt lgkmcnt(0)\ns_mov_b32 m0, s{sIt}\ns_add_u32 s{sIt}, s{sIt}, 1\nv_writelane_b32 v{vPf}, s{sSt}, m0")
    A("s_branch L_entry\nL_misspec:\ns_waitcnt vmcnt(0)")
    issue(0, 0); issue(1, 0); issue(0, 1)
    A("s_branch L_spec_ok")
    A(f"""
    L_late:
    s_mov_b32 s{rW}, s{sWS}
    s_and_b32 s{rW+1}, s{sWS+1}, 0xffff
    s_mov_b32 s{rW+2}, {WS_BYTES if not prof else 16 << 20}
    s_mov_b32 s{rW+3}, 0x20000
    s_lshl2_add_u32 s{sTmp2}, s{sH}, s{sW}
    s_lshl_b32 s{sTmp}, s{sTmp2}, 5
    s_add_u32 s{sTmp}, s{sTmp}, s{sJ0}
    s_lshl_b32 s{sTmp}, s{sTmp}, 7
    s_add_u32 s{sTmp}, s{sTmp}, {ML_OFF}
    v_lshl_add_u32 v{vMO}, v{vQi}, 3, s{sTmp}
    s_lshl_b32 s{sTmp2}, s{sTmp2}, 8
    s_lshl2_add_u32 s{sTmp2}, s{sJ0}, s{sTmp2}
    s_add_u32 s{sTmp2}, s{sTmp2}, {FL_OFF}
    v_mov_b32 v{vFo}, s{sTmp2}
    s_lshl_b32 s{sTmp}, s{sH}, 5
    v_mov_b32 v{vRd}, s{sTmp}
    s_add_u32 s{sTmp}, s{sTmp}, s{sJ0}
    s_lshl2_add_u32 s{sTmp}, s{sTmp}, s{sW}
    s_lshl_b32 s{sTmp}, s{sTmp}, 11
    v_cmp_gt_u32 vcc, 32, v{vLane}
    v_lshl_add_u32 v{vSO}, v{vQi}, 6, s{sTmp}
    v_lshl_add_u32 v{vJk+1}, v{vLane}, 6, s{sTmp}
    v_lshl_add_u32 v{vSO}, v{vG}, 4, v{vSO}
    v_cndmask_b32 v{vJk+1}, v{vMO}, v{vJk+1}, vcc
    """)
    if pre: A(f"buffer_load_dword v{vJk}, v{vJk+1}, s[{rW}:{rW+3}], 0 offen sc1")
    A(f"""
    v_lshrrev_b32 v{vJk+2}, 2, v{vLane}
    v_and_b32 v{vJk+3}, 3, v{vLane}
    s_lshr_b32 s{sB}, s{sJ0}, 2
    s_and_b32 s{sTmp}, s{sW}, 1
    s_lshl1_add_u32 s{sS}, s{sB}, s{sTmp}
    s_lshl1_add_u32 s{sWb}, s{sH}, s{sTmp}
    s_and_b32 s{sTot}, s{sJ0}, 3
    s_lshr_b32 s{sTmp2}, s{sW}, 1
    s_lshl1_add_u32 s{sPr}, s{sTot}, s{sTmp2}
    s_lshl2_add_u32 s{sTot}, s{sH}, s{sTot}
    s_lshl_b32 s{sTmp}, s{sTot}, 12
    s_lshl3_add_u32 s{sTmp}, s{sS}, s{sTmp}
    s_add_u32 s{sTmp}, s{sTmp}, {ML_OFF}
    v_lshl_add_u32 v{vMd}, v{vJk+2}, 7, s{sTmp}
    s_lshl_b32 s{sTmp}, s{sTot}, 8
    s_add_u32 s{sTmp}, s{sTmp}, {FL_OFF}
    v_lshl_add_u32 v{vFa}, v{vLane}, 2, s{sTmp}
    s_lshl_b32 s{sTmp}, s{sH}, 18
    s_lshl4_add_u32 s{sTmp2}, s{sPr}, s{sS}
    s_lshl_b32 s{sTmp2}, s{sTmp2}, 6
    s_add_u32 s{sTmp}, s{sTmp}, s{sTmp2}
    v_lshl_add_u32 v{vAd}, v{vJk+3}, 4, s{sTmp}
    v_lshl_add_u32 v{vAd}, v{vJk+2}, 13, v{vAd}
    v_add_u32 v{vAd+1}, {16*SB}, v{vAd}
    s_lshl4_add_u32 s{sTmp}, s{sB}, s{sWb}
    s_lshl3_add_u32 s{sTmp}, s{sTmp}, s{sPr}
    s_lshl_b32 s{sTmp}, s{sTmp}, 6
    v_lshl_add_u32 v{vOA}, v{vJk+3}, 4, s{sTmp}
    v_lshl_add_u32 v{vOA}, v{vG}, 2, v{vOA}
    s_getreg_b32 s{sPl}, hwreg(HW_REG_XCC_ID, 0, 4)
    s_xor_b32 s{sTmp}, s{sJ0}, 31
    s_or_b32 s{sTmp}, s{sTmp}, s{sW}
    s_cbranch_scc1 L_late_end
    s_lshl_b32 s{sTmp}, s{sH}, 10
    s_add_u32 s{sTmp}, s{sTmp}, {FL_OFF}
    v_lshl_add_u32 v{vJk+1}, v{vLane}, 3, s{sTmp}
    v_mov_b32 v{vJk+2}, 0
    v_mov_b32 v{vJk+3}, 0
    buffer_store_dwordx2 v[{vJk+2}:{vJk+3}], v{vJk+1}, s[{rW}:{rW+3}], 0 offen sc1
    buffer_store_dwordx2 v[{vJk+2}:{vJk+3}], v{vJk+1}, s[{rW}:{rW+3}], 0 offen offset:512 sc1
    s_waitcnt vmcnt(0)
    v_mov_b32 v{vJk+2}, 1
    s_mov_b64 exec, 1
    global_store_dword v{vRd}, v{vJk+2}, s[{sDBG}:{sDBG+1}] sc1
    s_mov_b64 exec, -1
    L_late_end:
    s_cmp_eq_u32 s{sWG}, 2
    s_cbranch_scc1 L_done2
    s_mov_b32 s{sWG}, 1
    s_branch L_back
    L_late2:
    s_mov_b32 s{sWG}, 2
    s_branch L_late
    """)
    A(".p2align 6\nL_loop:")
    for p in range(2):
        base = p * 32768
        A(f"s_waitcnt vmcnt({WN})\ns_barrier")
        if prof:
            A(f"s_memrealtime s[{sSt}:{sSt+1}]\ns_waitcnt lgkmcnt(0)\ns_mov_b32 m0, s{sIt}\ns_add_u32 s{sIt}, s{sIt}, 1\ns_min_u32 s{sIt}, s{sIt}, 60\nv_writelane_b32 v{vPf}, s{sSt}, m0")
        issue1(p)
        if p == 0: A("L_entry:")
        A(f"v_readlane_b32 s{sPos}, v{vDs}, s{sI}")
        for s in range(8):
            for h in range(2):
                r = vKF + 8*s + 4*h
                A(f"ds_read_b128 v[{r}:{r+3}], v{vKA+(s&3)} offset:{base + 256*(s>>2) + 8192*h}")
        A(f"""
        s_lshr_b32 s{sTmp}, s{sPos}, 15
        s_lshl_b64 vcc, s[{sC3}:{sC3+1}], s{sTmp}
        s_bitcmp1_b32 s{sPos}, 19
        s_cselect_b64 vcc, -1, vcc
        s_and_b32 s{sPos}, s{sPos}, 0xff
        s_lshl_b32 s{sPos}, s{sPos}, 5
        v_mov_b32 v{vT1}, s{sPos}
        v_cndmask_b32 v{vT1}, v{vDs+1}, v{vT1}, vcc
        v_add_u32 v{vT2}, 16, v{vT1}
        """)
        for hf in range(2):
            for r in range(4): A(f"v_cmp_lt_i32 s[{sMk+8*hf+2*r}:{sMk+8*hf+2*r+1}], v{vT1+hf}, v{vLim+r}")
        for r in range(8):
            A(f"v_cndmask_b32 v{vB+r}, v{vQD}, 0, s[{sMk+2*r}:{sMk+2*r+1}]")
        for s in range(8):
            A(f"s_waitcnt lgkmcnt({14-2*s})")
            for h in range(2):
                c = "0" if s == 0 else f"v[{vS+4*h}:{vS+4*h+3}]"
                r = vKF + 8*s + 4*h
                A(f"v_mfma_f32_16x16x32_bf16 v[{vS+4*h}:{vS+4*h+3}], v[{r}:{r+3}], v[{vQ+4*s}:{vQ+4*s+3}], {c}")
        tile_addr(p, 2)
        A(f"s_add_u32 s{sI}, s{sI}, 1")
        for r in range(8):
            A(f"v_fma_f32 v{vX+r}, v{vS+r}, v{vC}, v{vB+r}")
        A(f"""
        v_max3_f32 v{vT0}, v{vX}, v{vX+1}, v{vX+2}
        v_max3_f32 v{vT1}, v{vX+3}, v{vX+4}, v{vX+5}
        v_max3_f32 v{vT0}, v{vT0}, v{vX+6}, v{vX+7}
        v_max3_f32 v{vT0}, v{vT0}, v{vT1}, v{vM}
        v_mov_b32 v{vT1}, v{vT0}
        s_nop 1
        v_permlane32_swap_b32 v{vT0}, v{vT1}
        v_max_f32 v{vT0}, v{vT0}, v{vT1}
        v_mov_b32 v{vT1}, v{vT0}
        s_nop 1
        v_permlane16_swap_b32 v{vT0}, v{vT1}
        v_max_f32 v{vT0}, v{vT0}, v{vT1}
        v_sub_f32 v{vAl}, v{vM}, v{vT0}
        v_mov_b32 v{vM}, v{vT0}
        """)
        for r in range(8): A(f"v_sub_f32 v{vX+r}, v{vX+r}, v{vT0}")
        A(f"v_exp_f32 v{vAl}, v{vAl}")
        for r in range(8): A(f"v_exp_f32 v{vX+r}, v{vX+r}")
        for i in range(8):
            A(f"v_pk_mul_f32 v[{vO+2*i}:{vO+2*i+1}], v[{vO+2*i}:{vO+2*i+1}], v[{vAl}:{vAl+1}] op_sel_hi:[1,0]")
        for j in range(4): A(f"v_cvt_pk_bf16_f32 v{vP+j}, v{vX+2*j}, v{vX+2*j+1}")
        A(f"s_waitcnt vmcnt({WN})\ns_barrier")
        for i in range(4):
            for h in range(2):
                r = vVF + 4*i + 2*h
                A(f"ds_read_b64_tr_b16 v[{r}:{r+1}], v{vVA+(i>>1)} offset:{base + 16384 + 8192*h + 8*(i&1)}")
        if p == 0 and X < 4: A(f"s_cmp_eq_u32 s{sI}, 1\ns_cbranch_scc1 L_skipv")
        issue(1, 1-p, range(X, 4))
        if p == 0: A("L_skipv:")
        issue(0, p, range(X))
        A(f"""
        v_fma_f32 v{vL}, v{vL}, v{vAl}, v{vX}
        v_add_f32 v{vT0}, v{vX+1}, v{vX+2}
        v_add_f32 v{vT1}, v{vX+3}, v{vX+4}
        v_add_f32 v{vT2}, v{vX+5}, v{vX+6}
        v_add_f32 v{vL}, v{vL}, v{vX+7}
        v_add_f32 v{vT0}, v{vT0}, v{vT1}
        v_add_f32 v{vL}, v{vL}, v{vT2}
        v_add_f32 v{vL}, v{vL}, v{vT0}
        s_cmp_ge_u32 s{sI}, s{sN}
        """)
        for i in range(4):
            A(f"s_waitcnt lgkmcnt({6-2*i})")
            A(f"v_mfma_f32_16x16x32_bf16 v[{vO+4*i}:{vO+4*i+3}], v[{vVF+4*i}:{vVF+4*i+3}], v[{vP}:{vP+3}], v[{vO+4*i}:{vO+4*i+3}]")
        if p == 0: A(f"s_cbranch_scc1 L_done\ns_cmp_eq_u32 s{sI}, s{sNinf}\ns_cbranch_scc1 L_late\nL_back:")
        else: A("s_cbranch_scc0 L_loop")
    A(f"L_done:\ns_cmp_eq_u32 s{sWG}, 0\ns_cbranch_scc1 L_late2\nL_done2:")
    stamp(3)
    vF = vT3
    A(f"""
    global_load_dword v{vT0}, v{vRd}, s[{sDBG}:{sDBG+1}] sc1
    v_mov_b32 v{vT1}, v{vL}
    v_mov_b32 v{vAl}, v{vM}
    s_mov_b32 s{sCnt}, 0
    v_permlane32_swap_b32 v{vL}, v{vT1}
    v_add_f32 v{vL}, v{vL}, v{vT1}
    v_mov_b32 v{vT1}, v{vL}
    s_mov_b32 s{sReg}, 0
    s_cmp_eq_u32 s{sPl}, s{sH}
    v_permlane16_swap_b32 v{vL}, v{vT1}
    v_add_f32 v{vAl+1}, v{vL}, v{vT1}
    """)
    for j in range(8): A(f"v_cvt_pk_bf16_f32 v{vX+j}, v{vO+2*j}, v{vO+2*j+1}")
    A(f"v_mov_b32 v{vT2}, 1\ns_cbranch_scc0 L_slow")
    def publish(sc, tag, foff):
        for ih in range(2):
            A(f"buffer_store_dwordx4 v[{vX+4*ih}:{vX+4*ih+3}], v{vSO}, s[{rW}:{rW+3}], s{sReg} offen offset:{1024*ih} {sc}")
        A(f"""
        s_mov_b64 exec, 0xffff
        buffer_store_dwordx2 v[{vAl}:{vAl+1}], v{vMO}, s[{rW}:{rW+3}], s{sReg} offen {sc}
        s_mov_b64 exec, 1
        L_rdy{tag}:
        s_waitcnt vmcnt(0)
        v_cmp_eq_u32 vcc, 0, v{vT0}
        s_cbranch_vccz L_rok{tag}
        s_add_u32 s{sCnt}, s{sCnt}, 1
        s_cmp_ge_u32 s{sCnt}, 0x40000
        s_cbranch_scc1 L_rok{tag}
        global_load_dword v{vT0}, v{vRd}, s[{sDBG}:{sDBG+1}] sc1
        s_branch L_rdy{tag}
        L_rok{tag}:
        buffer_store_dword v{vT2}, v{vFo}, s[{rW}:{rW+3}], 0 offen offset:{foff} {sc}
        s_mov_b64 exec, -1
        """)
    publish(stp, "a", 0)
    stamp(4)
    A(f"""
    L_poll:
    buffer_load_dword v{vF}, v{vFa}, s[{rW}:{rW+3}], 0 offen sc1
    s_add_u32 s{sCnt}, s{sCnt}, 1
    s_waitcnt vmcnt(0)
    v_cmp_ne_u32 vcc, 0, v{vF}
    s_cmp_eq_u32 vcc_lo, -1
    s_cbranch_scc1 L_got
    s_cmp_lg_u32 vcc_hi, 0
    s_cbranch_scc1 L_slow
    """)
    if sleep: A(f"s_sleep {sleep}")
    A(f"""
    s_cmp_lt_u32 s{sCnt}, 0x40000
    s_cbranch_scc1 L_poll
    L_got:
    """)
    stamp(5)
    vD = vKF; vML = vKF + 8; vAc = vKF + 16
    for k in range(2):
        A(f"buffer_load_dwordx2 v[{vML+2*k}:{vML+2*k+1}], v{vMd}, s[{rW}:{rW+3}], s{sReg} offen offset:{2048*k} {ldpol}")
    for k in range(2):
        A(f"buffer_load_dwordx4 v[{vD+4*k}:{vD+4*k+3}], v{vAd+k}, s[{rW}:{rW+3}], s{sReg} offen {ldpol}")
    stamp(10)
    A(f"s_waitcnt vmcnt(2)")
    stamp(7)
    A(f"v_max_f32 v{vT0}, v{vML}, v{vML+2}")
    for ro in (4, 8):
        A(f"s_nop 1\nv_max_f32_dpp v{vT0}, v{vT0}, v{vT0} row_ror:{ro} row_mask:0xf bank_mask:0xf")
    A(f"""
    v_mov_b32 v{vT1}, v{vT0}
    s_nop 1
    v_permlane32_swap_b32 v{vT0}, v{vT1}
    v_max_f32 v{vT0}, v{vT0}, v{vT1}
    v_mov_b32 v{vT1}, v{vT0}
    s_nop 1
    v_permlane16_swap_b32 v{vT0}, v{vT1}
    v_max_f32 v{vT0}, v{vT0}, v{vT1}
    """)
    for k in range(2): A(f"v_sub_f32 v{vML+2*k}, v{vML+2*k}, v{vT0}")
    for k in range(2): A(f"v_exp_f32 v{vML+2*k}, v{vML+2*k}")
    vLs = vAc + 8
    A(f"v_mul_f32 v{vLs}, v{vML}, v{vML+1}\nv_fmac_f32 v{vLs}, v{vML+2}, v{vML+3}")
    for k in range(2):
        A(f"s_waitcnt vmcnt({1-k})")
        op = "v_mul_f32" if k == 0 else "v_fmac_f32"
        for j in range(4):
            A(f"v_lshlrev_b32 v{vT1}, 16, v{vD+4*k+j}\nv_and_b32 v{vT2}, 0xffff0000, v{vD+4*k+j}")
            A(f"{op} v{vAc+2*j}, v{vML+2*k}, v{vT1}\n{op} v{vAc+2*j+1}, v{vML+2*k}, v{vT2}")
    stamp(8)
    A(f"v_mov_b32 v{vLs+1}, v{vLs}")
    for j in range(4): A(f"v_permlane32_swap_b32 v{vAc+j}, v{vAc+4+j}")
    A(f"v_permlane32_swap_b32 v{vLs}, v{vLs+1}")
    A(f"v_add_f32 v{vLs}, v{vLs}, v{vLs+1}")
    for j in range(4): A(f"v_add_f32 v{vAc+j}, v{vAc+j}, v{vAc+4+j}")
    A(f"v_mov_b32 v{vLs+1}, v{vLs}\ns_nop 0")
    for j in range(2): A(f"v_permlane16_swap_b32 v{vAc+j}, v{vAc+2+j}")
    A(f"v_permlane16_swap_b32 v{vLs}, v{vLs+1}")
    A(f"v_add_f32 v{vLs}, v{vLs}, v{vLs+1}")
    for j in range(2): A(f"v_add_f32 v{vAc+j}, v{vAc+j}, v{vAc+2+j}")
    for ro in (4, 8):
        for r in (vLs, vAc, vAc+1): A(f"v_add_f32_dpp v{r}, v{r}, v{r} row_ror:{ro} row_mask:0xf bank_mask:0xf")
    A(f"""
    v_rcp_f32 v{vLs}, v{vLs}
    s_mov_b32 exec_lo, 0x000f000f
    s_mov_b32 exec_hi, 0x000f000f
    v_mul_f32 v{vAc}, v{vAc}, v{vLs}
    v_mul_f32 v{vAc+1}, v{vAc+1}, v{vLs}
    v_cvt_pk_bf16_f32 v{vAc}, v{vAc}, v{vAc+1}
    global_store_dword v{vOA}, v{vAc}, s[{sOUT}:{sOUT+1}] {outpol}
    """)
    stamp(9)
    if prof: A("s_mov_b64 exec, -1\ns_waitcnt vmcnt(0)")
    stamp(6)
    if prof == 2:
        a, b = diag
        A(f"""
        s_nop 1
        v_readlane_b32 s{sF}, v{vPf}, 0
        v_readlane_b32 s{sF+1}, v{vPf}, {a}
        v_readlane_b32 s{sF+2}, v{vPf}, {b}
        s_sub_u32 s{sF+1}, s{sF+2}, s{sF+1}
        s_min_u32 s{sF+1}, s{sF+1}, 20000
        s_mul_i32 s{sF+1}, s{sF+1}, {diagmul}
        """)
        if diagwg >= 0: A(f"s_cmp_eq_u32 s2, {diagwg}\ns_cselect_b32 s{sF+1}, s{sF+1}, 0")
        A(f"""
        s_add_u32 s{sF+1}, s{sF+1}, 10000
        L_spin:
        s_memrealtime s[{sSt}:{sSt+1}]
        s_waitcnt lgkmcnt(0)
        s_sub_u32 s{sF+2}, s{sSt}, s{sF}
        s_cmp_lt_u32 s{sF+2}, s{sF+1}
        s_cbranch_scc1 L_spin
        """)
    if prof == 1:
        A(f"""
        v_writelane_b32 v{vPf}, s{sPl}, 62
        v_writelane_b32 v{vPf}, s{sCnt}, 63
        s_lshl_b32 s{sTmp}, s2, 2
        s_add_u32 s{sTmp}, s{sTmp}, s{sW}
        s_lshl_b32 s{sTmp}, s{sTmp}, 8
        s_add_u32 s{sTmp}, s{sTmp}, {PROF_OFF}
        v_lshlrev_b32 v{vT0}, 2, v{vLane}
        buffer_store_dword v{vPf}, v{vT0}, s[{rW}:{rW+3}], s{sTmp} offen
        """)
    A("s_endpgm")
    A(f"L_slow:\ns_mov_b32 s{sReg}, {REG}")
    publish("sc1", "b", 128)
    A(f"""
    L_poll2:
    buffer_load_dword v{vF}, v{vFa}, s[{rW}:{rW+3}], 0 offen sc1
    s_add_u32 s{sCnt}, s{sCnt}, 1
    s_waitcnt vmcnt(0)
    v_cmp_ne_u32 vcc, 0, v{vF}
    s_cmp_eq_u32 vcc_hi, -1
    s_cbranch_scc1 L_got
    s_sleep 2
    s_cmp_lt_u32 s{sCnt}, 0x40000
    s_cbranch_scc1 L_poll2
    s_branch L_got
    """)
    A("L_end:\ns_endpgm")
    A(f""".section .rodata,"a"
.p2align 6
.amdhsa_kernel {KN}
.amdhsa_next_free_vgpr {NV}
.amdhsa_next_free_sgpr {NS}
.amdhsa_accum_offset {(NV+3)//4*4}
.amdhsa_group_segment_fixed_size 0
.amdhsa_kernarg_size 64
.amdhsa_user_sgpr_count 2
.amdhsa_user_sgpr_kernarg_segment_ptr 1
.amdhsa_system_sgpr_workgroup_id_x 1
.end_amdhsa_kernel""")
    return A.text()

if __name__ == "__main__":
    out = sys.argv[1]
    kw = {}
    for kv in sys.argv[2:]:
        k, v = kv.split("=")
        if "," in v: kw[k] = tuple(int(x) for x in v.split(","))
        else: kw[k] = int(v) if v.lstrip("-").isdigit() else v.replace("+", " ")
    open(out, "w").write(gen(**kw))
```

```python
import sys
from gen import Asm, HEADER, NAME, KN

def gen(prof=0, pol="nt", diag=None, diagwg=-1, diagmul=10, pfi=1, remap=0, pre=1, pat=1, pst=0,
        WE=22, WO=21, step=1, prio=3, W0=24, b0=1, p1=32):
    NWG = 256
    SB = 8192
    ML_OFF = NWG * SB
    REG = ML_OFF + 32 * 4096
    FL_OFF = 2 * REG
    WS_BYTES = FL_OFF + 32 * 256
    PROF_OFF = 8 << 20
    TL = 65536
    QL = TL + 16384
    OL = QL + 8192
    XL = OL + 1024
    LDS = XL + 64
    KVB = 2304 * 65536
    NEGBIG = 0xFF000000
    CSC = 0x3DB8AA3B
    if diag is not None: prof = 2
    A = Asm()
    vLane, vG, vQi = 0, 1, 2
    vT0, vT1, vT2, vT3 = 3, 4, 5, 6
    vCtx, vC, vM, vL = 7, 8, 9, 10
    vPf = 11
    vAl = 12
    vOf = 14; vNb = 15
    vP = 16
    vS = 20
    vB = 28
    vX = 36
    vLim = 44
    vDs = 48; vBig = 49
    vQD = 50
    vNi = 50
    vKA = 52
    vDO = 56
    vVA = 60
    vSO = 62; vMO = 63
    vQ = 64
    vKF = 96
    vVF = 160
    vO = 176
    vAd = 192
    vMd = 194; vFa = 195; vOA = 196; vFo = 197; vRd = 198
    vJk = 200
    NV = 204
    sQ, sK, sV, sBT, sCTX, sOUT, sDBG, sWS = 4, 6, 8, 10, 12, 14, 16, 18
    rK, rV, rW, rQ, rT = 20, 24, 28, 32, 36
    sLt = 40; sReg = 41; sCnt = 42; sPl = 43
    sO4 = 44
    sCm = 48
    sN4 = 64
    sPos = 52
    sC3 = 54
    sN = 56; sI = 57; sLB = 58; sTmp = 59; sTmp2 = 60; sS = 61; sIt = 63
    sPr = 68
    sH = 70; sJ0 = 71
    sMk = 72
    sF = 72
    sSt = 88
    sW = 90; sB = 91; sTot = 92; sWb = 93
    NS = 96
    def stamp(i, grp=0):
        if not prof: return
        if i >= 7 and grp != pst: return
        A(f"s_memrealtime s[{sSt}:{sSt+1}]\ns_waitcnt lgkmcnt(0)\nv_writelane_b32 v{vPf}, s{sSt}, {i}")

    A(HEADER)
    if prof == 1: A("; prof=1\n; proftile=8192")
    A(f"; @launch grid=({NWG},1,1) block=(320,1,1) lds={LDS}")
    A('.amdgcn_target "amdgcn-amd-amdhsa--gfx950"\n.text')
    A(f".globl {KN}\n.p2align 8\n.type {KN},@function\n{KN}:")
    A(f"s_cmp_ge_u32 s2, {NWG}\ns_cbranch_scc1 L_end")
    if prof: A(f"v_mov_b32 v{vPf}, 0\ns_mov_b32 s{sIt}, 16")
    stamp(0)
    A("s_load_dwordx16 s[4:19], s[0:1], 0")
    if pfi:
        A(f"""
        s_getpc_b64 s[{sCm}:{sCm+1}]
        L_pf1:
        v_lshlrev_b32 v{vJk+2}, 7, v0
        v_min_u32 v{vJk+2}, L_end-L_pf1, v{vJk+2}
        global_load_dword v{vJk}, v{vJk+2}, s[{sCm}:{sCm+1}]
        """)
    if remap == 1: A("s_lshr_b32 s3, s2, 3\ns_cmp_eq_u32 s3, 5\ns_cselect_b32 s3, 1, 0\ns_xor_b32 s2, s2, s3")
    if remap == 2: A("s_lshr_b32 s3, s2, 3\ns_and_b32 s3, s3, 7\ns_xor_b32 s2, s2, s3")
    if remap == 3: A("s_xor_b32 s2, s2, 3")
    A(f"""
    v_readfirstlane_b32 s{sW}, v0
    v_bfe_u32 v{vT0}, v0, 5, 1
    v_and_b32 v{vT1}, 31, v0
    v_lshlrev_b32 v{vT1}, 4, v{vT1}
    v_lshlrev_b32 v{vT2}, 5, v{vT0}
    v_lshl_add_u32 v{vS}, v{vT0}, 11, v{vT1}
    v_xor_b32 v{vT1}, v{vT1}, v{vT2}
    v_lshl_add_u32 v{vDO}, v{vT0}, 12, v{vT1}
    s_and_b32 s{sH}, s2, 7
    s_lshr_b32 s{sJ0}, s2, 3
    s_lshl_b32 s{sPr}, s{sJ0}, 8
    s_add_u32 s{sPr}, s{sPr}, s{sH}
    s_lshl_b32 s{sO4}, s{sPr}, 9
    s_mov_b32 s{rK+2}, {KVB}
    s_mov_b32 s{rK+3}, 0x20000
    s_mov_b32 s{rT+2}, 16384
    s_mov_b32 s{rT+3}, 0x20000
    s_sub_u32 s{sB}, s{sW}, 64
    s_lshl_b32 s{sLB}, s{sB}, 6
    s_lshl_b32 s{sMk}, s{sB}, 3
    s_add_u32 s{sMk+1}, s{sMk}, {3072}
    s_add_u32 s{sMk+2}, s{sMk}, {2*3072}
    s_add_u32 s{sMk+3}, s{sMk}, {3*3072}
    s_add_u32 m0, s{sLB}, {TL}
    v_and_b32 v{vT2}, 14, v0
    v_lshlrev_b32 v{vT2}, 1, v{vT2}
    """)
    for jl in range(1, 4):
        A(f"v_xor_b32 v{vDO+jl}, {64*jl}, v{vDO}\nv_add_u32 v{vDO+jl}, {7168*jl}, v{vDO+jl}")
    A(f"""
    s_cmp_eq_u32 s{sW}, 0
    s_waitcnt lgkmcnt(0)
    s_cbranch_scc1 L_load
    s_mov_b32 s{rT}, s{sBT}
    s_and_b32 s{rT+1}, s{sBT+1}, 0xffff
    """)
    for j in range(4):
        A(f"buffer_load_dwordx4 v{vS}, s[{rT}:{rT+3}], s{sMk+j} offen offset:{1024*j} lds")
    A(f"global_load_dword v{vCtx}, v{vT2}, s[{sCTX}:{sCTX+1}]")
    if b0: A("s_barrier")
    A("s_branch L_cons\nL_load:")

    def lgroup(isv, w, m0expr, waits=None, bar=None, setnr=True):
        r = rV if isv else rK
        A(m0expr)
        A(f"s_mov_b32 s{r+2}, s{sN4+w}" if setnr else "s_nop 0")
        for jl in range(4):
            c = 4*w + jl
            if waits is not None and (c % step == 0 or c == bar):
                A(f"s_waitcnt vmcnt({waits - 1 if c == bar else waits - step})")
            if c == bar: A("s_barrier")
            A(f"buffer_load_dwordx4 v{vDO+jl}, s[{r}:{r+3}], s{sO4+w} offen offset:{1024*jl} {pol} lds")
    def unit_fixed(isv, slot, setnr):
        for w in range(4): lgroup(isv, w, f"s_mov_b32 m0, {slot*32768 + isv*16384 + w*4096}", setnr=setnr)
    cnt = [0]
    def unit_paced(isv, slot, setnr):
        r = rV if isv else rK
        for w in range(4):
            A(f"s_mov_b32 m0, {slot*32768 + isv*16384 + w*4096}")
            if cnt[0] == 0: A(f"s_mov_b32 s{rK}, s{sK}\ns_and_b32 s{rK+1}, s{sK+1}, 0xffff")
            elif cnt[0] < 16: A(f"s_add_u32 s{sO4+w}, s{sO4}, {32768*w}")
            else: A(f"s_mov_b32 s{r+2}, s{sN4+w}" if setnr else "s_nop 0")
            for jl in range(4):
                if b0 and cnt[0] == b0 - 1: A("s_barrier")
                if cnt[0] == p1 and p1 < 48: A("s_barrier")
                if cnt[0] >= W0: A(f"s_waitcnt vmcnt({W0-1})")
                A(f"buffer_load_dwordx4 v{vDO+jl}, s[{r}:{r+3}], s{sO4+w} offen offset:{1024*jl} {pol} lds")
                cnt[0] += 1
    unit_paced(0, 0, False)
    A(f"s_setprio {prio}\ns_mov_b32 s{rV}, s{sV}\ns_and_b32 s{rV+1}, s{sV+1}, 0xffff\ns_mov_b32 s{rV+2}, {KVB}\ns_mov_b32 s{rV+3}, 0x20000")
    unit_paced(1, 0, False)
    A(f"v_lshl_add_u32 v{vT0}, v0, 22, s{sO4}\nv_lshlrev_b32 v{vT1}, 4, v0\nv_add_u32 v{vT1}, {OL}, v{vT1}\nv_mov_b32 v{vT2}, {XL+16}")
    for w in range(4): A(f"s_add_u32 s{sO4+w}, s{sO4+w}, {64*65536}")
    unit_paced(0, 1, False)
    if p1 == 48: A("s_barrier")
    A(f"""
    s_barrier
    ds_read_b128 v[{vX}:{vX+3}], v{vT1}
    ds_read_b32 v{vT2}, v{vT2}
    v_add_u32 v{vS+1}, 32768, v{vT0}
    v_add_u32 v{vS+2}, 65536, v{vT0}
    v_add_u32 v{vS+3}, 98304, v{vT0}
    s_waitcnt lgkmcnt(0)
    v_readfirstlane_b32 s{sN}, v{vT2}
    v_cmp_eq_u32 vcc, v{vX}, v{vT0}
    v_cmp_eq_u32 s[{sMk}:{sMk+1}], v{vX+1}, v{vS+1}
    v_cmp_eq_u32 s[{sMk+2}:{sMk+3}], v{vX+2}, v{vS+2}
    v_cmp_eq_u32 s[{sMk+4}:{sMk+5}], v{vX+3}, v{vS+3}
    s_cmp_eq_u32 s{sN}, 0
    s_cbranch_scc1 L_lend
    s_and_b32 s{sTmp}, vcc_lo, s{sMk}
    s_and_b32 s{sTmp2}, s{sMk+2}, s{sMk+4}
    s_and_b32 s{sTmp}, s{sTmp}, s{sTmp2}
    s_and_b32 s{sTmp}, s{sTmp}, 3
    s_mov_b32 s{sLB}, 0
    """)
    for w in range(4): A(f"s_mov_b32 s{sN4+w}, {KVB}")
    A(f"s_cmp_eq_u32 s{sTmp}, 3\ns_cbranch_scc0 L_misspec\nL_spec_ok:\ns_waitcnt vmcnt(32)\ns_barrier")
    unit_paced(1, 1, True)
    A(f"s_waitcnt vmcnt(32)\ns_barrier\ns_mov_b32 s{sI}, 2\ns_cmp_lt_u32 s{sN}, 2\ns_cbranch_scc1 L_lend")
    def laddr():
        for w in range(4): A(f"v_readlane_b32 s{sO4+w}, v{vX+w}, s{sI}")
        A(f"s_cmp_lt_u32 s{sI}, s{sN}\ns_cselect_b32 s{sTmp}, 0, 1")
        for w in range(4):
            A(f"s_or_b32 s{sO4+w}, s{sO4+w}, s{sTmp}\ns_bitcmp0_b32 s{sO4+w}, 0\ns_cselect_b32 s{sO4+w}, s{sO4+w}, 0\ns_cselect_b32 s{sN4+w}, {KVB}, 0")
    variants = [("e", WE)] if WE == WO else [("e", WE), ("o", WO)]
    if len(variants) > 1: A(f"s_bitcmp1_b32 s{sH}, 0\ns_cbranch_scc1 L_llo")
    for tag, W in variants:
        assert 17 <= W <= 32
        A(f"L_ll{tag}:")
        laddr()
        for w in range(4): lgroup(0, w, f"s_add_u32 m0, s{sLB}, {w*4096}", W, W-17)
        A(f"L_lv{tag}:")
        for w in range(4): lgroup(1, w, f"s_add_u32 m0, s{sLB}, {16384 + w*4096}", W, W-17)
        A(f"""
        s_xor_b32 s{sLB}, s{sLB}, 32768
        s_add_u32 s{sI}, s{sI}, 1
        s_cmp_le_u32 s{sI}, s{sN}
        s_cbranch_scc1 L_ll{tag}
        """)
        if tag == "e": A("L_lend:")
        A("s_waitcnt vmcnt(0)\ns_endpgm")
    A(f"L_misspec:\ns_waitcnt vmcnt(0)\ns_mov_b32 s{sI}, 0")
    laddr(); unit_fixed(0, 0, True); unit_fixed(1, 0, True)
    A(f"s_mov_b32 s{sI}, 1")
    laddr(); unit_fixed(0, 1, True)
    A("s_branch L_spec_ok")
    A(f"""
    L_cons:
    s_lshr_b32 s{sW}, s{sB}, 6
    s_mov_b32 s{rQ+2}, 65536
    s_mov_b32 s{rQ+3}, 0x20000
    s_and_b32 s{sTmp}, s{sW}, 1
    s_lshl_b32 s{sTmp}, s{sTmp}, 7
    v_xor_b32 v{vT1}, s{sTmp}, v{vT1}
    v_lshl_add_u32 v{vQD}, v{vT0}, 9, v{vT1}
    v_xor_b32 v{vQD+1}, 64, v{vQD}
    s_lshl4_add_u32 s{sS}, s{sW}, s{sH}
    s_lshl_b32 s{sS}, s{sS}, 10
    s_add_u32 s{sTmp2}, s{sS}, {8192-1024}
    s_lshr_b32 s{sTmp}, s{sLB}, 1
    s_add_u32 m0, s{sTmp}, {QL}
    s_mov_b32 s{rQ}, s{sQ}
    s_and_b32 s{rQ+1}, s{sQ+1}, 0xffff
    buffer_load_dwordx4 v{vQD}, s[{rQ}:{rQ+3}], s{sS} offen lds
    buffer_load_dwordx4 v{vQD+1}, s[{rQ}:{rQ+3}], s{sTmp2} offen offset:1024 lds
    """)
    stamp(1)
    A(f"""
    v_and_b32 v{vLane}, 63, v0
    s_add_u32 s{sTmp}, s{sLB}, {TL}
    v_lshl_add_u32 v{vOf}, v{vLane}, 3, s{sTmp}
    v_lshrrev_b32 v{vG}, 4, v{vLane}
    v_and_b32 v{vQi}, 15, v{vLane}
    s_lshl2_add_u32 s{sTmp}, s{sW}, {XL}
    v_mov_b32 v{vB+2}, s{sTmp}
    v_mov_b32 v{vB+3}, {XL}
    s_lshl2_add_u32 s{sTmp}, s{sW}, {OL}
    v_lshl_add_u32 v{vB+4}, v{vLane}, 4, s{sTmp}
    s_lshl_b32 s{sWb}, s{sW}, 6
    v_lshl_add_u32 v{vS}, v{vLane}, 5, s{sJ0}
    v_mov_b32 v{vDs}, 0x80000
    v_not_b32 v{vS+1}, v{vS}
    v_mov_b32 v{vBig}, 0x7fff0000
    v_lshrrev_b32 v{vB}, 1, v{vQi}
    v_lshlrev_b32 v{vB}, 16, v{vB}
    v_and_b32 v{vT0}, 7, v{vQi}
    v_lshlrev_b32 v{vT0}, 1, v{vT0}
    v_xor_b32 v{vT0}, v{vT0}, v{vG}
    v_lshlrev_b32 v{vT0}, 4, v{vT0}
    v_lshl_add_u32 v{vKA}, v{vQi}, 9, v{vT0}
    v_xor_b32 v{vKA+1}, 64, v{vKA}
    v_xor_b32 v{vKA+2}, 128, v{vKA}
    v_xor_b32 v{vKA+3}, 192, v{vKA}
    v_lshrrev_b32 v{vT0}, 2, v{vLane}
    v_lshlrev_b32 v{vT1}, 9, v{vT0}
    v_and_b32 v{vT0}, 7, v{vT0}
    v_lshlrev_b32 v{vT0}, 1, v{vT0}
    v_and_b32 v{vT2}, 3, v{vLane}
    s_lshl_b32 s{sTmp}, s{sW}, 3
    v_add_u32 v{vT2}, s{sTmp}, v{vT2}
    v_xor_b32 v{vT3}, v{vT2}, v{vT0}
    v_lshl_add_u32 v{vVA}, v{vT3}, 4, v{vT1}
    v_xor_b32 v{vVA+1}, 64, v{vVA}
    """)
    for sl in range(4): A(f"v_add_u32 v{vVF+sl}, {QL}, v{vKA+sl}")
    A(f"""
    s_and_b32 s{sTmp}, s{sW}, 1
    s_lshl_b32 s{sPr}, s{sTmp}, 6
    s_add_u32 s{sPr}, s{sPr}, s{sH}
    s_lshl_b32 s{sPr}, s{sPr}, 9
    v_mov_b32 v{vT2}, 0x2000
    v_mov_b32 v{vT3}, {CSC}
    """)
    stamp(7, 2)
    A(f"s_waitcnt vmcnt(2)")
    stamp(2)
    for b in range(8):
        A(f"ds_read_b64 v[{vKF+2*b}:{vKF+2*b+1}], v{vOf} offset:{512*b}")
    A(f"""
    v_cmp_lt_i32 vcc, 0, v{vCtx}
    v_min_i32 v{vCtx}, 0x2000, v{vCtx}
    v_lshlrev_b32 v{vT0}, 2, v{vG}
    v_cndmask_b32 v{vCtx}, v{vT2}, v{vCtx}, vcc
    v_cndmask_b32 v{vC}, 0, v{vT3}, vcc
    v_add_u32 v{vNb}, 31, v{vCtx}
    v_lshrrev_b32 v{vNb}, 5, v{vNb}
    v_sub_u32 v{vLim}, v{vCtx}, v{vT0}
    v_subrev_u32 v{vLim+1}, 1, v{vLim}
    v_max_u32_dpp v{vT2}, v{vNb}, v{vNb} row_ror:2 row_mask:0xf bank_mask:0xf
    v_subrev_u32 v{vLim+2}, 2, v{vLim}
    v_subrev_u32 v{vLim+3}, 3, v{vLim}
    v_max_u32_dpp v{vT2}, v{vT2}, v{vT2} row_ror:4 row_mask:0xf bank_mask:0xf
    s_waitcnt lgkmcnt(0)
    """)
    for b in range(1, 8):
        A(f"v_cmp_ne_u64 s[{sMk+2*b}:{sMk+2*b+1}], v[{vKF}:{vKF+1}], v[{vKF+2*b}:{vKF+2*b+1}]")
    A(f"v_max_u32_dpp v{vT2}, v{vT2}, v{vT2} row_ror:8 row_mask:0xf bank_mask:0xf")
    for b in range(2, 8):
        A(f"s_or_b64 s[{sMk+2}:{sMk+3}], s[{sMk+2}:{sMk+3}], s[{sMk+2*b}:{sMk+2*b+1}]")
    A(f"""
    s_ff1_i32_b64 s{sTmp}, s[{sMk+2}:{sMk+3}]
    s_min_u32 s{sTmp}, s{sTmp}, 256
    s_add_u32 s{sTmp}, s{sTmp}, s{sWb}
    v_min_u32 v{vT2}, s{sTmp}, v{vT2}
    ds_write_b32 v{vB+2}, v{vT2}
    s_waitcnt lgkmcnt(0)
    """)
    stamp(8, 2)
    A("s_barrier")
    stamp(9, 2)
    A(f"""
    ds_read_b128 v[{vX}:{vX+3}], v{vB+3}
    s_waitcnt lgkmcnt(0)
    v_min3_u32 v{vT0}, v{vX}, v{vX+1}, v{vX+2}
    v_min_u32 v{vT0}, v{vT0}, v{vX+3}
    v_max_u32 v{vNb}, v{vNb}, v{vT0}
    v_sub_u32 v{vNb}, v{vNb}, v{vT0}
    v_mov_b32 v{vO}, 0
    v_mov_b32 v{vO+1}, 0
    v_add_u32_dpp v{vT1}, v{vNb}, v{vNb} row_shr:2 row_mask:0xf bank_mask:0xf bound_ctrl:0
    v_mov_b32 v{vO+2}, 0
    v_mov_b32 v{vO+3}, 0
    v_add_u32_dpp v{vT1}, v{vT1}, v{vT1} row_shr:4 row_mask:0xf bank_mask:0xf bound_ctrl:0
    v_mov_b32 v{vM}, {NEGBIG}
    v_mov_b32 v{vL}, 0
    v_add_u32_dpp v{vT1}, v{vT1}, v{vT1} row_shr:8 row_mask:0xf bank_mask:0xf bound_ctrl:0
    v_add_u32 v{vT2}, v{vT1}, v{vT0}
    v_sub_u32 v{vT1}, v{vT1}, v{vNb}
    v_readlane_b32 s{sTot}, v{vT2}, 15
    v_sub_u32 v{vT2}, v{vT2}, v{vNb}
    v_sub_u32 v{vT1}, v{vB}, v{vT1}
    s_mov_b32 s{sI}, 0
    """)
    fill = [f"v_mov_b32 v{vO+i}, 0" for i in range(4, 16)] + [f"v_mov_b32 v{vNi}, 0xff800000", f"s_mov_b32 s{sC3}, 0x00030003", f"s_mov_b32 s{sC3+1}, 0x00030003", f"s_mov_b32 s{sLt}, 0"]
    for b in range(8):
        A(f"v_add_co_u32_dpp v{vT3}, vcc, v{vT2}, v{vS+1} row_newbcast:{2*b} row_mask:0xf bank_mask:0xf")
        A(fill[2*b]); A(fill[2*b+1])
        A(f"v_cndmask_b32_dpp v{vDs}, v{vT1}, v{vDs}, vcc row_newbcast:{2*b} row_mask:0xf bank_mask:0xf")
    stamp(10, 2)
    A(f"""
    v_cmp_gt_u32 s[{sMk+2}:{sMk+3}], s{sTot}, v{vS}
    v_add_u32 v{vDs}, v{vDs}, v{vS}
    v_bfe_u32 v{vT1}, v{vDs}, 16, 3
    v_bfe_u32 v{vT2}, v{vDs}, 6, 2
    v_and_b32 v{vT0}, 0x3f, v{vDs}
    v_lshl_add_u32 v{vT2}, v{vT2}, 3, v{vT1}
    v_lshl_add_u32 v{vT0}, v{vT2}, 6, v{vT0}
    s_and_b32 s{sTmp}, s{sW}, 2
    s_lshl1_add_u32 s{sTmp}, s{sTmp}, {TL}
    v_lshl_add_u32 v{vT0}, v{vT0}, 3, s{sTmp}
    v_lshlrev_b32 v{vT1}, 3, v{vT1}
    ds_read_b32 v{vOf}, v{vT0}
    ds_bpermute_b32 v{vT1}, v{vT1}, v{vCtx}
    s_bcnt1_i32_b64 s{sN}, s[{sMk+2}:{sMk+3}]
    v_and_b32 v{vT0}, 0xff, v{vDs}
    s_lshl_b32 s{sTmp2}, s{sW}, 3
    v_lshl_add_u32 v{vT0}, v{vT0}, 5, s{sTmp2}
    v_cmp_le_u32 vcc, 0x80000, v{vDs}
    v_mov_b32 v{vT2}, s{sN}
    ds_write_b32 v{vB+3}, v{vT2} offset:16
    s_waitcnt lgkmcnt(1)
    v_cmp_lt_u32 s[{sMk}:{sMk+1}], v{vT0}, v{vT1}
    v_lshl_add_u32 v{vOf}, v{vOf}, 16, s{sPr}
    s_or_b64 vcc, vcc, s[{sMk}:{sMk+1}]
    s_and_b64 vcc, vcc, s[{sMk+2}:{sMk+3}]
    v_cndmask_b32 v{vOf}, 1, v{vOf}, vcc
    ds_write_b32 v{vB+4}, v{vOf}
    s_cmp_eq_u32 s{sN}, 0
    s_waitcnt vmcnt(0) lgkmcnt(0)
    s_barrier
    s_cbranch_scc1 L_done
    """)
    stamp(11, 2)
    for s in range(8):
        A(f"ds_read_b128 v[{vQ+4*s}:{vQ+4*s+3}], v{vVF+(s&3)} offset:{256*(s>>2)}")
    A("s_branch L_loop")
    A(f"""
    L_late:
    s_mov_b32 s{rW}, s{sWS}
    s_and_b32 s{rW+1}, s{sWS+1}, 0xffff
    s_mov_b32 s{rW+2}, {WS_BYTES if not prof else 16 << 20}
    s_mov_b32 s{rW+3}, 0x20000
    s_lshl2_add_u32 s{sTmp2}, s{sH}, s{sW}
    s_lshl_b32 s{sTmp}, s{sTmp2}, 5
    s_add_u32 s{sTmp}, s{sTmp}, s{sJ0}
    s_lshl_b32 s{sTmp}, s{sTmp}, 7
    s_add_u32 s{sTmp}, s{sTmp}, {ML_OFF}
    v_lshl_add_u32 v{vMO}, v{vQi}, 3, s{sTmp}
    s_lshl_b32 s{sTmp2}, s{sTmp2}, 8
    s_lshl2_add_u32 s{sTmp2}, s{sJ0}, s{sTmp2}
    s_add_u32 s{sTmp2}, s{sTmp2}, {FL_OFF}
    v_mov_b32 v{vFo}, s{sTmp2}
    s_lshl_b32 s{sTmp}, s{sH}, 5
    v_mov_b32 v{vRd}, s{sTmp}
    s_add_u32 s{sTmp}, s{sTmp}, s{sJ0}
    s_lshl2_add_u32 s{sTmp}, s{sTmp}, s{sW}
    s_lshl_b32 s{sTmp}, s{sTmp}, 11
    v_cmp_gt_u32 vcc, 32, v{vLane}
    v_lshl_add_u32 v{vSO}, v{vQi}, 6, s{sTmp}
    v_lshl_add_u32 v{vJk+1}, v{vLane}, 6, s{sTmp}
    v_lshl_add_u32 v{vSO}, v{vG}, 4, v{vSO}
    v_cndmask_b32 v{vJk+1}, v{vMO}, v{vJk+1}, vcc
    """)
    if pre: A(f"buffer_load_dword v{vJk}, v{vJk+1}, s[{rW}:{rW+3}], 0 offen sc1")
    A(f"""
    v_lshrrev_b32 v{vJk+2}, 2, v{vLane}
    v_and_b32 v{vJk+3}, 3, v{vLane}
    s_lshr_b32 s{sB}, s{sJ0}, 2
    s_and_b32 s{sTmp}, s{sW}, 1
    s_lshl1_add_u32 s{sS}, s{sB}, s{sTmp}
    s_lshl1_add_u32 s{sWb}, s{sH}, s{sTmp}
    s_and_b32 s{sTot}, s{sJ0}, 3
    s_lshr_b32 s{sTmp2}, s{sW}, 1
    s_lshl1_add_u32 s{sPr}, s{sTot}, s{sTmp2}
    s_lshl2_add_u32 s{sTot}, s{sH}, s{sTot}
    s_lshl_b32 s{sTmp}, s{sTot}, 12
    s_lshl3_add_u32 s{sTmp}, s{sS}, s{sTmp}
    s_add_u32 s{sTmp}, s{sTmp}, {ML_OFF}
    v_lshl_add_u32 v{vMd}, v{vJk+2}, 7, s{sTmp}
    s_lshl_b32 s{sTmp}, s{sTot}, 8
    s_add_u32 s{sTmp}, s{sTmp}, {FL_OFF}
    v_lshl_add_u32 v{vFa}, v{vLane}, 2, s{sTmp}
    s_lshl_b32 s{sTmp}, s{sH}, 18
    s_lshl4_add_u32 s{sTmp2}, s{sPr}, s{sS}
    s_lshl_b32 s{sTmp2}, s{sTmp2}, 6
    s_add_u32 s{sTmp}, s{sTmp}, s{sTmp2}
    v_lshl_add_u32 v{vAd}, v{vJk+3}, 4, s{sTmp}
    v_lshl_add_u32 v{vAd}, v{vJk+2}, 13, v{vAd}
    v_add_u32 v{vAd+1}, {16*SB}, v{vAd}
    s_lshl4_add_u32 s{sTmp}, s{sB}, s{sWb}
    s_lshl3_add_u32 s{sTmp}, s{sTmp}, s{sPr}
    s_lshl_b32 s{sTmp}, s{sTmp}, 6
    v_lshl_add_u32 v{vOA}, v{vJk+3}, 4, s{sTmp}
    v_lshl_add_u32 v{vOA}, v{vG}, 2, v{vOA}
    s_getreg_b32 s{sPl}, hwreg(HW_REG_XCC_ID, 0, 4)
    s_xor_b32 s{sTmp}, s{sJ0}, 31
    s_or_b32 s{sTmp}, s{sTmp}, s{sW}
    s_cbranch_scc1 L_late_end
    s_lshl_b32 s{sTmp}, s{sH}, 10
    s_add_u32 s{sTmp}, s{sTmp}, {FL_OFF}
    v_lshl_add_u32 v{vJk+1}, v{vLane}, 3, s{sTmp}
    v_mov_b32 v{vJk+2}, 0
    v_mov_b32 v{vJk+3}, 0
    buffer_store_dwordx2 v[{vJk+2}:{vJk+3}], v{vJk+1}, s[{rW}:{rW+3}], 0 offen sc1
    buffer_store_dwordx2 v[{vJk+2}:{vJk+3}], v{vJk+1}, s[{rW}:{rW+3}], 0 offen offset:512 sc1
    s_waitcnt vmcnt(0)
    v_mov_b32 v{vJk+2}, 1
    s_mov_b64 exec, 1
    global_store_dword v{vRd}, v{vJk+2}, s[{sDBG}:{sDBG+1}] sc1
    s_mov_b64 exec, -1
    L_late_end:
    s_cmp_eq_u32 s{sLt}, 2
    s_cbranch_scc1 L_done2
    s_mov_b32 s{sLt}, 1
    s_branch L_back
    L_late2:
    s_mov_b32 s{sLt}, 2
    s_branch L_late
    """)
    A(".p2align 6\nL_loop:")
    for p in range(2):
        base = p * 32768
        A(f"""
        v_readlane_b32 s{sPos}, v{vDs}, s{sI}
        s_add_u32 s{sI}, s{sI}, 1
        s_lshr_b32 s{sTmp}, s{sPos}, 15
        s_lshl_b64 vcc, s[{sC3}:{sC3+1}], s{sTmp}
        s_bitcmp1_b32 s{sPos}, 19
        s_cselect_b64 vcc, -1, vcc
        s_and_b32 s{sPos}, s{sPos}, 0xff
        s_lshl_b32 s{sPos}, s{sPos}, 5
        v_mov_b32 v{vT1}, s{sPos}
        v_cndmask_b32 v{vT1}, v{vBig}, v{vT1}, vcc
        v_add_u32 v{vT2}, 16, v{vT1}
        """)
        for hf in range(2):
            for r in range(4): A(f"v_cmp_lt_i32 s[{sMk+8*hf+2*r}:{sMk+8*hf+2*r+1}], v{vT1+hf}, v{vLim+r}")
        for r in range(8):
            A(f"v_cndmask_b32 v{vB+r}, v{vNi}, 0, s[{sMk+2*r}:{sMk+2*r+1}]")
        A("s_barrier")
        if prof:
            A(f"s_memrealtime s[{sSt}:{sSt+1}]\ns_waitcnt lgkmcnt(0)\ns_mov_b32 m0, s{sIt}\ns_add_u32 s{sIt}, s{sIt}, 1\ns_min_u32 s{sIt}, s{sIt}, 60\nv_writelane_b32 v{vPf}, s{sSt}, m0")
        for s in range(8):
            for h in range(2):
                r = vKF + 8*s + 4*h
                A(f"ds_read_b128 v[{r}:{r+3}], v{vKA+(s&3)} offset:{base + 256*(s>>2) + 8192*h}")
        for s in range(8):
            A(f"s_waitcnt lgkmcnt({14-2*s})")
            for h in range(2):
                c = "0" if s == 0 else f"v[{vS+4*h}:{vS+4*h+3}]"
                r = vKF + 8*s + 4*h
                A(f"v_mfma_f32_16x16x32_bf16 v[{vS+4*h}:{vS+4*h+3}], v[{r}:{r+3}], v[{vQ+4*s}:{vQ+4*s+3}], {c}")
        A("s_nop 6")
        for r in range(8):
            A(f"v_fma_f32 v{vX+r}, v{vS+r}, v{vC}, v{vB+r}")
        A(f"""
        v_max3_f32 v{vT0}, v{vX}, v{vX+1}, v{vX+2}
        v_max3_f32 v{vT1}, v{vX+3}, v{vX+4}, v{vX+5}
        v_max3_f32 v{vT0}, v{vT0}, v{vX+6}, v{vX+7}
        v_max3_f32 v{vT0}, v{vT0}, v{vT1}, v{vM}
        v_mov_b32 v{vT1}, v{vT0}
        s_nop 1
        v_permlane32_swap_b32 v{vT0}, v{vT1}
        v_max_f32 v{vT0}, v{vT0}, v{vT1}
        v_mov_b32 v{vT1}, v{vT0}
        s_nop 1
        v_permlane16_swap_b32 v{vT0}, v{vT1}
        v_max_f32 v{vT0}, v{vT0}, v{vT1}
        v_sub_f32 v{vAl}, v{vM}, v{vT0}
        v_mov_b32 v{vM}, v{vT0}
        """)
        for r in range(8): A(f"v_sub_f32 v{vX+r}, v{vX+r}, v{vT0}")
        A(f"v_exp_f32 v{vAl}, v{vAl}")
        for r in range(8): A(f"v_exp_f32 v{vX+r}, v{vX+r}")
        for i in range(8):
            A(f"v_pk_mul_f32 v[{vO+2*i}:{vO+2*i+1}], v[{vO+2*i}:{vO+2*i+1}], v[{vAl}:{vAl+1}] op_sel_hi:[1,0]")
        for j in range(4): A(f"v_cvt_pk_bf16_f32 v{vP+j}, v{vX+2*j}, v{vX+2*j+1}")
        A("s_barrier")
        for i in range(4):
            for h in range(2):
                r = vVF + 4*i + 2*h
                A(f"ds_read_b64_tr_b16 v[{r}:{r+1}], v{vVA+(i>>1)} offset:{base + 16384 + 8192*h + 8*(i&1)}")
        A(f"""
        v_fma_f32 v{vL}, v{vL}, v{vAl}, v{vX}
        v_add_f32 v{vT0}, v{vX+1}, v{vX+2}
        v_add_f32 v{vT1}, v{vX+3}, v{vX+4}
        v_add_f32 v{vT2}, v{vX+5}, v{vX+6}
        v_add_f32 v{vL}, v{vL}, v{vX+7}
        v_add_f32 v{vT0}, v{vT0}, v{vT1}
        v_add_f32 v{vL}, v{vL}, v{vT2}
        v_add_f32 v{vL}, v{vL}, v{vT0}
        s_cmp_ge_u32 s{sI}, s{sN}
        """)
        for i in range(4):
            A(f"s_waitcnt lgkmcnt({6-2*i})")
            A(f"v_mfma_f32_16x16x32_bf16 v[{vO+4*i}:{vO+4*i+3}], v[{vVF+4*i}:{vVF+4*i+3}], v[{vP}:{vP+3}], v[{vO+4*i}:{vO+4*i+3}]")
        if p == 0: A(f"s_cbranch_scc1 L_done\ns_cmp_eq_u32 s{sI}, {pat}\ns_cbranch_scc1 L_late\nL_back:")
        else: A("s_cbranch_scc0 L_loop")
    A(f"L_done:\ns_cmp_eq_u32 s{sLt}, 0\ns_cbranch_scc1 L_late2\nL_done2:")
    stamp(3)
    vF = vT3
    A(f"""
    global_load_dword v{vT0}, v{vRd}, s[{sDBG}:{sDBG+1}] sc1
    v_mov_b32 v{vT1}, v{vL}
    v_mov_b32 v{vAl}, v{vM}
    s_mov_b32 s{sCnt}, 0
    v_permlane32_swap_b32 v{vL}, v{vT1}
    v_add_f32 v{vL}, v{vL}, v{vT1}
    v_mov_b32 v{vT1}, v{vL}
    s_mov_b32 s{sReg}, 0
    s_cmp_eq_u32 s{sPl}, s{sH}
    v_permlane16_swap_b32 v{vL}, v{vT1}
    v_add_f32 v{vAl+1}, v{vL}, v{vT1}
    """)
    for j in range(8): A(f"v_cvt_pk_bf16_f32 v{vX+j}, v{vO+2*j}, v{vO+2*j+1}")
    A(f"v_mov_b32 v{vT2}, 1\ns_cbranch_scc0 L_slow")
    def publish(sc, tag, foff):
        for ih in range(2):
            A(f"buffer_store_dwordx4 v[{vX+4*ih}:{vX+4*ih+3}], v{vSO}, s[{rW}:{rW+3}], s{sReg} offen offset:{1024*ih} {sc}")
        A(f"""
        s_mov_b64 exec, 0xffff
        buffer_store_dwordx2 v[{vAl}:{vAl+1}], v{vMO}, s[{rW}:{rW+3}], s{sReg} offen {sc}
        s_mov_b64 exec, 1
        L_rdy{tag}:
        s_waitcnt vmcnt(0)
        v_cmp_eq_u32 vcc, 0, v{vT0}
        s_cbranch_vccz L_rok{tag}
        s_add_u32 s{sCnt}, s{sCnt}, 1
        s_cmp_ge_u32 s{sCnt}, 0x40000
        s_cbranch_scc1 L_rok{tag}
        global_load_dword v{vT0}, v{vRd}, s[{sDBG}:{sDBG+1}] sc1
        s_branch L_rdy{tag}
        L_rok{tag}:
        buffer_store_dword v{vT2}, v{vFo}, s[{rW}:{rW+3}], 0 offen offset:{foff} {sc}
        s_mov_b64 exec, -1
        """)
    publish("", "a", 0)
    stamp(4)
    A(f"""
    L_poll:
    buffer_load_dword v{vF}, v{vFa}, s[{rW}:{rW+3}], 0 offen sc1
    s_add_u32 s{sCnt}, s{sCnt}, 1
    s_waitcnt vmcnt(0)
    v_cmp_ne_u32 vcc, 0, v{vF}
    s_cmp_eq_u32 vcc_lo, -1
    s_cbranch_scc1 L_got
    s_cmp_lg_u32 vcc_hi, 0
    s_cbranch_scc1 L_slow
    s_cmp_lt_u32 s{sCnt}, 0x40000
    s_cbranch_scc1 L_poll
    L_got:
    """)
    stamp(5)
    vD = vKF; vML = vKF + 8; vAc = vKF + 16
    for k in range(2):
        A(f"buffer_load_dwordx2 v[{vML+2*k}:{vML+2*k+1}], v{vMd}, s[{rW}:{rW+3}], s{sReg} offen offset:{2048*k} sc1")
    for k in range(2):
        A(f"buffer_load_dwordx4 v[{vD+4*k}:{vD+4*k+3}], v{vAd+k}, s[{rW}:{rW+3}], s{sReg} offen sc1")
    A(f"s_waitcnt vmcnt(2)")
    stamp(7)
    A(f"v_max_f32 v{vT0}, v{vML}, v{vML+2}")
    for ro in (4, 8):
        A(f"s_nop 1\nv_max_f32_dpp v{vT0}, v{vT0}, v{vT0} row_ror:{ro} row_mask:0xf bank_mask:0xf")
    A(f"""
    v_mov_b32 v{vT1}, v{vT0}
    s_nop 1
    v_permlane32_swap_b32 v{vT0}, v{vT1}
    v_max_f32 v{vT0}, v{vT0}, v{vT1}
    v_mov_b32 v{vT1}, v{vT0}
    s_nop 1
    v_permlane16_swap_b32 v{vT0}, v{vT1}
    v_max_f32 v{vT0}, v{vT0}, v{vT1}
    """)
    for k in range(2): A(f"v_sub_f32 v{vML+2*k}, v{vML+2*k}, v{vT0}")
    for k in range(2): A(f"v_exp_f32 v{vML+2*k}, v{vML+2*k}")
    vLs = vAc + 8
    A(f"v_mul_f32 v{vLs}, v{vML}, v{vML+1}\nv_fmac_f32 v{vLs}, v{vML+2}, v{vML+3}")
    for k in range(2):
        A(f"s_waitcnt vmcnt({1-k})")
        op = "v_mul_f32" if k == 0 else "v_fmac_f32"
        for j in range(4):
            A(f"v_lshlrev_b32 v{vT1}, 16, v{vD+4*k+j}\nv_and_b32 v{vT2}, 0xffff0000, v{vD+4*k+j}")
            A(f"{op} v{vAc+2*j}, v{vML+2*k}, v{vT1}\n{op} v{vAc+2*j+1}, v{vML+2*k}, v{vT2}")
    stamp(8)
    A(f"v_mov_b32 v{vLs+1}, v{vLs}")
    for j in range(4): A(f"v_permlane32_swap_b32 v{vAc+j}, v{vAc+4+j}")
    A(f"v_permlane32_swap_b32 v{vLs}, v{vLs+1}")
    A(f"v_add_f32 v{vLs}, v{vLs}, v{vLs+1}")
    for j in range(4): A(f"v_add_f32 v{vAc+j}, v{vAc+j}, v{vAc+4+j}")
    A(f"v_mov_b32 v{vLs+1}, v{vLs}\ns_nop 0")
    for j in range(2): A(f"v_permlane16_swap_b32 v{vAc+j}, v{vAc+2+j}")
    A(f"v_permlane16_swap_b32 v{vLs}, v{vLs+1}")
    A(f"v_add_f32 v{vLs}, v{vLs}, v{vLs+1}")
    for j in range(2): A(f"v_add_f32 v{vAc+j}, v{vAc+j}, v{vAc+2+j}")
    for ro in (4, 8):
        for r in (vLs, vAc, vAc+1): A(f"v_add_f32_dpp v{r}, v{r}, v{r} row_ror:{ro} row_mask:0xf bank_mask:0xf")
    A(f"""
    v_rcp_f32 v{vLs}, v{vLs}
    s_mov_b32 exec_lo, 0x000f000f
    s_mov_b32 exec_hi, 0x000f000f
    v_mul_f32 v{vAc}, v{vAc}, v{vLs}
    v_mul_f32 v{vAc+1}, v{vAc+1}, v{vLs}
    v_cvt_pk_bf16_f32 v{vAc}, v{vAc}, v{vAc+1}
    global_store_dword v{vOA}, v{vAc}, s[{sOUT}:{sOUT+1}]
    """)
    stamp(9)
    if prof: A("s_mov_b64 exec, -1\ns_waitcnt vmcnt(0)")
    stamp(6)
    if prof == 2:
        a, b = diag
        A(f"""
        s_nop 1
        v_readlane_b32 s{sF}, v{vPf}, 0
        v_readlane_b32 s{sF+1}, v{vPf}, {a}
        v_readlane_b32 s{sF+2}, v{vPf}, {b}
        s_sub_u32 s{sF+1}, s{sF+2}, s{sF+1}
        s_min_u32 s{sF+1}, s{sF+1}, 20000
        s_mul_i32 s{sF+1}, s{sF+1}, {diagmul}
        """)
        if diagwg >= 0: A(f"s_cmp_eq_u32 s2, {diagwg}\ns_cselect_b32 s{sF+1}, s{sF+1}, 0")
        A(f"""
        s_add_u32 s{sF+1}, s{sF+1}, 10000
        L_spin:
        s_memrealtime s[{sSt}:{sSt+1}]
        s_waitcnt lgkmcnt(0)
        s_sub_u32 s{sF+2}, s{sSt}, s{sF}
        s_cmp_lt_u32 s{sF+2}, s{sF+1}
        s_cbranch_scc1 L_spin
        """)
    if prof == 1:
        A(f"""
        v_writelane_b32 v{vPf}, s{sPl}, 62
        v_writelane_b32 v{vPf}, s{sCnt}, 63
        s_lshl_b32 s{sTmp}, s2, 2
        s_add_u32 s{sTmp}, s{sTmp}, s{sW}
        s_lshl_b32 s{sTmp}, s{sTmp}, 8
        s_add_u32 s{sTmp}, s{sTmp}, {PROF_OFF}
        v_lshlrev_b32 v{vT0}, 2, v{vLane}
        buffer_store_dword v{vPf}, v{vT0}, s[{rW}:{rW+3}], s{sTmp} offen
        """)
    A("s_endpgm")
    A(f"L_slow:\ns_mov_b32 s{sReg}, {REG}")
    publish("sc1", "b", 128)
    A(f"""
    L_poll2:
    buffer_load_dword v{vF}, v{vFa}, s[{rW}:{rW+3}], 0 offen sc1
    s_add_u32 s{sCnt}, s{sCnt}, 1
    s_waitcnt vmcnt(0)
    v_cmp_ne_u32 vcc, 0, v{vF}
    s_cmp_eq_u32 vcc_hi, -1
    s_cbranch_scc1 L_got
    s_sleep 2
    s_cmp_lt_u32 s{sCnt}, 0x40000
    s_cbranch_scc1 L_poll2
    s_branch L_got
    """)
    A("L_end:\ns_endpgm")
    A(f""".section .rodata,"a"
.p2align 6
.amdhsa_kernel {KN}
.amdhsa_next_free_vgpr {NV}
.amdhsa_next_free_sgpr {NS}
.amdhsa_accum_offset {(NV+3)//4*4}
.amdhsa_group_segment_fixed_size 0
.amdhsa_kernarg_size 64
.amdhsa_user_sgpr_count 2
.amdhsa_user_sgpr_kernarg_segment_ptr 1
.amdhsa_system_sgpr_workgroup_id_x 1
.end_amdhsa_kernel""")
    return A.text()

if __name__ == "__main__":
    out = sys.argv[1]
    kw = {}
    for kv in sys.argv[2:]:
        k, v = kv.split("=")
        if "," in v: kw[k] = tuple(int(x) for x in v.split(","))
        else: kw[k] = int(v) if v.lstrip("-").isdigit() else v.replace("+", " ")
    open(out, "w").write(gen(**kw))
```

```python
import sys
from gen import Asm, HEADER, NAME, KN

def gen(prof=0, pol="nt", diag=None, diagwg=-1, diagmul=10, pfi=1, remap=0, pre=1, pat=0, pst=0,
        WE=21, WO=21, step=1, prio=3, W0=24, b0=1, p1=32, WT=0, ta=3, tb=0, fb=(18,20,21,23,27), th=(-110,-90,-70,-50), rev=0, lagprof=0, neu=-80, lead=31, us=6):
    NWG = 256
    SB = 8192
    ML_OFF = NWG * SB
    REG = ML_OFF + 32 * 4096
    FL_OFF = 2 * REG
    PG_OFF = FL_OFF + 32 * 256
    WS_BYTES = PG_OFF + 8 * 256
    PROF_OFF = 8 << 20
    SC = 65536
    TL = SC
    QL = SC + 32768
    OL = SC + 49152
    XL = SC + 65536
    MX = XL + 64
    LDS = MX + 256
    KVB = 2304 * 65536
    NEGBIG = 0xFF000000
    CSC = 0x3DB8AA3B
    if diag is not None: prof = 2
    A = Asm()
    vLane, vG, vQi = 0, 1, 2
    vT0, vT1, vT2, vT3 = 3, 4, 5, 6
    vCtx, vC, vM, vL = 7, 8, 9, 10
    vPf = 11
    vAl = 12
    vOf = 14; vNb = 15
    vP = 16
    vS = 20
    vB = 28
    vX = 36
    vLim = 44
    vDs = 48; vBig = 49
    vQD = 50
    vNi = 50
    vKA = 52
    vDO = 56
    vVA = 60
    vSO = 62; vMO = 63
    vQ = 64
    vKF = 96
    vVF = 160
    vO = 176
    vAd = 192
    vMd = 194; vFa = 195; vOA = 196; vFo = 197; vRd = 198
    vJk = 200
    NV = 204
    sQ, sK, sV, sBT, sCTX, sOUT, sDBG, sWS = 4, 6, 8, 10, 12, 14, 16, 18
    rK, rV, rW, rQ, rT = 20, 24, 28, 32, 36
    sLt = 40; sReg = 41; sCnt = 42; sPl = 43
    sO4 = 44
    sCm = 48
    sN4 = 64
    sPos = 52; sU = 53; sN0 = 50; sN1 = 51; sIsV = 62; sSl = 69
    sC3 = 54
    sN = 56; sI = 57; sLB = 58; sTmp = 59; sTmp2 = 60; sS = 61; sIt = 63
    sPr = 68
    sH = 70; sJ0 = 71
    sMk = 72
    sF = 72
    sSt = 88
    sW = 90; sB = 91; sTot = 92; sWb = 93
    NS = 98
    def stamp(i, grp=0):
        if not prof: return
        if i >= 7 and grp != pst: return
        A(f"s_memrealtime s[{sSt}:{sSt+1}]\ns_waitcnt lgkmcnt(0)\nv_writelane_b32 v{vPf}, s{sSt}, {i}")

    A(HEADER)
    if prof == 1: A("; prof=1\n; proftile=8192")
    A(f"; @launch grid=({NWG},1,1) block=(320,1,1) lds={LDS}")
    A('.amdgcn_target "amdgcn-amd-amdhsa--gfx950"\n.text')
    A(f".globl {KN}\n.p2align 8\n.type {KN},@function\n{KN}:")
    A(f"s_cmp_ge_u32 s2, {NWG}\ns_cbranch_scc1 L_end")
    if prof: A(f"v_mov_b32 v{vPf}, 0\ns_mov_b32 s{sIt}, 32")
    stamp(0)
    A("s_load_dwordx16 s[4:19], s[0:1], 0")
    if pfi:
        A(f"""
        s_getpc_b64 s[{sCm}:{sCm+1}]
        L_pf1:
        v_lshlrev_b32 v{vJk+2}, 7, v0
        v_min_u32 v{vJk+2}, L_end-L_pf1, v{vJk+2}
        global_load_dword v{vJk}, v{vJk+2}, s[{sCm}:{sCm+1}]
        """)
    if remap == 1: A("s_lshr_b32 s3, s2, 3\ns_cmp_eq_u32 s3, 5\ns_cselect_b32 s3, 1, 0\ns_xor_b32 s2, s2, s3")
    if remap == 2: A("s_lshr_b32 s3, s2, 3\ns_and_b32 s3, s3, 7\ns_xor_b32 s2, s2, s3")
    if remap == 3: A("s_xor_b32 s2, s2, 3")
    A(f"""
    v_readfirstlane_b32 s{sW}, v0
    v_bfe_u32 v{vT0}, v0, 5, 1
    v_and_b32 v{vT1}, 31, v0
    v_lshlrev_b32 v{vT1}, 4, v{vT1}
    v_lshlrev_b32 v{vT2}, 5, v{vT0}
    v_lshl_add_u32 v{vS}, v{vT0}, 11, v{vT1}
    v_xor_b32 v{vT1}, v{vT1}, v{vT2}
    v_lshl_add_u32 v{vDO}, v{vT0}, 12, v{vT1}
    s_and_b32 s{sH}, s2, 7
    s_lshr_b32 s{sJ0}, s2, 3
    s_lshl_b32 s{sPr}, s{sJ0}, 8
    s_add_u32 s{sPr}, s{sPr}, s{sH}
    s_lshl_b32 s{sO4}, s{sPr}, 9
    s_mov_b32 s{rK+2}, {KVB}
    s_mov_b32 s{rK+3}, 0x20000
    s_mov_b32 s{rT+2}, 16384
    s_mov_b32 s{rT+3}, 0x20000
    s_sub_u32 s{sB}, s{sW}, 64
    s_lshl_b32 s{sLB}, s{sB}, 6
    s_lshl_b32 s{sMk}, s{sB}, 3
    s_add_u32 s{sMk+1}, s{sMk}, {3072}
    s_add_u32 s{sMk+2}, s{sMk}, {2*3072}
    s_add_u32 s{sMk+3}, s{sMk}, {3*3072}
    s_add_u32 m0, s{sLB}, {TL}
    v_and_b32 v{vT2}, 14, v0
    v_lshlrev_b32 v{vT2}, 1, v{vT2}
    """)
    for jl in range(1, 4):
        A(f"v_xor_b32 v{vDO+jl}, {64*jl}, v{vDO}\nv_add_u32 v{vDO+jl}, {7168*jl}, v{vDO+jl}")
    A(f"""
    s_cmp_eq_u32 s{sW}, 0
    s_waitcnt lgkmcnt(0)
    s_cbranch_scc1 L_load
    s_mov_b32 s{rT}, s{sBT}
    s_and_b32 s{rT+1}, s{sBT+1}, 0xffff
    """)
    for j in range(4):
        A(f"buffer_load_dwordx4 v{vS}, s[{rT}:{rT+3}], s{sMk+j} offen offset:{1024*j} lds")
    A(f"global_load_dword v{vCtx}, v{vT2}, s[{sCTX}:{sCTX+1}]")
    if b0: A("s_barrier")
    A("s_branch L_cons\nL_load:")

    cnt = 0
    for u in range(3):
        for w in range(4):
            A(f"s_mov_b32 m0, {u*16384 + w*4096}")
            if cnt == 0: A(f"s_mov_b32 s{rK}, s{sK}\ns_and_b32 s{rK+1}, s{sK+1}, 0xffff")
            else: A(f"s_add_u32 s{sTmp}, s{sO4}, {32768*w + u*64*65536}")
            for jl in range(4):
                if b0 and cnt == b0 - 1: A("s_barrier")
                if cnt == p1 and p1 < 48: A("s_barrier")
                if cnt >= W0: A(f"s_waitcnt vmcnt({W0-1})")
                A(f"buffer_load_dwordx4 v{vDO+jl}, s[{rK}:{rK+3}], s{sO4 if cnt < 4 else sTmp} offen offset:{1024*jl} {pol} lds")
                cnt += 1
            if cnt == 16:
                A(f"""
                s_setprio {prio}
                s_and_b32 s{sK+1}, s{sK+1}, 0xffff
                s_and_b32 s{sV+1}, s{sV+1}, 0xffff
                v_lshl_add_u32 v{vT0}, v0, 22, s{sO4}
                v_lshlrev_b32 v{vT1}, 4, v0
                v_add_u32 v{vT1}, {OL}, v{vT1}
                v_mov_b32 v{vT2}, {XL+16}
                v_add_u32 v{vS+1}, 32768, v{vT0}
                v_add_u32 v{vS+2}, 65536, v{vT0}
                v_add_u32 v{vS+3}, 98304, v{vT0}
                """)
    if p1 == 48: A("s_barrier")
    A(f"""
    s_barrier
    ds_read_b128 v[{vX}:{vX+3}], v{vT1}
    ds_read_b32 v{vT2}, v{vT2}
    s_mov_b32 s{sN0}, 0
    s_mov_b32 s{sIsV}, 0
    s_mov_b32 s{sI}, 2
    s_mov_b32 s{sU}, 3
    s_waitcnt lgkmcnt(0)
    v_readfirstlane_b32 s{sN}, v{vT2}
    v_cmp_eq_u32 vcc, v{vX}, v{vT0}
    v_cmp_eq_u32 s[{sMk}:{sMk+1}], v{vX+1}, v{vS+1}
    v_cmp_eq_u32 s[{sMk+2}:{sMk+3}], v{vX+2}, v{vS+2}
    v_cmp_eq_u32 s[{sMk+4}:{sMk+5}], v{vX+3}, v{vS+3}
    s_min_u32 s{sN1}, s{sN}, 32
    s_lshl1_add_u32 s{sTot}, s{sN}, 2
    s_and_b32 s{sTmp}, vcc_lo, s{sMk}
    s_and_b32 s{sTmp2}, s{sMk+2}, s{sMk+4}
    s_and_b32 s{sTmp}, s{sTmp}, s{sTmp2}
    s_and_b32 s{sTmp}, s{sTmp}, 7
    s_cmp_eq_u32 s{sTmp}, 7
    s_cbranch_scc0 L_misspec
    s_waitcnt vmcnt(32)
    s_barrier
    L_lgo:
    """)
    if fb:
        E = 2
        sEx = 94
        rP = 96
        vPg = vP; vPa = vP+1; vPo = vP+2; vPv = vP+3
        A(f"""
        s_mov_b32 s{rW}, s{sWS}
        s_and_b32 s{rW+1}, s{sWS+1}, 0xffff
        s_mov_b32 s{rW+2}, {WS_BYTES}
        s_mov_b32 s{rW+3}, 0x20000
        s_mov_b64 s[{rP}:{rP+1}], s[{sDBG}:{sDBG+1}]
        s_lshl_b32 s{sTmp}, s{sH}, 5
        v_mov_b32 v{vPa}, s{sTmp}
        v_mov_b32 v{vPo}, 0x7f000000
        v_mov_b32 v{vPg}, 0
        s_mov_b32 s{sEx}, -1
        s_mov_b32 s{sEx+1}, 0
        s_mov_b32 s{sS}, 0
        s_sub_u32 s{sWb}, 256, s{sTot}
        s_branch L_lle
        L_ltop:
        v_add_u32_dpp v{vT0}, v{vPg}, v{vPg} row_ror:1 row_mask:0xf bank_mask:0xf
        v_cmp_gt_u32 vcc, 2, v{vPg}
        s_add_u32 s{sPos}, s{sU}, s{sWb}
        v_add_u32_dpp v{vT0}, v{vT0}, v{vT0} row_ror:2 row_mask:0xf bank_mask:0xf
        v_mov_b32 v{vPv}, s{sPos}
        s_add_u32 s{sTmp2}, s{sS}, 16
        v_add_u32_dpp v{vT0}, v{vT0}, v{vT0} row_ror:4 row_mask:0xf bank_mask:0xf
        s_mov_b64 exec, 1
        buffer_store_dword v{vPv}, v{vPo}, s[{rW}:{rW+3}], 0 offen
        s_mov_b64 exec, s[{sEx}:{sEx+1}]
        global_load_dword v{vPg}, v{vPa}, s[{rP}:{rP+1}] sc1
        s_mov_b64 exec, -1
        v_add_u32_dpp v{vT0}, v{vT0}, v{vT0} row_ror:8 row_mask:0xf bank_mask:0xf
        s_lshl_b32 s{sPos}, s{sPos}, 5
        v_readlane_b32 s{sTmp}, v{vT0}, s{sS}
        v_readlane_b32 s{sTmp2}, v{vT0}, s{sTmp2}
        s_xor_b32 s{sS}, s{sS}, 32
        s_add_u32 s{sTmp}, s{sTmp}, s{sTmp2}
        s_sub_i32 s{sPos}, s{sTmp}, s{sPos}
        s_and_b64 vcc, vcc, s[{sEx}:{sEx+1}]
        s_cselect_b32 s{sPos}, {neu}, s{sPos}
        s_not_b64 s[{sEx}:{sEx+1}], s[{sEx}:{sEx+1}]
        s_cmp_lg_u32 s{sTmp}, 32
        s_cbranch_scc1 L_lsel
        s_mov_b64 s[{rP}:{rP+1}], s[{sWS}:{sWS+1}]
        s_lshl_b32 s{sTmp}, s{sH}, 8
        s_add_u32 s{sTmp}, s{sTmp}, {PG_OFF}
        v_and_b32 v{vPa}, 31, v0
        v_lshl_add_u32 v{vPa}, v{vPa}, 2, s{sTmp}
        s_lshl2_add_u32 s{sTmp}, s{sJ0}, s{sTmp}
        v_mov_b32 v{vPo}, s{sTmp}
        L_lsel:
        """)
        if lagprof: A(f"s_mov_b32 m0, s{sU}\ns_nop 0\nv_writelane_b32 v{vQ}, s{sPos}, m0")
        variants = [(f"f{i}", W) for i, W in enumerate(fb)] + [("e", WE)]
        for i in range(len(th)-1, -1, -1):
            A(f"s_cmp_gt_i32 s{sPos}, {th[i]}\ns_cbranch_scc1 L_llf{i+1}")
    else:
        E = 0
        variants = [("e", WE)] if WE == WO else [("e", WE), ("o", WO)]
        if len(variants) > 1: A(f"s_bitcmp1_b32 s{sH}, 0\ns_cbranch_scc1 L_llo")
        if WT:
            assert WE == WO
            variants.append(("t", WT))
            A(f"s_sub_u32 s{sTmp}, s{sU}, s{sN}\ns_add_u32 s{sTmp}, s{sTmp}, {ta}\ns_cmp_lt_u32 s{sTmp}, {ta+tb}\ns_cbranch_scc1 L_llt")
    for tag, W in variants:
        assert 17 <= W <= 32
        if tag == "e": E = 0
        A(f"""
        L_ll{tag}:
        s_add_u32 s{sI}, s{sI}, 1
        s_cmp_lg_u32 s{sI}, s{sN1}
        s_cbranch_scc1 L_ls{tag}
        s_xor_b32 s{sIsV}, s{sIsV}, 1
        s_cselect_b32 s{sN0}, s{sN0}, s{sN1}
        s_cselect_b32 s{sN1}, s{sN1}, s{sN}
        s_cselect_b32 s{rK}, s{sV}, s{sK}
        s_cselect_b32 s{rK+1}, s{sV+1}, s{sK+1}
        s_mov_b32 s{sI}, s{sN0}
        L_ls{tag}:
        """)
        if rev:
            A(f"s_add_u32 s{sTmp}, s{sN0}, s{sN1}\ns_sub_u32 s{sTmp}, s{sTmp}, s{sI}\ns_sub_u32 s{sTmp}, s{sTmp}, 1\ns_cmp_eq_u32 s{sIsV}, 0\ns_cselect_b32 s{sTmp}, s{sI}, s{sTmp}")
        for w in range(4): A(f"v_readlane_b32 s{sO4+w}, v{vX+w}, s{sTmp if rev else sI}")
        A(f"s_and_b32 s{sLB}, s{sU}, 3\ns_lshl_b32 s{sLB}, s{sLB}, 14\ns_cmp_lt_u32 s{sI}, s{sN}\ns_cselect_b32 s{sTmp}, 0, 1")
        for w in range(4):
            A(f"""
            s_add_u32 m0, s{sLB}, {w*4096}
            s_or_b32 s{sO4+w}, s{sO4+w}, s{sTmp}
            s_bitcmp0_b32 s{sO4+w}, 0
            s_cselect_b32 s{sO4+w}, s{sO4+w}, 0
            s_cselect_b32 s{rK+2}, {KVB}, 0
            """)
            for jl in range(4):
                c = 4*w + jl
                if c == W-17: A(f"s_cmp_lt_u32 s{sU}, 2\ns_waitcnt vmcnt({W-1+E})\ns_cbranch_scc1 L_lb{tag}\ns_barrier\nL_lb{tag}:")
                elif c % step == 0: A(f"s_waitcnt vmcnt({W-step+E*(2 if c < W-17 else 1)})")
                A(f"buffer_load_dwordx4 v{vDO+jl}, s[{rK}:{rK+3}], s{sO4+w} offen offset:{1024*jl} {pol} lds")
        A(f"""
        s_add_u32 s{sU}, s{sU}, 1
        s_cmp_lt_u32 s{sU}, s{sTot}
        """)
        if fb and tag == "e":
            A(f"s_cbranch_scc0 L_lend\ns_cmp_lt_u32 s{sU}, {us}\ns_cbranch_scc1 L_lle\ns_branch L_ltop")
            continue
        A(f"s_cbranch_scc1 {'L_ltop' if fb else 'L_lgo' if WT else 'L_ll'+tag}")
        if lagprof: A(f"s_lshl_b32 s{sTmp}, s2, 8\ns_add_u32 s{sTmp}, s{sTmp}, {12<<20}\nv_lshl_add_u32 v{vT0}, v0, 2, s{sTmp}\nglobal_store_dword v{vT0}, v{vQ}, s[{sWS}:{sWS+1}]")
        if tag == ("f0" if fb else "e"): A("L_lend:")
        A("s_waitcnt vmcnt(0)\ns_endpgm")
    A(f"""
    L_misspec:
    s_waitcnt vmcnt(0)
    s_cmp_eq_u32 s{sN}, 0
    s_cbranch_scc1 L_lend
    s_mov_b32 s{sI}, -1
    s_mov_b32 s{sU}, 0
    s_branch L_lgo
    """)
    A(f"""
    L_cons:
    s_lshr_b32 s{sW}, s{sB}, 6
    s_mov_b32 s{rQ+2}, 65536
    s_mov_b32 s{rQ+3}, 0x20000
    s_and_b32 s{sTmp}, s{sW}, 1
    s_lshl_b32 s{sTmp}, s{sTmp}, 7
    v_xor_b32 v{vT1}, s{sTmp}, v{vT1}
    v_lshl_add_u32 v{vQD}, v{vT0}, 9, v{vT1}
    v_xor_b32 v{vQD+1}, 64, v{vQD}
    s_lshl4_add_u32 s{sS}, s{sW}, s{sH}
    s_lshl_b32 s{sS}, s{sS}, 10
    s_add_u32 s{sTmp2}, s{sS}, {8192-1024}
    s_lshr_b32 s{sTmp}, s{sLB}, 1
    s_add_u32 m0, s{sTmp}, {QL}
    s_mov_b32 s{rQ}, s{sQ}
    s_and_b32 s{rQ+1}, s{sQ+1}, 0xffff
    buffer_load_dwordx4 v{vQD}, s[{rQ}:{rQ+3}], s{sS} offen lds
    buffer_load_dwordx4 v{vQD+1}, s[{rQ}:{rQ+3}], s{sTmp2} offen offset:1024 lds
    """)
    stamp(1)
    A(f"""
    v_and_b32 v{vLane}, 63, v0
    s_xor_b32 s{sTmp}, s{sJ0}, {lead}
    s_or_b32 s{sTmp}, s{sTmp}, s{sW}
    s_cselect_b32 s{sReg}, 0, 1
    s_cbranch_scc0 L_clear
    L_cleared:
    s_add_u32 s{sTmp}, s{sLB}, {TL}
    v_lshl_add_u32 v{vOf}, v{vLane}, 3, s{sTmp}
    v_lshrrev_b32 v{vG}, 4, v{vLane}
    v_and_b32 v{vQi}, 15, v{vLane}
    s_lshl2_add_u32 s{sTmp}, s{sW}, {XL}
    v_mov_b32 v{vB+2}, s{sTmp}
    v_mov_b32 v{vB+3}, {XL}
    s_lshl2_add_u32 s{sTmp}, s{sW}, {OL}
    v_lshl_add_u32 v{vB+4}, v{vLane}, 4, s{sTmp}
    s_lshl_b32 s{sWb}, s{sW}, 6
    v_lshl_add_u32 v{vS}, v{vLane}, 5, s{sJ0}
    v_mov_b32 v{vDs}, 0x80000
    v_not_b32 v{vS+1}, v{vS}
    v_mov_b32 v{vBig}, 0x7fff0000
    v_lshrrev_b32 v{vB}, 1, v{vQi}
    v_lshlrev_b32 v{vB}, 16, v{vB}
    v_and_b32 v{vT0}, 7, v{vQi}
    v_lshlrev_b32 v{vT0}, 1, v{vT0}
    v_xor_b32 v{vT0}, v{vT0}, v{vG}
    v_lshlrev_b32 v{vT0}, 4, v{vT0}
    v_lshl_add_u32 v{vKA}, v{vQi}, 9, v{vT0}
    v_xor_b32 v{vKA+1}, 64, v{vKA}
    v_xor_b32 v{vKA+2}, 128, v{vKA}
    v_xor_b32 v{vKA+3}, 192, v{vKA}
    v_lshrrev_b32 v{vT0}, 2, v{vLane}
    v_lshlrev_b32 v{vT1}, 9, v{vT0}
    v_and_b32 v{vT0}, 7, v{vT0}
    v_lshlrev_b32 v{vT0}, 1, v{vT0}
    v_and_b32 v{vT2}, 3, v{vLane}
    s_lshl_b32 s{sTmp}, s{sW}, 3
    v_add_u32 v{vT2}, s{sTmp}, v{vT2}
    v_xor_b32 v{vT3}, v{vT2}, v{vT0}
    v_lshl_add_u32 v{vVA}, v{vT3}, 4, v{vT1}
    v_xor_b32 v{vVA+1}, 64, v{vVA}
    """)
    for sl in range(4): A(f"v_add_u32 v{vVF+sl}, {QL}, v{vKA+sl}")
    A(f"""
    s_and_b32 s{sTmp}, s{sW}, 1
    s_lshl_b32 s{sS}, s{sTmp}, 4
    s_lshl_b32 s{sPr}, s{sTmp}, 6
    s_add_u32 s{sPr}, s{sPr}, s{sH}
    s_lshl_b32 s{sPr}, s{sPr}, 9
    v_mov_b32 v{vT2}, 0x2000
    v_mov_b32 v{vT3}, {CSC}
    """)
    stamp(7, 2)
    A(f"s_waitcnt vmcnt(2)")
    stamp(2)
    for b in range(8):
        A(f"ds_read_b64 v[{vKF+2*b}:{vKF+2*b+1}], v{vOf} offset:{512*b}")
    A(f"""
    v_cmp_lt_i32 vcc, 0, v{vCtx}
    v_min_i32 v{vCtx}, 0x2000, v{vCtx}
    v_lshl_add_u32 v{vT0}, v{vG}, 2, s{sS}
    v_cndmask_b32 v{vCtx}, v{vT2}, v{vCtx}, vcc
    v_cndmask_b32 v{vC}, 0, v{vT3}, vcc
    v_add_u32 v{vNb}, 31, v{vCtx}
    v_lshrrev_b32 v{vNb}, 5, v{vNb}
    v_sub_u32 v{vLim}, v{vCtx}, v{vT0}
    v_subrev_u32 v{vLim+1}, 1, v{vLim}
    v_max_u32_dpp v{vT2}, v{vNb}, v{vNb} row_ror:2 row_mask:0xf bank_mask:0xf
    v_subrev_u32 v{vLim+2}, 2, v{vLim}
    v_subrev_u32 v{vLim+3}, 3, v{vLim}
    v_max_u32_dpp v{vT2}, v{vT2}, v{vT2} row_ror:4 row_mask:0xf bank_mask:0xf
    s_waitcnt lgkmcnt(0)
    """)
    for b in range(1, 8):
        A(f"v_cmp_ne_u64 s[{sMk+2*b}:{sMk+2*b+1}], v[{vKF}:{vKF+1}], v[{vKF+2*b}:{vKF+2*b+1}]")
    A(f"v_max_u32_dpp v{vT2}, v{vT2}, v{vT2} row_ror:8 row_mask:0xf bank_mask:0xf")
    for b in range(2, 8):
        A(f"s_or_b64 s[{sMk+2}:{sMk+3}], s[{sMk+2}:{sMk+3}], s[{sMk+2*b}:{sMk+2*b+1}]")
    A(f"""
    s_ff1_i32_b64 s{sTmp}, s[{sMk+2}:{sMk+3}]
    s_min_u32 s{sTmp}, s{sTmp}, 256
    s_add_u32 s{sTmp}, s{sTmp}, s{sWb}
    v_min_u32 v{vT2}, s{sTmp}, v{vT2}
    ds_write_b32 v{vB+2}, v{vT2}
    s_waitcnt lgkmcnt(0)
    """)
    stamp(8, 2)
    A("s_barrier")
    stamp(9, 2)
    A(f"""
    ds_read_b128 v[{vX}:{vX+3}], v{vB+3}
    s_waitcnt lgkmcnt(0)
    v_min3_u32 v{vT0}, v{vX}, v{vX+1}, v{vX+2}
    v_min_u32 v{vT0}, v{vT0}, v{vX+3}
    v_max_u32 v{vNb}, v{vNb}, v{vT0}
    v_sub_u32 v{vNb}, v{vNb}, v{vT0}
    v_mov_b32 v{vO}, 0
    v_mov_b32 v{vO+1}, 0
    v_add_u32_dpp v{vT1}, v{vNb}, v{vNb} row_shr:2 row_mask:0xf bank_mask:0xf bound_ctrl:0
    v_mov_b32 v{vO+2}, 0
    v_mov_b32 v{vO+3}, 0
    v_add_u32_dpp v{vT1}, v{vT1}, v{vT1} row_shr:4 row_mask:0xf bank_mask:0xf bound_ctrl:0
    v_mov_b32 v{vM}, {NEGBIG}
    v_mov_b32 v{vL}, 0
    v_add_u32_dpp v{vT1}, v{vT1}, v{vT1} row_shr:8 row_mask:0xf bank_mask:0xf bound_ctrl:0
    v_add_u32 v{vT2}, v{vT1}, v{vT0}
    v_sub_u32 v{vT1}, v{vT1}, v{vNb}
    v_readlane_b32 s{sTot}, v{vT2}, 15
    v_sub_u32 v{vT2}, v{vT2}, v{vNb}
    v_sub_u32 v{vT1}, v{vB}, v{vT1}
    s_mov_b32 s{sI}, 0
    """)
    fill = [f"v_mov_b32 v{vO+i}, 0" for i in range(4, 16)] + [f"v_mov_b32 v{vNi}, 0xff800000", f"s_mov_b32 s{sC3}, 0x00030003", f"s_mov_b32 s{sC3+1}, 0x00030003", f"s_mov_b32 s{sLt}, 0"]
    for b in range(8):
        A(f"v_add_co_u32_dpp v{vT3}, vcc, v{vT2}, v{vS+1} row_newbcast:{2*b} row_mask:0xf bank_mask:0xf")
        A(fill[2*b]); A(fill[2*b+1])
        A(f"v_cndmask_b32_dpp v{vDs}, v{vT1}, v{vDs}, vcc row_newbcast:{2*b} row_mask:0xf bank_mask:0xf")
    stamp(10, 2)
    A(f"""
    v_cmp_gt_u32 s[{sMk+2}:{sMk+3}], s{sTot}, v{vS}
    v_add_u32 v{vDs}, v{vDs}, v{vS}
    v_bfe_u32 v{vT1}, v{vDs}, 16, 3
    v_bfe_u32 v{vT2}, v{vDs}, 6, 2
    v_and_b32 v{vT0}, 0x3f, v{vDs}
    v_lshl_add_u32 v{vT2}, v{vT2}, 3, v{vT1}
    v_lshl_add_u32 v{vT0}, v{vT2}, 6, v{vT0}
    s_and_b32 s{sTmp}, s{sW}, 2
    s_lshl1_add_u32 s{sTmp}, s{sTmp}, {TL}
    v_lshl_add_u32 v{vT0}, v{vT0}, 3, s{sTmp}
    v_lshlrev_b32 v{vT1}, 3, v{vT1}
    ds_read_b32 v{vOf}, v{vT0}
    ds_bpermute_b32 v{vT1}, v{vT1}, v{vCtx}
    s_bcnt1_i32_b64 s{sN}, s[{sMk+2}:{sMk+3}]
    v_and_b32 v{vT0}, 0xff, v{vDs}
    s_lshl_b32 s{sTmp2}, s{sW}, 3
    v_lshl_add_u32 v{vT0}, v{vT0}, 5, s{sTmp2}
    v_cmp_le_u32 vcc, 0x80000, v{vDs}
    v_mov_b32 v{vT2}, s{sN}
    ds_write_b32 v{vB+3}, v{vT2} offset:16
    s_waitcnt lgkmcnt(1)
    v_cmp_lt_u32 s[{sMk}:{sMk+1}], v{vT0}, v{vT1}
    v_lshl_add_u32 v{vOf}, v{vOf}, 16, s{sPr}
    s_or_b64 vcc, vcc, s[{sMk}:{sMk+1}]
    s_and_b64 vcc, vcc, s[{sMk+2}:{sMk+3}]
    v_cndmask_b32 v{vOf}, 1, v{vOf}, vcc
    ds_write_b32 v{vB+4}, v{vOf}
    s_cmp_eq_u32 s{sReg}, 1
    s_waitcnt vmcnt(0) lgkmcnt(0)
    s_barrier
    s_cbranch_scc1 L_ready
    L_readied:
    s_cmp_eq_u32 s{sN}, 0
    s_cbranch_scc1 L_done
    """)
    stamp(11, 2)
    for s in range(8):
        A(f"ds_read_b128 v[{vQ+4*s}:{vQ+4*s+3}], v{vVF+(s&3)} offset:{256*(s>>2)}")
    vSW = vDO; vSR = vDO + 1; vMW = vDO + 2; vMR = vDO + 3
    A(f"""
    s_lshl_b32 s{sTmp}, s{sS}, 9
    v_add_u32 v{vKA}, s{sTmp}, v{vKA}
    v_lshlrev_b32 v{vSR}, 4, v{vLane}
    v_add_u32 v{vSR}, {SC}, v{vSR}
    s_lshl_b32 s{sTmp}, s{sS}, 6
    v_add_u32 v{vSW}, s{sTmp}, v{vSR}
    v_lshlrev_b32 v{vMR}, 4, v{vQi}
    v_add_u32 v{vMR}, {MX}, v{vMR}
    s_lshl_b32 s{sTmp}, s{sW}, 2
    v_add_u32 v{vMW}, s{sTmp}, v{vMR}
    s_mov_b32 s{sSl}, 0
    s_mov_b32 s{sN0}, 0
    s_min_u32 s{sN1}, s{sN}, 32
    s_lshr_b32 s{sIsV}, s{sW}, 1
    s_branch L_pass
    """)
    A(f"""
    L_clear:
    s_lshl_b32 s{sTmp}, s{sH}, 10
    s_add_u32 s{sTmp}, s{sTmp}, {FL_OFF}
    v_lshl_add_u32 v{vJk+1}, v{vLane}, 3, s{sTmp}
    v_mov_b32 v{vJk+2}, 0
    v_mov_b32 v{vJk+3}, 0
    global_store_dwordx2 v{vJk+1}, v[{vJk+2}:{vJk+3}], s[{sWS}:{sWS+1}] sc1
    global_store_dwordx2 v{vJk+1}, v[{vJk+2}:{vJk+3}], s[{sWS}:{sWS+1}] offset:512 sc1
    s_lshl_b32 s{sTmp}, s{sH}, 8
    s_add_u32 s{sTmp}, s{sTmp}, {PG_OFF}
    v_lshl_add_u32 v{vJk+1}, v{vLane}, 2, s{sTmp}
    global_store_dword v{vJk+1}, v{vJk+2}, s[{sWS}:{sWS+1}] sc1
    s_branch L_cleared
    L_ready:
    s_lshl_b32 s{sTmp}, s{sH}, 5
    v_mov_b32 v{vJk+1}, s{sTmp}
    v_mov_b32 v{vJk+2}, 1
    s_mov_b64 exec, 1
    global_store_dword v{vJk+1}, v{vJk+2}, s[{sDBG}:{sDBG+1}] sc1
    s_mov_b64 exec, -1
    s_branch L_readied
    """)
    A(f"""
    L_late:
    s_mov_b32 s{rW}, s{sWS}
    s_and_b32 s{rW+1}, s{sWS+1}, 0xffff
    s_mov_b32 s{rW+2}, {WS_BYTES if not prof else 16 << 20}
    s_mov_b32 s{rW+3}, 0x20000
    s_lshl2_add_u32 s{sTmp2}, s{sH}, s{sW}
    s_lshl_b32 s{sTmp}, s{sTmp2}, 5
    s_add_u32 s{sTmp}, s{sTmp}, s{sJ0}
    s_lshl_b32 s{sTmp}, s{sTmp}, 7
    s_add_u32 s{sTmp}, s{sTmp}, {ML_OFF}
    v_lshl_add_u32 v{vMO}, v{vQi}, 3, s{sTmp}
    s_lshl_b32 s{sTmp2}, s{sTmp2}, 8
    s_lshl2_add_u32 s{sTmp2}, s{sJ0}, s{sTmp2}
    s_add_u32 s{sTmp2}, s{sTmp2}, {FL_OFF}
    v_mov_b32 v{vFo}, s{sTmp2}
    s_lshl_b32 s{sTmp}, s{sH}, 5
    v_mov_b32 v{vRd}, s{sTmp}
    s_add_u32 s{sTmp}, s{sTmp}, s{sJ0}
    s_lshl2_add_u32 s{sTmp}, s{sTmp}, s{sW}
    s_lshl_b32 s{sTmp}, s{sTmp}, 11
    v_cmp_gt_u32 vcc, 32, v{vLane}
    v_lshl_add_u32 v{vSO}, v{vQi}, 6, s{sTmp}
    v_lshl_add_u32 v{vJk+1}, v{vLane}, 6, s{sTmp}
    v_lshl_add_u32 v{vSO}, v{vG}, 4, v{vSO}
    v_cndmask_b32 v{vJk+1}, v{vMO}, v{vJk+1}, vcc
    """)
    A(f"""
    v_lshrrev_b32 v{vJk+2}, 2, v{vLane}
    v_and_b32 v{vJk+3}, 3, v{vLane}
    s_lshr_b32 s{sB}, s{sJ0}, 2
    s_and_b32 s{sTmp}, s{sW}, 1
    s_lshl1_add_u32 s{sS}, s{sB}, s{sTmp}
    s_lshl1_add_u32 s{sWb}, s{sH}, s{sTmp}
    s_and_b32 s{sTot}, s{sJ0}, 3
    s_lshr_b32 s{sTmp2}, s{sW}, 1
    s_lshl1_add_u32 s{sPr}, s{sTot}, s{sTmp2}
    s_lshl2_add_u32 s{sTot}, s{sH}, s{sTot}
    s_lshl_b32 s{sTmp}, s{sTot}, 12
    s_lshl3_add_u32 s{sTmp}, s{sS}, s{sTmp}
    s_add_u32 s{sTmp}, s{sTmp}, {ML_OFF}
    v_lshl_add_u32 v{vMd}, v{vJk+2}, 7, s{sTmp}
    s_lshl_b32 s{sTmp}, s{sTot}, 8
    s_add_u32 s{sTmp}, s{sTmp}, {FL_OFF}
    v_lshl_add_u32 v{vFa}, v{vLane}, 2, s{sTmp}
    s_lshl_b32 s{sTmp}, s{sH}, 18
    s_lshl4_add_u32 s{sTmp2}, s{sPr}, s{sS}
    s_lshl_b32 s{sTmp2}, s{sTmp2}, 6
    s_add_u32 s{sTmp}, s{sTmp}, s{sTmp2}
    v_lshl_add_u32 v{vAd}, v{vJk+3}, 4, s{sTmp}
    v_lshl_add_u32 v{vAd}, v{vJk+2}, 13, v{vAd}
    v_add_u32 v{vAd+1}, {16*SB}, v{vAd}
    s_lshl4_add_u32 s{sTmp}, s{sB}, s{sWb}
    s_lshl3_add_u32 s{sTmp}, s{sTmp}, s{sPr}
    s_lshl_b32 s{sTmp}, s{sTmp}, 6
    v_lshl_add_u32 v{vOA}, v{vJk+3}, 4, s{sTmp}
    v_lshl_add_u32 v{vOA}, v{vG}, 2, v{vOA}
    s_getreg_b32 s{sPl}, hwreg(HW_REG_XCC_ID, 0, 4)
    L_late_end:
    s_cmp_eq_u32 s{sLt}, 2
    s_cbranch_scc1 L_done2
    s_mov_b32 s{sLt}, 1
    s_branch L_back
    L_late2:
    s_mov_b32 s{sLt}, 2
    s_branch L_late
    """)
    def ustamp():
        if prof: A(f"s_memrealtime s[{sSt}:{sSt+1}]\ns_waitcnt lgkmcnt(0)\ns_lshr_b32 m0, s{sIt}, 1\ns_add_u32 s{sIt}, s{sIt}, 1\ns_min_u32 s{sIt}, s{sIt}, 121\nv_writelane_b32 v{vPf}, s{sSt}, m0")
    vA = vB + 4
    A(f"""
    .p2align 6
    L_pass:
    v_mov_b32 v{vNb}, v{vM}
    L_p1:
    s_xor_b32 s{sTmp}, s{sI}, s{sIsV}
    s_bitcmp0_b32 s{sTmp}, 0
    s_cbranch_scc1 L_mine
    s_barrier
    """)
    ustamp()
    A(f"""
    s_lshr_b32 s{sTmp}, s{sI}, 1
    s_cmp_eq_u32 s{sTmp}, {pat}
    s_cbranch_scc1 L_late
    s_branch L_back
    L_mine:
    v_readlane_b32 s{sPos}, v{vDs}, s{sI}
    v_add_u32 v{vA}, s{sSl}, v{vKA}
    v_xor_b32 v{vA+1}, 64, v{vA}
    v_xor_b32 v{vA+2}, 128, v{vA}
    v_xor_b32 v{vA+3}, 192, v{vA}
    s_lshr_b32 s{sTmp}, s{sPos}, 15
    s_lshl_b64 vcc, s[{sC3}:{sC3+1}], s{sTmp}
    s_bitcmp1_b32 s{sPos}, 19
    s_cselect_b64 vcc, -1, vcc
    s_and_b32 s{sPos}, s{sPos}, 0xff
    s_lshl_b32 s{sPos}, s{sPos}, 5
    v_mov_b32 v{vT1}, s{sPos}
    v_cndmask_b32 v{vT1}, v{vBig}, v{vT1}, vcc
    s_and_b32 s{sTmp}, s{sI}, 31
    s_lshl_b32 s{sTmp}, s{sTmp}, 11
    """)
    for r in range(4): A(f"v_cmp_lt_i32 s[{sMk+2*r}:{sMk+2*r+1}], v{vT1}, v{vLim+r}")
    A(f"v_add_u32 v{vT2}, s{sTmp}, v{vSW}")
    for r in range(4): A(f"v_cndmask_b32 v{vB+r}, v{vNi}, 0, s[{sMk+2*r}:{sMk+2*r+1}]")
    A("s_barrier")
    ustamp()
    for s in range(8):
        A(f"ds_read_b128 v[{vKF+4*s}:{vKF+4*s+3}], v{vA+(s&3)} offset:{256*(s>>2)}")
    for s in range(8):
        A(f"s_waitcnt lgkmcnt({7-s})")
        c = "0" if s == 0 else f"v[{vS}:{vS+3}]"
        A(f"v_mfma_f32_16x16x32_bf16 v[{vS}:{vS+3}], v[{vKF+4*s}:{vKF+4*s+3}], v[{vQ+4*s}:{vQ+4*s+3}], {c}")
    A("s_nop 7")
    for r in range(4): A(f"v_fma_f32 v{vX+r}, v{vS+r}, v{vC}, v{vB+r}")
    A(f"""
    ds_write_b128 v{vT2}, v[{vX}:{vX+3}]
    v_max3_f32 v{vNb}, v{vNb}, v{vX}, v{vX+1}
    v_max3_f32 v{vNb}, v{vNb}, v{vX+2}, v{vX+3}
    L_back:
    s_add_u32 s{sSl}, s{sSl}, 16384
    s_and_b32 s{sSl}, s{sSl}, 0xffff
    s_add_u32 s{sI}, s{sI}, 1
    s_cmp_lt_u32 s{sI}, s{sN1}
    s_cbranch_scc1 L_p1
    """)
    if pre: A(f"s_cmp_eq_u32 s{sLt}, 0\ns_cbranch_scc1 L_nopre\nbuffer_load_dword v{vJk}, v{vJk+1}, s[{rW}:{rW+3}], 0 offen sc1\nL_nopre:")
    A(f"""
    v_mov_b32 v{vT1}, v{vNb}
    s_mov_b32 s{sI}, s{sN0}
    s_nop 0
    v_permlane32_swap_b32 v{vNb}, v{vT1}
    v_max_f32 v{vNb}, v{vNb}, v{vT1}
    v_mov_b32 v{vT1}, v{vNb}
    s_nop 1
    v_permlane16_swap_b32 v{vNb}, v{vT1}
    v_max_f32 v{vNb}, v{vNb}, v{vT1}
    ds_write_b32 v{vMW}, v{vNb}
    s_sub_u32 s{sTmp}, s{sN1}, s{sN0}
    s_sub_u32 s{sTmp}, s{sTmp}, 1
    s_mul_i32 s{sTmp}, s{sTmp}, {2048 if rev else 0}
    v_add_u32 v{vT3}, s{sTmp}, v{vSR}
    s_waitcnt lgkmcnt(0)
    s_barrier
    """)
    ustamp()
    A(f"""
    ds_read_b128 v[{vS}:{vS+3}], v{vMR}
    s_mov_b32 s{sU}, 0
    s_waitcnt lgkmcnt(0)
    v_max3_f32 v{vT0}, v{vS}, v{vS+1}, v{vS+2}
    v_max_f32 v{vT0}, v{vT0}, v{vS+3}
    v_sub_f32 v{vAl}, v{vM}, v{vT0}
    v_exp_f32 v{vAl}, v{vAl}
    v_mov_b32 v{vM}, v{vT0}
    v_mul_f32 v{vL}, v{vL}, v{vAl}
    """)
    for i in range(8):
        A(f"v_pk_mul_f32 v[{vO+2*i}:{vO+2*i+1}], v[{vO+2*i}:{vO+2*i+1}], v[{vAl}:{vAl+1}] op_sel_hi:[1,0]")
    A(f"""
    L_p2:
    ds_read_b128 v[{vX}:{vX+3}], v{vT3}
    ds_read_b128 v[{vX+4}:{vX+7}], v{vT3} offset:1024
    v_add_u32 v{vA}, s{sSl}, v{vVA}
    v_add_u32 v{vA+1}, s{sSl}, v{vVA+1}
    v_add_u32 v{vT3}, {-2048 if rev else 2048}, v{vT3}
    s_add_u32 s{sSl}, s{sSl}, 16384
    s_and_b32 s{sSl}, s{sSl}, 0xffff
    s_add_u32 s{sI}, s{sI}, 1
    s_cmp_eq_u32 s{sU}, 0
    s_mov_b32 s{sU}, 1
    s_waitcnt lgkmcnt(0)
    """)
    for r in range(8): A(f"v_sub_f32 v{vX+r}, v{vX+r}, v{vM}")
    for r in range(8): A(f"v_exp_f32 v{vX+r}, v{vX+r}")
    for j in range(4): A(f"v_cvt_pk_bf16_f32 v{vP+j}, v{vX+2*j}, v{vX+2*j+1}")
    A(f"""
    v_add_f32 v{vL}, v{vL}, v{vX}
    v_add_f32 v{vT0}, v{vX+1}, v{vX+2}
    v_add_f32 v{vT1}, v{vX+3}, v{vX+4}
    v_add_f32 v{vT2}, v{vX+5}, v{vX+6}
    v_add_f32 v{vL}, v{vL}, v{vX+7}
    v_add_f32 v{vT0}, v{vT0}, v{vT1}
    v_add_f32 v{vL}, v{vL}, v{vT2}
    v_add_f32 v{vL}, v{vL}, v{vT0}
    s_cbranch_scc1 L_nb
    s_barrier
    """)
    ustamp()
    A("L_nb:")
    for i in range(4):
        for h in range(2):
            r = vVF + 4*i + 2*h
            A(f"ds_read_b64_tr_b16 v[{r}:{r+1}], v{vA+(i>>1)} offset:{8192*h + 8*(i&1)}")
    A(f"s_cmp_lt_u32 s{sI}, s{sN1}")
    for i in range(4):
        A(f"s_waitcnt lgkmcnt({6-2*i})")
        A(f"v_mfma_f32_16x16x32_bf16 v[{vO+4*i}:{vO+4*i+3}], v[{vVF+4*i}:{vVF+4*i+3}], v[{vP}:{vP+3}], v[{vO+4*i}:{vO+4*i+3}]")
    A(f"""
    s_cbranch_scc1 L_p2
    s_mov_b32 s{sN0}, s{sN1}
    s_mov_b32 s{sN1}, s{sN}
    s_cmp_lt_u32 s{sI}, s{sN}
    s_cbranch_scc1 L_pass
    """)
    A(f"L_done:\ns_cmp_eq_u32 s{sLt}, 0\ns_cbranch_scc1 L_late2\nL_done2:")
    stamp(3)
    vF = vT3
    A(f"""
    global_load_dword v{vT0}, v{vRd}, s[{sDBG}:{sDBG+1}] sc1
    v_mov_b32 v{vT1}, v{vL}
    v_mov_b32 v{vAl}, v{vM}
    s_mov_b32 s{sCnt}, 0
    v_permlane32_swap_b32 v{vL}, v{vT1}
    v_add_f32 v{vL}, v{vL}, v{vT1}
    v_mov_b32 v{vT1}, v{vL}
    s_mov_b32 s{sReg}, 0
    s_cmp_eq_u32 s{sPl}, s{sH}
    v_permlane16_swap_b32 v{vL}, v{vT1}
    v_add_f32 v{vAl+1}, v{vL}, v{vT1}
    """)
    for j in range(8): A(f"v_cvt_pk_bf16_f32 v{vX+j}, v{vO+2*j}, v{vO+2*j+1}")
    A(f"v_mov_b32 v{vT2}, 1\ns_cbranch_scc0 L_slow")
    def publish(sc, tag, foff):
        for ih in range(2):
            A(f"buffer_store_dwordx4 v[{vX+4*ih}:{vX+4*ih+3}], v{vSO}, s[{rW}:{rW+3}], s{sReg} offen offset:{1024*ih} {sc}")
        A(f"""
        s_mov_b64 exec, 0xffff
        buffer_store_dwordx2 v[{vAl}:{vAl+1}], v{vMO}, s[{rW}:{rW+3}], s{sReg} offen {sc}
        s_mov_b64 exec, 1
        L_rdy{tag}:
        s_waitcnt vmcnt(0)
        v_cmp_eq_u32 vcc, 0, v{vT0}
        s_cbranch_vccz L_rok{tag}
        s_add_u32 s{sCnt}, s{sCnt}, 1
        s_cmp_ge_u32 s{sCnt}, 0x40000
        s_cbranch_scc1 L_rok{tag}
        global_load_dword v{vT0}, v{vRd}, s[{sDBG}:{sDBG+1}] sc1
        s_branch L_rdy{tag}
        L_rok{tag}:
        buffer_store_dword v{vT2}, v{vFo}, s[{rW}:{rW+3}], 0 offen offset:{foff} {sc}
        s_mov_b64 exec, -1
        """)
    publish("", "a", 0)
    stamp(4)
    A(f"""
    L_poll:
    buffer_load_dword v{vF}, v{vFa}, s[{rW}:{rW+3}], 0 offen sc1
    s_add_u32 s{sCnt}, s{sCnt}, 1
    s_waitcnt vmcnt(0)
    v_cmp_ne_u32 vcc, 0, v{vF}
    s_cmp_eq_u32 vcc_lo, -1
    s_cbranch_scc1 L_got
    s_cmp_lg_u32 vcc_hi, 0
    s_cbranch_scc1 L_slow
    s_cmp_lt_u32 s{sCnt}, 0x40000
    s_cbranch_scc1 L_poll
    L_got:
    """)
    stamp(5)
    vD = vKF; vML = vKF + 8; vAc = vKF + 16
    for k in range(2):
        A(f"buffer_load_dwordx2 v[{vML+2*k}:{vML+2*k+1}], v{vMd}, s[{rW}:{rW+3}], s{sReg} offen offset:{2048*k} sc1")
    for k in range(2):
        A(f"buffer_load_dwordx4 v[{vD+4*k}:{vD+4*k+3}], v{vAd+k}, s[{rW}:{rW+3}], s{sReg} offen sc1")
    A(f"s_waitcnt vmcnt(2)")
    stamp(7)
    A(f"v_max_f32 v{vT0}, v{vML}, v{vML+2}")
    for ro in (4, 8):
        A(f"s_nop 1\nv_max_f32_dpp v{vT0}, v{vT0}, v{vT0} row_ror:{ro} row_mask:0xf bank_mask:0xf")
    A(f"""
    v_mov_b32 v{vT1}, v{vT0}
    s_nop 1
    v_permlane32_swap_b32 v{vT0}, v{vT1}
    v_max_f32 v{vT0}, v{vT0}, v{vT1}
    v_mov_b32 v{vT1}, v{vT0}
    s_nop 1
    v_permlane16_swap_b32 v{vT0}, v{vT1}
    v_max_f32 v{vT0}, v{vT0}, v{vT1}
    """)
    for k in range(2): A(f"v_sub_f32 v{vML+2*k}, v{vML+2*k}, v{vT0}")
    for k in range(2): A(f"v_exp_f32 v{vML+2*k}, v{vML+2*k}")
    vLs = vAc + 8
    A(f"v_mul_f32 v{vLs}, v{vML}, v{vML+1}\nv_fmac_f32 v{vLs}, v{vML+2}, v{vML+3}")
    for k in range(2):
        A(f"s_waitcnt vmcnt({1-k})")
        op = "v_mul_f32" if k == 0 else "v_fmac_f32"
        for j in range(4):
            A(f"v_lshlrev_b32 v{vT1}, 16, v{vD+4*k+j}\nv_and_b32 v{vT2}, 0xffff0000, v{vD+4*k+j}")
            A(f"{op} v{vAc+2*j}, v{vML+2*k}, v{vT1}\n{op} v{vAc+2*j+1}, v{vML+2*k}, v{vT2}")
    stamp(8)
    A(f"v_mov_b32 v{vLs+1}, v{vLs}")
    for j in range(4): A(f"v_permlane32_swap_b32 v{vAc+j}, v{vAc+4+j}")
    A(f"v_permlane32_swap_b32 v{vLs}, v{vLs+1}")
    A(f"v_add_f32 v{vLs}, v{vLs}, v{vLs+1}")
    for j in range(4): A(f"v_add_f32 v{vAc+j}, v{vAc+j}, v{vAc+4+j}")
    A(f"v_mov_b32 v{vLs+1}, v{vLs}\ns_nop 0")
    for j in range(2): A(f"v_permlane16_swap_b32 v{vAc+j}, v{vAc+2+j}")
    A(f"v_permlane16_swap_b32 v{vLs}, v{vLs+1}")
    A(f"v_add_f32 v{vLs}, v{vLs}, v{vLs+1}")
    for j in range(2): A(f"v_add_f32 v{vAc+j}, v{vAc+j}, v{vAc+2+j}")
    for ro in (4, 8):
        for r in (vLs, vAc, vAc+1): A(f"v_add_f32_dpp v{r}, v{r}, v{r} row_ror:{ro} row_mask:0xf bank_mask:0xf")
    A(f"""
    v_rcp_f32 v{vLs}, v{vLs}
    s_mov_b32 exec_lo, 0x000f000f
    s_mov_b32 exec_hi, 0x000f000f
    v_mul_f32 v{vAc}, v{vAc}, v{vLs}
    v_mul_f32 v{vAc+1}, v{vAc+1}, v{vLs}
    v_cvt_pk_bf16_f32 v{vAc}, v{vAc}, v{vAc+1}
    global_store_dword v{vOA}, v{vAc}, s[{sOUT}:{sOUT+1}]
    """)
    stamp(9)
    if prof: A("s_mov_b64 exec, -1\ns_waitcnt vmcnt(0)")
    stamp(6)
    if prof == 2:
        a, b = diag
        A(f"""
        s_nop 1
        v_readlane_b32 s{sF}, v{vPf}, 0
        v_readlane_b32 s{sF+1}, v{vPf}, {a}
        v_readlane_b32 s{sF+2}, v{vPf}, {b}
        s_sub_u32 s{sF+1}, s{sF+2}, s{sF+1}
        s_min_u32 s{sF+1}, s{sF+1}, 20000
        s_mul_i32 s{sF+1}, s{sF+1}, {diagmul}
        """)
        if diagwg >= 0: A(f"s_cmp_eq_u32 s2, {diagwg}\ns_cselect_b32 s{sF+1}, s{sF+1}, 0")
        A(f"""
        s_add_u32 s{sF+1}, s{sF+1}, 10000
        L_spin:
        s_memrealtime s[{sSt}:{sSt+1}]
        s_waitcnt lgkmcnt(0)
        s_sub_u32 s{sF+2}, s{sSt}, s{sF}
        s_cmp_lt_u32 s{sF+2}, s{sF+1}
        s_cbranch_scc1 L_spin
        """)
    if prof == 1:
        A(f"""
        v_writelane_b32 v{vPf}, s{sPl}, 62
        v_writelane_b32 v{vPf}, s{sCnt}, 63
        s_lshl_b32 s{sTmp}, s2, 2
        s_add_u32 s{sTmp}, s{sTmp}, s{sW}
        s_lshl_b32 s{sTmp}, s{sTmp}, 8
        s_add_u32 s{sTmp}, s{sTmp}, {PROF_OFF}
        v_lshlrev_b32 v{vT0}, 2, v{vLane}
        buffer_store_dword v{vPf}, v{vT0}, s[{rW}:{rW+3}], s{sTmp} offen
        """)
    A("s_endpgm")
    A(f"L_slow:\ns_mov_b32 s{sReg}, {REG}")
    publish("sc1", "b", 128)
    A(f"""
    L_poll2:
    buffer_load_dword v{vF}, v{vFa}, s[{rW}:{rW+3}], 0 offen sc1
    s_add_u32 s{sCnt}, s{sCnt}, 1
    s_waitcnt vmcnt(0)
    v_cmp_ne_u32 vcc, 0, v{vF}
    s_cmp_eq_u32 vcc_hi, -1
    s_cbranch_scc1 L_got
    s_sleep 2
    s_cmp_lt_u32 s{sCnt}, 0x40000
    s_cbranch_scc1 L_poll2
    s_branch L_got
    """)
    A("L_end:\ns_endpgm")
    A(f""".section .rodata,"a"
.p2align 6
.amdhsa_kernel {KN}
.amdhsa_next_free_vgpr {NV}
.amdhsa_next_free_sgpr {NS}
.amdhsa_accum_offset {(NV+3)//4*4}
.amdhsa_group_segment_fixed_size 0
.amdhsa_kernarg_size 64
.amdhsa_user_sgpr_count 2
.amdhsa_user_sgpr_kernarg_segment_ptr 1
.amdhsa_system_sgpr_workgroup_id_x 1
.end_amdhsa_kernel""")
    return A.text()

if __name__ == "__main__":
    out = sys.argv[1]
    kw = {}
    for kv in sys.argv[2:]:
        k, v = kv.split("=")
        if "," in v: kw[k] = tuple(int(x) for x in v.split(","))
        else: kw[k] = int(v) if v.lstrip("-").isdigit() else v.replace("+", " ")
    open(out, "w").write(gen(**kw))
```

```python
import sys
from gen import Asm, HEADER, NAME, KN

def gen(prof=0, pol="nt", diag=None, diagwg=-1, diagmul=10, pfi=1, remap=0, pre=3, pat=2, pst=0,
        WE=21, WO=21, step=1, prio=3, W0=28, b0=0, p1=56, WT=0, ta=3, tb=0, fb=(18,20,21,23,27), th=(-110,-90,-70,-50), rev=0, lagprof=0, neu=-80, lead=31, us=9, pb=3, pk=1, fin=1, pp=16, qe=1, p2=72, RS=6, CH=30, a0=0, pbs=(72, 80, 88, 96), cml=1, early=0, lin=0, stp="", outpol="", wb=0):
    NWG = 256
    SB = 8192
    ML_OFF = NWG * SB
    REG = ML_OFF + 32 * 4096
    FL_OFF = 2 * REG
    PG_OFF = FL_OFF + 32 * 256
    WS_BYTES = PG_OFF + 8 * 256
    PROF_OFF = 8 << 20
    SC = RS * 16384
    TL = SC
    QL = SC + 32768
    OL = SC + 49152
    XL = SC + CH * 2048
    MX = XL + 64
    LDS = MX + 256
    KVB = 2304 * 65536
    NEGBIG = 0xFF000000
    CSC = 0x3DB8AA3B
    if diag is not None: prof = 2
    A = Asm()
    vLane, vG, vQi = 0, 1, 2
    vT0, vT1, vT2, vT3 = 3, 4, 5, 6
    vCtx, vC, vM, vL = 7, 8, 9, 10
    vPf = 11
    vAl = 12
    vOf = 14; vNb = 15
    vP = 16
    vS = 20
    vB = 28
    vX = 36
    vLim = 44
    vDs = 48; vBig = 49
    vQD = 50
    vNi = 50
    vKA = 52
    vDO = 56
    vVA = 60
    vSO = 62; vMO = 63
    vQ = 64
    vKF = 96
    vVF = 160
    vO = 176
    vAd = 192
    vMd = 194; vFa = 195; vOA = 196; vFo = 197; vRd = 198
    vJk = 200
    NV = 204
    sQ, sK, sV, sBT, sCTX, sOUT, sDBG, sWS = 4, 6, 8, 10, 12, 14, 16, 18
    rK, rV, rW, rQ, rT = 20, 24, 28, 32, 36
    sLt = 40; sReg = 41; sCnt = 42; sPl = 43
    sO4 = 44
    sCm = 48
    sN4 = 64
    sPos = 52; sU = 53; sN0 = 50; sN1 = 51; sIsV = 62; sSl = 69
    sC3 = 54
    sN = 56; sI = 57; sLB = 58; sTmp = 59; sTmp2 = 60; sS = 61; sIt = 63
    sPr = 68
    sH = 70; sJ0 = 71
    sMk = 72
    sF = 72
    sSt = 88
    sW = 90; sB = 91; sTot = 92; sWb = 93
    NS = 98
    def stamp(i, grp=0):
        if not prof: return
        if i >= 7 and grp != pst: return
        A(f"s_memrealtime s[{sSt}:{sSt+1}]\ns_waitcnt lgkmcnt(0)\nv_writelane_b32 v{vPf}, s{sSt}, {i}")

    A(HEADER)
    if prof == 1: A("; prof=1\n; proftile=8192")
    A(f"; @launch grid=({NWG},1,1) block=(320,1,1) lds={LDS}")
    A('.amdgcn_target "amdgcn-amd-amdhsa--gfx950"\n.text')
    A(f".globl {KN}\n.p2align 8\n.type {KN},@function\n{KN}:")
    A(f"s_cmp_ge_u32 s2, {NWG}\ns_cbranch_scc1 L_end")
    if prof: A(f"v_mov_b32 v{vPf}, 0\ns_mov_b32 s{sIt}, 32")
    stamp(0)
    A("s_load_dwordx16 s[4:19], s[0:1], 0")
    if pfi:
        A(f"""
        s_getpc_b64 s[{sCm}:{sCm+1}]
        L_pf1:
        v_lshlrev_b32 v{vJk+2}, 7, v0
        v_min_u32 v{vJk+2}, L_end-L_pf1, v{vJk+2}
        global_load_dword v{vJk}, v{vJk+2}, s[{sCm}:{sCm+1}]
        """)
    if remap == 1: A("s_lshr_b32 s3, s2, 3\ns_cmp_eq_u32 s3, 5\ns_cselect_b32 s3, 1, 0\ns_xor_b32 s2, s2, s3")
    if remap == 2: A("s_lshr_b32 s3, s2, 3\ns_and_b32 s3, s3, 7\ns_xor_b32 s2, s2, s3")
    if remap == 3: A("s_xor_b32 s2, s2, 3")
    A(f"""
    v_readfirstlane_b32 s{sW}, v0
    v_bfe_u32 v{vT0}, v0, 5, 1
    v_and_b32 v{vT1}, 31, v0
    v_lshlrev_b32 v{vT1}, 4, v{vT1}
    v_lshlrev_b32 v{vT2}, 5, v{vT0}
    s_and_b32 s{sH}, s2, 7
    s_lshr_b32 s{sJ0}, s2, 3
    s_cmp_lg_u32 s{sW}, 0
    s_cbranch_scc1 L_cons
    v_xor_b32 v{vT1}, v{vT1}, v{vT2}
    v_lshl_add_u32 v{vDO}, v{vT0}, 12, v{vT1}
    s_lshl_b32 s{sPr}, s{sJ0}, 8
    s_add_u32 s{sPr}, s{sPr}, s{sH}
    s_lshl_b32 s{sO4}, s{sPr}, 9
    s_mov_b32 s{rK+2}, {KVB}
    s_mov_b32 s{rK+3}, 0x20000
    """)
    for jl in range(1, 4):
        A(f"v_xor_b32 v{vDO+jl}, {64*jl}, v{vDO}\nv_add_u32 v{vDO+jl}, {7168*jl}, v{vDO+jl}")
    A(f"s_setprio {prio}\ns_waitcnt lgkmcnt(0)")
    def qissue():
        A(f"""
        s_lshr_b32 s{sW}, s{sB}, 6
        s_mov_b32 s{rQ+2}, 65536
        s_mov_b32 s{rQ+3}, 0x20000
        s_and_b32 s{sTmp}, s{sW}, 1
        s_lshl_b32 s{sTmp}, s{sTmp}, 7
        v_xor_b32 v{vT1}, s{sTmp}, v{vT1}
        v_lshl_add_u32 v{vQD}, v{vT0}, 9, v{vT1}
        v_xor_b32 v{vQD+1}, 64, v{vQD}
        s_lshl4_add_u32 s{sS}, s{sW}, s{sH}
        s_lshl_b32 s{sS}, s{sS}, 10
        s_add_u32 s{sTmp2}, s{sS}, {8192-1024}
        s_lshr_b32 s{sTmp}, s{sLB}, 1
        s_add_u32 m0, s{sTmp}, {QL}
        s_mov_b32 s{rQ}, s{sQ}
        s_and_b32 s{rQ+1}, s{sQ+1}, 0xffff
        buffer_load_dwordx4 v{vQD}, s[{rQ}:{rQ+3}], s{sS} offen lds
        buffer_load_dwordx4 v{vQD+1}, s[{rQ}:{rQ+3}], s{sTmp2} offen offset:1024 lds
        """)

    def verify():
        A(f"""
        s_barrier
        ds_read_b128 v[{vX}:{vX+3}], v{vT1}
        ds_read_b32 v{vT2}, v{vT2}
        s_mov_b32 s{sN0}, 0
        s_mov_b32 s{sIsV}, 0
        s_mov_b32 s{sI}, {RS-1}
        s_mov_b32 s{sU}, {RS}
        s_mov_b32 s{sLB}, 0
        s_waitcnt lgkmcnt(0)
        v_readfirstlane_b32 s{sN}, v{vT2}
        v_cmp_eq_u32 vcc, v{vX}, v{vT0}
        v_cmp_eq_u32 s[{sMk}:{sMk+1}], v{vX+1}, v{vS+1}
        v_cmp_eq_u32 s[{sMk+2}:{sMk+3}], v{vX+2}, v{vS+2}
        v_cmp_eq_u32 s[{sMk+4}:{sMk+5}], v{vX+3}, v{vS+3}
        s_min_u32 s{sN1}, s{sN}, {CH}
        s_lshl1_add_u32 s{sTot}, s{sN}, {0 if fin else 2}
        s_and_b32 s{sTmp}, vcc_lo, s{sMk}
        s_and_b32 s{sTmp2}, s{sMk+2}, s{sMk+4}
        s_and_b32 s{sTmp}, s{sTmp}, s{sTmp2}
        s_and_b32 s{sTmp2}, s{sTmp}, {(1 << RS) - 1}
        s_cmp_eq_u32 s{sTmp2}, {(1 << RS) - 1}
        s_cbranch_scc0 L_misspec
        """)

    cnt = 0
    assert len(pbs) == RS - 2
    def dbar():
        for i, pos in enumerate(pbs):
            if pos == cnt:
                assert pos >= p2 and pos >= 16*(i+1)
                A(f"s_waitcnt vmcnt({min(cnt - 16*(i+1), 63)})\ns_barrier")
    for u in range(RS):
        for w in range(4):
            if cnt == p2: verify()
            dbar()
            A(f"s_mov_b32 m0, {u*16384 + w*4096}")
            if cnt == 0: A(f"s_mov_b32 s{rK}, s{sK}\ns_and_b32 s{rK+1}, s{sK+1}, 0xffff")
            else: A(f"s_add_u32 s{sTmp}, s{sO4}, {32768*w + u*64*65536}")
            for jl in range(4):
                if b0 and cnt == b0 - 1: A("s_barrier")
                if cnt == p1 or (a0 and cnt == a0 and a0 != W0 // 4 * 4): A("s_barrier")
                if cnt >= W0: A(f"s_waitcnt vmcnt({W0-1})")
                A(f"buffer_load_dwordx4 v{vDO+jl}, s[{rK}:{rK+3}], s{sO4 if cnt < 4 else sTmp} offen offset:{1024*jl} {pol} lds")
                cnt += 1
            if cnt == W0 // 4 * 4:
                if a0 == cnt: A('s_barrier')
                A(f"""
                s_and_b32 s{sK+1}, s{sK+1}, 0xffff
                s_and_b32 s{sV+1}, s{sV+1}, 0xffff
                v_lshl_add_u32 v{vT0}, v0, 22, s{sO4}
                v_lshlrev_b32 v{vT1}, 4, v0
                v_add_u32 v{vT1}, {OL}, v{vT1}
                v_mov_b32 v{vT2}, {XL+16}
                v_add_u32 v{vS+1}, 32768, v{vT0}
                v_add_u32 v{vS+2}, 65536, v{vT0}
                v_add_u32 v{vS+3}, 98304, v{vT0}
                """)
                if pre == 3: A(f"""
                s_lshl_b32 s{sTmp2}, s{sH}, 5
                s_add_u32 s{sTmp2}, s{sTmp2}, s{sJ0}
                s_lshl_b32 s{sTmp2}, s{sTmp2}, 13
                v_lshl_add_u32 v{vB}, v0, 6, s{sTmp2}
                v_add_u32 v{vB+1}, 4096, v{vB}
                s_lshl_b32 s{sTmp2}, s{sH}, 7
                s_add_u32 s{sTmp2}, s{sTmp2}, s{sJ0}
                s_lshl_b32 s{sTmp2}, s{sTmp2}, 7
                s_add_u32 s{sTmp2}, s{sTmp2}, {ML_OFF}
                v_and_b32 v{vB+2}, 1, v0
                v_lshl_add_u32 v{vB+2}, v{vB+2}, 6, s{sTmp2}
                v_bfe_u32 v{vB+3}, v0, 1, 2
                v_lshl_add_u32 v{vB+2}, v{vB+3}, 12, v{vB+2}
                """)
    if p2 == cnt: verify()
    dbar()
    A(f"""
    L_lgo:
    """)
    if fb:
        E = 2
        sEx = 94
        rP = 96
        vPg = vP; vPa = vP+1; vPo = vP+2; vPv = vP+3
        A(f"""
        s_mov_b32 s{rW}, s{sWS}
        s_and_b32 s{rW+1}, s{sWS+1}, 0xffff
        s_mov_b32 s{rW+2}, {WS_BYTES}
        s_mov_b32 s{rW+3}, 0x20000
        s_mov_b64 s[{rP}:{rP+1}], s[{sDBG}:{sDBG+1}]
        s_lshl_b32 s{sTmp}, s{sH}, 5
        v_mov_b32 v{vPa}, s{sTmp}
        v_mov_b32 v{vPo}, 0x7f000000
        v_mov_b32 v{vPg}, 0
        s_mov_b32 s{sEx}, -1
        s_mov_b32 s{sEx+1}, 0
        s_mov_b32 s{sS}, 0
        s_sub_u32 s{sWb}, 256, s{sTot}
        s_bitcmp1_b32 s{sH}, 0
        s_cselect_b32 s{sB}, {-pb}, {pb}
        s_branch L_lle
        L_ltop:
        v_add_u32_dpp v{vT0}, v{vPg}, v{vPg} row_ror:1 row_mask:0xf bank_mask:0xf
        v_cmp_gt_u32 vcc, 2, v{vPg}
        s_add_u32 s{sPos}, s{sU}, s{sWb}
        v_add_u32_dpp v{vT0}, v{vT0}, v{vT0} row_ror:2 row_mask:0xf bank_mask:0xf
        v_mov_b32 v{vPv}, s{sPos}
        s_add_u32 s{sTmp2}, s{sS}, 16
        v_add_u32_dpp v{vT0}, v{vT0}, v{vT0} row_ror:4 row_mask:0xf bank_mask:0xf
        s_mov_b64 exec, 1
        buffer_store_dword v{vPv}, v{vPo}, s[{rW}:{rW+3}], 0 offen
        s_mov_b64 exec, s[{sEx}:{sEx+1}]
        global_load_dword v{vPg}, v{vPa}, s[{rP}:{rP+1}] sc1
        s_mov_b64 exec, -1
        v_add_u32_dpp v{vT0}, v{vT0}, v{vT0} row_ror:8 row_mask:0xf bank_mask:0xf
        s_lshl_b32 s{sPos}, s{sPos}, 5
        v_readlane_b32 s{sTmp}, v{vT0}, s{sS}
        v_readlane_b32 s{sTmp2}, v{vT0}, s{sTmp2}
        s_xor_b32 s{sS}, s{sS}, 32
        s_add_u32 s{sTmp}, s{sTmp}, s{sTmp2}
        s_sub_i32 s{sPos}, s{sTmp}, s{sPos}
        s_add_i32 s{sPos}, s{sPos}, s{sB}
        s_and_b64 vcc, vcc, s[{sEx}:{sEx+1}]
        s_cselect_b32 s{sPos}, {neu}, s{sPos}
        s_not_b64 s[{sEx}:{sEx+1}], s[{sEx}:{sEx+1}]
        s_cmp_lg_u32 s{sTmp}, 32
        s_cbranch_scc1 L_lsel
        s_mov_b64 s[{rP}:{rP+1}], s[{sWS}:{sWS+1}]
        s_lshl_b32 s{sTmp}, s{sH}, 8
        s_add_u32 s{sTmp}, s{sTmp}, {PG_OFF}
        v_and_b32 v{vPa}, 31, v0
        v_lshl_add_u32 v{vPa}, v{vPa}, 2, s{sTmp}
        s_lshl2_add_u32 s{sTmp}, s{sJ0}, s{sTmp}
        v_mov_b32 v{vPo}, s{sTmp}
        L_lsel:
        """)
        if lagprof: A(f"s_mov_b32 m0, s{sU}\ns_nop 0\nv_writelane_b32 v{vQ}, s{sPos}, m0")
        variants = [(f"f{i}", W) for i, W in enumerate(fb)] + [("e", WE)]
        for i in range(len(th)-1, -1, -1):
            A(f"s_cmp_gt_i32 s{sPos}, {th[i]}\ns_cbranch_scc1 L_llf{i+1}")
    else:
        E = 0
        variants = [("e", WE)] if WE == WO else [("e", WE), ("o", WO)]
        if len(variants) > 1: A(f"s_bitcmp1_b32 s{sH}, 0\ns_cbranch_scc1 L_llo")
        if WT:
            assert WE == WO
            variants.append(("t", WT))
            A(f"s_sub_u32 s{sTmp}, s{sU}, s{sN}\ns_add_u32 s{sTmp}, s{sTmp}, {ta}\ns_cmp_lt_u32 s{sTmp}, {ta+tb}\ns_cbranch_scc1 L_llt")
    for tag, W in variants:
        assert 17 <= W <= 32
        if tag == "e": E = 0
        A(f"""
        L_ll{tag}:
        s_add_u32 s{sI}, s{sI}, 1
        s_cmp_lg_u32 s{sI}, s{sN1}
        s_cbranch_scc1 L_ls{tag}
        s_xor_b32 s{sIsV}, s{sIsV}, 1
        s_cselect_b32 s{sN0}, s{sN0}, s{sN1}
        s_cselect_b32 s{rK}, s{sV}, s{sK}
        s_cselect_b32 s{rK+1}, s{sV+1}, s{sK+1}
        s_mov_b32 s{sI}, s{sN0}
        s_add_u32 s{sN1}, s{sN0}, {CH}
        s_min_u32 s{sN1}, s{sN1}, s{sN}
        L_ls{tag}:
        """)
        if rev:
            A(f"s_add_u32 s{sTmp}, s{sN0}, s{sN1}\ns_sub_u32 s{sTmp}, s{sTmp}, s{sI}\ns_sub_u32 s{sTmp}, s{sTmp}, 1\ns_cmp_eq_u32 s{sIsV}, 0\ns_cselect_b32 s{sTmp}, s{sI}, s{sTmp}")
        for w in range(4): A(f"v_readlane_b32 s{sO4+w}, v{vX+w}, s{sTmp if rev else sI}")
        pass
        for w in range(4):
            A(f"""
            s_add_u32 m0, s{sLB}, {w*4096}
            s_bitcmp0_b32 s{sO4+w}, 0
            s_cselect_b32 s{sO4+w}, s{sO4+w}, 0
            s_cselect_b32 s{rK+2}, {KVB}, 0
            """)
            for jl in range(4):
                c = 4*w + jl
                if c == W-17: A(f"s_cmp_lt_u32 s{sU}, 2\ns_waitcnt vmcnt({W-1+E})\ns_cbranch_scc1 L_lb{tag}\ns_barrier\nL_lb{tag}:")
                elif c % step == 0: A(f"s_waitcnt vmcnt({W-step+E*(2 if c < W-17 else 1)})")
                A(f"buffer_load_dwordx4 v{vDO+jl}, s[{rK}:{rK+3}], s{sO4+w} offen offset:{1024*jl} {pol} lds")
        A(f"""
        s_add_u32 s{sLB}, s{sLB}, 16384
        s_cmp_lg_u32 s{sLB}, {RS*16384}
        s_cselect_b32 s{sLB}, s{sLB}, 0
        s_add_u32 s{sU}, s{sU}, 1
        s_cmp_lt_u32 s{sU}, s{sTot}
        """)
        if fb and tag == "e":
            A(f"s_cbranch_scc0 {'L_lfin' if fin else 'L_lend'}\ns_cmp_lt_u32 s{sU}, {us}\ns_cbranch_scc1 L_lle\ns_branch L_ltop")
            continue
        A(f"s_cbranch_scc1 {'L_ltop' if fb else 'L_lgo' if WT else 'L_ll'+tag}")
        if lagprof: A(f"s_lshl_b32 s{sTmp}, s2, 8\ns_add_u32 s{sTmp}, s{sTmp}, {12<<20}\nv_lshl_add_u32 v{vT0}, v0, 2, s{sTmp}\nglobal_store_dword v{vT0}, v{vQ}, s[{sWS}:{sWS+1}]")
        first = tag == ("f0" if fb else "e")
        if fin and not first:
            A("s_branch L_lfin"); continue
        if fin:
            A("L_lfin:")
            prl = f"""
                global_load_dword v{vT0}, v{vB}, s[{sWS}:{sWS+1}] sc1
                global_load_dword v{vT1}, v{vB+1}, s[{sWS}:{sWS+1}] sc1
                global_load_dword v{vT2}, v{vB+2}, s[{sWS}:{sWS+1}] sc1
                """
            if pre != 3: A("s_waitcnt vmcnt(16)\ns_barrier\ns_waitcnt vmcnt(0)\ns_barrier")
            elif pp > 16: A(prl); A("s_waitcnt vmcnt(19)\ns_barrier\ns_waitcnt vmcnt(3)\ns_barrier")
            elif pp > 0: A(f"s_waitcnt vmcnt(16)\ns_barrier\ns_waitcnt vmcnt({pp})"); A(prl); A("s_waitcnt vmcnt(3)\ns_barrier")
            else: A("s_waitcnt vmcnt(16)\ns_barrier\ns_waitcnt vmcnt(0)\ns_barrier"); A(prl)
        if first: A("L_lend:")
        A("s_waitcnt vmcnt(0)\ns_endpgm")
    A(f"""
    L_misspec:
    s_waitcnt vmcnt(0)
    s_cmp_eq_u32 s{sN}, 0
    s_cbranch_scc1 L_lend
    s_mov_b32 s{sI}, -1
    s_mov_b32 s{sU}, 0
    s_branch L_lgo
    """)
    A(f"""
    L_cons:
    v_lshl_add_u32 v{vS}, v{vT0}, 11, v{vT1}
    v_xor_b32 v{vT1}, v{vT1}, v{vT2}
    s_mov_b32 s{rT+2}, 16384
    s_mov_b32 s{rT+3}, 0x20000
    s_sub_u32 s{sB}, s{sW}, 64
    s_lshl_b32 s{sLB}, s{sB}, 6
    s_lshl_b32 s{sMk}, s{sB}, 3
    s_add_u32 s{sMk+1}, s{sMk}, {3072}
    s_add_u32 s{sMk+2}, s{sMk}, {2*3072}
    s_add_u32 s{sMk+3}, s{sMk}, {3*3072}
    s_add_u32 m0, s{sLB}, {TL}
    v_and_b32 v{vT2}, 14, v0
    v_lshlrev_b32 v{vT2}, 1, v{vT2}
    s_waitcnt lgkmcnt(0)
    s_mov_b32 s{rT}, s{sBT}
    s_and_b32 s{rT+1}, s{sBT+1}, 0xffff
    """)
    if a0: A("s_barrier")
    for j in range(4):
        A(f"buffer_load_dwordx4 v{vS}, s[{rT}:{rT+3}], s{sMk+j} offen offset:{1024*j} lds")
    A(f"global_load_dword v{vCtx}, v{vT2}, s[{sCTX}:{sCTX+1}]")
    qissue()
    stamp(1)
    A(f"""
    v_and_b32 v{vLane}, 63, v0
    s_xor_b32 s{sTmp}, s{sJ0}, {lead}
    s_or_b32 s{sTmp}, s{sTmp}, s{sW}
    s_cselect_b32 s{sReg}, 0, 1
    s_cbranch_scc0 L_clear
    L_cleared:
    s_add_u32 s{sTmp}, s{sLB}, {TL}
    v_lshl_add_u32 v{vOf}, v{vLane}, 3, s{sTmp}
    v_lshrrev_b32 v{vG}, 4, v{vLane}
    v_and_b32 v{vQi}, 15, v{vLane}
    s_lshl2_add_u32 s{sTmp}, s{sW}, {XL}
    v_mov_b32 v{vB+2}, s{sTmp}
    v_mov_b32 v{vB+3}, {XL}
    s_lshl2_add_u32 s{sTmp}, s{sW}, {OL}
    v_lshl_add_u32 v{vB+4}, v{vLane}, 4, s{sTmp}
    s_lshl_b32 s{sWb}, s{sW}, 6
    v_lshl_add_u32 v{vS}, v{vLane}, 5, s{sJ0}
    v_mov_b32 v{vDs}, 0x80000
    v_not_b32 v{vS+1}, v{vS}
    v_mov_b32 v{vBig}, 0x7fff0000
    v_lshrrev_b32 v{vB}, 1, v{vQi}
    v_lshlrev_b32 v{vB}, 16, v{vB}
    v_and_b32 v{vT0}, 7, v{vQi}
    v_lshlrev_b32 v{vT0}, 1, v{vT0}
    v_xor_b32 v{vT0}, v{vT0}, v{vG}
    v_lshlrev_b32 v{vT0}, 4, v{vT0}
    v_lshl_add_u32 v{vKA}, v{vQi}, 9, v{vT0}
    v_xor_b32 v{vKA+1}, 64, v{vKA}
    v_xor_b32 v{vKA+2}, 128, v{vKA}
    v_xor_b32 v{vKA+3}, 192, v{vKA}
    v_lshrrev_b32 v{vT0}, 2, v{vLane}
    v_lshlrev_b32 v{vT1}, 9, v{vT0}
    v_and_b32 v{vT0}, 7, v{vT0}
    v_lshlrev_b32 v{vT0}, 1, v{vT0}
    v_and_b32 v{vT2}, 3, v{vLane}
    s_lshl_b32 s{sTmp}, s{sW}, 3
    v_add_u32 v{vT2}, s{sTmp}, v{vT2}
    v_xor_b32 v{vT3}, v{vT2}, v{vT0}
    v_lshl_add_u32 v{vVA}, v{vT3}, 4, v{vT1}
    v_xor_b32 v{vVA+1}, 64, v{vVA}
    """)
    for sl in range(4): A(f"v_add_u32 v{vVF+sl}, {QL}, v{vKA+sl}")
    A(f"""
    s_and_b32 s{sTmp}, s{sW}, 1
    s_lshl_b32 s{sS}, s{sTmp}, 4
    s_lshl_b32 s{sPr}, s{sTmp}, 6
    s_add_u32 s{sPr}, s{sPr}, s{sH}
    s_lshl_b32 s{sPr}, s{sPr}, 9
    v_mov_b32 v{vT2}, 0x2000
    v_mov_b32 v{vT3}, {CSC}
    """)
    stamp(7, 2)
    A(f"s_waitcnt vmcnt(2)")
    stamp(2)
    for b in range(8):
        A(f"ds_read_b64 v[{vKF+2*b}:{vKF+2*b+1}], v{vOf} offset:{512*b}")
    A(f"""
    v_cmp_lt_i32 vcc, 0, v{vCtx}
    v_min_i32 v{vCtx}, 0x2000, v{vCtx}
    v_lshl_add_u32 v{vT0}, v{vG}, 2, s{sS}
    v_cndmask_b32 v{vCtx}, v{vT2}, v{vCtx}, vcc
    v_cndmask_b32 v{vC}, 0, v{vT3}, vcc
    v_add_u32 v{vNb}, 31, v{vCtx}
    v_lshrrev_b32 v{vNb}, 5, v{vNb}
    v_sub_u32 v{vLim}, v{vCtx}, v{vT0}
    v_subrev_u32 v{vLim+1}, 1, v{vLim}
    v_max_u32_dpp v{vT2}, v{vNb}, v{vNb} row_ror:2 row_mask:0xf bank_mask:0xf
    v_subrev_u32 v{vLim+2}, 2, v{vLim}
    v_subrev_u32 v{vLim+3}, 3, v{vLim}
    v_max_u32_dpp v{vT2}, v{vT2}, v{vT2} row_ror:4 row_mask:0xf bank_mask:0xf
    s_waitcnt lgkmcnt(0)
    """)
    for b in range(1, 8):
        A(f"v_cmp_ne_u64 s[{sMk+2*b}:{sMk+2*b+1}], v[{vKF}:{vKF+1}], v[{vKF+2*b}:{vKF+2*b+1}]")
    A(f"v_max_u32_dpp v{vT2}, v{vT2}, v{vT2} row_ror:8 row_mask:0xf bank_mask:0xf")
    for b in range(2, 8):
        A(f"s_or_b64 s[{sMk+2}:{sMk+3}], s[{sMk+2}:{sMk+3}], s[{sMk+2*b}:{sMk+2*b+1}]")
    A(f"""
    s_ff1_i32_b64 s{sTmp}, s[{sMk+2}:{sMk+3}]
    s_min_u32 s{sTmp}, s{sTmp}, 256
    s_add_u32 s{sTmp}, s{sTmp}, s{sWb}
    v_min_u32 v{vT2}, s{sTmp}, v{vT2}
    ds_write_b32 v{vB+2}, v{vT2}
    s_waitcnt lgkmcnt(0)
    """)
    stamp(8, 2)
    A("s_barrier")
    stamp(9, 2)
    A(f"""
    ds_read_b128 v[{vX}:{vX+3}], v{vB+3}
    s_waitcnt lgkmcnt(0)
    v_min3_u32 v{vT0}, v{vX}, v{vX+1}, v{vX+2}
    v_min_u32 v{vT0}, v{vT0}, v{vX+3}
    v_max_u32 v{vNb}, v{vNb}, v{vT0}
    v_sub_u32 v{vNb}, v{vNb}, v{vT0}
    v_mov_b32 v{vO}, 0
    v_mov_b32 v{vO+1}, 0
    v_add_u32_dpp v{vT1}, v{vNb}, v{vNb} row_shr:2 row_mask:0xf bank_mask:0xf bound_ctrl:0
    v_mov_b32 v{vO+2}, 0
    v_mov_b32 v{vO+3}, 0
    v_add_u32_dpp v{vT1}, v{vT1}, v{vT1} row_shr:4 row_mask:0xf bank_mask:0xf bound_ctrl:0
    v_mov_b32 v{vM}, {NEGBIG}
    v_mov_b32 v{vL}, 0
    v_add_u32_dpp v{vT1}, v{vT1}, v{vT1} row_shr:8 row_mask:0xf bank_mask:0xf bound_ctrl:0
    v_add_u32 v{vT2}, v{vT1}, v{vT0}
    v_sub_u32 v{vT1}, v{vT1}, v{vNb}
    v_readlane_b32 s{sTot}, v{vT2}, 15
    v_sub_u32 v{vT2}, v{vT2}, v{vNb}
    v_sub_u32 v{vT1}, v{vB}, v{vT1}
    s_mov_b32 s{sI}, 0
    """)
    fill = [f"v_mov_b32 v{vO+i}, 0" for i in range(4, 16)] + [f"v_mov_b32 v{vNi}, 0xff800000", f"s_mov_b32 s{sC3}, 0x00030003", f"s_mov_b32 s{sC3+1}, 0x00030003", f"s_mov_b32 s{sLt}, 0"]
    for b in range(8):
        A(f"v_add_co_u32_dpp v{vT3}, vcc, v{vT2}, v{vS+1} row_newbcast:{2*b} row_mask:0xf bank_mask:0xf")
        A(fill[2*b]); A(fill[2*b+1])
        A(f"v_cndmask_b32_dpp v{vDs}, v{vT1}, v{vDs}, vcc row_newbcast:{2*b} row_mask:0xf bank_mask:0xf")
    stamp(10, 2)
    A(f"""
    v_cmp_gt_u32 s[{sMk+2}:{sMk+3}], s{sTot}, v{vS}
    v_add_u32 v{vDs}, v{vDs}, v{vS}
    v_bfe_u32 v{vT1}, v{vDs}, 16, 3
    v_bfe_u32 v{vT2}, v{vDs}, 6, 2
    v_and_b32 v{vT0}, 0x3f, v{vDs}
    v_lshl_add_u32 v{vT2}, v{vT2}, 3, v{vT1}
    v_lshl_add_u32 v{vT0}, v{vT2}, 6, v{vT0}
    s_and_b32 s{sTmp}, s{sW}, 2
    s_lshl1_add_u32 s{sTmp}, s{sTmp}, {TL}
    v_lshl_add_u32 v{vT0}, v{vT0}, 3, s{sTmp}
    v_lshlrev_b32 v{vT1}, 3, v{vT1}
    ds_read_b32 v{vOf}, v{vT0}
    ds_bpermute_b32 v{vT1}, v{vT1}, v{vCtx}
    s_bcnt1_i32_b64 s{sN}, s[{sMk+2}:{sMk+3}]
    v_and_b32 v{vT0}, 0xff, v{vDs}
    s_lshl_b32 s{sTmp2}, s{sW}, 3
    v_lshl_add_u32 v{vT0}, v{vT0}, 5, s{sTmp2}
    v_cmp_le_u32 vcc, 0x80000, v{vDs}
    v_mov_b32 v{vT2}, s{sN}
    ds_write_b32 v{vB+3}, v{vT2} offset:16
    s_waitcnt lgkmcnt(1)
    v_cmp_lt_u32 s[{sMk}:{sMk+1}], v{vT0}, v{vT1}
    v_lshl_add_u32 v{vOf}, v{vOf}, 16, s{sPr}
    s_or_b64 vcc, vcc, s[{sMk}:{sMk+1}]
    s_and_b64 vcc, vcc, s[{sMk+2}:{sMk+3}]
    v_cndmask_b32 v{vOf}, 1, v{vOf}, vcc
    ds_write_b32 v{vB+4}, v{vOf}
    s_cmp_eq_u32 s{sReg}, 1
    s_waitcnt vmcnt(0) lgkmcnt(0)
    s_barrier
    s_cbranch_scc1 L_ready
    L_readied:
    s_mov_b32 s{sPos}, 0
    s_cmp_eq_u32 s{sN}, 0
    s_cbranch_scc1 L_done
    """)
    stamp(11, 2)
    for s in range(8):
        A(f"ds_read_b128 v[{vQ+4*s}:{vQ+4*s+3}], v{vVF+(s&3)} offset:{256*(s>>2)}")
    vSW = vDO; vSR = vDO + 1; vMW = vDO + 2; vMR = vDO + 3
    A(f"""
    s_lshl_b32 s{sTmp}, s{sS}, 9
    v_add_u32 v{vKA}, s{sTmp}, v{vKA}
    v_lshlrev_b32 v{vSR}, 4, v{vLane}
    v_add_u32 v{vSR}, {SC}, v{vSR}
    s_lshl_b32 s{sTmp}, s{sS}, 6
    v_add_u32 v{vSW}, s{sTmp}, v{vSR}
    v_lshlrev_b32 v{vMR}, 4, v{vQi}
    v_add_u32 v{vMR}, {MX}, v{vMR}
    s_lshl_b32 s{sTmp}, s{sW}, 2
    v_add_u32 v{vMW}, s{sTmp}, v{vMR}
    s_mov_b32 s{sSl}, 0
    s_mov_b32 s{sN0}, 0
    s_min_u32 s{sN1}, s{sN}, {CH}
    s_lshr_b32 s{sIsV}, s{sW}, 1
    s_branch L_pass
    """)
    A(f"""
    L_clear:
    s_lshl_b32 s{sTmp}, s{sH}, 10
    s_add_u32 s{sTmp}, s{sTmp}, {FL_OFF}
    v_lshl_add_u32 v{vJk+1}, v{vLane}, 3, s{sTmp}
    v_mov_b32 v{vJk+2}, 0
    v_mov_b32 v{vJk+3}, 0
    global_store_dwordx2 v{vJk+1}, v[{vJk+2}:{vJk+3}], s[{sWS}:{sWS+1}] sc1
    global_store_dwordx2 v{vJk+1}, v[{vJk+2}:{vJk+3}], s[{sWS}:{sWS+1}] offset:512 sc1
    s_lshl_b32 s{sTmp}, s{sH}, 8
    s_add_u32 s{sTmp}, s{sTmp}, {PG_OFF}
    v_lshl_add_u32 v{vJk+1}, v{vLane}, 2, s{sTmp}
    global_store_dword v{vJk+1}, v{vJk+2}, s[{sWS}:{sWS+1}] sc1
    s_branch L_cleared
    L_ready:
    s_lshl_b32 s{sTmp}, s{sH}, 5
    v_mov_b32 v{vJk+1}, s{sTmp}
    v_mov_b32 v{vJk+2}, 1
    s_mov_b64 exec, 1
    global_store_dword v{vJk+1}, v{vJk+2}, s[{sDBG}:{sDBG+1}] sc1
    s_mov_b64 exec, -1
    s_branch L_readied
    """)
    A(f"""
    L_late:
    s_mov_b32 s{rW}, s{sWS}
    s_and_b32 s{rW+1}, s{sWS+1}, 0xffff
    s_mov_b32 s{rW+2}, {WS_BYTES if not prof else 16 << 20}
    s_mov_b32 s{rW+3}, 0x20000
    s_lshl2_add_u32 s{sTmp2}, s{sH}, s{sW}
    s_lshl_b32 s{sTmp}, s{sTmp2}, {9 if cml else 5}
    s_add_u32 s{sTmp}, s{sTmp}, s{sJ0}
    s_lshl_b32 s{sTmp}, s{sTmp}, {3 if cml else 7}
    s_add_u32 s{sTmp}, s{sTmp}, {ML_OFF}
    v_lshl_add_u32 v{vMO}, v{vQi}, {8 if cml else 3}, s{sTmp}
    s_lshl_b32 s{sTmp2}, s{sTmp2}, 8
    s_lshl2_add_u32 s{sTmp2}, s{sJ0}, s{sTmp2}
    s_add_u32 s{sTmp2}, s{sTmp2}, {FL_OFF}
    v_mov_b32 v{vFo}, s{sTmp2}
    s_lshl_b32 s{sTmp}, s{sH}, 5
    v_mov_b32 v{vRd}, s{sTmp}
    s_add_u32 s{sTmp}, s{sTmp}, s{sJ0}
    s_lshl2_add_u32 s{sTmp}, s{sTmp}, s{sW}
    s_lshl_b32 s{sTmp}, s{sTmp}, 11
    v_cmp_gt_u32 vcc, 32, v{vLane}
    v_lshl_add_u32 v{vSO}, v{vQi}, {4 if lin else 6}, s{sTmp}
    v_lshl_add_u32 v{vJk+1}, v{vLane}, 6, s{sTmp}
    v_lshl_add_u32 v{vSO}, v{vG}, {8 if lin else 4}, v{vSO}
    v_cndmask_b32 v{vJk+1}, v{vMO}, v{vJk+1}, vcc
    """)
    A(f"""
    v_lshrrev_b32 v{vJk+2}, 2, v{vLane}
    v_and_b32 v{vJk+3}, 3, v{vLane}
    """)
    if lin:
        assert cml
        A(f"""
        s_lshr_b32 s{sTot}, s{sJ0}, 3
        s_lshl2_add_u32 s{sTot}, s{sH}, s{sTot}
        s_lshl2_add_u32 s{sTmp}, s{sTot}, s{sW}
        s_lshl_b32 s{sTmp}, s{sTmp}, 10
        s_add_u32 s{sTmp}, s{sTmp}, {ML_OFF}
        v_lshl_add_u32 v{vMd}, v{vJk+2}, 3, s{sTmp}
        v_lshl_add_u32 v{vMd}, v{vJk+3}, 8, v{vMd}
        s_lshl_b32 s{sTmp}, s{sTot}, 8
        s_add_u32 s{sTmp}, s{sTmp}, {FL_OFF}
        v_lshl_add_u32 v{vFa}, v{vLane}, 2, s{sTmp}
        s_lshl_b32 s{sTmp}, s{sH}, 18
        s_lshl2_add_u32 s{sTmp2}, s{sJ0}, s{sW}
        s_lshl_b32 s{sTmp2}, s{sTmp2}, 6
        s_add_u32 s{sTmp}, s{sTmp}, s{sTmp2}
        v_lshl_add_u32 v{vAd}, v{vJk+3}, 4, s{sTmp}
        v_lshl_add_u32 v{vAd}, v{vJk+2}, 13, v{vAd}
        v_add_u32 v{vAd+1}, {16*SB}, v{vAd}
        s_lshl4_add_u32 s{sTmp}, s{sW}, s{sH}
        s_lshl_b32 s{sTmp}, s{sTmp}, 10
        s_lshl4_add_u32 s{sTmp}, s{sJ0}, s{sTmp}
        v_lshl_add_u32 v{vOA}, v{vG}, 2, s{sTmp}
        v_and_b32 v{vJk+2}, 1, v{vLane}
        v_lshl_add_u32 v{vOA}, v{vJk+2}, 9, v{vOA}
        v_bfe_u32 v{vJk+2}, v{vLane}, 1, 1
        v_lshl_add_u32 v{vOA}, v{vJk+2}, 13, v{vOA}
        """)
    else:
        A(f"""
    s_lshr_b32 s{sB}, s{sJ0}, 2
    s_and_b32 s{sTmp}, s{sW}, 1
    s_lshl1_add_u32 s{sS}, s{sB}, s{sTmp}
    s_lshl1_add_u32 s{sWb}, s{sH}, s{sTmp}
    s_and_b32 s{sTot}, s{sJ0}, 3
    s_lshr_b32 s{sTmp2}, s{sW}, 1
    s_lshl1_add_u32 s{sPr}, s{sTot}, s{sTmp2}
    s_lshl2_add_u32 s{sTot}, s{sH}, s{sTot}
    s_lshl_b32 s{sTmp}, s{sTot}, 12
    s_lshl_b32 s{sTmp2}, s{sS}, {8 if cml else 3}
    s_add_u32 s{sTmp}, s{sTmp}, s{sTmp2}
    s_add_u32 s{sTmp}, s{sTmp}, {ML_OFF}
    v_lshl_add_u32 v{vMd}, v{vJk+2}, {3 if cml else 7}, s{sTmp}
    s_lshl_b32 s{sTmp}, s{sTot}, 8
    s_add_u32 s{sTmp}, s{sTmp}, {FL_OFF}
    v_lshl_add_u32 v{vFa}, v{vLane}, 2, s{sTmp}
    s_lshl_b32 s{sTmp}, s{sH}, 18
    s_lshl4_add_u32 s{sTmp2}, s{sPr}, s{sS}
    s_lshl_b32 s{sTmp2}, s{sTmp2}, 6
    s_add_u32 s{sTmp}, s{sTmp}, s{sTmp2}
    v_lshl_add_u32 v{vAd}, v{vJk+3}, 4, s{sTmp}
    v_lshl_add_u32 v{vAd}, v{vJk+2}, 13, v{vAd}
    v_add_u32 v{vAd+1}, {16*SB}, v{vAd}
    s_lshl4_add_u32 s{sTmp}, s{sB}, s{sWb}
    s_lshl3_add_u32 s{sTmp}, s{sTmp}, s{sPr}
    s_lshl_b32 s{sTmp}, s{sTmp}, 6
    v_lshl_add_u32 v{vOA}, v{vJk+3}, 4, s{sTmp}
    v_lshl_add_u32 v{vOA}, v{vG}, 2, v{vOA}
    """)
    A(f"""
    s_getreg_b32 s{sPl}, hwreg(HW_REG_XCC_ID, 0, 4)
    L_late_end:
    s_cmp_eq_u32 s{sLt}, 2
    s_cbranch_scc1 L_done2
    s_mov_b32 s{sLt}, 1
    s_branch L_back
    L_late2:
    s_mov_b32 s{sLt}, 2
    s_branch L_late
    """)
    def ustamp():
        if prof: A(f"s_memrealtime s[{sSt}:{sSt+1}]\ns_waitcnt lgkmcnt(0)\ns_lshr_b32 m0, s{sIt}, 1\ns_add_u32 s{sIt}, s{sIt}, 1\ns_min_u32 s{sIt}, s{sIt}, 121\nv_writelane_b32 v{vPf}, s{sSt}, m0")
    vA = vB + 4
    A(f"""
    .p2align 6
    L_pass:
    v_mov_b32 v{vNb}, v{vM}
    L_p1:
    s_xor_b32 s{sTmp}, s{sI}, s{sIsV}
    s_bitcmp0_b32 s{sTmp}, 0
    s_cbranch_scc1 L_mine
    s_barrier
    """)
    ustamp()
    A(f"""
    s_lshr_b32 s{sTmp}, s{sI}, 1
    s_cmp_eq_u32 s{sTmp}, {pat}
    s_cbranch_scc1 L_late
    s_branch L_back
    L_mine:
    v_readlane_b32 s{sPos}, v{vDs}, s{sI}
    v_add_u32 v{vA}, s{sSl}, v{vKA}
    v_xor_b32 v{vA+1}, 64, v{vA}
    v_xor_b32 v{vA+2}, 128, v{vA}
    v_xor_b32 v{vA+3}, 192, v{vA}
    s_lshr_b32 s{sTmp}, s{sPos}, 15
    s_lshl_b64 vcc, s[{sC3}:{sC3+1}], s{sTmp}
    s_bitcmp1_b32 s{sPos}, 19
    s_cselect_b64 vcc, -1, vcc
    s_and_b32 s{sPos}, s{sPos}, 0xff
    s_lshl_b32 s{sPos}, s{sPos}, 5
    v_mov_b32 v{vT1}, s{sPos}
    v_cndmask_b32 v{vT1}, v{vBig}, v{vT1}, vcc
    s_sub_u32 s{sTmp}, s{sI}, s{sN0}
    s_lshl_b32 s{sTmp}, s{sTmp}, 11
    """)
    for r in range(4): A(f"v_cmp_lt_i32 s[{sMk+2*r}:{sMk+2*r+1}], v{vT1}, v{vLim+r}")
    A(f"v_add_u32 v{vT2}, s{sTmp}, v{vSW}")
    for r in range(4): A(f"v_cndmask_b32 v{vB+r}, v{vNi}, 0, s[{sMk+2*r}:{sMk+2*r+1}]")
    A("s_barrier")
    ustamp()
    for s in range(8):
        A(f"ds_read_b128 v[{vKF+4*s}:{vKF+4*s+3}], v{vA+(s&3)} offset:{256*(s>>2)}")
    for s in range(8):
        A(f"s_waitcnt lgkmcnt({7-s})")
        c = "0" if s == 0 else f"v[{vS}:{vS+3}]"
        A(f"v_mfma_f32_16x16x32_bf16 v[{vS}:{vS+3}], v[{vKF+4*s}:{vKF+4*s+3}], v[{vQ+4*s}:{vQ+4*s+3}], {c}")
    A("s_nop 7")
    for r in range(4): A(f"v_fma_f32 v{vX+r}, v{vS+r}, v{vC}, v{vB+r}")
    A(f"""
    ds_write_b128 v{vT2}, v[{vX}:{vX+3}]
    v_max3_f32 v{vNb}, v{vNb}, v{vX}, v{vX+1}
    v_max3_f32 v{vNb}, v{vNb}, v{vX+2}, v{vX+3}
    L_back:
    s_add_u32 s{sSl}, s{sSl}, 16384
    s_cmp_lg_u32 s{sSl}, {RS*16384}
    s_cselect_b32 s{sSl}, s{sSl}, 0
    s_add_u32 s{sI}, s{sI}, 1
    s_cmp_lt_u32 s{sI}, s{sN1}
    s_cbranch_scc1 L_p1
    """)
    if pre == 1: A(f"s_cmp_eq_u32 s{sLt}, 0\ns_cbranch_scc1 L_nopre\nbuffer_load_dword v{vJk}, v{vJk+1}, s[{rW}:{rW+3}], 0 offen sc1\nL_nopre:")
    A(f"""
    v_mov_b32 v{vT1}, v{vNb}
    s_mov_b32 s{sI}, s{sN0}
    s_nop 0
    v_permlane32_swap_b32 v{vNb}, v{vT1}
    v_max_f32 v{vNb}, v{vNb}, v{vT1}
    v_mov_b32 v{vT1}, v{vNb}
    s_nop 1
    v_permlane16_swap_b32 v{vNb}, v{vT1}
    v_max_f32 v{vNb}, v{vNb}, v{vT1}
    ds_write_b32 v{vMW}, v{vNb}
    s_sub_u32 s{sTmp}, s{sN1}, s{sN0}
    s_sub_u32 s{sTmp}, s{sTmp}, 1
    s_mul_i32 s{sTmp}, s{sTmp}, {2048 if rev else 0}
    v_add_u32 v{vT3}, s{sTmp}, v{vSR}
    s_waitcnt lgkmcnt(0)
    s_barrier
    """)
    ustamp()
    A(f"""
    ds_read_b128 v[{vS}:{vS+3}], v{vMR}
    s_mov_b32 s{sU}, 0
    s_waitcnt lgkmcnt(0)
    v_max3_f32 v{vT0}, v{vS}, v{vS+1}, v{vS+2}
    v_max_f32 v{vT0}, v{vT0}, v{vS+3}
    v_sub_f32 v{vAl}, v{vM}, v{vT0}
    v_exp_f32 v{vAl}, v{vAl}
    v_mov_b32 v{vM}, v{vT0}
    v_mul_f32 v{vL}, v{vL}, v{vAl}
    """)
    for i in range(8):
        A(f"v_pk_mul_f32 v[{vO+2*i}:{vO+2*i+1}], v[{vO+2*i}:{vO+2*i+1}], v[{vAl}:{vAl+1}] op_sel_hi:[1,0]")
    A(f"""
    L_p2:
    ds_read_b128 v[{vX}:{vX+3}], v{vT3}
    ds_read_b128 v[{vX+4}:{vX+7}], v{vT3} offset:1024
    v_add_u32 v{vA}, s{sSl}, v{vVA}
    v_add_u32 v{vA+1}, s{sSl}, v{vVA+1}
    v_add_u32 v{vT3}, {-2048 if rev else 2048}, v{vT3}
    s_add_u32 s{sSl}, s{sSl}, 16384
    s_cmp_lg_u32 s{sSl}, {RS*16384}
    s_cselect_b32 s{sSl}, s{sSl}, 0
    s_add_u32 s{sI}, s{sI}, 1
    s_cmp_eq_u32 s{sU}, 0
    s_mov_b32 s{sU}, 1
    s_waitcnt lgkmcnt(0)
    """)
    for r in range(8): A(f"v_sub_f32 v{vX+r}, v{vX+r}, v{vM}")
    for r in range(8): A(f"v_exp_f32 v{vX+r}, v{vX+r}")
    for j in range(4): A(f"v_cvt_pk_bf16_f32 v{vP+j}, v{vX+2*j}, v{vX+2*j+1}")
    A(f"""
    v_add_f32 v{vL}, v{vL}, v{vX}
    v_add_f32 v{vT0}, v{vX+1}, v{vX+2}
    v_add_f32 v{vT1}, v{vX+3}, v{vX+4}
    v_add_f32 v{vT2}, v{vX+5}, v{vX+6}
    v_add_f32 v{vL}, v{vL}, v{vX+7}
    v_add_f32 v{vT0}, v{vT0}, v{vT1}
    v_add_f32 v{vL}, v{vL}, v{vT2}
    v_add_f32 v{vL}, v{vL}, v{vT0}
    """)
    def pv(inter=None):
        for i in range(4):
            for h in range(2):
                r = vVF + 4*i + 2*h
                A(f"ds_read_b64_tr_b16 v[{r}:{r+1}], v{vA+(i>>1)} offset:{8192*h + 8*(i&1)}")
        if inter: A(inter)
        for i in range(4):
            A(f"s_waitcnt lgkmcnt({6-2*i})")
            A(f"v_mfma_f32_16x16x32_bf16 v[{vO+4*i}:{vO+4*i+3}], v[{vVF+4*i}:{vVF+4*i+3}], v[{vP}:{vP+3}], v[{vO+4*i}:{vO+4*i+3}]")
    vF = vT3
    A(f"""
    s_cselect_b32 s{sPos}, 1, 2
    s_cmp_eq_u32 s{sI}, s{sN}
    s_cbranch_scc1 L_done
    s_cmp_eq_u32 s{sPos}, 1
    s_cbranch_scc1 L_nb
    s_barrier
    """)
    ustamp()
    A("L_nb:")
    pv(f"s_cmp_lt_u32 s{sI}, s{sN1}")
    A(f"""
    s_cbranch_scc1 L_p2
    s_mov_b32 s{sN0}, s{sN1}
    s_add_u32 s{sN1}, s{sN1}, {CH}
    s_min_u32 s{sN1}, s{sN1}, s{sN}
    s_branch L_pass
    L_done:
    s_cmp_eq_u32 s{sLt}, 0
    s_cbranch_scc1 L_late2
    L_done2:
    global_load_dword v{vT0}, v{vRd}, s[{sDBG}:{sDBG+1}] sc1
    v_mov_b32 v{vT1}, v{vL}
    v_mov_b32 v{vAl}, v{vM}
    s_mov_b32 s{sCnt}, 0
    v_permlane32_swap_b32 v{vL}, v{vT1}
    v_add_f32 v{vL}, v{vL}, v{vT1}
    v_mov_b32 v{vT1}, v{vL}
    s_mov_b32 s{sReg}, 0
    v_mov_b32 v{vT2}, 1
    v_permlane16_swap_b32 v{vL}, v{vT1}
    v_add_f32 v{vAl+1}, v{vL}, v{vT1}
    s_cmp_lg_u32 s{sPl}, s{sH}
    s_cbranch_scc1 L_noml
    s_mov_b64 exec, 0xffff
    buffer_store_dwordx2 v[{vAl}:{vAl+1}], v{vMO}, s[{rW}:{rW+3}], 0 offen
    s_mov_b64 exec, -1
    L_noml:
    s_cmp_eq_u32 s{sPos}, 0
    s_cbranch_scc1 L_nopv
    s_cmp_eq_u32 s{sPos}, 1
    s_cbranch_scc1 L_nb2
    s_barrier
    """)
    ustamp()
    A("L_nb2:")
    pv()
    A(f"L_nopv:")
    stamp(3)
    A(f"s_cmp_eq_u32 s{sPl}, s{sH}\ns_nop 2")
    for j in range(4): A(f"v_cvt_pk_bf16_f32 v{vX+j}, v{vO+2*j}, v{vO+2*j+1}")
    A("s_nop 0")
    for j in range(4, 8): A(f"v_cvt_pk_bf16_f32 v{vX+j}, v{vO+2*j}, v{vO+2*j+1}")
    A(f"s_cbranch_scc0 L_slow")
    def publish(sc, tag, foff):
        for ih in range(2):
            A(f"buffer_store_dwordx4 v[{vX+4*ih}:{vX+4*ih+3}], v{vSO}, s[{rW}:{rW+3}], s{sReg} offen offset:{1024*ih} {sc or stp}")
        if sc: A(f"s_mov_b64 exec, 0xffff\nbuffer_store_dwordx2 v[{vAl}:{vAl+1}], v{vMO}, s[{rW}:{rW+3}], s{sReg} offen {sc}")
        A(f"""
        s_mov_b64 exec, 1
        L_rdy{tag}:
        s_waitcnt vmcnt(0)
        v_cmp_eq_u32 vcc, 0, v{vT0}
        s_cbranch_vccz L_rok{tag}
        s_add_u32 s{sCnt}, s{sCnt}, 1
        s_cmp_ge_u32 s{sCnt}, 0x40000
        s_cbranch_scc1 L_rok{tag}
        global_load_dword v{vT0}, v{vRd}, s[{sDBG}:{sDBG+1}] sc1
        s_branch L_rdy{tag}
        L_rok{tag}:
        buffer_store_dword v{vT2}, v{vFo}, s[{rW}:{rW+3}], 0 offen offset:{foff} {sc}
        s_mov_b64 exec, -1
        """)
    publish("", "a", 0)
    stamp(4)
    A(f"""
    L_poll:
    buffer_load_dword v{vF}, v{vFa}, s[{rW}:{rW+3}], 0 offen sc1
    s_add_u32 s{sCnt}, s{sCnt}, 1
    s_waitcnt vmcnt(0)
    v_cmp_ne_u32 vcc, 0, v{vF}
    s_cmp_eq_u32 vcc_lo, -1
    s_cbranch_scc1 L_got
    s_cmp_lg_u32 vcc_hi, 0
    s_cbranch_scc1 L_slow
    s_cmp_lt_u32 s{sCnt}, 0x40000
    s_cbranch_scc1 L_poll
    L_got:
    """)
    stamp(5)
    vD = vKF; vML = vKF + 8; vAc = vKF + 16
    for k in range(2):
        A(f"buffer_load_dwordx2 v[{vML+2*k}:{vML+2*k+1}], v{vMd}, s[{rW}:{rW+3}], s{sReg} offen offset:{(128 if cml else 2048)*k} sc1")
    for k in range(2):
        A(f"buffer_load_dwordx4 v[{vD+4*k}:{vD+4*k+3}], v{vAd+k}, s[{rW}:{rW+3}], s{sReg} offen sc1")
    A(f"s_waitcnt vmcnt(2)")
    stamp(7)
    A(f"v_max_f32 v{vT0}, v{vML}, v{vML+2}")
    for ro in (4, 8):
        A(f"s_nop 1\nv_max_f32_dpp v{vT0}, v{vT0}, v{vT0} row_ror:{ro} row_mask:0xf bank_mask:0xf")
    A(f"""
    v_mov_b32 v{vT1}, v{vT0}
    s_nop 1
    v_permlane32_swap_b32 v{vT0}, v{vT1}
    v_max_f32 v{vT0}, v{vT0}, v{vT1}
    v_mov_b32 v{vT1}, v{vT0}
    s_nop 1
    v_permlane16_swap_b32 v{vT0}, v{vT1}
    v_max_f32 v{vT0}, v{vT0}, v{vT1}
    """)
    for k in range(2): A(f"v_sub_f32 v{vML+2*k}, v{vML+2*k}, v{vT0}")
    for k in range(2): A(f"v_exp_f32 v{vML+2*k}, v{vML+2*k}")
    vLs = vAc + 8
    A(f"v_mul_f32 v{vLs}, v{vML}, v{vML+1}\nv_fmac_f32 v{vLs}, v{vML+2}, v{vML+3}")
    for k in range(2):
        A(f"s_waitcnt vmcnt({1-k})")
        op = "v_mul_f32" if k == 0 else "v_fmac_f32"
        for j in range(4):
            A(f"v_lshlrev_b32 v{vT1}, 16, v{vD+4*k+j}\nv_and_b32 v{vT2}, 0xffff0000, v{vD+4*k+j}")
            A(f"{op} v{vAc+2*j}, v{vML+2*k}, v{vT1}\n{op} v{vAc+2*j+1}, v{vML+2*k}, v{vT2}")
    stamp(8)
    A(f"v_mov_b32 v{vLs+1}, v{vLs}")
    for j in range(4): A(f"v_permlane32_swap_b32 v{vAc+j}, v{vAc+4+j}")
    A(f"v_permlane32_swap_b32 v{vLs}, v{vLs+1}")
    A(f"v_add_f32 v{vLs}, v{vLs}, v{vLs+1}")
    for j in range(4): A(f"v_add_f32 v{vAc+j}, v{vAc+j}, v{vAc+4+j}")
    A(f"v_mov_b32 v{vLs+1}, v{vLs}\ns_nop 0")
    for j in range(2): A(f"v_permlane16_swap_b32 v{vAc+j}, v{vAc+2+j}")
    A(f"v_permlane16_swap_b32 v{vLs}, v{vLs+1}")
    A(f"v_add_f32 v{vLs}, v{vLs}, v{vLs+1}")
    for j in range(2): A(f"v_add_f32 v{vAc+j}, v{vAc+j}, v{vAc+2+j}")
    for ro in (4, 8):
        for r in (vLs, vAc, vAc+1): A(f"v_add_f32_dpp v{r}, v{r}, v{r} row_ror:{ro} row_mask:0xf bank_mask:0xf")
    A(f"""
    v_rcp_f32 v{vLs}, v{vLs}
    s_mov_b32 exec_lo, 0x000f000f
    s_mov_b32 exec_hi, 0x000f000f
    v_mul_f32 v{vAc}, v{vAc}, v{vLs}
    v_mul_f32 v{vAc+1}, v{vAc+1}, v{vLs}
    v_cvt_pk_bf16_f32 v{vAc}, v{vAc}, v{vAc+1}
    global_store_dword v{vOA}, v{vAc}, s[{sOUT}:{sOUT+1}] {outpol}
    """)
    stamp(9)
    if prof: A("s_mov_b64 exec, -1\ns_waitcnt vmcnt(0)")
    stamp(6)
    if prof == 2:
        a, b = diag
        A(f"""
        s_nop 1
        v_readlane_b32 s{sF}, v{vPf}, 0
        v_readlane_b32 s{sF+1}, v{vPf}, {a}
        v_readlane_b32 s{sF+2}, v{vPf}, {b}
        s_sub_u32 s{sF+1}, s{sF+2}, s{sF+1}
        s_min_u32 s{sF+1}, s{sF+1}, 20000
        s_mul_i32 s{sF+1}, s{sF+1}, {diagmul}
        """)
        if diagwg >= 0: A(f"s_cmp_eq_u32 s2, {diagwg}\ns_cselect_b32 s{sF+1}, s{sF+1}, 0")
        A(f"""
        s_add_u32 s{sF+1}, s{sF+1}, 10000
        L_spin:
        s_memrealtime s[{sSt}:{sSt+1}]
        s_waitcnt lgkmcnt(0)
        s_sub_u32 s{sF+2}, s{sSt}, s{sF}
        s_cmp_lt_u32 s{sF+2}, s{sF+1}
        s_cbranch_scc1 L_spin
        """)
    if prof == 1:
        A(f"""
        v_writelane_b32 v{vPf}, s{sPl}, 62
        v_writelane_b32 v{vPf}, s{sCnt}, 63
        s_lshl_b32 s{sTmp}, s2, 2
        s_add_u32 s{sTmp}, s{sTmp}, s{sW}
        s_lshl_b32 s{sTmp}, s{sTmp}, 8
        s_add_u32 s{sTmp}, s{sTmp}, {PROF_OFF}
        v_lshlrev_b32 v{vT0}, 2, v{vLane}
        buffer_store_dword v{vPf}, v{vT0}, s[{rW}:{rW+3}], s{sTmp} offen
        """)
    A("s_endpgm")
    A(f"L_slow:\ns_mov_b32 s{sReg}, {REG}")
    publish("sc1", "b", 128)
    A(f"""
    L_poll2:
    buffer_load_dword v{vF}, v{vFa}, s[{rW}:{rW+3}], 0 offen sc1
    s_add_u32 s{sCnt}, s{sCnt}, 1
    s_waitcnt vmcnt(0)
    v_cmp_ne_u32 vcc, 0, v{vF}
    s_cmp_eq_u32 vcc_hi, -1
    s_cbranch_scc1 L_got
    s_sleep 2
    s_cmp_lt_u32 s{sCnt}, 0x40000
    s_cbranch_scc1 L_poll2
    s_branch L_got
    """)
    A("L_end:\ns_endpgm")
    A(f""".section .rodata,"a"
.p2align 6
.amdhsa_kernel {KN}
.amdhsa_next_free_vgpr {NV}
.amdhsa_next_free_sgpr {NS}
.amdhsa_accum_offset {(NV+3)//4*4}
.amdhsa_group_segment_fixed_size 0
.amdhsa_kernarg_size 64
.amdhsa_user_sgpr_count 2
.amdhsa_user_sgpr_kernarg_segment_ptr 1
.amdhsa_system_sgpr_workgroup_id_x 1
.end_amdhsa_kernel""")
    return A.text()

if __name__ == "__main__":
    out = sys.argv[1]
    kw = {}
    for kv in sys.argv[2:]:
        k, v = kv.split("=")
        if "," in v: kw[k] = tuple(int(x) for x in v.split(","))
        else: kw[k] = int(v) if v.lstrip("-").isdigit() else v.replace("+", " ")
    open(out, "w").write(gen(**kw))
```

```python
import sys
from gen import Asm, HEADER, NAME, KN

def gen(prof=0, pol="nt", diag=None, diagwg=-1, diagmul=10, pfi=1, remap=0, pre=3, pat=2, pst=0,
        WE=21, WO=21, step=1, prio=3, W0=28, b0=0, p1=56, WT=0, ta=3, tb=0, fb=(18,20,21,23,27), th=(-110,-90,-70,-50), rev=1, lagprof=0, neu=-80, lead=31, us=9, pb=3, pk=1, fin=1, pp=16, qe=1, p2=72, RS=6, CH=30, a0=0, pbs=(72, 80, 88, 96), cml=1, early=0, lin=0, stp="", outpol="", wb=0, mlp="", mlonly=0, ek=0, eb=0, gx=30, gk=8, gd=(2,3,4), gsh=1, gmax=24, gstr=4352, gon=1, gw=0, gstop=8, gab=28, gdel=7, sp=0, spst=64, lst=None, lp=24, cb=(3, 11)):
    NWG = 256
    SB = 8192
    ML_OFF = NWG * SB
    REG = ML_OFF + 32 * 4096
    FL_OFF = 2 * REG
    PG_OFF = FL_OFF + 32 * 256
    GX_OFF = PG_OFF + 8 * 256
    WS_BYTES = GX_OFF + 128 * gstr
    PROF_OFF = 8 << 20
    SC = RS * 16384
    TL = SC
    QL = SC + 32768
    OL = SC + 49152
    XL = SC + CH * 2048
    MX = XL + 64
    LDS = MX + 256
    KVB = 2304 * 65536
    NEGBIG = 0xFF000000
    CSC = 0x3DB8AA3B
    if diag is not None: prof = 2
    A = Asm()
    vLane, vG, vQi = 0, 1, 2
    vT0, vT1, vT2, vT3 = 3, 4, 5, 6
    vCtx, vC, vM, vL = 7, 8, 9, 10
    vPf = 11
    vAl = 12
    vOf = 14; vNb = 15
    vP = 16
    vS = 20
    vB = 28
    vX = 36
    vLim = 44
    vDs = 48; vBig = 49
    vQD = 50
    vNi = 50
    vKA = 52
    vDO = 56
    vVA = 60
    vSO = 62; vMO = 63
    vQ = 64
    vKF = 96
    vVF = 160
    vO = 176
    vAd = 192
    vMd = 194; vFa = 195; vOA = 196; vFo = 197; vRd = 198
    vJk = 200
    vGa = 204
    NV = 208
    sQ, sK, sV, sBT, sCTX, sOUT, sDBG, sWS = 4, 6, 8, 10, 12, 14, 16, 18
    rK, rV, rW, rQ, rT = 20, 24, 28, 32, 36
    sLt = 40; sReg = 41; sCnt = 42; sPl = 43
    sO4 = 44
    sCm = 48
    sN4 = 64
    sPos = 52; sU = 53; sN0 = 50; sN1 = 51; sIsV = 62; sSl = 69
    sC3 = 54
    sN = 56; sI = 57; sLB = 58; sTmp = 59; sTmp2 = 60; sS = 61; sIt = 63
    sPr = 68
    sH = 70; sJ0 = 71
    sMk = 72
    sF = 72
    sSt = 88
    sW = 90; sB = 91; sTot = 92; sWb = 93
    sBe = 98; sGb = 100; sCu = 3
    NS = 102
    def stamp(i, grp=0):
        if not prof: return
        if i >= 7 and grp != pst: return
        A(f"s_memrealtime s[{sSt}:{sSt+1}]\ns_waitcnt lgkmcnt(0)\nv_writelane_b32 v{vPf}, s{sSt}, {i}")

    A(HEADER)
    if prof == 1: A("; prof=1\n; proftile=8192")
    A(f"; @launch grid=({NWG},1,1) block=(320,1,1) lds={LDS}")
    A('.amdgcn_target "amdgcn-amd-amdhsa--gfx950"\n.text')
    A(f".globl {KN}\n.p2align 8\n.type {KN},@function\n{KN}:")
    A(f"s_cmpk_ge_u32 s2, {NWG}\ns_cbranch_scc1 L_end")
    if prof: A(f"v_mov_b32 v{vPf}, 0\ns_mov_b32 s{sIt}, 32")
    stamp(0)
    if lst: A("s_memrealtime s[32:33]")
    A("s_load_dwordx16 s[4:19], s[0:1], 0")
    if pfi:
        A(f"""
        s_getpc_b64 s[{sCm}:{sCm+1}]
        L_pf1:
        v_lshlrev_b32 v{vJk+2}, 7, v0
        v_min_u32 v{vJk+2}, L_end-L_pf1, v{vJk+2}
        global_load_dword v{vJk}, v{vJk+2}, s[{sCm}:{sCm+1}]
        """)
    if remap == 1: A("s_lshr_b32 s3, s2, 3\ns_cmp_eq_u32 s3, 5\ns_cselect_b32 s3, 1, 0\ns_xor_b32 s2, s2, s3")
    if remap == 2: A("s_lshr_b32 s3, s2, 3\ns_and_b32 s3, s3, 7\ns_xor_b32 s2, s2, s3")
    if remap == 3: A("s_xor_b32 s2, s2, 3")
    A(f"""
    v_readfirstlane_b32 s{sW}, v0
    v_bfe_u32 v{vT0}, v0, 5, 1
    v_and_b32 v{vT1}, 31, v0
    v_lshlrev_b32 v{vT1}, 4, v{vT1}
    v_lshlrev_b32 v{vT2}, 5, v{vT0}
    s_and_b32 s{sH}, s2, 7
    s_lshr_b32 s{sJ0}, s2, 3
    s_cmp_lg_u32 s{sW}, 0
    s_cbranch_scc1 L_cons
    v_xor_b32 v{vT1}, v{vT1}, v{vT2}
    v_lshl_add_u32 v{vDO}, v{vT0}, 12, v{vT1}
    s_lshl_b32 s{sPr}, s{sJ0}, 8
    s_add_u32 s{sPr}, s{sPr}, s{sH}
    s_lshl_b32 s{sTot if lp else sO4}, s{sPr}, 9
    s_mov_b32 s{rK+2}, {KVB}
    s_mov_b32 s{rK+3}, 0x20000
    """)
    for jl in range(1, 4):
        A(f"v_xor_b32 v{vDO+jl}, {64*jl}, v{vDO}\nv_add_u32 v{vDO+jl}, {7168*jl}, v{vDO+jl}")
    if lp: A(f"s_mov_b32 m0, 0\ns_movk_i32 s{sN}, 4096\ns_lshl_b32 s{sN0}, s{sN}, 3\ns_mov_b32 s{sN1}, {64*65536 - 3*32768}")
    A(f"s_setprio {prio}\ns_waitcnt lgkmcnt(0)")
    def qissue():
        A(f"""
        s_lshr_b32 s{sW}, s{sB}, 6
        s_mov_b32 s{rQ+2}, 65536
        s_mov_b32 s{rQ+3}, 0x20000
        s_and_b32 s{sTmp}, s{sW}, 1
        s_lshl_b32 s{sTmp}, s{sTmp}, 7
        v_xor_b32 v{vT1}, s{sTmp}, v{vT1}
        v_lshl_add_u32 v{vQD}, v{vT0}, 9, v{vT1}
        v_xor_b32 v{vQD+1}, 64, v{vQD}
        s_lshl4_add_u32 s{sS}, s{sW}, s{sH}
        s_lshl_b32 s{sS}, s{sS}, 10
        s_add_u32 s{sTmp2}, s{sS}, {8192-1024}
        s_lshr_b32 s{sTmp}, s{sLB}, 1
        s_add_u32 m0, s{sTmp}, {QL}
        s_mov_b32 s{rQ}, s{sQ}
        s_and_b32 s{rQ+1}, s{sQ+1}, 0xffff
        buffer_load_dwordx4 v{vQD}, s[{rQ}:{rQ+3}], s{sS} offen lds
        buffer_load_dwordx4 v{vQD+1}, s[{rQ}:{rQ+3}], s{sTmp2} offen offset:1024 lds
        """)

    def verify():
        A(f"""
        s_barrier
        ds_read_b128 v[{vX}:{vX+3}], v{vT1}
        ds_read_b32 v{vT2}, v{vT2}
        s_mov_b32 s{sN0}, 0
        s_mov_b32 s{sIsV}, 0
        s_mov_b32 s{sI}, {RS-1}
        s_mov_b32 s{sU}, {RS}
        s_mov_b32 s{sLB}, 0
        s_waitcnt lgkmcnt(0)
        v_readfirstlane_b32 s{sN}, v{vT2}
        v_cmp_eq_u32 vcc, v{vX}, v{vT0}
        v_cmp_eq_u32 s[{sMk}:{sMk+1}], v{vX+1}, v{vS+1}
        v_cmp_eq_u32 s[{sMk+2}:{sMk+3}], v{vX+2}, v{vS+2}
        v_cmp_eq_u32 s[{sMk+4}:{sMk+5}], v{vX+3}, v{vS+3}
        s_min_u32 s{sN1}, s{sN}, {CH}
        s_lshl1_add_u32 s{sTot}, s{sN}, {0 if fin else 2}
        s_and_b32 s{sTmp}, vcc_lo, s{sMk}
        s_and_b32 s{sTmp2}, s{sMk+2}, s{sMk+4}
        s_and_b32 s{sTmp}, s{sTmp}, s{sTmp2}
        s_and_b32 s{sTmp2}, s{sTmp}, {(1 << RS) - 1}
        s_cmp_eq_u32 s{sTmp2}, {(1 << RS) - 1}
        s_cbranch_scc0 L_misspec
        """)

    cnt = 0
    NCU = RS - 2 - len(pbs)
    assert NCU >= 0 and len(pbs) >= 2
    def dbar():
        for i, pos in enumerate(pbs):
            if pos == cnt:
                assert pos >= p2 and pos >= 16*(i+1)
                A(f"s_waitcnt vmcnt({min(cnt - 16*(i+1), 63)})\ns_barrier")
    if lp:
        A(f"""
        s_mov_b64 s[{rK}:{rK+1}], s[{sK}:{sK+1}]
        L_burst:
        """)
        for jl in range(4): A(f"buffer_load_dwordx4 v{vDO+jl}, s[{rK}:{rK+3}], s{sTot} offen offset:{1024*jl} {pol} lds")
        A(f"""
        s_add_u32 m0, m0, s{sN}
        s_cmpk_eq_u32 m0, 16384
        s_cselect_b32 s{sTmp}, s{sN1}, s{sN0}
        s_add_u32 s{sTot}, s{sTot}, s{sTmp}
        s_cmpk_lg_u32 m0, {lp*1024}
        s_cbranch_scc1 L_burst
        s_lshl_b32 s{sO4}, s{sPr}, 9
        """)
    for u in range(RS):
        for w in range(4):
            if cnt < lp:
                cnt += 4
                if cnt < lp or cnt != W0 // 4 * 4: continue
                raise AssertionError("lp must be below W0")
            if lst and cnt in lst: A(f"s_memrealtime s[{34+2*lst.index(cnt)}:{35+2*lst.index(cnt)}]")
            if cnt == p2: verify()
            dbar()
            if sp and cnt == sp - 1:
                A(f"""
                s_lshl_b32 s{sTmp}, s{sJ0}, 9
                s_add_u32 s{sGb}, s{sBT}, s{sTmp}
                s_addc_u32 s{sGb+1}, s{sBT+1}, 0
                s_lshr_b32 s{sTmp}, s{sJ0}, 2
                s_lshl3_add_u32 s{sTmp}, s{sTmp}, s{sH}
                s_and_b32 s{sTmp2}, s{sJ0}, 3
                s_lshl2_add_u32 s{sTmp}, s{sTmp}, s{sTmp2}
                s_lshl_b32 s{sTmp}, s{sTmp}, 8
                s_add_u32 s{sBe}, s{sQ}, s{sTmp}
                s_addc_u32 s{sBe+1}, s{sQ+1}, 0
                """)
                i = 0
                for o in range(0, 512, spst): A(f"s_load_dword s{sMk+i}, s[{sGb}:{sGb+1}], {o}"); i += 1
                for o in range(0, 256, spst): A(f"s_load_dword s{sMk+i}, s[{sBe}:{sBe+1}], {o}"); i += 1
                A(f"s_load_dword s{sMk+i}, s[{sCTX}:{sCTX+1}], 0")
            A(f"s_mov_b32 m0, {u*16384 + w*4096}")
            if cnt == 0: A(f"s_mov_b32 s{rK}, s{sK}\ns_and_b32 s{rK+1}, s{sK+1}, 0xffff")
            else: A(f"s_add_u32 s{sTmp}, s{sO4}, {32768*w + u*64*65536}")
            for jl in range(4):
                if b0 and cnt == b0 - 1: A("s_barrier")
                if cnt == p1 or (a0 and cnt == a0 and a0 != W0 // 4 * 4): A("s_barrier")
                if cnt >= W0: A(f"s_waitcnt vmcnt({W0-1})")
                A(f"buffer_load_dwordx4 v{vDO+jl}, s[{rK}:{rK+3}], s{sO4 if cnt < 4 else sTmp} offen offset:{1024*jl} {pol} lds")
                cnt += 1
            if cnt == W0 // 4 * 4:
                if a0 == cnt: A('s_barrier')
                A(f"""
                s_and_b32 s{sK+1}, s{sK+1}, 0xffff
                s_and_b32 s{sV+1}, s{sV+1}, 0xffff
                v_lshl_add_u32 v{vT0}, v0, 22, s{sO4}
                v_lshlrev_b32 v{vT1}, 4, v0
                v_add_u32 v{vT1}, {OL}, v{vT1}
                v_mov_b32 v{vT2}, {XL+16}
                v_add_u32 v{vS+1}, 32768, v{vT0}
                v_add_u32 v{vS+2}, 65536, v{vT0}
                v_add_u32 v{vS+3}, 98304, v{vT0}
                """)
                if pre == 3: A(f"""
                s_lshl_b32 s{sTmp2}, s{sH}, 5
                s_add_u32 s{sTmp2}, s{sTmp2}, s{sJ0}
                s_lshl_b32 s{sTmp2}, s{sTmp2}, 13
                v_lshl_add_u32 v{vB}, v0, 6, s{sTmp2}
                v_add_u32 v{vB+1}, 4096, v{vB}
                s_lshl_b32 s{sTmp2}, s{sH}, 7
                s_add_u32 s{sTmp2}, s{sTmp2}, s{sJ0}
                s_lshl_b32 s{sTmp2}, s{sTmp2}, 7
                s_add_u32 s{sTmp2}, s{sTmp2}, {ML_OFF}
                v_and_b32 v{vB+2}, 1, v0
                v_lshl_add_u32 v{vB+2}, v{vB+2}, 6, s{sTmp2}
                v_bfe_u32 v{vB+3}, v0, 1, 2
                v_lshl_add_u32 v{vB+2}, v{vB+3}, 12, v{vB+2}
                """)
    if p2 == cnt: verify()
    dbar()
    A(f"""
    L_lgo:
    """)
    if fb:
        E = 2
        sEx = 94
        rP = 96
        vPg = vP; vPa = vP+1; vPo = vP+2; vPv = vP+3
        A(f"""
        s_mov_b32 s{rW}, s{sWS}
        s_and_b32 s{rW+1}, s{sWS+1}, 0xffff
        s_mov_b32 s{rW+2}, {WS_BYTES}
        s_mov_b32 s{rW+3}, 0x20000
        s_mov_b64 s[{rP}:{rP+1}], s[{sDBG}:{sDBG+1}]
        v_and_b32 v{vPa}, 7, v0
        v_lshlrev_b32 v{vPa}, 5, v{vPa}
        v_mov_b32 v{vPo}, 0x7f000000
        v_mov_b32 v{vPg}, 0
        s_mov_b32 s{sEx}, -1
        s_mov_b32 s{sEx+1}, 0
        s_mov_b32 s{sS}, 0
        s_sub_u32 s{sWb}, 256, s{sTot}
        s_bitcmp1_b32 s{sH}, 0
        s_cselect_b32 s{sB}, {-pb}, {pb}
        s_mov_b32 s{sBe}, 0
        s_mov_b32 s{sBe+1}, 0
        s_add_u32 s{sGb}, s{sWS}, {GX_OFF}
        s_addc_u32 s{sGb+1}, s{sWS+1}, 0
        s_lshl_b32 s{sPr}, s{sH}, 3
        s_cmp_eq_u32 s{sJ0}, {gx if gon else 99}
        s_mov_b32 s{sCu}, -1
        s_cselect_b32 s{sTmp}, {gab}, 0
        s_add_i32 s{sB}, s{sB}, s{sTmp}
        """)
        for i in range(len(gd)): A(f"s_mov_b64 s[{sMk+2*i}:{sMk+2*i+1}], 0")
        if NCU: A(f"s_cmp_lg_u32 s{sU}, 0\ns_cbranch_scc1 L_llc")
        A(f"""
        s_branch L_lle
        L_gx:
        {"s_waitcnt lgkmcnt(0)" if gw else ""}
        s_mov_b32 s{sTmp}, 0
        """)
        for i in range(len(gd)):
            A(f"""
            s_bcnt1_i32_b64 s{sTmp2}, s[{sMk+2*i}:{sMk+2*i+1}]
            s_add_i32 s{sTmp}, s{sTmp}, s{sTmp2}
            s_bitcmp1_b64 s[{sMk+2*i}:{sMk+2*i+1}], s{sPr}
            s_cselect_b32 s{sTmp2}, 8, 0
            s_sub_i32 s{sTmp}, s{sTmp}, s{sTmp2}
            """)
        if lagprof == 2: A(f"s_mov_b32 m0, s{sU}\ns_nop 0\nv_writelane_b32 v{vQ}, s{sTmp}, m0")
        for i, d in enumerate(gd):
            A(f"s_add_u32 s{sTmp2}, s{sU}, s{sWb}\ns_sub_u32 s{sTmp2}, s{sTmp2}, {128+d}\ns_mul_i32 s{sTmp2}, s{sTmp2}, {gstr}\ns_load_dwordx2 s[{sMk+2*i}:{sMk+2*i+1}], s[{sGb}:{sGb+1}], s{sTmp2} glc")
        A(f"""
        s_mul_i32 s{sTmp}, s{sTmp}, {gk}
        s_ashr_i32 s{sTmp2}, s{sBe+1}, {gsh}
        s_sub_i32 s{sBe+1}, s{sBe+1}, s{sTmp2}
        s_add_i32 s{sBe+1}, s{sBe+1}, s{sTmp}
        s_ashr_i32 s{sBe}, s{sBe+1}, {gsh+2}
        s_min_i32 s{sBe}, s{sBe}, {gmax}
        s_max_i32 s{sBe}, s{sBe}, {-gmax}
        s_add_u32 s{sTmp}, s{sU}, {gstop}
        s_add_u32 s{sCu}, s{sU}, 2
        s_cmp_lt_u32 s{sTmp}, s{sTot}
        s_cselect_b32 s{sCu}, s{sCu}, -1
        s_branch L_gxd
        L_ltop:
        s_cmp_eq_u32 s{sU}, s{sCu}
        s_cbranch_scc1 L_gx
        L_gxd:
        v_add_u32_dpp v{vT0}, v{vPg}, v{vPg} row_ror:1 row_mask:0xf bank_mask:0xf
        v_cmp_gt_u32 vcc, 2, v{vPg}
        s_add_u32 s{sPos}, s{sU}, s{sWb}
        v_add_u32_dpp v{vT0}, v{vT0}, v{vT0} row_ror:2 row_mask:0xf bank_mask:0xf
        s_add_i32 s{sTmp2}, s{sPos}, s{sBe}
        v_mov_b32 v{vPv}, s{sTmp2}
        s_add_u32 s{sTmp2}, s{sS}, 16
        v_add_u32_dpp v{vT0}, v{vT0}, v{vT0} row_ror:4 row_mask:0xf bank_mask:0xf
        s_mov_b64 exec, 1
        buffer_store_dword v{vPv}, v{vPo}, s[{rW}:{rW+3}], 0 offen
        s_mov_b64 exec, s[{sEx}:{sEx+1}]
        global_load_dword v{vPg}, v{vPa}, s[{rP}:{rP+1}] sc1
        s_mov_b64 exec, -1
        v_add_u32_dpp v{vT0}, v{vT0}, v{vT0} row_ror:8 row_mask:0xf bank_mask:0xf
        s_lshl_b32 s{sPos}, s{sPos}, 5
        v_readlane_b32 s{sTmp}, v{vT0}, s{sS}
        v_readlane_b32 s{sTmp2}, v{vT0}, s{sTmp2}
        s_xor_b32 s{sS}, s{sS}, 32
        s_add_u32 s{sTmp}, s{sTmp}, s{sTmp2}
        s_sub_i32 s{sPos}, s{sTmp}, s{sPos}
        s_add_i32 s{sPos}, s{sPos}, s{sB}
        s_and_b64 vcc, vcc, s[{sEx}:{sEx+1}]
        s_cselect_b32 s{sPos}, {neu}, s{sPos}
        s_not_b64 s[{sEx}:{sEx+1}], s[{sEx}:{sEx+1}]
        s_cmp_lg_u32 s{sTmp}, 32
        s_cbranch_scc1 L_lsel
        s_mov_b64 s[{rP}:{rP+1}], s[{sWS}:{sWS+1}]
        s_lshl_b32 s{sTmp}, s{sH}, 8
        s_add_u32 s{sTmp}, s{sTmp}, {PG_OFF}
        v_and_b32 v{vPa}, 31, v0
        v_lshl_add_u32 v{vPa}, v{vPa}, 2, s{sTmp}
        s_lshl2_add_u32 s{sTmp}, s{sJ0}, s{sTmp}
        v_mov_b32 v{vPo}, s{sTmp}
        v_mov_b32 v{vT1}, {XL+20}
        s_add_u32 s{sTmp}, s{sU}, {gdel}
        ds_write_b32 v{vT1}, v{vT1}
        s_cmp_eq_u32 s{sJ0}, {gx if gon else 99}
        s_cselect_b32 s{sCu}, s{sTmp}, -1
        L_lsel:
        """)
        if lagprof == 1: A(f"s_mov_b32 m0, s{sU}\ns_nop 0\nv_writelane_b32 v{vQ}, s{sPos}, m0")
        if ek: A(f"s_sub_u32 s{sTmp}, s{sTot}, s{sU}\ns_cmp_le_u32 s{sTmp}, {ek}\ns_cselect_b32 s{sTmp}, {eb}, 0\ns_add_i32 s{sPos}, s{sPos}, s{sTmp}")
        variants = [(f"f{i}", W) for i, W in enumerate(fb)] + [("e", WE)] + ([("c", WE)] if NCU else [])
        for i in range(len(th)-1, -1, -1):
            A(f"s_cmp_gt_i32 s{sPos}, {th[i]}\ns_cbranch_scc1 L_llf{i+1}")
    else:
        E = 0
        variants = [("e", WE)] if WE == WO else [("e", WE), ("o", WO)]
        if len(variants) > 1: A(f"s_bitcmp1_b32 s{sH}, 0\ns_cbranch_scc1 L_llo")
        if WT:
            assert WE == WO
            variants.append(("t", WT))
            A(f"s_sub_u32 s{sTmp}, s{sU}, s{sN}\ns_add_u32 s{sTmp}, s{sTmp}, {ta}\ns_cmp_lt_u32 s{sTmp}, {ta+tb}\ns_cbranch_scc1 L_llt")
    for tag, W in variants:
        assert 17 <= W <= 48
        if tag == "e": E = 0
        A(f"""
        L_ll{tag}:
        s_add_u32 s{sI}, s{sI}, 1
        s_cmp_lg_u32 s{sI}, s{sN1}
        s_cbranch_scc1 L_ls{tag}
        s_xor_b32 s{sIsV}, s{sIsV}, 1
        s_cselect_b32 s{sN0}, s{sN0}, s{sN1}
        s_cselect_b32 s{rK}, s{sV}, s{sK}
        s_cselect_b32 s{rK+1}, s{sV+1}, s{sK+1}
        s_mov_b32 s{sI}, s{sN0}
        s_add_u32 s{sN1}, s{sN0}, {CH}
        s_min_u32 s{sN1}, s{sN1}, s{sN}
        L_ls{tag}:
        """)
        if rev:
            A(f"s_add_u32 s{sTmp}, s{sN0}, s{sN1}\ns_sub_u32 s{sTmp}, s{sTmp}, s{sI}\ns_sub_u32 s{sTmp}, s{sTmp}, 1\ns_cmp_eq_u32 s{sIsV}, 0\ns_cselect_b32 s{sTmp}, s{sI}, s{sTmp}")
        for w in range(4): A(f"v_readlane_b32 s{sO4+w}, v{vX+w}, s{sTmp if rev else sI}")
        pass
        for w in range(4):
            A(f"""
            s_add_u32 m0, s{sLB}, {w*4096}
            s_bitcmp0_b32 s{sO4+w}, 0
            s_cselect_b32 s{sO4+w}, s{sO4+w}, 0
            s_cselect_b32 s{rK+2}, {KVB}, 0
            """)
            for jl in range(4):
                c = 4*w + jl
                if tag == "c":
                    assert cb[1] >= W - 17
                    A(f"s_waitcnt vmcnt({W-1})")
                    if c in cb: A("s_barrier")
                elif c == W-17: A(f"s_cmp_lt_u32 s{sU}, 2\ns_waitcnt vmcnt({W-1+E})\ns_cbranch_scc1 L_lb{tag}\ns_barrier\nL_lb{tag}:")
                elif c % step == 0: A(f"s_waitcnt vmcnt({W-step+E*(2 if c < W-17 else 1)})")
                A(f"buffer_load_dwordx4 v{vDO+jl}, s[{rK}:{rK+3}], s{sO4+w} offen offset:{1024*jl} {pol} lds")
        if W > 32: A(f"s_cmp_lt_u32 s{sU}, 2\ns_waitcnt vmcnt({32+E})\ns_cbranch_scc1 L_lb{tag}\ns_barrier\nL_lb{tag}:")
        A(f"""
        s_add_u32 s{sLB}, s{sLB}, 16384
        s_cmp_lg_u32 s{sLB}, {RS*16384}
        s_cselect_b32 s{sLB}, s{sLB}, 0
        s_add_u32 s{sU}, s{sU}, 1
        s_cmp_lt_u32 s{sU}, s{sTot}
        """)
        if tag == "c":
            A(f"s_cmp_lt_u32 s{sU}, {RS+NCU}\ns_cbranch_scc1 L_llc\ns_branch L_lle")
            continue
        if fb and tag == "e":
            A(f"s_cbranch_scc0 {'L_lfin' if fin else 'L_lend'}\ns_cmp_lt_u32 s{sU}, {us}\ns_cbranch_scc1 L_lle\ns_branch L_ltop")
            continue
        A(f"s_cbranch_scc1 {'L_ltop' if fb else 'L_lgo' if WT else 'L_ll'+tag}")
        if lst:
            for i in range(4): A(f"v_writelane_b32 v{vQ}, s{32+2*i}, {i}")
        if lagprof: A(f"s_lshl_b32 s{sTmp}, s2, 8\ns_add_u32 s{sTmp}, s{sTmp}, {12<<20}\nv_lshl_add_u32 v{vT0}, v0, 2, s{sTmp}\nglobal_store_dword v{vT0}, v{vQ}, s[{sWS}:{sWS+1}]")
        first = tag == ("f0" if fb else "e")
        if fin and not first:
            A("s_branch L_lfin"); continue
        if fin:
            A("L_lfin:")
            prl = f"""
                global_load_dword v{vT0}, v{vB+2 if mlonly else vB}, s[{sWS}:{sWS+1}] sc1
                global_load_dword v{vT1}, v{vB+2 if mlonly else vB+1}, s[{sWS}:{sWS+1}] sc1
                global_load_dword v{vT2}, v{vB+2}, s[{sWS}:{sWS+1}] sc1
                """
            if pre != 3: A("s_waitcnt vmcnt(16)\ns_barrier\ns_waitcnt vmcnt(0)\ns_barrier")
            elif pp > 16: A(prl); A("s_waitcnt vmcnt(19)\ns_barrier\ns_waitcnt vmcnt(3)\ns_barrier")
            elif pp > 0: A(f"s_waitcnt vmcnt(16)\ns_barrier\ns_waitcnt vmcnt({pp})"); A(prl); A("s_waitcnt vmcnt(3)\ns_barrier")
            else: A("s_waitcnt vmcnt(16)\ns_barrier\ns_waitcnt vmcnt(0)\ns_barrier"); A(prl)
        if fin and wb == 1:
            A(f"""
            s_cmp_lg_u32 s{sJ0}, 0
            s_cbranch_scc1 L_lend
            s_lshl_b32 s{sTmp}, s{sH}, 10
            s_add_u32 s{sTmp}, s{sTmp}, {FL_OFF}
            s_waitcnt vmcnt(0)
            v_and_b32 v{vB+4}, 31, v0
            v_lshl_add_u32 v{vB+4}, v{vB+4}, 2, s{sTmp}
            s_mov_b32 s{sCnt}, 0
            L_wbp:
            buffer_load_dword v{vT0}, v{vB+4}, s[{rW}:{rW+3}], 0 offen sc1
            s_add_u32 s{sCnt}, s{sCnt}, 1
            s_waitcnt vmcnt(0)
            v_cmp_eq_u32 vcc, 0, v{vT0}
            s_cmp_ge_u32 s{sCnt}, 64
            s_cbranch_scc1 L_lend
            s_cbranch_vccnz L_wbp
            buffer_wbl2 sc1
            s_endpgm
            """)
        if first: A("L_lend:")
        A("s_waitcnt vmcnt(0) lgkmcnt(0)\ns_endpgm")
    A(f"""
    L_misspec:
    s_waitcnt vmcnt(0)
    s_cmp_eq_u32 s{sN}, 0
    s_cbranch_scc1 L_lend
    s_mov_b32 s{sI}, -1
    s_mov_b32 s{sU}, 0
    s_branch L_lgo
    """)
    A(f"""
    L_cons:
    v_lshl_add_u32 v{vS}, v{vT0}, 11, v{vT1}
    v_xor_b32 v{vT1}, v{vT1}, v{vT2}
    s_mov_b32 s{rT+2}, 16384
    s_mov_b32 s{rT+3}, 0x20000
    s_sub_u32 s{sB}, s{sW}, 64
    s_lshl_b32 s{sLB}, s{sB}, 6
    s_lshl_b32 s{sMk}, s{sB}, 3
    s_add_u32 s{sMk+1}, s{sMk}, {3072}
    s_add_u32 s{sMk+2}, s{sMk}, {2*3072}
    s_add_u32 s{sMk+3}, s{sMk}, {3*3072}
    s_add_u32 m0, s{sLB}, {TL}
    v_and_b32 v{vT2}, 14, v0
    v_lshlrev_b32 v{vT2}, 1, v{vT2}
    s_waitcnt lgkmcnt(0)
    s_mov_b32 s{rT}, s{sBT}
    s_and_b32 s{rT+1}, s{sBT+1}, 0xffff
    """)
    if a0: A("s_barrier")
    for j in range(4):
        A(f"buffer_load_dwordx4 v{vS}, s[{rT}:{rT+3}], s{sMk+j} offen offset:{1024*j} lds")
    A(f"global_load_dword v{vCtx}, v{vT2}, s[{sCTX}:{sCTX+1}]")
    qissue()
    stamp(1)
    A(f"""
    v_and_b32 v{vLane}, 63, v0
    s_xor_b32 s{sTmp}, s{sJ0}, {lead}
    s_or_b32 s{sTmp}, s{sTmp}, s{sW}
    s_cselect_b32 s{sReg}, 0, 1
    s_cbranch_scc0 L_clear
    L_cleared:
    s_add_u32 s{sTmp}, s{sLB}, {TL}
    v_lshl_add_u32 v{vOf}, v{vLane}, 3, s{sTmp}
    v_lshrrev_b32 v{vG}, 4, v{vLane}
    v_and_b32 v{vQi}, 15, v{vLane}
    s_lshl2_add_u32 s{sTmp}, s{sW}, {XL}
    v_mov_b32 v{vB+2}, s{sTmp}
    v_mov_b32 v{vB+3}, {XL}
    s_lshl2_add_u32 s{sTmp}, s{sW}, {OL}
    v_lshl_add_u32 v{vB+4}, v{vLane}, 4, s{sTmp}
    s_lshl_b32 s{sWb}, s{sW}, 6
    v_lshl_add_u32 v{vS}, v{vLane}, 5, s{sJ0}
    v_mov_b32 v{vDs}, 0x80000
    v_not_b32 v{vS+1}, v{vS}
    v_mov_b32 v{vBig}, 0x7fff0000
    v_lshrrev_b32 v{vB}, 1, v{vQi}
    v_lshlrev_b32 v{vB}, 16, v{vB}
    v_and_b32 v{vT0}, 7, v{vQi}
    v_lshlrev_b32 v{vT0}, 1, v{vT0}
    v_xor_b32 v{vT0}, v{vT0}, v{vG}
    v_lshlrev_b32 v{vT0}, 4, v{vT0}
    v_lshl_add_u32 v{vKA}, v{vQi}, 9, v{vT0}
    v_xor_b32 v{vKA+1}, 64, v{vKA}
    v_xor_b32 v{vKA+2}, 128, v{vKA}
    v_xor_b32 v{vKA+3}, 192, v{vKA}
    v_lshrrev_b32 v{vT0}, 2, v{vLane}
    v_lshlrev_b32 v{vT1}, 9, v{vT0}
    v_and_b32 v{vT0}, 7, v{vT0}
    v_lshlrev_b32 v{vT0}, 1, v{vT0}
    v_and_b32 v{vT2}, 3, v{vLane}
    s_lshl_b32 s{sTmp}, s{sW}, 3
    v_add_u32 v{vT2}, s{sTmp}, v{vT2}
    v_xor_b32 v{vT3}, v{vT2}, v{vT0}
    v_lshl_add_u32 v{vVA}, v{vT3}, 4, v{vT1}
    v_xor_b32 v{vVA+1}, 64, v{vVA}
    """)
    for sl in range(4): A(f"v_add_u32 v{vVF+sl}, {QL}, v{vKA+sl}")
    A(f"""
    s_and_b32 s{sTmp}, s{sW}, 1
    s_lshl_b32 s{sS}, s{sTmp}, 4
    s_lshl_b32 s{sPr}, s{sTmp}, 6
    s_add_u32 s{sPr}, s{sPr}, s{sH}
    s_lshl_b32 s{sPr}, s{sPr}, 9
    v_mov_b32 v{vT2}, 0x2000
    v_mov_b32 v{vT3}, {CSC}
    """)
    stamp(7, 2)
    A(f"s_waitcnt vmcnt(2)")
    stamp(2)
    for b in range(8):
        A(f"ds_read_b64 v[{vKF+2*b}:{vKF+2*b+1}], v{vOf} offset:{512*b}")
    A(f"""
    v_cmp_lt_i32 vcc, 0, v{vCtx}
    v_min_i32 v{vCtx}, 0x2000, v{vCtx}
    v_lshl_add_u32 v{vT0}, v{vG}, 2, s{sS}
    v_cndmask_b32 v{vCtx}, v{vT2}, v{vCtx}, vcc
    v_cndmask_b32 v{vC}, 0, v{vT3}, vcc
    v_add_u32 v{vNb}, 31, v{vCtx}
    v_lshrrev_b32 v{vNb}, 5, v{vNb}
    v_sub_u32 v{vLim}, v{vCtx}, v{vT0}
    v_subrev_u32 v{vLim+1}, 1, v{vLim}
    v_max_u32_dpp v{vT2}, v{vNb}, v{vNb} row_ror:2 row_mask:0xf bank_mask:0xf
    v_subrev_u32 v{vLim+2}, 2, v{vLim}
    v_subrev_u32 v{vLim+3}, 3, v{vLim}
    v_max_u32_dpp v{vT2}, v{vT2}, v{vT2} row_ror:4 row_mask:0xf bank_mask:0xf
    s_waitcnt lgkmcnt(0)
    """)
    for b in range(1, 8):
        A(f"v_cmp_ne_u64 s[{sMk+2*b}:{sMk+2*b+1}], v[{vKF}:{vKF+1}], v[{vKF+2*b}:{vKF+2*b+1}]")
    A(f"v_max_u32_dpp v{vT2}, v{vT2}, v{vT2} row_ror:8 row_mask:0xf bank_mask:0xf")
    for b in range(2, 8):
        A(f"s_or_b64 s[{sMk+2}:{sMk+3}], s[{sMk+2}:{sMk+3}], s[{sMk+2*b}:{sMk+2*b+1}]")
    A(f"""
    s_ff1_i32_b64 s{sTmp}, s[{sMk+2}:{sMk+3}]
    s_min_u32 s{sTmp}, s{sTmp}, 256
    s_add_u32 s{sTmp}, s{sTmp}, s{sWb}
    v_min_u32 v{vT2}, s{sTmp}, v{vT2}
    ds_write_b32 v{vB+2}, v{vT2}
    s_waitcnt lgkmcnt(0)
    """)
    stamp(8, 2)
    A("s_barrier")
    stamp(9, 2)
    A(f"""
    ds_read_b128 v[{vX}:{vX+3}], v{vB+3}
    s_waitcnt lgkmcnt(0)
    v_min3_u32 v{vT0}, v{vX}, v{vX+1}, v{vX+2}
    v_min_u32 v{vT0}, v{vT0}, v{vX+3}
    v_max_u32 v{vNb}, v{vNb}, v{vT0}
    v_sub_u32 v{vNb}, v{vNb}, v{vT0}
    v_mov_b32 v{vO}, 0
    v_mov_b32 v{vO+1}, 0
    v_add_u32_dpp v{vT1}, v{vNb}, v{vNb} row_shr:2 row_mask:0xf bank_mask:0xf bound_ctrl:0
    v_mov_b32 v{vO+2}, 0
    v_mov_b32 v{vO+3}, 0
    v_add_u32_dpp v{vT1}, v{vT1}, v{vT1} row_shr:4 row_mask:0xf bank_mask:0xf bound_ctrl:0
    v_mov_b32 v{vM}, {NEGBIG}
    v_mov_b32 v{vL}, 0
    v_add_u32_dpp v{vT1}, v{vT1}, v{vT1} row_shr:8 row_mask:0xf bank_mask:0xf bound_ctrl:0
    v_add_u32 v{vT2}, v{vT1}, v{vT0}
    v_sub_u32 v{vT1}, v{vT1}, v{vNb}
    v_readlane_b32 s{sTot}, v{vT2}, 15
    v_sub_u32 v{vT2}, v{vT2}, v{vNb}
    v_sub_u32 v{vT1}, v{vB}, v{vT1}
    s_mov_b32 s{sI}, 0
    """)
    fill = [f"v_mov_b32 v{vO+i}, 0" for i in range(4, 16)] + [f"v_mov_b32 v{vNi}, 0xff800000", f"s_mov_b32 s{sC3}, 0x00030003", f"s_mov_b32 s{sC3+1}, 0x00030003", f"s_mov_b32 s{sLt}, 0"]
    for b in range(8):
        A(f"v_add_co_u32_dpp v{vT3}, vcc, v{vT2}, v{vS+1} row_newbcast:{2*b} row_mask:0xf bank_mask:0xf")
        A(fill[2*b]); A(fill[2*b+1])
        A(f"v_cndmask_b32_dpp v{vDs}, v{vT1}, v{vDs}, vcc row_newbcast:{2*b} row_mask:0xf bank_mask:0xf")
    stamp(10, 2)
    A(f"""
    v_cmp_gt_u32 s[{sMk+2}:{sMk+3}], s{sTot}, v{vS}
    v_add_u32 v{vDs}, v{vDs}, v{vS}
    v_bfe_u32 v{vT1}, v{vDs}, 16, 3
    v_bfe_u32 v{vT2}, v{vDs}, 6, 2
    v_and_b32 v{vT0}, 0x3f, v{vDs}
    v_lshl_add_u32 v{vT2}, v{vT2}, 3, v{vT1}
    v_lshl_add_u32 v{vT0}, v{vT2}, 6, v{vT0}
    s_and_b32 s{sTmp}, s{sW}, 2
    s_lshl1_add_u32 s{sTmp}, s{sTmp}, {TL}
    v_lshl_add_u32 v{vT0}, v{vT0}, 3, s{sTmp}
    v_lshlrev_b32 v{vT1}, 3, v{vT1}
    ds_read_b32 v{vOf}, v{vT0}
    ds_bpermute_b32 v{vT1}, v{vT1}, v{vCtx}
    s_bcnt1_i32_b64 s{sN}, s[{sMk+2}:{sMk+3}]
    v_and_b32 v{vT0}, 0xff, v{vDs}
    s_lshl_b32 s{sTmp2}, s{sW}, 3
    v_lshl_add_u32 v{vT0}, v{vT0}, 5, s{sTmp2}
    v_cmp_le_u32 vcc, 0x80000, v{vDs}
    v_mov_b32 v{vT2}, s{sN}
    ds_write_b32 v{vB+3}, v{vT2} offset:16
    ds_write_b32 v{vB+3}, v{vO} offset:20
    s_waitcnt lgkmcnt(2)
    v_cmp_lt_u32 s[{sMk}:{sMk+1}], v{vT0}, v{vT1}
    v_lshl_add_u32 v{vOf}, v{vOf}, 16, s{sPr}
    s_or_b64 vcc, vcc, s[{sMk}:{sMk+1}]
    s_and_b64 vcc, vcc, s[{sMk+2}:{sMk+3}]
    v_cndmask_b32 v{vOf}, 1, v{vOf}, vcc
    ds_write_b32 v{vB+4}, v{vOf}
    s_cmp_eq_u32 s{sReg}, 1
    s_waitcnt vmcnt(0) lgkmcnt(0)
    s_barrier
    s_cbranch_scc1 L_ready
    L_readied:
    s_mov_b32 s{sPos}, 0
    s_cmp_eq_u32 s{sN}, 0
    s_cbranch_scc1 L_done
    """)
    stamp(11, 2)
    for s in range(8):
        A(f"ds_read_b128 v[{vQ+4*s}:{vQ+4*s+3}], v{vVF+(s&3)} offset:{256*(s>>2)}")
    vSW = vDO; vSR = vDO + 1; vMW = vDO + 2; vMR = vDO + 3
    A(f"""
    s_lshl_b32 s{sTmp}, s{sS}, 9
    v_add_u32 v{vKA}, s{sTmp}, v{vKA}
    v_lshlrev_b32 v{vSR}, 4, v{vLane}
    v_add_u32 v{vSR}, {SC}, v{vSR}
    s_lshl_b32 s{sTmp}, s{sS}, 6
    v_add_u32 v{vSW}, s{sTmp}, v{vSR}
    v_lshlrev_b32 v{vMR}, 4, v{vQi}
    v_add_u32 v{vMR}, {MX}, v{vMR}
    s_lshl_b32 s{sTmp}, s{sW}, 2
    v_add_u32 v{vMW}, s{sTmp}, v{vMR}
    s_mov_b32 s{sSl}, 0
    s_mov_b32 s{sN0}, 0
    s_min_u32 s{sN1}, s{sN}, {CH}
    s_lshr_b32 s{sIsV}, s{sW}, 1
    s_add_u32 s{sGb+1}, s{sH}, {GX_OFF-gstr}
    v_mov_b32 v{vGa}, 0
    v_mov_b32 v{vGa+1}, 1
    s_lshl_b32 s{sTmp}, s{sN}, 1
    s_sub_u32 s{sCu}, 128, s{sTmp}
    s_cmp_eq_u32 s{sW}, 3
    s_cselect_b32 s{sGb}, s{sJ0}, 99
    s_branch L_pass
    """)
    A(f"""
    L_clear:
    s_lshl_b32 s{sTmp}, s{sH}, 10
    s_add_u32 s{sTmp}, s{sTmp}, {FL_OFF}
    v_lshl_add_u32 v{vJk+1}, v{vLane}, 3, s{sTmp}
    v_mov_b32 v{vJk+2}, 0
    v_mov_b32 v{vJk+3}, 0
    global_store_dwordx2 v{vJk+1}, v[{vJk+2}:{vJk+3}], s[{sWS}:{sWS+1}] sc1
    global_store_dwordx2 v{vJk+1}, v[{vJk+2}:{vJk+3}], s[{sWS}:{sWS+1}] offset:512 sc1
    s_lshl_b32 s{sTmp}, s{sH}, 8
    s_add_u32 s{sTmp}, s{sTmp}, {PG_OFF}
    v_lshl_add_u32 v{vJk+1}, v{vLane}, 2, s{sTmp}
    global_store_dword v{vJk+1}, v{vJk+2}, s[{sWS}:{sWS+1}] sc1
    s_mul_i32 s{sTmp}, s{sH}, {16*gstr}
    s_add_u32 s{sTmp}, s{sTmp}, {GX_OFF}
    v_mul_u32_u24 v{vJk+1}, {gstr}, v{vLane}
    v_add_u32 v{vJk+1}, s{sTmp}, v{vJk+1}
    s_mov_b64 exec, 0xffff
    global_store_dwordx2 v{vJk+1}, v[{vJk+2}:{vJk+3}], s[{sWS}:{sWS+1}] sc1
    s_mov_b64 exec, -1
    s_branch L_cleared
    L_ready:
    s_lshl_b32 s{sTmp}, s{sH}, 5
    v_mov_b32 v{vJk+1}, s{sTmp}
    v_mov_b32 v{vJk+2}, 1
    s_mov_b64 exec, 1
    global_store_dword v{vJk+1}, v{vJk+2}, s[{sDBG}:{sDBG+1}] sc1
    s_mov_b64 exec, -1
    s_branch L_readied
    """)
    A(f"""
    L_late:
    s_mov_b32 s{rW}, s{sWS}
    s_and_b32 s{rW+1}, s{sWS+1}, 0xffff
    s_mov_b32 s{rW+2}, {WS_BYTES if not prof else 16 << 20}
    s_mov_b32 s{rW+3}, 0x20000
    s_lshl2_add_u32 s{sTmp2}, s{sH}, s{sW}
    s_lshl_b32 s{sTmp}, s{sTmp2}, {9 if cml else 5}
    s_add_u32 s{sTmp}, s{sTmp}, s{sJ0}
    s_lshl_b32 s{sTmp}, s{sTmp}, {3 if cml else 7}
    s_add_u32 s{sTmp}, s{sTmp}, {ML_OFF}
    v_lshl_add_u32 v{vMO}, v{vQi}, {8 if cml else 3}, s{sTmp}
    s_lshl_b32 s{sTmp2}, s{sTmp2}, 8
    s_lshl2_add_u32 s{sTmp2}, s{sJ0}, s{sTmp2}
    s_add_u32 s{sTmp2}, s{sTmp2}, {FL_OFF}
    v_mov_b32 v{vFo}, s{sTmp2}
    s_lshl_b32 s{sTmp}, s{sH}, 5
    v_mov_b32 v{vRd}, s{sTmp}
    s_add_u32 s{sTmp}, s{sTmp}, s{sJ0}
    s_lshl2_add_u32 s{sTmp}, s{sTmp}, s{sW}
    s_lshl_b32 s{sTmp}, s{sTmp}, 11
    v_cmp_gt_u32 vcc, 32, v{vLane}
    v_lshl_add_u32 v{vSO}, v{vQi}, {4 if lin else 6}, s{sTmp}
    v_lshl_add_u32 v{vJk+1}, v{vLane}, 6, s{sTmp}
    v_lshl_add_u32 v{vSO}, v{vG}, {8 if lin else 4}, v{vSO}
    v_cndmask_b32 v{vJk+1}, v{vMO}, v{vJk+1}, vcc
    """)
    A(f"""
    v_lshrrev_b32 v{vJk+2}, 2, v{vLane}
    v_and_b32 v{vJk+3}, 3, v{vLane}
    """)
    if lin:
        assert cml
        A(f"""
        s_lshr_b32 s{sTot}, s{sJ0}, 3
        s_lshl2_add_u32 s{sTot}, s{sH}, s{sTot}
        s_lshl2_add_u32 s{sTmp}, s{sTot}, s{sW}
        s_lshl_b32 s{sTmp}, s{sTmp}, 10
        s_add_u32 s{sTmp}, s{sTmp}, {ML_OFF}
        v_lshl_add_u32 v{vMd}, v{vJk+2}, 3, s{sTmp}
        v_lshl_add_u32 v{vMd}, v{vJk+3}, 8, v{vMd}
        s_lshl_b32 s{sTmp}, s{sTot}, 8
        s_add_u32 s{sTmp}, s{sTmp}, {FL_OFF}
        v_lshl_add_u32 v{vFa}, v{vLane}, 2, s{sTmp}
        s_lshl_b32 s{sTmp}, s{sH}, 18
        s_lshl2_add_u32 s{sTmp2}, s{sJ0}, s{sW}
        s_lshl_b32 s{sTmp2}, s{sTmp2}, 6
        s_add_u32 s{sTmp}, s{sTmp}, s{sTmp2}
        v_lshl_add_u32 v{vAd}, v{vJk+3}, 4, s{sTmp}
        v_lshl_add_u32 v{vAd}, v{vJk+2}, 13, v{vAd}
        v_add_u32 v{vAd+1}, {16*SB}, v{vAd}
        s_lshl4_add_u32 s{sTmp}, s{sW}, s{sH}
        s_lshl_b32 s{sTmp}, s{sTmp}, 10
        s_lshl4_add_u32 s{sTmp}, s{sJ0}, s{sTmp}
        v_lshl_add_u32 v{vOA}, v{vG}, 2, s{sTmp}
        v_and_b32 v{vJk+2}, 1, v{vLane}
        v_lshl_add_u32 v{vOA}, v{vJk+2}, 9, v{vOA}
        v_bfe_u32 v{vJk+2}, v{vLane}, 1, 1
        v_lshl_add_u32 v{vOA}, v{vJk+2}, 13, v{vOA}
        """)
    else:
        A(f"""
    s_lshr_b32 s{sB}, s{sJ0}, 2
    s_and_b32 s{sTmp}, s{sW}, 1
    s_lshl1_add_u32 s{sS}, s{sB}, s{sTmp}
    s_lshl1_add_u32 s{sWb}, s{sH}, s{sTmp}
    s_and_b32 s{sTot}, s{sJ0}, 3
    s_lshr_b32 s{sTmp2}, s{sW}, 1
    s_lshl1_add_u32 s{sPr}, s{sTot}, s{sTmp2}
    s_lshl2_add_u32 s{sTot}, s{sH}, s{sTot}
    s_lshl_b32 s{sTmp}, s{sTot}, 12
    s_lshl_b32 s{sTmp2}, s{sS}, {8 if cml else 3}
    s_add_u32 s{sTmp}, s{sTmp}, s{sTmp2}
    s_add_u32 s{sTmp}, s{sTmp}, {ML_OFF}
    v_lshl_add_u32 v{vMd}, v{vJk+2}, {3 if cml else 7}, s{sTmp}
    s_lshl_b32 s{sTmp}, s{sTot}, 8
    s_add_u32 s{sTmp}, s{sTmp}, {FL_OFF}
    v_lshl_add_u32 v{vFa}, v{vLane}, 2, s{sTmp}
    s_lshl_b32 s{sTmp}, s{sH}, 18
    s_lshl4_add_u32 s{sTmp2}, s{sPr}, s{sS}
    s_lshl_b32 s{sTmp2}, s{sTmp2}, 6
    s_add_u32 s{sTmp}, s{sTmp}, s{sTmp2}
    v_lshl_add_u32 v{vAd}, v{vJk+3}, 4, s{sTmp}
    v_lshl_add_u32 v{vAd}, v{vJk+2}, 13, v{vAd}
    v_add_u32 v{vAd+1}, {16*SB}, v{vAd}
    s_lshl4_add_u32 s{sTmp}, s{sB}, s{sWb}
    s_lshl3_add_u32 s{sTmp}, s{sTmp}, s{sPr}
    s_lshl_b32 s{sTmp}, s{sTmp}, 6
    v_lshl_add_u32 v{vOA}, v{vJk+3}, 4, s{sTmp}
    v_lshl_add_u32 v{vOA}, v{vG}, 2, v{vOA}
    """)
    A(f"""
    s_getreg_b32 s{sPl}, hwreg(HW_REG_XCC_ID, 0, 4)
    L_late_end:
    s_cmp_eq_u32 s{sLt}, 2
    s_cbranch_scc1 L_done2
    s_mov_b32 s{sLt}, 1
    s_branch L_back
    L_late2:
    s_mov_b32 s{sLt}, 2
    s_branch L_late
    """)
    hk = [0]
    def ustamp(last=False):
        if gon and not last:
            hk[0] += 1
            A(f"""
            s_and_b32 s{sTmp}, s{sCu}, 31
            s_add_u32 s{sCu}, s{sCu}, 1
            s_cmp_lg_u32 s{sTmp}, s{sGb}
            s_cbranch_scc1 L_hk{hk[0]}
            s_cmp_gt_u32 s{sCu}, {128-gstop}
            s_cbranch_scc1 L_hk{hk[0]}
            v_mov_b32 v{vGa}, {XL+20}
            ds_read_b32 v{vGa}, v{vGa}
            s_mul_i32 s{sTmp}, s{sCu}, {gstr}
            s_add_u32 s{sTmp}, s{sTmp}, s{sGb+1}
            s_waitcnt lgkmcnt(0)
            v_cmp_ne_u32 vcc, 0, v{vGa}
            s_cbranch_vccz L_hk{hk[0]}
            s_mov_b64 exec, 1
            v_mov_b32 v{vGa}, s{sTmp}
            global_store_byte v{vGa}, v{vGa+1}, s[{sWS}:{sWS+1}] sc1
            s_mov_b64 exec, -1
            L_hk{hk[0]}:
            """)
        if prof: A(f"s_memrealtime s[{sSt}:{sSt+1}]\ns_waitcnt lgkmcnt(0)\ns_lshr_b32 m0, s{sIt}, 1\ns_add_u32 s{sIt}, s{sIt}, 1\ns_min_u32 s{sIt}, s{sIt}, 121\nv_writelane_b32 v{vPf}, s{sSt}, m0")
    vA = vB + 4
    A(f"""
    .p2align 6
    L_pass:
    v_mov_b32 v{vNb}, v{vM}
    L_p1:
    s_xor_b32 s{sTmp}, s{sI}, s{sIsV}
    s_bitcmp0_b32 s{sTmp}, 0
    s_cbranch_scc1 L_mine
    s_barrier
    """)
    ustamp()
    A(f"""
    s_lshr_b32 s{sTmp}, s{sI}, 1
    s_cmp_eq_u32 s{sTmp}, {pat}
    s_cbranch_scc1 L_late
    s_branch L_back
    L_mine:
    v_readlane_b32 s{sPos}, v{vDs}, s{sI}
    v_add_u32 v{vA}, s{sSl}, v{vKA}
    v_xor_b32 v{vA+1}, 64, v{vA}
    v_xor_b32 v{vA+2}, 128, v{vA}
    v_xor_b32 v{vA+3}, 192, v{vA}
    s_lshr_b32 s{sTmp}, s{sPos}, 15
    s_lshl_b64 vcc, s[{sC3}:{sC3+1}], s{sTmp}
    s_bitcmp1_b32 s{sPos}, 19
    s_cselect_b64 vcc, -1, vcc
    s_and_b32 s{sPos}, s{sPos}, 0xff
    s_lshl_b32 s{sPos}, s{sPos}, 5
    v_mov_b32 v{vT1}, s{sPos}
    v_cndmask_b32 v{vT1}, v{vBig}, v{vT1}, vcc
    s_sub_u32 s{sTmp}, s{sI}, s{sN0}
    s_lshl_b32 s{sTmp}, s{sTmp}, 11
    """)
    for r in range(4): A(f"v_cmp_lt_i32 s[{sMk+2*r}:{sMk+2*r+1}], v{vT1}, v{vLim+r}")
    A(f"v_add_u32 v{vT2}, s{sTmp}, v{vSW}")
    for r in range(4): A(f"v_cndmask_b32 v{vB+r}, v{vNi}, 0, s[{sMk+2*r}:{sMk+2*r+1}]")
    A("s_barrier")
    ustamp()
    for s in range(8):
        A(f"ds_read_b128 v[{vKF+4*s}:{vKF+4*s+3}], v{vA+(s&3)} offset:{256*(s>>2)}")
    for s in range(8):
        A(f"s_waitcnt lgkmcnt({7-s})")
        c = "0" if s == 0 else f"v[{vS}:{vS+3}]"
        A(f"v_mfma_f32_16x16x32_bf16 v[{vS}:{vS+3}], v[{vKF+4*s}:{vKF+4*s+3}], v[{vQ+4*s}:{vQ+4*s+3}], {c}")
    A("s_nop 7")
    for r in range(4): A(f"v_fma_f32 v{vX+r}, v{vS+r}, v{vC}, v{vB+r}")
    A(f"""
    ds_write_b128 v{vT2}, v[{vX}:{vX+3}]
    v_max3_f32 v{vNb}, v{vNb}, v{vX}, v{vX+1}
    v_max3_f32 v{vNb}, v{vNb}, v{vX+2}, v{vX+3}
    L_back:
    s_add_u32 s{sSl}, s{sSl}, 16384
    s_cmp_lg_u32 s{sSl}, {RS*16384}
    s_cselect_b32 s{sSl}, s{sSl}, 0
    s_add_u32 s{sI}, s{sI}, 1
    s_cmp_lt_u32 s{sI}, s{sN1}
    s_cbranch_scc1 L_p1
    """)
    if pre == 1: A(f"s_cmp_eq_u32 s{sLt}, 0\ns_cbranch_scc1 L_nopre\nbuffer_load_dword v{vJk}, v{vJk+1}, s[{rW}:{rW+3}], 0 offen sc1\nL_nopre:")
    A(f"""
    v_mov_b32 v{vT1}, v{vNb}
    s_mov_b32 s{sI}, s{sN0}
    s_nop 0
    v_permlane32_swap_b32 v{vNb}, v{vT1}
    v_max_f32 v{vNb}, v{vNb}, v{vT1}
    v_mov_b32 v{vT1}, v{vNb}
    s_nop 1
    v_permlane16_swap_b32 v{vNb}, v{vT1}
    v_max_f32 v{vNb}, v{vNb}, v{vT1}
    ds_write_b32 v{vMW}, v{vNb}
    s_sub_u32 s{sTmp}, s{sN1}, s{sN0}
    s_sub_u32 s{sTmp}, s{sTmp}, 1
    s_mul_i32 s{sTmp}, s{sTmp}, {2048 if rev else 0}
    v_add_u32 v{vT3}, s{sTmp}, v{vSR}
    s_waitcnt lgkmcnt(0)
    s_barrier
    """)
    ustamp()
    A(f"""
    ds_read_b128 v[{vS}:{vS+3}], v{vMR}
    s_mov_b32 s{sU}, 0
    s_waitcnt lgkmcnt(0)
    v_max3_f32 v{vT0}, v{vS}, v{vS+1}, v{vS+2}
    v_max_f32 v{vT0}, v{vT0}, v{vS+3}
    v_sub_f32 v{vAl}, v{vM}, v{vT0}
    v_exp_f32 v{vAl}, v{vAl}
    v_mov_b32 v{vM}, v{vT0}
    v_mul_f32 v{vL}, v{vL}, v{vAl}
    """)
    for i in range(8):
        A(f"v_pk_mul_f32 v[{vO+2*i}:{vO+2*i+1}], v[{vO+2*i}:{vO+2*i+1}], v[{vAl}:{vAl+1}] op_sel_hi:[1,0]")
    A(f"""
    L_p2:
    ds_read_b128 v[{vX}:{vX+3}], v{vT3}
    ds_read_b128 v[{vX+4}:{vX+7}], v{vT3} offset:1024
    v_add_u32 v{vA}, s{sSl}, v{vVA}
    v_add_u32 v{vA+1}, s{sSl}, v{vVA+1}
    v_add_u32 v{vT3}, {-2048 if rev else 2048}, v{vT3}
    s_add_u32 s{sSl}, s{sSl}, 16384
    s_cmp_lg_u32 s{sSl}, {RS*16384}
    s_cselect_b32 s{sSl}, s{sSl}, 0
    s_add_u32 s{sI}, s{sI}, 1
    s_cmp_eq_u32 s{sU}, 0
    s_mov_b32 s{sU}, 1
    s_waitcnt lgkmcnt(0)
    """)
    for r in range(8): A(f"v_sub_f32 v{vX+r}, v{vX+r}, v{vM}")
    for r in range(8): A(f"v_exp_f32 v{vX+r}, v{vX+r}")
    for j in range(4): A(f"v_cvt_pk_bf16_f32 v{vP+j}, v{vX+2*j}, v{vX+2*j+1}")
    A(f"""
    v_add_f32 v{vL}, v{vL}, v{vX}
    v_add_f32 v{vT0}, v{vX+1}, v{vX+2}
    v_add_f32 v{vT1}, v{vX+3}, v{vX+4}
    v_add_f32 v{vT2}, v{vX+5}, v{vX+6}
    v_add_f32 v{vL}, v{vL}, v{vX+7}
    v_add_f32 v{vT0}, v{vT0}, v{vT1}
    v_add_f32 v{vL}, v{vL}, v{vT2}
    v_add_f32 v{vL}, v{vL}, v{vT0}
    """)
    def pv(inter=None):
        for i in range(4):
            for h in range(2):
                r = vVF + 4*i + 2*h
                A(f"ds_read_b64_tr_b16 v[{r}:{r+1}], v{vA+(i>>1)} offset:{8192*h + 8*(i&1)}")
        if inter: A(inter)
        for i in range(4):
            A(f"s_waitcnt lgkmcnt({6-2*i})")
            A(f"v_mfma_f32_16x16x32_bf16 v[{vO+4*i}:{vO+4*i+3}], v[{vVF+4*i}:{vVF+4*i+3}], v[{vP}:{vP+3}], v[{vO+4*i}:{vO+4*i+3}]")
    vF = vT3
    A(f"""
    s_cselect_b32 s{sPos}, 1, 2
    s_cmp_eq_u32 s{sI}, s{sN}
    s_cbranch_scc1 L_done
    s_cmp_eq_u32 s{sPos}, 1
    s_cbranch_scc1 L_nb
    s_barrier
    """)
    ustamp()
    A("L_nb:")
    pv(f"s_cmp_lt_u32 s{sI}, s{sN1}")
    A(f"""
    s_cbranch_scc1 L_p2
    s_mov_b32 s{sN0}, s{sN1}
    s_add_u32 s{sN1}, s{sN1}, {CH}
    s_min_u32 s{sN1}, s{sN1}, s{sN}
    s_branch L_pass
    L_done:
    s_cmp_eq_u32 s{sLt}, 0
    s_cbranch_scc1 L_late2
    L_done2:
    global_load_dword v{vT0}, v{vRd}, s[{sDBG}:{sDBG+1}] sc1
    v_mov_b32 v{vT1}, v{vL}
    v_mov_b32 v{vAl}, v{vM}
    s_mov_b32 s{sCnt}, 0
    v_permlane32_swap_b32 v{vL}, v{vT1}
    v_add_f32 v{vL}, v{vL}, v{vT1}
    v_mov_b32 v{vT1}, v{vL}
    s_mov_b32 s{sReg}, 0
    v_mov_b32 v{vT2}, 1
    v_permlane16_swap_b32 v{vL}, v{vT1}
    v_add_f32 v{vAl+1}, v{vL}, v{vT1}
    s_cmp_lg_u32 s{sPl}, s{sH}
    s_cbranch_scc1 L_noml
    s_mov_b64 exec, 0xffff
    buffer_store_dwordx2 v[{vAl}:{vAl+1}], v{vMO}, s[{rW}:{rW+3}], 0 offen {mlp}
    s_mov_b64 exec, -1
    L_noml:
    s_cmp_eq_u32 s{sPos}, 0
    s_cbranch_scc1 L_nopv
    s_cmp_eq_u32 s{sPos}, 1
    s_cbranch_scc1 L_nb2
    s_barrier
    """)
    ustamp(True)
    A("L_nb2:")
    pv()
    A(f"L_nopv:")
    stamp(3)
    A(f"s_cmp_eq_u32 s{sPl}, s{sH}\ns_nop 2")
    for j in range(4): A(f"v_cvt_pk_bf16_f32 v{vX+j}, v{vO+2*j}, v{vO+2*j+1}")
    A("s_nop 0")
    for j in range(4, 8): A(f"v_cvt_pk_bf16_f32 v{vX+j}, v{vO+2*j}, v{vO+2*j+1}")
    A(f"s_cbranch_scc0 L_slow")
    def publish(sc, tag, foff):
        for ih in range(2):
            A(f"buffer_store_dwordx4 v[{vX+4*ih}:{vX+4*ih+3}], v{vSO}, s[{rW}:{rW+3}], s{sReg} offen offset:{1024*ih} {sc or stp}")
        if sc: A(f"s_mov_b64 exec, 0xffff\nbuffer_store_dwordx2 v[{vAl}:{vAl+1}], v{vMO}, s[{rW}:{rW+3}], s{sReg} offen {sc}")
        A(f"""
        s_mov_b64 exec, 1
        L_rdy{tag}:
        s_waitcnt vmcnt(0)
        v_cmp_eq_u32 vcc, 0, v{vT0}
        s_cbranch_vccz L_rok{tag}
        s_add_u32 s{sCnt}, s{sCnt}, 1
        s_cmp_ge_u32 s{sCnt}, 0x40000
        s_cbranch_scc1 L_rok{tag}
        global_load_dword v{vT0}, v{vRd}, s[{sDBG}:{sDBG+1}] sc1
        s_branch L_rdy{tag}
        L_rok{tag}:
        buffer_store_dword v{vT2}, v{vFo}, s[{rW}:{rW+3}], 0 offen offset:{foff} {sc}
        s_mov_b64 exec, -1
        """)
    publish("", "a", 0)
    stamp(4)
    A(f"""
    L_poll:
    buffer_load_dword v{vF}, v{vFa}, s[{rW}:{rW+3}], 0 offen sc1
    s_add_u32 s{sCnt}, s{sCnt}, 1
    s_waitcnt vmcnt(0)
    v_cmp_ne_u32 vcc, 0, v{vF}
    s_cmp_eq_u32 vcc_lo, -1
    s_cbranch_scc1 L_got
    s_cmp_lg_u32 vcc_hi, 0
    s_cbranch_scc1 L_slow
    s_cmp_lt_u32 s{sCnt}, 0x40000
    s_cbranch_scc1 L_poll
    L_got:
    """)
    stamp(5)
    vD = vKF; vML = vKF + 8; vAc = vKF + 16
    for k in range(2):
        A(f"buffer_load_dwordx2 v[{vML+2*k}:{vML+2*k+1}], v{vMd}, s[{rW}:{rW+3}], s{sReg} offen offset:{(128 if cml else 2048)*k} sc1")
    for k in range(2):
        A(f"buffer_load_dwordx4 v[{vD+4*k}:{vD+4*k+3}], v{vAd+k}, s[{rW}:{rW+3}], s{sReg} offen sc1")
    A(f"s_waitcnt vmcnt(2)")
    stamp(7)
    A(f"v_max_f32 v{vT0}, v{vML}, v{vML+2}")
    for ro in (4, 8):
        A(f"s_nop 1\nv_max_f32_dpp v{vT0}, v{vT0}, v{vT0} row_ror:{ro} row_mask:0xf bank_mask:0xf")
    A(f"""
    v_mov_b32 v{vT1}, v{vT0}
    s_nop 1
    v_permlane32_swap_b32 v{vT0}, v{vT1}
    v_max_f32 v{vT0}, v{vT0}, v{vT1}
    v_mov_b32 v{vT1}, v{vT0}
    s_nop 1
    v_permlane16_swap_b32 v{vT0}, v{vT1}
    v_max_f32 v{vT0}, v{vT0}, v{vT1}
    """)
    for k in range(2): A(f"v_sub_f32 v{vML+2*k}, v{vML+2*k}, v{vT0}")
    for k in range(2): A(f"v_exp_f32 v{vML+2*k}, v{vML+2*k}")
    vLs = vAc + 8
    A(f"v_mul_f32 v{vLs}, v{vML}, v{vML+1}\nv_fmac_f32 v{vLs}, v{vML+2}, v{vML+3}")
    for k in range(2):
        A(f"s_waitcnt vmcnt({1-k})")
        op = "v_mul_f32" if k == 0 else "v_fmac_f32"
        for j in range(4):
            A(f"v_lshlrev_b32 v{vT1}, 16, v{vD+4*k+j}\nv_and_b32 v{vT2}, 0xffff0000, v{vD+4*k+j}")
            A(f"{op} v{vAc+2*j}, v{vML+2*k}, v{vT1}\n{op} v{vAc+2*j+1}, v{vML+2*k}, v{vT2}")
    if wb == 2: A(f"s_or_b32 s{sTmp}, s{sJ0}, s{sW}\ns_cbranch_scc1 L_nowb\nbuffer_wbl2 sc1\nL_nowb:")
    stamp(8)
    A(f"v_mov_b32 v{vLs+1}, v{vLs}")
    for j in range(4): A(f"v_permlane32_swap_b32 v{vAc+j}, v{vAc+4+j}")
    A(f"v_permlane32_swap_b32 v{vLs}, v{vLs+1}")
    A(f"v_add_f32 v{vLs}, v{vLs}, v{vLs+1}")
    for j in range(4): A(f"v_add_f32 v{vAc+j}, v{vAc+j}, v{vAc+4+j}")
    A(f"v_mov_b32 v{vLs+1}, v{vLs}\ns_nop 0")
    for j in range(2): A(f"v_permlane16_swap_b32 v{vAc+j}, v{vAc+2+j}")
    A(f"v_permlane16_swap_b32 v{vLs}, v{vLs+1}")
    A(f"v_add_f32 v{vLs}, v{vLs}, v{vLs+1}")
    for j in range(2): A(f"v_add_f32 v{vAc+j}, v{vAc+j}, v{vAc+2+j}")
    for ro in (4, 8):
        for r in (vLs, vAc, vAc+1): A(f"v_add_f32_dpp v{r}, v{r}, v{r} row_ror:{ro} row_mask:0xf bank_mask:0xf")
    A(f"""
    v_rcp_f32 v{vLs}, v{vLs}
    s_mov_b32 exec_lo, 0x000f000f
    s_mov_b32 exec_hi, 0x000f000f
    v_mul_f32 v{vAc}, v{vAc}, v{vLs}
    v_mul_f32 v{vAc+1}, v{vAc+1}, v{vLs}
    v_cvt_pk_bf16_f32 v{vAc}, v{vAc}, v{vAc+1}
    global_store_dword v{vOA}, v{vAc}, s[{sOUT}:{sOUT+1}] {outpol}
    """)
    if wb == 3: A(f"s_or_b32 s{sTmp}, s{sJ0}, s{sW}\ns_cbranch_scc1 L_nowb\nbuffer_wbl2 sc1\nL_nowb:")
    stamp(9)
    if prof: A("s_mov_b64 exec, -1\ns_waitcnt vmcnt(0)")
    stamp(6)
    if prof == 2:
        a, b = diag
        A(f"""
        s_nop 1
        v_readlane_b32 s{sF}, v{vPf}, 0
        v_readlane_b32 s{sF+1}, v{vPf}, {a}
        v_readlane_b32 s{sF+2}, v{vPf}, {b}
        s_sub_u32 s{sF+1}, s{sF+2}, s{sF+1}
        s_min_u32 s{sF+1}, s{sF+1}, 20000
        s_mul_i32 s{sF+1}, s{sF+1}, {diagmul}
        """)
        if diagwg >= 0: A(f"s_cmp_eq_u32 s2, {diagwg}\ns_cselect_b32 s{sF+1}, s{sF+1}, 0")
        A(f"""
        s_add_u32 s{sF+1}, s{sF+1}, 10000
        L_spin:
        s_memrealtime s[{sSt}:{sSt+1}]
        s_waitcnt lgkmcnt(0)
        s_sub_u32 s{sF+2}, s{sSt}, s{sF}
        s_cmp_lt_u32 s{sF+2}, s{sF+1}
        s_cbranch_scc1 L_spin
        """)
    if prof == 1:
        A(f"""
        v_writelane_b32 v{vPf}, s{sPl}, 62
        v_writelane_b32 v{vPf}, s{sCnt}, 63
        s_lshl_b32 s{sTmp}, s2, 2
        s_add_u32 s{sTmp}, s{sTmp}, s{sW}
        s_lshl_b32 s{sTmp}, s{sTmp}, 8
        s_add_u32 s{sTmp}, s{sTmp}, {PROF_OFF}
        v_lshlrev_b32 v{vT0}, 2, v{vLane}
        buffer_store_dword v{vPf}, v{vT0}, s[{rW}:{rW+3}], s{sTmp} offen
        """)
    A("s_endpgm")
    A(f"L_slow:\ns_mov_b32 s{sReg}, {REG}")
    publish("sc1", "b", 128)
    A(f"""
    L_poll2:
    buffer_load_dword v{vF}, v{vFa}, s[{rW}:{rW+3}], 0 offen sc1
    s_add_u32 s{sCnt}, s{sCnt}, 1
    s_waitcnt vmcnt(0)
    v_cmp_ne_u32 vcc, 0, v{vF}
    s_cmp_eq_u32 vcc_hi, -1
    s_cbranch_scc1 L_got
    s_sleep 2
    s_cmp_lt_u32 s{sCnt}, 0x40000
    s_cbranch_scc1 L_poll2
    s_branch L_got
    """)
    A("L_end:\ns_endpgm")
    A(f""".section .rodata,"a"
.p2align 6
.amdhsa_kernel {KN}
.amdhsa_next_free_vgpr {NV}
.amdhsa_next_free_sgpr {NS}
.amdhsa_accum_offset {(NV+3)//4*4}
.amdhsa_group_segment_fixed_size 0
.amdhsa_kernarg_size 64
.amdhsa_user_sgpr_count 2
.amdhsa_user_sgpr_kernarg_segment_ptr 1
.amdhsa_system_sgpr_workgroup_id_x 1
.end_amdhsa_kernel""")
    return A.text()

if __name__ == "__main__":
    out = sys.argv[1]
    kw = {}
    for kv in sys.argv[2:]:
        k, v = kv.split("=")
        if "," in v: kw[k] = tuple(int(x) for x in v.split(","))
        else: kw[k] = int(v) if v.lstrip("-").isdigit() else v.replace("+", " ")
    open(out, "w").write(gen(**kw))
```

```python
import sys
from gen import Asm, HEADER, NAME, KN

def gen(prof=0, pol="nt", diag=None, diagwg=-1, diagmul=10, pfi=1, remap=0, pre=3, pat=2, pst=0,
        WE=21, WO=21, step=1, prio=3, W0=28, b0=0, p1=56, WT=0, ta=3, tb=0, fb=(18,20,21,23,27), th=(-110,-90,-70,-50), rev=1, lagprof=0, neu=-80, lead=31, us=9, pb=3, pk=1, fin=1, pp=16, qe=1, p2=72, RS=6, CH=30, a0=0, pbs=(72, 80, 88, 96), cml=1, early=0, lin=0, stp="", outpol="", wb=0, mlp="", mlonly=0, ek=0, eb=0, gx=30, gk=8, gd=(2,3,4), gsh=1, gmax=24, gstr=4352, gon=1, gw=0, gstop=8, gab=28, gdel=7, sp=0, spst=64, lst=None, lp=24, cb=(3, 11)):
    NWG = 256
    SB = 8192
    ML_OFF = NWG * SB
    REG = ML_OFF + 32 * 4096
    FL_OFF = 2 * REG
    PG_OFF = FL_OFF + 32 * 256
    GX_OFF = PG_OFF + 8 * 256
    WS_BYTES = GX_OFF + 128 * gstr
    PROF_OFF = 8 << 20
    SC = RS * 16384
    TL = SC
    QL = SC + 32768
    OL = SC + 49152
    XL = SC + CH * 2048
    MX = XL + 64
    LDS = MX + 256
    KVB = 2304 * 65536
    NEGBIG = 0xFF000000
    CSC = 0x3DB8AA3B
    if diag is not None: prof = 2
    A = Asm()
    vLane, vG, vQi = 0, 1, 2
    vT0, vT1, vT2, vT3 = 3, 4, 5, 6
    vCtx, vC, vM, vL = 7, 8, 9, 10
    vPf = 11
    vAl = 12
    vOf = 14; vNb = 15
    vP = 16
    vS = 20
    vB = 28
    vX = 36
    vLim = 44
    vDs = 48; vBig = 49
    vQD = 50
    vNi = 50
    vKA = 52
    vDO = 56
    vVA = 60
    vSO = 62; vMO = 63
    vQ = 64
    vKF = 96
    vVF = 160
    vO = 176
    vAd = 192
    vMd = 194; vFa = 195; vOA = 196; vFo = 197; vRd = 198
    vJk = 200
    vGa = 204
    NV = 208
    sQ, sK, sV, sBT, sCTX, sOUT, sDBG, sWS = 4, 6, 8, 10, 12, 14, 16, 18
    rK, rV, rW, rQ, rT = 20, 24, 28, 32, 36
    sLt = 40; sReg = 41; sCnt = 42; sPl = 43
    sO4 = 44
    sCm = 48
    sN4 = 64
    sPos = 52; sU = 53; sN0 = 50; sN1 = 51; sIsV = 62; sSl = 69
    sC3 = 54
    sN = 56; sI = 57; sLB = 58; sTmp = 59; sTmp2 = 60; sS = 61; sIt = 63
    sPr = 68
    sH = 70; sJ0 = 71
    sMk = 72
    sF = 72
    sSt = 88
    sW = 90; sB = 91; sTot = 92; sWb = 93
    sBe = 98; sGb = 100; sCu = 3
    NS = 102
    def stamp(i, grp=0):
        if not prof: return
        if i >= 7 and grp != pst: return
        A(f"s_memrealtime s[{sSt}:{sSt+1}]\ns_waitcnt lgkmcnt(0)\nv_writelane_b32 v{vPf}, s{sSt}, {i}")

    A(HEADER)
    A("""
;
;
;
;
;
;
""")
    if prof == 1: A("; prof=1\n; proftile=8192")
    A(f"; @launch grid=({NWG},1,1) block=(320,1,1) lds={LDS}")
    A('.amdgcn_target "amdgcn-amd-amdhsa--gfx950"\n.text')
    A(f".globl {KN}\n.p2align 8\n.type {KN},@function\n{KN}:")
    A(f"s_cmpk_ge_u32 s2, {NWG}\ns_cbranch_scc1 L_end")
    if prof: A(f"v_mov_b32 v{vPf}, 0\ns_mov_b32 s{sIt}, 32")
    stamp(0)
    if lst: A("s_memrealtime s[32:33]")
    A("s_load_dwordx16 s[4:19], s[0:1], 0")
    if pfi:
        A(f"""
        s_getpc_b64 s[{sCm}:{sCm+1}]
        L_pf1:
        v_lshlrev_b32 v{vJk+2}, 7, v0
        v_min_u32 v{vJk+2}, L_end-L_pf1, v{vJk+2}
        global_load_dword v{vJk}, v{vJk+2}, s[{sCm}:{sCm+1}]
        """)
    if remap == 1: A("s_lshr_b32 s3, s2, 3\ns_cmp_eq_u32 s3, 5\ns_cselect_b32 s3, 1, 0\ns_xor_b32 s2, s2, s3")
    if remap == 2: A("s_lshr_b32 s3, s2, 3\ns_and_b32 s3, s3, 7\ns_xor_b32 s2, s2, s3")
    if remap == 3: A("s_xor_b32 s2, s2, 3")
    A(f"""
    v_readfirstlane_b32 s{sW}, v0
    v_bfe_u32 v{vT0}, v0, 5, 1
    v_and_b32 v{vT1}, 31, v0
    v_lshlrev_b32 v{vT1}, 4, v{vT1}
    v_lshlrev_b32 v{vT2}, 5, v{vT0}
    s_and_b32 s{sH}, s2, 7
    s_lshr_b32 s{sJ0}, s2, 3
    s_cmp_lg_u32 s{sW}, 0
    s_cbranch_scc1 L_cons
    v_xor_b32 v{vT1}, v{vT1}, v{vT2}
    v_lshl_add_u32 v{vDO}, v{vT0}, 12, v{vT1}
    s_lshl_b32 s{sPr}, s{sJ0}, 8
    s_add_u32 s{sPr}, s{sPr}, s{sH}
    s_lshl_b32 s{sTot if lp else sO4}, s{sPr}, 9
    s_mov_b32 s{rK+2}, {KVB}
    s_mov_b32 s{rK+3}, 0x20000
    """)
    for jl in range(1, 4):
        A(f"v_xor_b32 v{vDO+jl}, {64*jl}, v{vDO}\nv_add_u32 v{vDO+jl}, {7168*jl}, v{vDO+jl}")
    if lp: A(f"s_mov_b32 m0, 0\ns_movk_i32 s{sN}, 4096\ns_lshl_b32 s{sN0}, s{sN}, 3\ns_mov_b32 s{sN1}, {64*65536 - 3*32768}")
    A(f"s_setprio {prio}\ns_waitcnt lgkmcnt(0)")
    def qissue():
        A(f"""
        s_lshr_b32 s{sW}, s{sB}, 6
        s_mov_b32 s{rQ+2}, 65536
        s_mov_b32 s{rQ+3}, 0x20000
        s_and_b32 s{sTmp}, s{sW}, 1
        s_lshl_b32 s{sTmp}, s{sTmp}, 7
        v_xor_b32 v{vT1}, s{sTmp}, v{vT1}
        v_lshl_add_u32 v{vQD}, v{vT0}, 9, v{vT1}
        v_xor_b32 v{vQD+1}, 64, v{vQD}
        s_lshl4_add_u32 s{sS}, s{sW}, s{sH}
        s_lshl_b32 s{sS}, s{sS}, 10
        s_add_u32 s{sTmp2}, s{sS}, {8192-1024}
        s_lshr_b32 s{sTmp}, s{sLB}, 1
        s_add_u32 m0, s{sTmp}, {QL}
        s_mov_b32 s{rQ}, s{sQ}
        s_and_b32 s{rQ+1}, s{sQ+1}, 0xffff
        buffer_load_dwordx4 v{vQD}, s[{rQ}:{rQ+3}], s{sS} offen lds
        buffer_load_dwordx4 v{vQD+1}, s[{rQ}:{rQ+3}], s{sTmp2} offen offset:1024 lds
        """)

    def verify():
        A(f"""
        s_barrier
        ds_read_b128 v[{vX}:{vX+3}], v{vT1}
        ds_read_b32 v{vT2}, v{vT2}
        s_mov_b32 s{sN0}, 0
        s_mov_b32 s{sIsV}, 0
        s_mov_b32 s{sI}, {RS-1}
        s_mov_b32 s{sU}, {RS}
        s_mov_b32 s{sLB}, 0
        s_waitcnt lgkmcnt(0)
        v_readfirstlane_b32 s{sN}, v{vT2}
        v_cmp_eq_u32 vcc, v{vX}, v{vT0}
        v_cmp_eq_u32 s[{sMk}:{sMk+1}], v{vX+1}, v{vS+1}
        v_cmp_eq_u32 s[{sMk+2}:{sMk+3}], v{vX+2}, v{vS+2}
        v_cmp_eq_u32 s[{sMk+4}:{sMk+5}], v{vX+3}, v{vS+3}
        s_min_u32 s{sN1}, s{sN}, {CH}
        s_lshl1_add_u32 s{sTot}, s{sN}, {0 if fin else 2}
        s_and_b32 s{sTmp}, vcc_lo, s{sMk}
        s_and_b32 s{sTmp2}, s{sMk+2}, s{sMk+4}
        s_and_b32 s{sTmp}, s{sTmp}, s{sTmp2}
        s_and_b32 s{sTmp2}, s{sTmp}, {(1 << RS) - 1}
        s_cmp_eq_u32 s{sTmp2}, {(1 << RS) - 1}
        s_cbranch_scc0 L_misspec
        """)

    cnt = 0
    NCU = RS - 2 - len(pbs)
    assert NCU >= 0 and len(pbs) >= 2
    def dbar():
        for i, pos in enumerate(pbs):
            if pos == cnt:
                assert pos >= p2 and pos >= 16*(i+1)
                A(f"s_waitcnt vmcnt({min(cnt - 16*(i+1), 63)})\ns_barrier")
    if lp:
        A(f"""
        s_mov_b64 s[{rK}:{rK+1}], s[{sK}:{sK+1}]
        L_burst:
        """)
        for jl in range(4): A(f"buffer_load_dwordx4 v{vDO+jl}, s[{rK}:{rK+3}], s{sTot} offen offset:{1024*jl} {pol} lds")
        A(f"""
        s_add_u32 m0, m0, s{sN}
        s_cmpk_eq_u32 m0, 16384
        s_cselect_b32 s{sTmp}, s{sN1}, s{sN0}
        s_add_u32 s{sTot}, s{sTot}, s{sTmp}
        s_cmpk_lg_u32 m0, {lp*1024}
        s_cbranch_scc1 L_burst
        s_lshl_b32 s{sO4}, s{sPr}, 9
        """)
    for u in range(RS):
        for w in range(4):
            if cnt < lp:
                cnt += 4
                if cnt < lp or cnt != W0 // 4 * 4: continue
                raise AssertionError("lp must be below W0")
            if lst and cnt in lst: A(f"s_memrealtime s[{34+2*lst.index(cnt)}:{35+2*lst.index(cnt)}]")
            if cnt == p2: verify()
            dbar()
            if sp and cnt == sp - 1:
                A(f"""
                s_lshl_b32 s{sTmp}, s{sJ0}, 9
                s_add_u32 s{sGb}, s{sBT}, s{sTmp}
                s_addc_u32 s{sGb+1}, s{sBT+1}, 0
                s_lshr_b32 s{sTmp}, s{sJ0}, 2
                s_lshl3_add_u32 s{sTmp}, s{sTmp}, s{sH}
                s_and_b32 s{sTmp2}, s{sJ0}, 3
                s_lshl2_add_u32 s{sTmp}, s{sTmp}, s{sTmp2}
                s_lshl_b32 s{sTmp}, s{sTmp}, 8
                s_add_u32 s{sBe}, s{sQ}, s{sTmp}
                s_addc_u32 s{sBe+1}, s{sQ+1}, 0
                """)
                i = 0
                for o in range(0, 512, spst): A(f"s_load_dword s{sMk+i}, s[{sGb}:{sGb+1}], {o}"); i += 1
                for o in range(0, 256, spst): A(f"s_load_dword s{sMk+i}, s[{sBe}:{sBe+1}], {o}"); i += 1
                A(f"s_load_dword s{sMk+i}, s[{sCTX}:{sCTX+1}], 0")
            A(f"s_mov_b32 m0, {u*16384 + w*4096}")
            if cnt == 0: A(f"s_mov_b32 s{rK}, s{sK}\ns_and_b32 s{rK+1}, s{sK+1}, 0xffff")
            else: A(f"s_add_u32 s{sTmp}, s{sO4}, {32768*w + u*64*65536}")
            for jl in range(4):
                if b0 and cnt == b0 - 1: A("s_barrier")
                if cnt == p1 or (a0 and cnt == a0 and a0 != W0 // 4 * 4): A("s_barrier")
                if cnt >= W0: A(f"s_waitcnt vmcnt({W0-1})")
                A(f"buffer_load_dwordx4 v{vDO+jl}, s[{rK}:{rK+3}], s{sO4 if cnt < 4 else sTmp} offen offset:{1024*jl} {pol} lds")
                cnt += 1
            if cnt == W0 // 4 * 4:
                if a0 == cnt: A('s_barrier')
                A(f"""
                s_and_b32 s{sK+1}, s{sK+1}, 0xffff
                s_and_b32 s{sV+1}, s{sV+1}, 0xffff
                v_lshl_add_u32 v{vT0}, v0, 22, s{sO4}
                v_lshlrev_b32 v{vT1}, 4, v0
                v_add_u32 v{vT1}, {OL}, v{vT1}
                v_mov_b32 v{vT2}, {XL+16}
                v_add_u32 v{vS+1}, 32768, v{vT0}
                v_add_u32 v{vS+2}, 65536, v{vT0}
                v_add_u32 v{vS+3}, 98304, v{vT0}
                """)
                if pre == 3: A(f"""
                s_lshl_b32 s{sTmp2}, s{sH}, 5
                s_add_u32 s{sTmp2}, s{sTmp2}, s{sJ0}
                s_lshl_b32 s{sTmp2}, s{sTmp2}, 13
                v_lshl_add_u32 v{vB}, v0, 6, s{sTmp2}
                v_add_u32 v{vB+1}, 4096, v{vB}
                s_lshl_b32 s{sTmp2}, s{sH}, 7
                s_add_u32 s{sTmp2}, s{sTmp2}, s{sJ0}
                s_lshl_b32 s{sTmp2}, s{sTmp2}, 7
                s_add_u32 s{sTmp2}, s{sTmp2}, {ML_OFF}
                v_and_b32 v{vB+2}, 1, v0
                v_lshl_add_u32 v{vB+2}, v{vB+2}, 6, s{sTmp2}
                v_bfe_u32 v{vB+3}, v0, 1, 2
                v_lshl_add_u32 v{vB+2}, v{vB+3}, 12, v{vB+2}
                """)
    if p2 == cnt: verify()
    dbar()
    A(f"""
    L_lgo:
    """)
    if fb:
        E = 2
        sEx = 94
        rP = 96
        vPg = vP; vPa = vP+1; vPo = vP+2; vPv = vP+3
        A(f"""
        s_mov_b32 s{rW}, s{sWS}
        s_and_b32 s{rW+1}, s{sWS+1}, 0xffff
        s_mov_b32 s{rW+2}, {WS_BYTES}
        s_mov_b32 s{rW+3}, 0x20000
        s_mov_b64 s[{rP}:{rP+1}], s[{sDBG}:{sDBG+1}]
        v_and_b32 v{vPa}, 7, v0
        v_lshlrev_b32 v{vPa}, 5, v{vPa}
        v_mov_b32 v{vPo}, 0x7f000000
        v_mov_b32 v{vPg}, 0
        s_mov_b32 s{sEx}, -1
        s_mov_b32 s{sEx+1}, 0
        s_mov_b32 s{sS}, 0
        s_sub_u32 s{sWb}, 256, s{sTot}
        s_bitcmp1_b32 s{sH}, 0
        s_cselect_b32 s{sB}, {-pb}, {pb}
        s_mov_b32 s{sBe}, 0
        s_mov_b32 s{sBe+1}, 0
        s_add_u32 s{sGb}, s{sWS}, {GX_OFF}
        s_addc_u32 s{sGb+1}, s{sWS+1}, 0
        s_lshl_b32 s{sPr}, s{sH}, 3
        s_cmp_eq_u32 s{sJ0}, {gx if gon else 99}
        s_mov_b32 s{sCu}, -1
        s_cselect_b32 s{sTmp}, {gab}, 0
        s_add_i32 s{sB}, s{sB}, s{sTmp}
        """)
        for i in range(len(gd)): A(f"s_mov_b64 s[{sMk+2*i}:{sMk+2*i+1}], 0")
        if NCU: A(f"s_cmp_lg_u32 s{sU}, 0\ns_cbranch_scc1 L_llc")
        A(f"""
        s_branch L_lle
        L_gx:
        {"s_waitcnt lgkmcnt(0)" if gw else ""}
        s_mov_b32 s{sTmp}, 0
        """)
        for i in range(len(gd)):
            A(f"""
            s_bcnt1_i32_b64 s{sTmp2}, s[{sMk+2*i}:{sMk+2*i+1}]
            s_add_i32 s{sTmp}, s{sTmp}, s{sTmp2}
            s_bitcmp1_b64 s[{sMk+2*i}:{sMk+2*i+1}], s{sPr}
            s_cselect_b32 s{sTmp2}, 8, 0
            s_sub_i32 s{sTmp}, s{sTmp}, s{sTmp2}
            """)
        if lagprof == 2: A(f"s_mov_b32 m0, s{sU}\ns_nop 0\nv_writelane_b32 v{vQ}, s{sTmp}, m0")
        for i, d in enumerate(gd):
            A(f"s_add_u32 s{sTmp2}, s{sU}, s{sWb}\ns_sub_u32 s{sTmp2}, s{sTmp2}, {128+d}\ns_mul_i32 s{sTmp2}, s{sTmp2}, {gstr}\ns_load_dwordx2 s[{sMk+2*i}:{sMk+2*i+1}], s[{sGb}:{sGb+1}], s{sTmp2} glc")
        A(f"""
        s_mul_i32 s{sTmp}, s{sTmp}, {gk}
        s_ashr_i32 s{sTmp2}, s{sBe+1}, {gsh}
        s_sub_i32 s{sBe+1}, s{sBe+1}, s{sTmp2}
        s_add_i32 s{sBe+1}, s{sBe+1}, s{sTmp}
        s_ashr_i32 s{sBe}, s{sBe+1}, {gsh+2}
        s_min_i32 s{sBe}, s{sBe}, {gmax}
        s_max_i32 s{sBe}, s{sBe}, {-gmax}
        s_add_u32 s{sTmp}, s{sU}, {gstop}
        s_add_u32 s{sCu}, s{sU}, 2
        s_cmp_lt_u32 s{sTmp}, s{sTot}
        s_cselect_b32 s{sCu}, s{sCu}, -1
        s_branch L_gxd
        L_ltop:
        s_cmp_eq_u32 s{sU}, s{sCu}
        s_cbranch_scc1 L_gx
        L_gxd:
        v_add_u32_dpp v{vT0}, v{vPg}, v{vPg} row_ror:1 row_mask:0xf bank_mask:0xf
        v_cmp_gt_u32 vcc, 2, v{vPg}
        s_add_u32 s{sPos}, s{sU}, s{sWb}
        v_add_u32_dpp v{vT0}, v{vT0}, v{vT0} row_ror:2 row_mask:0xf bank_mask:0xf
        s_add_i32 s{sTmp2}, s{sPos}, s{sBe}
        v_mov_b32 v{vPv}, s{sTmp2}
        s_add_u32 s{sTmp2}, s{sS}, 16
        v_add_u32_dpp v{vT0}, v{vT0}, v{vT0} row_ror:4 row_mask:0xf bank_mask:0xf
        s_mov_b64 exec, 1
        buffer_store_dword v{vPv}, v{vPo}, s[{rW}:{rW+3}], 0 offen
        s_mov_b64 exec, s[{sEx}:{sEx+1}]
        global_load_dword v{vPg}, v{vPa}, s[{rP}:{rP+1}] sc1
        s_mov_b64 exec, -1
        v_add_u32_dpp v{vT0}, v{vT0}, v{vT0} row_ror:8 row_mask:0xf bank_mask:0xf
        s_lshl_b32 s{sPos}, s{sPos}, 5
        v_readlane_b32 s{sTmp}, v{vT0}, s{sS}
        v_readlane_b32 s{sTmp2}, v{vT0}, s{sTmp2}
        s_xor_b32 s{sS}, s{sS}, 32
        s_add_u32 s{sTmp}, s{sTmp}, s{sTmp2}
        s_sub_i32 s{sPos}, s{sTmp}, s{sPos}
        s_add_i32 s{sPos}, s{sPos}, s{sB}
        s_and_b64 vcc, vcc, s[{sEx}:{sEx+1}]
        s_cselect_b32 s{sPos}, {neu}, s{sPos}
        s_not_b64 s[{sEx}:{sEx+1}], s[{sEx}:{sEx+1}]
        s_cmp_lg_u32 s{sTmp}, 32
        s_cbranch_scc1 L_lsel
        s_mov_b64 s[{rP}:{rP+1}], s[{sWS}:{sWS+1}]
        s_lshl_b32 s{sTmp}, s{sH}, 8
        s_add_u32 s{sTmp}, s{sTmp}, {PG_OFF}
        v_and_b32 v{vPa}, 31, v0
        v_lshl_add_u32 v{vPa}, v{vPa}, 2, s{sTmp}
        s_lshl2_add_u32 s{sTmp}, s{sJ0}, s{sTmp}
        v_mov_b32 v{vPo}, s{sTmp}
        v_mov_b32 v{vT1}, {XL+20}
        s_add_u32 s{sTmp}, s{sU}, {gdel}
        ds_write_b32 v{vT1}, v{vT1}
        s_cmp_eq_u32 s{sJ0}, {gx if gon else 99}
        s_cselect_b32 s{sCu}, s{sTmp}, -1
        L_lsel:
        """)
        if lagprof == 1: A(f"s_mov_b32 m0, s{sU}\ns_nop 0\nv_writelane_b32 v{vQ}, s{sPos}, m0")
        if ek: A(f"s_sub_u32 s{sTmp}, s{sTot}, s{sU}\ns_cmp_le_u32 s{sTmp}, {ek}\ns_cselect_b32 s{sTmp}, {eb}, 0\ns_add_i32 s{sPos}, s{sPos}, s{sTmp}")
        variants = [(f"f{i}", W) for i, W in enumerate(fb)] + [("e", WE)] + ([("c", WE)] if NCU else [])
        for i in range(len(th)-1, -1, -1):
            A(f"s_cmp_gt_i32 s{sPos}, {th[i]}\ns_cbranch_scc1 L_llf{i+1}")
    else:
        E = 0
        variants = [("e", WE)] if WE == WO else [("e", WE), ("o", WO)]
        if len(variants) > 1: A(f"s_bitcmp1_b32 s{sH}, 0\ns_cbranch_scc1 L_llo")
        if WT:
            assert WE == WO
            variants.append(("t", WT))
            A(f"s_sub_u32 s{sTmp}, s{sU}, s{sN}\ns_add_u32 s{sTmp}, s{sTmp}, {ta}\ns_cmp_lt_u32 s{sTmp}, {ta+tb}\ns_cbranch_scc1 L_llt")
    for tag, W in variants:
        assert 17 <= W <= 48
        if tag == "e": E = 0
        A(f"""
        L_ll{tag}:
        s_add_u32 s{sI}, s{sI}, 1
        s_cmp_lg_u32 s{sI}, s{sN1}
        s_cbranch_scc1 L_ls{tag}
        s_xor_b32 s{sIsV}, s{sIsV}, 1
        s_cselect_b32 s{sN0}, s{sN0}, s{sN1}
        s_cselect_b32 s{rK}, s{sV}, s{sK}
        s_cselect_b32 s{rK+1}, s{sV+1}, s{sK+1}
        s_mov_b32 s{sI}, s{sN0}
        s_add_u32 s{sN1}, s{sN0}, {CH}
        s_min_u32 s{sN1}, s{sN1}, s{sN}
        L_ls{tag}:
        """)
        if rev:
            A(f"s_add_u32 s{sTmp}, s{sN0}, s{sN1}\ns_sub_u32 s{sTmp}, s{sTmp}, s{sI}\ns_sub_u32 s{sTmp}, s{sTmp}, 1\ns_cmp_eq_u32 s{sIsV}, 0\ns_cselect_b32 s{sTmp}, s{sI}, s{sTmp}")
        for w in range(4): A(f"v_readlane_b32 s{sO4+w}, v{vX+w}, s{sTmp if rev else sI}")
        pass
        for w in range(4):
            A(f"""
            s_add_u32 m0, s{sLB}, {w*4096}
            s_bitcmp0_b32 s{sO4+w}, 0
            s_cselect_b32 s{sO4+w}, s{sO4+w}, 0
            s_cselect_b32 s{rK+2}, {KVB}, 0
            """)
            for jl in range(4):
                c = 4*w + jl
                if tag == "c":
                    assert cb[1] >= W - 17
                    A(f"s_waitcnt vmcnt({W-1})")
                    if c in cb: A("s_barrier")
                elif c == W-17: A(f"s_cmp_lt_u32 s{sU}, 2\ns_waitcnt vmcnt({W-1+E})\ns_cbranch_scc1 L_lb{tag}\ns_barrier\nL_lb{tag}:")
                elif c % step == 0: A(f"s_waitcnt vmcnt({W-step+E*(2 if c < W-17 else 1)})")
                A(f"buffer_load_dwordx4 v{vDO+jl}, s[{rK}:{rK+3}], s{sO4+w} offen offset:{1024*jl} {pol} lds")
        if W > 32: A(f"s_cmp_lt_u32 s{sU}, 2\ns_waitcnt vmcnt({32+E})\ns_cbranch_scc1 L_lb{tag}\ns_barrier\nL_lb{tag}:")
        A(f"""
        s_add_u32 s{sLB}, s{sLB}, 16384
        s_cmp_lg_u32 s{sLB}, {RS*16384}
        s_cselect_b32 s{sLB}, s{sLB}, 0
        s_add_u32 s{sU}, s{sU}, 1
        s_cmp_lt_u32 s{sU}, s{sTot}
        """)
        if tag == "c":
            A(f"s_cmp_lt_u32 s{sU}, {RS+NCU}\ns_cbranch_scc1 L_llc\ns_branch L_lle")
            continue
        if fb and tag == "e":
            A(f"s_cbranch_scc0 {'L_lfin' if fin else 'L_lend'}\ns_cmp_lt_u32 s{sU}, {us}\ns_cbranch_scc1 L_lle\ns_branch L_ltop")
            continue
        A(f"s_cbranch_scc1 {'L_ltop' if fb else 'L_lgo' if WT else 'L_ll'+tag}")
        if lst:
            for i in range(4): A(f"v_writelane_b32 v{vQ}, s{32+2*i}, {i}")
        if lagprof: A(f"s_lshl_b32 s{sTmp}, s2, 8\ns_add_u32 s{sTmp}, s{sTmp}, {12<<20}\nv_lshl_add_u32 v{vT0}, v0, 2, s{sTmp}\nglobal_store_dword v{vT0}, v{vQ}, s[{sWS}:{sWS+1}]")
        first = tag == ("f0" if fb else "e")
        if fin and not first:
            A("s_branch L_lfin"); continue
        if fin:
            A("; last two units land; pull this workgroup's publication lines into L2 meanwhile (values unused)")
            A("L_lfin:")
            prl = f"""
                global_load_dword v{vT0}, v{vB+2 if mlonly else vB}, s[{sWS}:{sWS+1}] sc1
                global_load_dword v{vT1}, v{vB+2 if mlonly else vB+1}, s[{sWS}:{sWS+1}] sc1
                global_load_dword v{vT2}, v{vB+2}, s[{sWS}:{sWS+1}] sc1
                """
            if pre != 3: A("s_waitcnt vmcnt(16)\ns_barrier\ns_waitcnt vmcnt(0)\ns_barrier")
            elif pp > 16: A(prl); A("s_waitcnt vmcnt(19)\ns_barrier\ns_waitcnt vmcnt(3)\ns_barrier")
            elif pp > 0: A(f"s_waitcnt vmcnt(16)\ns_barrier" + (f"\ns_waitcnt vmcnt({pp})" if pp < 16 else "")); A(prl); A("s_waitcnt vmcnt(3)\ns_barrier")
            else: A("s_waitcnt vmcnt(16)\ns_barrier\ns_waitcnt vmcnt(0)\ns_barrier"); A(prl)
        if fin and wb == 1:
            A(f"""
            s_cmp_lg_u32 s{sJ0}, 0
            s_cbranch_scc1 L_lend
            s_lshl_b32 s{sTmp}, s{sH}, 10
            s_add_u32 s{sTmp}, s{sTmp}, {FL_OFF}
            s_waitcnt vmcnt(0)
            v_and_b32 v{vB+4}, 31, v0
            v_lshl_add_u32 v{vB+4}, v{vB+4}, 2, s{sTmp}
            s_mov_b32 s{sCnt}, 0
            L_wbp:
            buffer_load_dword v{vT0}, v{vB+4}, s[{rW}:{rW+3}], 0 offen sc1
            s_add_u32 s{sCnt}, s{sCnt}, 1
            s_waitcnt vmcnt(0)
            v_cmp_eq_u32 vcc, 0, v{vT0}
            s_cmp_ge_u32 s{sCnt}, 64
            s_cbranch_scc1 L_lend
            s_cbranch_vccnz L_wbp
            buffer_wbl2 sc1
            s_endpgm
            """)
        if first: A("L_lend:")
        A("s_waitcnt vmcnt(0) lgkmcnt(0)\ns_endpgm")
    A(f"""
    L_misspec:
    s_waitcnt vmcnt(0)
    s_cmp_eq_u32 s{sN}, 0
    s_cbranch_scc1 L_lend
    s_mov_b32 s{sI}, -1
    s_mov_b32 s{sU}, 0
    s_branch L_lgo
    """)
    A(f"""
    L_cons:
    v_lshl_add_u32 v{vS}, v{vT0}, 11, v{vT1}
    v_xor_b32 v{vT1}, v{vT1}, v{vT2}
    s_mov_b32 s{rT+2}, 16384
    s_mov_b32 s{rT+3}, 0x20000
    s_sub_u32 s{sB}, s{sW}, 64
    s_lshl_b32 s{sLB}, s{sB}, 6
    s_lshl_b32 s{sMk}, s{sB}, 3
    s_add_u32 s{sMk+1}, s{sMk}, {3072}
    s_add_u32 s{sMk+2}, s{sMk}, {2*3072}
    s_add_u32 s{sMk+3}, s{sMk}, {3*3072}
    s_add_u32 m0, s{sLB}, {TL}
    v_and_b32 v{vT2}, 14, v0
    v_lshlrev_b32 v{vT2}, 1, v{vT2}
    s_waitcnt lgkmcnt(0)
    s_mov_b32 s{rT}, s{sBT}
    s_and_b32 s{rT+1}, s{sBT+1}, 0xffff
    """)
    if a0: A("s_barrier")
    for j in range(4):
        A(f"buffer_load_dwordx4 v{vS}, s[{rT}:{rT+3}], s{sMk+j} offen offset:{1024*j} lds")
    A(f"global_load_dword v{vCtx}, v{vT2}, s[{sCTX}:{sCTX+1}]")
    qissue()
    stamp(1)
    A(f"""
    v_and_b32 v{vLane}, 63, v0
    s_xor_b32 s{sTmp}, s{sJ0}, {lead}
    s_or_b32 s{sTmp}, s{sTmp}, s{sW}
    s_cselect_b32 s{sReg}, 0, 1
    s_cbranch_scc0 L_clear
    L_cleared:
    s_add_u32 s{sTmp}, s{sLB}, {TL}
    v_lshl_add_u32 v{vOf}, v{vLane}, 3, s{sTmp}
    v_lshrrev_b32 v{vG}, 4, v{vLane}
    v_and_b32 v{vQi}, 15, v{vLane}
    s_lshl2_add_u32 s{sTmp}, s{sW}, {XL}
    v_mov_b32 v{vB+2}, s{sTmp}
    v_mov_b32 v{vB+3}, {XL}
    s_lshl2_add_u32 s{sTmp}, s{sW}, {OL}
    v_lshl_add_u32 v{vB+4}, v{vLane}, 4, s{sTmp}
    s_lshl_b32 s{sWb}, s{sW}, 6
    v_lshl_add_u32 v{vS}, v{vLane}, 5, s{sJ0}
    v_mov_b32 v{vDs}, 0x80000
    v_not_b32 v{vS+1}, v{vS}
    v_mov_b32 v{vBig}, 0x7fff0000
    v_lshrrev_b32 v{vB}, 1, v{vQi}
    v_lshlrev_b32 v{vB}, 16, v{vB}
    v_and_b32 v{vT0}, 7, v{vQi}
    v_lshlrev_b32 v{vT0}, 1, v{vT0}
    v_xor_b32 v{vT0}, v{vT0}, v{vG}
    v_lshlrev_b32 v{vT0}, 4, v{vT0}
    v_lshl_add_u32 v{vKA}, v{vQi}, 9, v{vT0}
    v_xor_b32 v{vKA+1}, 64, v{vKA}
    v_xor_b32 v{vKA+2}, 128, v{vKA}
    v_xor_b32 v{vKA+3}, 192, v{vKA}
    v_lshrrev_b32 v{vT0}, 2, v{vLane}
    v_lshlrev_b32 v{vT1}, 9, v{vT0}
    v_and_b32 v{vT0}, 7, v{vT0}
    v_lshlrev_b32 v{vT0}, 1, v{vT0}
    v_and_b32 v{vT2}, 3, v{vLane}
    s_lshl_b32 s{sTmp}, s{sW}, 3
    v_add_u32 v{vT2}, s{sTmp}, v{vT2}
    v_xor_b32 v{vT3}, v{vT2}, v{vT0}
    v_lshl_add_u32 v{vVA}, v{vT3}, 4, v{vT1}
    v_xor_b32 v{vVA+1}, 64, v{vVA}
    """)
    for sl in range(4): A(f"v_add_u32 v{vVF+sl}, {QL}, v{vKA+sl}")
    A(f"""
    s_and_b32 s{sTmp}, s{sW}, 1
    s_lshl_b32 s{sS}, s{sTmp}, 4
    s_lshl_b32 s{sPr}, s{sTmp}, 6
    s_add_u32 s{sPr}, s{sPr}, s{sH}
    s_lshl_b32 s{sPr}, s{sPr}, 9
    v_mov_b32 v{vT2}, 0x2000
    v_mov_b32 v{vT3}, {CSC}
    """)
    stamp(7, 2)
    A(f"s_waitcnt vmcnt(2)")
    stamp(2)
    for b in range(8):
        A(f"ds_read_b64 v[{vKF+2*b}:{vKF+2*b+1}], v{vOf} offset:{512*b}")
    A(f"""
    v_cmp_lt_i32 vcc, 0, v{vCtx}
    v_min_i32 v{vCtx}, 0x2000, v{vCtx}
    v_lshl_add_u32 v{vT0}, v{vG}, 2, s{sS}
    v_cndmask_b32 v{vCtx}, v{vT2}, v{vCtx}, vcc
    v_cndmask_b32 v{vC}, 0, v{vT3}, vcc
    v_add_u32 v{vNb}, 31, v{vCtx}
    v_lshrrev_b32 v{vNb}, 5, v{vNb}
    v_sub_u32 v{vLim}, v{vCtx}, v{vT0}
    v_subrev_u32 v{vLim+1}, 1, v{vLim}
    v_max_u32_dpp v{vT2}, v{vNb}, v{vNb} row_ror:2 row_mask:0xf bank_mask:0xf
    v_subrev_u32 v{vLim+2}, 2, v{vLim}
    v_subrev_u32 v{vLim+3}, 3, v{vLim}
    v_max_u32_dpp v{vT2}, v{vT2}, v{vT2} row_ror:4 row_mask:0xf bank_mask:0xf
    s_waitcnt lgkmcnt(0)
    """)
    for b in range(1, 8):
        A(f"v_cmp_ne_u64 s[{sMk+2*b}:{sMk+2*b+1}], v[{vKF}:{vKF+1}], v[{vKF+2*b}:{vKF+2*b+1}]")
    A(f"v_max_u32_dpp v{vT2}, v{vT2}, v{vT2} row_ror:8 row_mask:0xf bank_mask:0xf")
    for b in range(2, 8):
        A(f"s_or_b64 s[{sMk+2}:{sMk+3}], s[{sMk+2}:{sMk+3}], s[{sMk+2*b}:{sMk+2*b+1}]")
    A(f"""
    s_ff1_i32_b64 s{sTmp}, s[{sMk+2}:{sMk+3}]
    s_min_u32 s{sTmp}, s{sTmp}, 256
    s_add_u32 s{sTmp}, s{sTmp}, s{sWb}
    v_min_u32 v{vT2}, s{sTmp}, v{vT2}
    ds_write_b32 v{vB+2}, v{vT2}
    s_waitcnt lgkmcnt(0)
    """)
    stamp(8, 2)
    A("s_barrier")
    stamp(9, 2)
    A(f"""
    ds_read_b128 v[{vX}:{vX+3}], v{vB+3}
    s_waitcnt lgkmcnt(0)
    v_min3_u32 v{vT0}, v{vX}, v{vX+1}, v{vX+2}
    v_min_u32 v{vT0}, v{vT0}, v{vX+3}
    v_max_u32 v{vNb}, v{vNb}, v{vT0}
    v_sub_u32 v{vNb}, v{vNb}, v{vT0}
    v_mov_b32 v{vO}, 0
    v_mov_b32 v{vO+1}, 0
    v_add_u32_dpp v{vT1}, v{vNb}, v{vNb} row_shr:2 row_mask:0xf bank_mask:0xf bound_ctrl:0
    v_mov_b32 v{vO+2}, 0
    v_mov_b32 v{vO+3}, 0
    v_add_u32_dpp v{vT1}, v{vT1}, v{vT1} row_shr:4 row_mask:0xf bank_mask:0xf bound_ctrl:0
    v_mov_b32 v{vM}, {NEGBIG}
    v_mov_b32 v{vL}, 0
    v_add_u32_dpp v{vT1}, v{vT1}, v{vT1} row_shr:8 row_mask:0xf bank_mask:0xf bound_ctrl:0
    v_add_u32 v{vT2}, v{vT1}, v{vT0}
    v_sub_u32 v{vT1}, v{vT1}, v{vNb}
    v_readlane_b32 s{sTot}, v{vT2}, 15
    v_sub_u32 v{vT2}, v{vT2}, v{vNb}
    v_sub_u32 v{vT1}, v{vB}, v{vT1}
    s_mov_b32 s{sI}, 0
    """)
    fill = [f"v_mov_b32 v{vO+i}, 0" for i in range(4, 16)] + [f"v_mov_b32 v{vNi}, 0xff800000", f"s_mov_b32 s{sC3}, 0x00030003", f"s_mov_b32 s{sC3+1}, 0x00030003", f"s_mov_b32 s{sLt}, 0"]
    for b in range(8):
        A(f"v_add_co_u32_dpp v{vT3}, vcc, v{vT2}, v{vS+1} row_newbcast:{2*b} row_mask:0xf bank_mask:0xf")
        A(fill[2*b]); A(fill[2*b+1])
        A(f"v_cndmask_b32_dpp v{vDs}, v{vT1}, v{vDs}, vcc row_newbcast:{2*b} row_mask:0xf bank_mask:0xf")
    stamp(10, 2)
    A(f"""
    v_cmp_gt_u32 s[{sMk+2}:{sMk+3}], s{sTot}, v{vS}
    v_add_u32 v{vDs}, v{vDs}, v{vS}
    v_bfe_u32 v{vT1}, v{vDs}, 16, 3
    v_bfe_u32 v{vT2}, v{vDs}, 6, 2
    v_and_b32 v{vT0}, 0x3f, v{vDs}
    v_lshl_add_u32 v{vT2}, v{vT2}, 3, v{vT1}
    v_lshl_add_u32 v{vT0}, v{vT2}, 6, v{vT0}
    s_and_b32 s{sTmp}, s{sW}, 2
    s_lshl1_add_u32 s{sTmp}, s{sTmp}, {TL}
    v_lshl_add_u32 v{vT0}, v{vT0}, 3, s{sTmp}
    v_lshlrev_b32 v{vT1}, 3, v{vT1}
    ds_read_b32 v{vOf}, v{vT0}
    ds_bpermute_b32 v{vT1}, v{vT1}, v{vCtx}
    s_bcnt1_i32_b64 s{sN}, s[{sMk+2}:{sMk+3}]
    v_and_b32 v{vT0}, 0xff, v{vDs}
    s_lshl_b32 s{sTmp2}, s{sW}, 3
    v_lshl_add_u32 v{vT0}, v{vT0}, 5, s{sTmp2}
    v_cmp_le_u32 vcc, 0x80000, v{vDs}
    v_mov_b32 v{vT2}, s{sN}
    ds_write_b32 v{vB+3}, v{vT2} offset:16
    ds_write_b32 v{vB+3}, v{vO} offset:20
    s_waitcnt lgkmcnt(2)
    v_cmp_lt_u32 s[{sMk}:{sMk+1}], v{vT0}, v{vT1}
    v_lshl_add_u32 v{vOf}, v{vOf}, 16, s{sPr}
    s_or_b64 vcc, vcc, s[{sMk}:{sMk+1}]
    s_and_b64 vcc, vcc, s[{sMk+2}:{sMk+3}]
    v_cndmask_b32 v{vOf}, 1, v{vOf}, vcc
    ds_write_b32 v{vB+4}, v{vOf}
    s_cmp_eq_u32 s{sReg}, 1
    s_waitcnt vmcnt(0) lgkmcnt(0)
    s_barrier
    s_cbranch_scc1 L_ready
    L_readied:
    s_mov_b32 s{sPos}, 0
    s_cmp_eq_u32 s{sN}, 0
    s_cbranch_scc1 L_done
    """)
    stamp(11, 2)
    for s in range(8):
        A(f"ds_read_b128 v[{vQ+4*s}:{vQ+4*s+3}], v{vVF+(s&3)} offset:{256*(s>>2)}")
    vSW = vDO; vSR = vDO + 1; vMW = vDO + 2; vMR = vDO + 3
    A(f"""
    s_lshl_b32 s{sTmp}, s{sS}, 9
    v_add_u32 v{vKA}, s{sTmp}, v{vKA}
    v_lshlrev_b32 v{vSR}, 4, v{vLane}
    v_add_u32 v{vSR}, {SC}, v{vSR}
    s_lshl_b32 s{sTmp}, s{sS}, 6
    v_add_u32 v{vSW}, s{sTmp}, v{vSR}
    v_lshlrev_b32 v{vMR}, 4, v{vQi}
    v_add_u32 v{vMR}, {MX}, v{vMR}
    s_lshl_b32 s{sTmp}, s{sW}, 2
    v_add_u32 v{vMW}, s{sTmp}, v{vMR}
    s_mov_b32 s{sSl}, 0
    s_mov_b32 s{sN0}, 0
    s_min_u32 s{sN1}, s{sN}, {CH}
    s_lshr_b32 s{sIsV}, s{sW}, 1
    s_add_u32 s{sGb+1}, s{sH}, {GX_OFF-gstr}
    v_mov_b32 v{vGa}, 0
    v_mov_b32 v{vGa+1}, 1
    s_lshl_b32 s{sTmp}, s{sN}, 1
    s_sub_u32 s{sCu}, 128, s{sTmp}
    s_cmp_eq_u32 s{sW}, 3
    s_cselect_b32 s{sGb}, s{sJ0}, 99
    s_branch L_pass
    """)
    A(f"""
    L_clear:
    s_lshl_b32 s{sTmp}, s{sH}, 10
    s_add_u32 s{sTmp}, s{sTmp}, {FL_OFF}
    v_lshl_add_u32 v{vJk+1}, v{vLane}, 3, s{sTmp}
    v_mov_b32 v{vJk+2}, 0
    v_mov_b32 v{vJk+3}, 0
    global_store_dwordx2 v{vJk+1}, v[{vJk+2}:{vJk+3}], s[{sWS}:{sWS+1}] sc1
    global_store_dwordx2 v{vJk+1}, v[{vJk+2}:{vJk+3}], s[{sWS}:{sWS+1}] offset:512 sc1
    s_lshl_b32 s{sTmp}, s{sH}, 8
    s_add_u32 s{sTmp}, s{sTmp}, {PG_OFF}
    v_lshl_add_u32 v{vJk+1}, v{vLane}, 2, s{sTmp}
    global_store_dword v{vJk+1}, v{vJk+2}, s[{sWS}:{sWS+1}] sc1
    s_mul_i32 s{sTmp}, s{sH}, {16*gstr}
    s_add_u32 s{sTmp}, s{sTmp}, {GX_OFF}
    v_mul_u32_u24 v{vJk+1}, {gstr}, v{vLane}
    v_add_u32 v{vJk+1}, s{sTmp}, v{vJk+1}
    s_mov_b64 exec, 0xffff
    global_store_dwordx2 v{vJk+1}, v[{vJk+2}:{vJk+3}], s[{sWS}:{sWS+1}] sc1
    s_mov_b64 exec, -1
    s_branch L_cleared
    L_ready:
    s_lshl_b32 s{sTmp}, s{sH}, 5
    v_mov_b32 v{vJk+1}, s{sTmp}
    v_mov_b32 v{vJk+2}, 1
    s_mov_b64 exec, 1
    global_store_dword v{vJk+1}, v{vJk+2}, s[{sDBG}:{sDBG+1}] sc1
    s_mov_b64 exec, -1
    s_branch L_readied
    """)
    A(f"""
    L_late:
    s_mov_b32 s{rW}, s{sWS}
    s_and_b32 s{rW+1}, s{sWS+1}, 0xffff
    s_mov_b32 s{rW+2}, {WS_BYTES if not prof else 16 << 20}
    s_mov_b32 s{rW+3}, 0x20000
    s_lshl2_add_u32 s{sTmp2}, s{sH}, s{sW}
    s_lshl_b32 s{sTmp}, s{sTmp2}, {9 if cml else 5}
    s_add_u32 s{sTmp}, s{sTmp}, s{sJ0}
    s_lshl_b32 s{sTmp}, s{sTmp}, {3 if cml else 7}
    s_add_u32 s{sTmp}, s{sTmp}, {ML_OFF}
    v_lshl_add_u32 v{vMO}, v{vQi}, {8 if cml else 3}, s{sTmp}
    s_lshl_b32 s{sTmp2}, s{sTmp2}, 8
    s_lshl2_add_u32 s{sTmp2}, s{sJ0}, s{sTmp2}
    s_add_u32 s{sTmp2}, s{sTmp2}, {FL_OFF}
    v_mov_b32 v{vFo}, s{sTmp2}
    s_lshl_b32 s{sTmp}, s{sH}, 5
    v_mov_b32 v{vRd}, s{sTmp}
    s_add_u32 s{sTmp}, s{sTmp}, s{sJ0}
    s_lshl2_add_u32 s{sTmp}, s{sTmp}, s{sW}
    s_lshl_b32 s{sTmp}, s{sTmp}, 11
    v_lshl_add_u32 v{vSO}, v{vQi}, {4 if lin else 6}, s{sTmp}
    v_lshl_add_u32 v{vSO}, v{vG}, {8 if lin else 4}, v{vSO}
    """)
    A(f"""
    v_lshrrev_b32 v{vJk+2}, 2, v{vLane}
    v_and_b32 v{vJk+3}, 3, v{vLane}
    """)
    if lin:
        assert cml
        A(f"""
        s_lshr_b32 s{sTot}, s{sJ0}, 3
        s_lshl2_add_u32 s{sTot}, s{sH}, s{sTot}
        s_lshl2_add_u32 s{sTmp}, s{sTot}, s{sW}
        s_lshl_b32 s{sTmp}, s{sTmp}, 10
        s_add_u32 s{sTmp}, s{sTmp}, {ML_OFF}
        v_lshl_add_u32 v{vMd}, v{vJk+2}, 3, s{sTmp}
        v_lshl_add_u32 v{vMd}, v{vJk+3}, 8, v{vMd}
        s_lshl_b32 s{sTmp}, s{sTot}, 8
        s_add_u32 s{sTmp}, s{sTmp}, {FL_OFF}
        v_lshl_add_u32 v{vFa}, v{vLane}, 2, s{sTmp}
        s_lshl_b32 s{sTmp}, s{sH}, 18
        s_lshl2_add_u32 s{sTmp2}, s{sJ0}, s{sW}
        s_lshl_b32 s{sTmp2}, s{sTmp2}, 6
        s_add_u32 s{sTmp}, s{sTmp}, s{sTmp2}
        v_lshl_add_u32 v{vAd}, v{vJk+3}, 4, s{sTmp}
        v_lshl_add_u32 v{vAd}, v{vJk+2}, 13, v{vAd}
        v_add_u32 v{vAd+1}, {16*SB}, v{vAd}
        s_lshl4_add_u32 s{sTmp}, s{sW}, s{sH}
        s_lshl_b32 s{sTmp}, s{sTmp}, 10
        s_lshl4_add_u32 s{sTmp}, s{sJ0}, s{sTmp}
        v_lshl_add_u32 v{vOA}, v{vG}, 2, s{sTmp}
        v_and_b32 v{vJk+2}, 1, v{vLane}
        v_lshl_add_u32 v{vOA}, v{vJk+2}, 9, v{vOA}
        v_bfe_u32 v{vJk+2}, v{vLane}, 1, 1
        v_lshl_add_u32 v{vOA}, v{vJk+2}, 13, v{vOA}
        """)
    else:
        A(f"""
    s_lshr_b32 s{sB}, s{sJ0}, 2
    s_and_b32 s{sTmp}, s{sW}, 1
    s_lshl1_add_u32 s{sS}, s{sB}, s{sTmp}
    s_lshl1_add_u32 s{sWb}, s{sH}, s{sTmp}
    s_and_b32 s{sTot}, s{sJ0}, 3
    s_lshr_b32 s{sTmp2}, s{sW}, 1
    s_lshl1_add_u32 s{sPr}, s{sTot}, s{sTmp2}
    s_lshl2_add_u32 s{sTot}, s{sH}, s{sTot}
    s_lshl_b32 s{sTmp}, s{sTot}, 12
    s_lshl_b32 s{sTmp2}, s{sS}, {8 if cml else 3}
    s_add_u32 s{sTmp}, s{sTmp}, s{sTmp2}
    s_add_u32 s{sTmp}, s{sTmp}, {ML_OFF}
    v_lshl_add_u32 v{vMd}, v{vJk+2}, {3 if cml else 7}, s{sTmp}
    s_lshl_b32 s{sTmp}, s{sTot}, 8
    s_add_u32 s{sTmp}, s{sTmp}, {FL_OFF}
    v_lshl_add_u32 v{vFa}, v{vLane}, 2, s{sTmp}
    s_lshl_b32 s{sTmp}, s{sH}, 18
    s_lshl4_add_u32 s{sTmp2}, s{sPr}, s{sS}
    s_lshl_b32 s{sTmp2}, s{sTmp2}, 6
    s_add_u32 s{sTmp}, s{sTmp}, s{sTmp2}
    v_lshl_add_u32 v{vAd}, v{vJk+3}, 4, s{sTmp}
    v_lshl_add_u32 v{vAd}, v{vJk+2}, 13, v{vAd}
    v_add_u32 v{vAd+1}, {16*SB}, v{vAd}
    s_lshl4_add_u32 s{sTmp}, s{sB}, s{sWb}
    s_lshl3_add_u32 s{sTmp}, s{sTmp}, s{sPr}
    s_lshl_b32 s{sTmp}, s{sTmp}, 6
    v_lshl_add_u32 v{vOA}, v{vJk+3}, 4, s{sTmp}
    v_lshl_add_u32 v{vOA}, v{vG}, 2, v{vOA}
    """)
    A(f"""
    s_getreg_b32 s{sPl}, hwreg(HW_REG_XCC_ID, 0, 4)
    L_late_end:
    s_cmp_eq_u32 s{sLt}, 2
    s_cbranch_scc1 L_done2
    s_mov_b32 s{sLt}, 1
    s_branch L_back
    L_late2:
    s_mov_b32 s{sLt}, 2
    s_branch L_late
    """)
    hk = [0]
    def ustamp(last=False):
        if gon and not last:
            hk[0] += 1
            A(f"""
            s_and_b32 s{sTmp}, s{sCu}, 31
            s_add_u32 s{sCu}, s{sCu}, 1
            s_cmp_lg_u32 s{sTmp}, s{sGb}
            s_cbranch_scc1 L_hk{hk[0]}
            s_cmp_gt_u32 s{sCu}, {128-gstop}
            s_cbranch_scc1 L_hk{hk[0]}
            v_mov_b32 v{vGa}, {XL+20}
            ds_read_b32 v{vGa}, v{vGa}
            s_mul_i32 s{sTmp}, s{sCu}, {gstr}
            s_add_u32 s{sTmp}, s{sTmp}, s{sGb+1}
            s_waitcnt lgkmcnt(0)
            v_cmp_ne_u32 vcc, 0, v{vGa}
            s_cbranch_vccz L_hk{hk[0]}
            s_mov_b64 exec, 1
            v_mov_b32 v{vGa}, s{sTmp}
            global_store_byte v{vGa}, v{vGa+1}, s[{sWS}:{sWS+1}] sc1
            s_mov_b64 exec, -1
            L_hk{hk[0]}:
            """)
        if prof: A(f"s_memrealtime s[{sSt}:{sSt+1}]\ns_waitcnt lgkmcnt(0)\ns_lshr_b32 m0, s{sIt}, 1\ns_add_u32 s{sIt}, s{sIt}, 1\ns_min_u32 s{sIt}, s{sIt}, 121\nv_writelane_b32 v{vPf}, s{sSt}, m0")
    vA = vB + 4
    A(f"""
    .p2align 6
    L_pass:
    v_mov_b32 v{vNb}, v{vM}
    L_p1:
    s_xor_b32 s{sTmp}, s{sI}, s{sIsV}
    s_bitcmp0_b32 s{sTmp}, 0
    s_cbranch_scc1 L_mine
    s_barrier
    """)
    ustamp()
    A(f"""
    s_lshr_b32 s{sTmp}, s{sI}, 1
    s_cmp_eq_u32 s{sTmp}, {pat}
    s_cbranch_scc1 L_late
    s_branch L_back
    L_mine:
    v_readlane_b32 s{sPos}, v{vDs}, s{sI}
    v_add_u32 v{vA}, s{sSl}, v{vKA}
    v_xor_b32 v{vA+1}, 64, v{vA}
    v_xor_b32 v{vA+2}, 128, v{vA}
    v_xor_b32 v{vA+3}, 192, v{vA}
    s_lshr_b32 s{sTmp}, s{sPos}, 15
    s_lshl_b64 vcc, s[{sC3}:{sC3+1}], s{sTmp}
    s_bitcmp1_b32 s{sPos}, 19
    s_cselect_b64 vcc, -1, vcc
    s_and_b32 s{sPos}, s{sPos}, 0xff
    s_lshl_b32 s{sPos}, s{sPos}, 5
    v_mov_b32 v{vT1}, s{sPos}
    v_cndmask_b32 v{vT1}, v{vBig}, v{vT1}, vcc
    s_sub_u32 s{sTmp}, s{sI}, s{sN0}
    s_lshl_b32 s{sTmp}, s{sTmp}, 11
    """)
    for r in range(4): A(f"v_cmp_lt_i32 s[{sMk+2*r}:{sMk+2*r+1}], v{vT1}, v{vLim+r}")
    A(f"v_add_u32 v{vT2}, s{sTmp}, v{vSW}")
    A("s_barrier")
    ustamp()
    for s in range(8):
        A(f"ds_read_b128 v[{vKF+4*s}:{vKF+4*s+3}], v{vA+(s&3)} offset:{256*(s>>2)}")
    for s in range(8):
        A(f"s_waitcnt lgkmcnt({7-s})")
        c = "0" if s == 0 else f"v[{vS}:{vS+3}]"
        A(f"v_mfma_f32_16x16x32_bf16 v[{vS}:{vS+3}], v[{vKF+4*s}:{vKF+4*s+3}], v[{vQ+4*s}:{vQ+4*s+3}], {c}")
    A("s_nop 7")
    for r in range(4): A(f"v_mul_f32 v{vX+r}, v{vS+r}, v{vC}")
    for r in range(4): A(f"v_cndmask_b32 v{vX+r}, v{vNi}, v{vX+r}, s[{sMk+2*r}:{sMk+2*r+1}]")
    A(f"""
    ds_write_b128 v{vT2}, v[{vX}:{vX+3}]
    v_max3_f32 v{vNb}, v{vNb}, v{vX}, v{vX+1}
    v_max3_f32 v{vNb}, v{vNb}, v{vX+2}, v{vX+3}
    L_back:
    s_add_u32 s{sSl}, s{sSl}, 16384
    s_cmp_lg_u32 s{sSl}, {RS*16384}
    s_cselect_b32 s{sSl}, s{sSl}, 0
    s_add_u32 s{sI}, s{sI}, 1
    s_cmp_lt_u32 s{sI}, s{sN1}
    s_cbranch_scc1 L_p1
    """)
    if pre == 1: A(f"s_cmp_eq_u32 s{sLt}, 0\ns_cbranch_scc1 L_nopre\nbuffer_load_dword v{vJk}, v{vJk+1}, s[{rW}:{rW+3}], 0 offen sc1\nL_nopre:")
    A(f"""
    v_mov_b32 v{vT1}, v{vNb}
    s_mov_b32 s{sI}, s{sN0}
    s_nop 0
    v_permlane32_swap_b32 v{vNb}, v{vT1}
    v_max_f32 v{vNb}, v{vNb}, v{vT1}
    v_mov_b32 v{vT1}, v{vNb}
    s_nop 1
    v_permlane16_swap_b32 v{vNb}, v{vT1}
    v_max_f32 v{vNb}, v{vNb}, v{vT1}
    ds_write_b32 v{vMW}, v{vNb}
    s_sub_u32 s{sTmp}, s{sN1}, s{sN0}
    s_sub_u32 s{sTmp}, s{sTmp}, 1
    s_mul_i32 s{sTmp}, s{sTmp}, {2048 if rev else 0}
    v_add_u32 v{vT3}, s{sTmp}, v{vSR}
    s_waitcnt lgkmcnt(0)
    s_barrier
    """)
    ustamp()
    A(f"""
    ds_read_b128 v[{vS}:{vS+3}], v{vMR}
    s_mov_b32 s{sU}, 0
    s_waitcnt lgkmcnt(0)
    v_max3_f32 v{vT0}, v{vS}, v{vS+1}, v{vS+2}
    v_max_f32 v{vT0}, v{vT0}, v{vS+3}
    v_sub_f32 v{vAl}, v{vM}, v{vT0}
    v_exp_f32 v{vAl}, v{vAl}
    v_mov_b32 v{vM}, v{vT0}
    v_mul_f32 v{vL}, v{vL}, v{vAl}
    """)
    for i in range(8):
        A(f"v_pk_mul_f32 v[{vO+2*i}:{vO+2*i+1}], v[{vO+2*i}:{vO+2*i+1}], v[{vAl}:{vAl+1}] op_sel_hi:[1,0]")
    A(f"""
    L_p2:
    ds_read_b128 v[{vX}:{vX+3}], v{vT3}
    ds_read_b128 v[{vX+4}:{vX+7}], v{vT3} offset:1024
    v_add_u32 v{vA}, s{sSl}, v{vVA}
    v_add_u32 v{vA+1}, s{sSl}, v{vVA+1}
    v_add_u32 v{vT3}, {-2048 if rev else 2048}, v{vT3}
    s_add_u32 s{sSl}, s{sSl}, 16384
    s_cmp_lg_u32 s{sSl}, {RS*16384}
    s_cselect_b32 s{sSl}, s{sSl}, 0
    s_add_u32 s{sI}, s{sI}, 1
    s_cmp_eq_u32 s{sU}, 0
    s_mov_b32 s{sU}, 1
    s_waitcnt lgkmcnt(0)
    """)
    for r in range(8): A(f"v_sub_f32 v{vX+r}, v{vX+r}, v{vM}")
    for r in range(8): A(f"v_exp_f32 v{vX+r}, v{vX+r}")
    for j in range(4): A(f"v_cvt_pk_bf16_f32 v{vP+j}, v{vX+2*j}, v{vX+2*j+1}")
    A(f"""
    v_add_f32 v{vL}, v{vL}, v{vX}
    v_add_f32 v{vT0}, v{vX+1}, v{vX+2}
    v_add_f32 v{vT1}, v{vX+3}, v{vX+4}
    v_add_f32 v{vT2}, v{vX+5}, v{vX+6}
    v_add_f32 v{vL}, v{vL}, v{vX+7}
    v_add_f32 v{vT0}, v{vT0}, v{vT1}
    v_add_f32 v{vL}, v{vL}, v{vT2}
    v_add_f32 v{vL}, v{vL}, v{vT0}
    """)
    def pv(inter=None):
        for i in range(4):
            for h in range(2):
                r = vVF + 4*i + 2*h
                A(f"ds_read_b64_tr_b16 v[{r}:{r+1}], v{vA+(i>>1)} offset:{8192*h + 8*(i&1)}")
        if inter: A(inter)
        for i in range(4):
            A(f"s_waitcnt lgkmcnt({6-2*i})")
            A(f"v_mfma_f32_16x16x32_bf16 v[{vO+4*i}:{vO+4*i+3}], v[{vVF+4*i}:{vVF+4*i+3}], v[{vP}:{vP+3}], v[{vO+4*i}:{vO+4*i+3}]")
    vF = vT3
    A(f"""
    s_cselect_b32 s{sPos}, 1, 2
    s_cmp_eq_u32 s{sI}, s{sN}
    s_cbranch_scc1 L_done
    s_cmp_eq_u32 s{sPos}, 1
    s_cbranch_scc1 L_nb
    s_barrier
    """)
    ustamp()
    A("L_nb:")
    pv(f"s_cmp_lt_u32 s{sI}, s{sN1}")
    A(f"""
    s_cbranch_scc1 L_p2
    s_mov_b32 s{sN0}, s{sN1}
    s_add_u32 s{sN1}, s{sN1}, {CH}
    s_min_u32 s{sN1}, s{sN1}, s{sN}
    s_branch L_pass
    L_done:
    s_cmp_eq_u32 s{sLt}, 0
    s_cbranch_scc1 L_late2
    L_done2:
    global_load_dword v{vT0}, v{vRd}, s[{sDBG}:{sDBG+1}] sc1
    v_mov_b32 v{vT1}, v{vL}
    v_mov_b32 v{vAl}, v{vM}
    s_mov_b32 s{sCnt}, 0
    v_permlane32_swap_b32 v{vL}, v{vT1}
    v_add_f32 v{vL}, v{vL}, v{vT1}
    v_mov_b32 v{vT1}, v{vL}
    s_mov_b32 s{sReg}, 0
    v_mov_b32 v{vT2}, 1
    v_permlane16_swap_b32 v{vL}, v{vT1}
    v_add_f32 v{vAl+1}, v{vL}, v{vT1}
    s_cmp_lg_u32 s{sPl}, s{sH}
    s_cbranch_scc1 L_noml
    s_mov_b64 exec, 0xffff
    buffer_store_dwordx2 v[{vAl}:{vAl+1}], v{vMO}, s[{rW}:{rW+3}], 0 offen {mlp}
    s_mov_b64 exec, -1
    L_noml:
    s_cmp_eq_u32 s{sPos}, 0
    s_cbranch_scc1 L_nopv
    s_cmp_eq_u32 s{sPos}, 1
    s_cbranch_scc1 L_nb2
    s_barrier
    """)
    ustamp(True)
    A("L_nb2:")
    pv()
    A(f"L_nopv:")
    stamp(3)
    A(f"s_cmp_eq_u32 s{sPl}, s{sH}\ns_nop 2")
    for j in range(4): A(f"v_cvt_pk_bf16_f32 v{vX+j}, v{vO+2*j}, v{vO+2*j+1}")
    A("s_nop 0")
    for j in range(4, 8): A(f"v_cvt_pk_bf16_f32 v{vX+j}, v{vO+2*j}, v{vO+2*j+1}")
    A(f"s_cbranch_scc0 L_slow")
    def publish(sc, tag, foff):
        for ih in range(2):
            A(f"buffer_store_dwordx4 v[{vX+4*ih}:{vX+4*ih+3}], v{vSO}, s[{rW}:{rW+3}], s{sReg} offen offset:{1024*ih} {sc or stp}")
        if sc: A(f"s_mov_b64 exec, 0xffff\nbuffer_store_dwordx2 v[{vAl}:{vAl+1}], v{vMO}, s[{rW}:{rW+3}], s{sReg} offen {sc}")
        A(f"""
        s_mov_b64 exec, 1
        L_rdy{tag}:
        s_waitcnt vmcnt(0)
        v_cmp_eq_u32 vcc, 0, v{vT0}
        s_cbranch_vccz L_rok{tag}
        s_add_u32 s{sCnt}, s{sCnt}, 1
        s_cmp_ge_u32 s{sCnt}, 0x40000
        s_cbranch_scc1 L_rok{tag}
        global_load_dword v{vT0}, v{vRd}, s[{sDBG}:{sDBG+1}] sc1
        s_branch L_rdy{tag}
        L_rok{tag}:
        buffer_store_dword v{vT2}, v{vFo}, s[{rW}:{rW+3}], 0 offen offset:{foff} {sc}
        s_mov_b64 exec, -1
        """)
    publish("", "a", 0)
    stamp(4)
    A(f"""
    L_poll:
    buffer_load_dword v{vF}, v{vFa}, s[{rW}:{rW+3}], 0 offen sc1
    s_add_u32 s{sCnt}, s{sCnt}, 1
    s_waitcnt vmcnt(0)
    v_cmp_ne_u32 vcc, 0, v{vF}
    s_cmp_eq_u32 vcc_lo, -1
    s_cbranch_scc1 L_got
    s_cmp_lg_u32 vcc_hi, 0
    s_cbranch_scc1 L_slow
    s_cmp_lt_u32 s{sCnt}, 0x40000
    s_cbranch_scc1 L_poll
    L_got:
    """)
    stamp(5)
    vD = vKF; vML = vKF + 8; vAc = vKF + 16
    for k in range(2):
        A(f"buffer_load_dwordx2 v[{vML+2*k}:{vML+2*k+1}], v{vMd}, s[{rW}:{rW+3}], s{sReg} offen offset:{(128 if cml else 2048)*k} sc1")
    for k in range(2):
        A(f"buffer_load_dwordx4 v[{vD+4*k}:{vD+4*k+3}], v{vAd+k}, s[{rW}:{rW+3}], s{sReg} offen sc1")
    A(f"s_waitcnt vmcnt(2)")
    stamp(7)
    A(f"v_max_f32 v{vT0}, v{vML}, v{vML+2}")
    for ro in (4, 8):
        A(f"s_nop 1\nv_max_f32_dpp v{vT0}, v{vT0}, v{vT0} row_ror:{ro} row_mask:0xf bank_mask:0xf")
    A(f"""
    v_mov_b32 v{vT1}, v{vT0}
    s_nop 1
    v_permlane32_swap_b32 v{vT0}, v{vT1}
    v_max_f32 v{vT0}, v{vT0}, v{vT1}
    v_mov_b32 v{vT1}, v{vT0}
    s_nop 1
    v_permlane16_swap_b32 v{vT0}, v{vT1}
    v_max_f32 v{vT0}, v{vT0}, v{vT1}
    """)
    for k in range(2): A(f"v_sub_f32 v{vML+2*k}, v{vML+2*k}, v{vT0}")
    for k in range(2): A(f"v_exp_f32 v{vML+2*k}, v{vML+2*k}")
    vLs = vAc + 8
    A(f"v_mul_f32 v{vLs}, v{vML}, v{vML+1}\nv_fmac_f32 v{vLs}, v{vML+2}, v{vML+3}")
    for k in range(2):
        A(f"s_waitcnt vmcnt({1-k})")
        op = "v_mul_f32" if k == 0 else "v_fmac_f32"
        for j in range(4):
            A(f"v_lshlrev_b32 v{vT1}, 16, v{vD+4*k+j}\nv_and_b32 v{vT2}, 0xffff0000, v{vD+4*k+j}")
            A(f"{op} v{vAc+2*j}, v{vML+2*k}, v{vT1}\n{op} v{vAc+2*j+1}, v{vML+2*k}, v{vT2}")
    if wb == 2: A(f"s_or_b32 s{sTmp}, s{sJ0}, s{sW}\ns_cbranch_scc1 L_nowb\nbuffer_wbl2 sc1\nL_nowb:")
    stamp(8)
    A(f"v_mov_b32 v{vLs+1}, v{vLs}")
    for j in range(4): A(f"v_permlane32_swap_b32 v{vAc+j}, v{vAc+4+j}")
    A(f"v_permlane32_swap_b32 v{vLs}, v{vLs+1}")
    A(f"v_add_f32 v{vLs}, v{vLs}, v{vLs+1}")
    for j in range(4): A(f"v_add_f32 v{vAc+j}, v{vAc+j}, v{vAc+4+j}")
    A(f"v_mov_b32 v{vLs+1}, v{vLs}\ns_nop 0")
    for j in range(2): A(f"v_permlane16_swap_b32 v{vAc+j}, v{vAc+2+j}")
    A(f"v_permlane16_swap_b32 v{vLs}, v{vLs+1}")
    A(f"v_add_f32 v{vLs}, v{vLs}, v{vLs+1}")
    for j in range(2): A(f"v_add_f32 v{vAc+j}, v{vAc+j}, v{vAc+2+j}")
    for ro in (4, 8):
        for r in (vLs, vAc, vAc+1): A(f"v_add_f32_dpp v{r}, v{r}, v{r} row_ror:{ro} row_mask:0xf bank_mask:0xf")
    A(f"""
    v_rcp_f32 v{vLs}, v{vLs}
    s_mov_b32 exec_lo, 0x000f000f
    s_mov_b32 exec_hi, 0x000f000f
    v_mul_f32 v{vAc}, v{vAc}, v{vLs}
    v_mul_f32 v{vAc+1}, v{vAc+1}, v{vLs}
    v_cvt_pk_bf16_f32 v{vAc}, v{vAc}, v{vAc+1}
    global_store_dword v{vOA}, v{vAc}, s[{sOUT}:{sOUT+1}] {outpol}
    """)
    if wb == 3: A(f"s_or_b32 s{sTmp}, s{sJ0}, s{sW}\ns_cbranch_scc1 L_nowb\nbuffer_wbl2 sc1\nL_nowb:")
    stamp(9)
    if prof: A("s_mov_b64 exec, -1\ns_waitcnt vmcnt(0)")
    stamp(6)
    if prof == 2:
        a, b = diag
        A(f"""
        s_nop 1
        v_readlane_b32 s{sF}, v{vPf}, 0
        v_readlane_b32 s{sF+1}, v{vPf}, {a}
        v_readlane_b32 s{sF+2}, v{vPf}, {b}
        s_sub_u32 s{sF+1}, s{sF+2}, s{sF+1}
        s_min_u32 s{sF+1}, s{sF+1}, 20000
        s_mul_i32 s{sF+1}, s{sF+1}, {diagmul}
        """)
        if diagwg >= 0: A(f"s_cmp_eq_u32 s2, {diagwg}\ns_cselect_b32 s{sF+1}, s{sF+1}, 0")
        A(f"""
        s_add_u32 s{sF+1}, s{sF+1}, 10000
        L_spin:
        s_memrealtime s[{sSt}:{sSt+1}]
        s_waitcnt lgkmcnt(0)
        s_sub_u32 s{sF+2}, s{sSt}, s{sF}
        s_cmp_lt_u32 s{sF+2}, s{sF+1}
        s_cbranch_scc1 L_spin
        """)
    if prof == 1:
        A(f"""
        v_writelane_b32 v{vPf}, s{sPl}, 62
        v_writelane_b32 v{vPf}, s{sCnt}, 63
        s_lshl_b32 s{sTmp}, s2, 2
        s_add_u32 s{sTmp}, s{sTmp}, s{sW}
        s_lshl_b32 s{sTmp}, s{sTmp}, 8
        s_add_u32 s{sTmp}, s{sTmp}, {PROF_OFF}
        v_lshlrev_b32 v{vT0}, 2, v{vLane}
        buffer_store_dword v{vPf}, v{vT0}, s[{rW}:{rW+3}], s{sTmp} offen
        """)
    A("s_endpgm")
    A(f"L_slow:\ns_mov_b32 s{sReg}, {REG}")
    publish("sc1", "b", 128)
    A(f"""
    L_poll2:
    buffer_load_dword v{vF}, v{vFa}, s[{rW}:{rW+3}], 0 offen sc1
    s_add_u32 s{sCnt}, s{sCnt}, 1
    s_waitcnt vmcnt(0)
    v_cmp_ne_u32 vcc, 0, v{vF}
    s_cmp_eq_u32 vcc_hi, -1
    s_cbranch_scc1 L_got
    s_sleep 2
    s_cmp_lt_u32 s{sCnt}, 0x40000
    s_cbranch_scc1 L_poll2
    s_branch L_got
    """)
    A("L_end:\ns_endpgm")
    A(f""".section .rodata,"a"
.p2align 6
.amdhsa_kernel {KN}
.amdhsa_next_free_vgpr {NV}
.amdhsa_next_free_sgpr {NS}
.amdhsa_accum_offset {(NV+3)//4*4}
.amdhsa_group_segment_fixed_size 0
.amdhsa_kernarg_size 64
.amdhsa_user_sgpr_count 2
.amdhsa_user_sgpr_kernarg_segment_ptr 1
.amdhsa_system_sgpr_workgroup_id_x 1
.end_amdhsa_kernel""")
    return A.text()

if __name__ == "__main__":
    out = sys.argv[1]
    kw = {}
    for kv in sys.argv[2:]:
        k, v = kv.split("=")
        if "," in v: kw[k] = tuple(int(x) for x in v.split(","))
        else: kw[k] = int(v) if v.lstrip("-").isdigit() else v.replace("+", " ")
    open(out, "w").write(gen(**kw))
```

```python
import sys
from gen import Asm, HEADER, NAME, KN

def gen(prof=0, pol="nt", diag=None, diagwg=-1, diagmul=10, pfi=1, remap=0, pre=3, pat=2, pst=0,
        WE=21, WO=21, step=1, prio=3, W0=28, b0=0, p1=56, WT=0, ta=3, tb=0, fb=(18,20,21,23,27), th=(-110,-90,-70,-50), rev=1, lagprof=0, neu=-80, lead=31, us=9, pb=3, pk=1, fin=1, pp=16, qe=1, p2=72, RS=6, CH=30, a0=0, pbs=(72, 80, 88, 96), cml=1, early=0, lin=0, stp="", outpol="", wb=0, mlp="", mlonly=0, ek=0, eb=0, gx=30, gk=8, gd=(2,3,4), gsh=1, gmax=24, gstr=4352, gon=1, gw=0, gstop=8, gab=28, gdel=7, sp=0, spst=64, lst=None, lp=24, cb=(3, 11), tp=0):
    NWG = 256
    SB = 8192
    ML_OFF = NWG * SB
    REG = ML_OFF + 32 * 4096
    FL_OFF = 2 * REG
    PG_OFF = FL_OFF + 32 * 256
    GX_OFF = PG_OFF + 8 * 256
    WS_BYTES = GX_OFF + 128 * gstr
    PROF_OFF = 8 << 20
    SC = RS * 16384
    TL = SC
    QL = SC + 32768
    OL = SC + 49152
    XL = SC + CH * 2048
    MX = XL + 64
    LDS = MX + 256
    KVB = 2304 * 65536
    NEGBIG = 0xFF000000
    CSC = 0x3DB8AA3B
    if diag is not None: prof = 2
    A = Asm()
    vLane, vG, vQi = 0, 1, 2
    vT0, vT1, vT2, vT3 = 3, 4, 5, 6
    vCtx, vC, vM, vL = 7, 8, 9, 10
    vPf = 11
    vAl = 12
    vOf = 14; vNb = 15
    vP = 16
    vS = 20
    vB = 28
    vX = 36
    vLim = 44
    vDs = 48; vBig = 49
    vQD = 50
    vNi = 50
    vKA = 52
    vDO = 56
    vVA = 60
    vSO = 62; vMO = 63
    vQ = 64
    vKF = 96
    vVF = 160
    vO = 176
    vAd = 192
    vMd = 194; vFa = 195; vOA = 196; vFo = 197; vRd = 198
    vJk = 200
    vGa = 204
    NV = 208
    sQ, sK, sV, sBT, sCTX, sOUT, sDBG, sWS = 4, 6, 8, 10, 12, 14, 16, 18
    rK, rV, rW, rQ, rT = 20, 24, 28, 32, 36
    sLt = 40; sReg = 41; sCnt = 42; sPl = 43
    sO4 = 44
    sCm = 48
    sN4 = 64
    sPos = 52; sU = 53; sN0 = 50; sN1 = 51; sIsV = 62; sSl = 69
    sC3 = 54
    sN = 56; sI = 57; sLB = 58; sTmp = 59; sTmp2 = 60; sS = 61; sIt = 63
    sPr = 68
    sH = 70; sJ0 = 71
    sMk = 72
    sF = 72
    sSt = 88
    sW = 90; sB = 91; sTot = 92; sWb = 93
    sBe = 98; sGb = 100; sCu = 3
    NS = 102
    def stamp(i, grp=0):
        if not prof: return
        if i >= 7 and grp != pst: return
        A(f"s_memrealtime s[{sSt}:{sSt+1}]\ns_waitcnt lgkmcnt(0)\nv_writelane_b32 v{vPf}, s{sSt}, {i}")

    A(HEADER)
    A("""
;
;
;
;
;
;
""")
    if prof == 1: A("; prof=1\n; proftile=8192")
    A(f"; @launch grid=({NWG},1,1) block=(320,1,1) lds={LDS}")
    A('.amdgcn_target "amdgcn-amd-amdhsa--gfx950"\n.text')
    A(f".globl {KN}\n.p2align 8\n.type {KN},@function\n{KN}:")
    A(f"s_cmpk_ge_u32 s2, {NWG}\ns_cbranch_scc1 L_end")
    if prof: A(f"v_mov_b32 v{vPf}, 0\ns_mov_b32 s{sIt}, 32")
    stamp(0)
    if lst: A("s_memrealtime s[32:33]")
    A("s_load_dwordx16 s[4:19], s[0:1], 0")
    if pfi:
        A(f"""
        s_getpc_b64 s[{sCm}:{sCm+1}]
        L_pf1:
        v_lshlrev_b32 v{vJk+2}, 7, v0
        v_min_u32 v{vJk+2}, L_end-L_pf1, v{vJk+2}
        global_load_dword v{vJk}, v{vJk+2}, s[{sCm}:{sCm+1}]
        """)
    if remap == 1: A("s_lshr_b32 s3, s2, 3\ns_cmp_eq_u32 s3, 5\ns_cselect_b32 s3, 1, 0\ns_xor_b32 s2, s2, s3")
    if remap == 2: A("s_lshr_b32 s3, s2, 3\ns_and_b32 s3, s3, 7\ns_xor_b32 s2, s2, s3")
    if remap == 3: A("s_xor_b32 s2, s2, 3")
    A(f"""
    v_readfirstlane_b32 s{sW}, v0
    v_bfe_u32 v{vT0}, v0, 5, 1
    v_and_b32 v{vT1}, 31, v0
    v_lshlrev_b32 v{vT1}, 4, v{vT1}
    v_lshlrev_b32 v{vT2}, 5, v{vT0}
    s_and_b32 s{sH}, s2, 7
    s_lshr_b32 s{sJ0}, s2, 3
    s_cmp_lg_u32 s{sW}, 0
    s_cbranch_scc1 L_cons
    v_xor_b32 v{vT1}, v{vT1}, v{vT2}
    v_lshl_add_u32 v{vDO}, v{vT0}, 12, v{vT1}
    s_lshl_b32 s{sPr}, s{sJ0}, 8
    s_add_u32 s{sPr}, s{sPr}, s{sH}
    s_lshl_b32 s{sTot if lp else sO4}, s{sPr}, 9
    s_mov_b32 s{rK+2}, {KVB}
    s_mov_b32 s{rK+3}, 0x20000
    """)
    for jl in range(1, 4):
        A(f"v_xor_b32 v{vDO+jl}, {64*jl}, v{vDO}\nv_add_u32 v{vDO+jl}, {7168*jl}, v{vDO+jl}")
    if lp: A(f"s_mov_b32 m0, 0\ns_movk_i32 s{sN}, 4096\ns_lshl_b32 s{sN0}, s{sN}, 3\ns_mov_b32 s{sN1}, {64*65536 - 3*32768}")
    A(f"s_setprio {prio}\ns_waitcnt lgkmcnt(0)")
    def qissue():
        A(f"""
        s_lshr_b32 s{sW}, s{sB}, 6
        s_mov_b32 s{rQ+2}, 65536
        s_mov_b32 s{rQ+3}, 0x20000
        s_and_b32 s{sTmp}, s{sW}, 1
        s_lshl_b32 s{sTmp}, s{sTmp}, 7
        v_xor_b32 v{vT1}, s{sTmp}, v{vT1}
        v_lshl_add_u32 v{vQD}, v{vT0}, 9, v{vT1}
        v_xor_b32 v{vQD+1}, 64, v{vQD}
        s_lshl4_add_u32 s{sS}, s{sW}, s{sH}
        s_lshl_b32 s{sS}, s{sS}, 10
        s_add_u32 s{sTmp2}, s{sS}, {8192-1024}
        s_lshr_b32 s{sTmp}, s{sLB}, 1
        s_add_u32 m0, s{sTmp}, {QL}
        s_mov_b32 s{rQ}, s{sQ}
        s_and_b32 s{rQ+1}, s{sQ+1}, 0xffff
        buffer_load_dwordx4 v{vQD}, s[{rQ}:{rQ+3}], s{sS} offen lds
        buffer_load_dwordx4 v{vQD+1}, s[{rQ}:{rQ+3}], s{sTmp2} offen offset:1024 lds
        """)

    def verify():
        A(f"""
        s_barrier
        ds_read_b128 v[{vX}:{vX+3}], v{vT1}
        ds_read_b32 v{vT2}, v{vT2}
        s_mov_b32 s{sN0}, 0
        s_mov_b32 s{sIsV}, 0
        s_mov_b32 s{sI}, {RS-1}
        s_mov_b32 s{sU}, {RS}
        s_mov_b32 s{sLB}, 0
        s_waitcnt lgkmcnt(0)
        v_readfirstlane_b32 s{sN}, v{vT2}
        v_cmp_eq_u32 vcc, v{vX}, v{vT0}
        v_cmp_eq_u32 s[{sMk}:{sMk+1}], v{vX+1}, v{vS+1}
        v_cmp_eq_u32 s[{sMk+2}:{sMk+3}], v{vX+2}, v{vS+2}
        v_cmp_eq_u32 s[{sMk+4}:{sMk+5}], v{vX+3}, v{vS+3}
        s_min_u32 s{sN1}, s{sN}, {CH}
        s_lshl1_add_u32 s{sTot}, s{sN}, {0 if fin else 2}
        s_and_b32 s{sTmp}, vcc_lo, s{sMk}
        s_and_b32 s{sTmp2}, s{sMk+2}, s{sMk+4}
        s_and_b32 s{sTmp}, s{sTmp}, s{sTmp2}
        s_and_b32 s{sTmp2}, s{sTmp}, {(1 << RS) - 1}
        s_cmp_eq_u32 s{sTmp2}, {(1 << RS) - 1}
        s_cbranch_scc0 L_misspec
        """)

    cnt = 0
    NCU = RS - 2 - len(pbs)
    assert NCU >= 0 and len(pbs) >= 2
    def dbar():
        for i, pos in enumerate(pbs):
            if pos == cnt:
                assert pos >= p2 and pos >= 16*(i+1)
                A(f"s_waitcnt vmcnt({min(cnt - 16*(i+1), 63)})\ns_barrier")
    if lp:
        A(f"""
        s_mov_b64 s[{rK}:{rK+1}], s[{sK}:{sK+1}]
        L_burst:
        """)
        for jl in range(4): A(f"buffer_load_dwordx4 v{vDO+jl}, s[{rK}:{rK+3}], s{sTot} offen offset:{1024*jl} {pol} lds")
        A(f"""
        s_add_u32 m0, m0, s{sN}
        s_cmpk_eq_u32 m0, 16384
        s_cselect_b32 s{sTmp}, s{sN1}, s{sN0}
        s_add_u32 s{sTot}, s{sTot}, s{sTmp}
        s_cmpk_lg_u32 m0, {lp*1024}
        s_cbranch_scc1 L_burst
        s_lshl_b32 s{sO4}, s{sPr}, 9
        """)
    for u in range(RS):
        for w in range(4):
            if cnt < lp:
                cnt += 4
                if cnt < lp or cnt != W0 // 4 * 4: continue
                raise AssertionError("lp must be below W0")
            if lst and cnt in lst: A(f"s_memrealtime s[{34+2*lst.index(cnt)}:{35+2*lst.index(cnt)}]")
            if cnt == p2: verify()
            dbar()
            if tp and cnt == tp:
                A("; touch the K, V, workspace and output pages once per XCD so that their translations are cached (values unused)")
                A(f"s_mul_i32 s{sTmp2}, s{sJ0}, {3*1572864}")
                for i in range(3):
                    A(f"s_load_dword s{sMk+2*i}, s[{sK}:{sK+1}], s{sTmp2}\ns_load_dword s{sMk+2*i+1}, s[{sV}:{sV+1}], s{sTmp2}")
                    if i < 2: A(f"s_add_u32 s{sTmp2}, s{sTmp2}, 1572864")
                A(f"s_and_b32 s{sTmp2}, s{sJ0}, 3\ns_lshl_b32 s{sTmp2}, s{sTmp2}, 21\ns_load_dword s{sMk+6}, s[{sWS}:{sWS+1}], s{sTmp2}\ns_load_dword s{sMk+7}, s[{sOUT}:{sOUT+1}], 0")
            if sp and cnt == sp - 1:
                A(f"""
                s_lshl_b32 s{sTmp}, s{sJ0}, 9
                s_add_u32 s{sGb}, s{sBT}, s{sTmp}
                s_addc_u32 s{sGb+1}, s{sBT+1}, 0
                s_lshr_b32 s{sTmp}, s{sJ0}, 2
                s_lshl3_add_u32 s{sTmp}, s{sTmp}, s{sH}
                s_and_b32 s{sTmp2}, s{sJ0}, 3
                s_lshl2_add_u32 s{sTmp}, s{sTmp}, s{sTmp2}
                s_lshl_b32 s{sTmp}, s{sTmp}, 8
                s_add_u32 s{sBe}, s{sQ}, s{sTmp}
                s_addc_u32 s{sBe+1}, s{sQ+1}, 0
                """)
                i = 0
                for o in range(0, 512, spst): A(f"s_load_dword s{sMk+i}, s[{sGb}:{sGb+1}], {o}"); i += 1
                for o in range(0, 256, spst): A(f"s_load_dword s{sMk+i}, s[{sBe}:{sBe+1}], {o}"); i += 1
                A(f"s_load_dword s{sMk+i}, s[{sCTX}:{sCTX+1}], 0")
            A(f"s_mov_b32 m0, {u*16384 + w*4096}")
            if cnt == 0: A(f"s_mov_b32 s{rK}, s{sK}\ns_and_b32 s{rK+1}, s{sK+1}, 0xffff")
            else: A(f"s_add_u32 s{sTmp}, s{sO4}, {32768*w + u*64*65536}")
            for jl in range(4):
                if b0 and cnt == b0 - 1: A("s_barrier")
                if cnt == p1 or (a0 and cnt == a0 and a0 != W0 // 4 * 4): A("s_barrier")
                if cnt >= W0: A(f"s_waitcnt vmcnt({W0-1})")
                A(f"buffer_load_dwordx4 v{vDO+jl}, s[{rK}:{rK+3}], s{sO4 if cnt < 4 else sTmp} offen offset:{1024*jl} {pol} lds")
                cnt += 1
            if cnt == W0 // 4 * 4:
                if a0 == cnt: A('s_barrier')
                A(f"""
                s_and_b32 s{sK+1}, s{sK+1}, 0xffff
                s_and_b32 s{sV+1}, s{sV+1}, 0xffff
                v_lshl_add_u32 v{vT0}, v0, 22, s{sO4}
                v_lshlrev_b32 v{vT1}, 4, v0
                v_add_u32 v{vT1}, {OL}, v{vT1}
                v_mov_b32 v{vT2}, {XL+16}
                v_add_u32 v{vS+1}, 32768, v{vT0}
                v_add_u32 v{vS+2}, 65536, v{vT0}
                v_add_u32 v{vS+3}, 98304, v{vT0}
                """)
                if pre == 3: A(f"""
                s_lshl_b32 s{sTmp2}, s{sH}, 5
                s_add_u32 s{sTmp2}, s{sTmp2}, s{sJ0}
                s_lshl_b32 s{sTmp2}, s{sTmp2}, 13
                v_lshl_add_u32 v{vB}, v0, 6, s{sTmp2}
                v_add_u32 v{vB+1}, 4096, v{vB}
                s_lshl_b32 s{sTmp2}, s{sH}, 7
                s_add_u32 s{sTmp2}, s{sTmp2}, s{sJ0}
                s_lshl_b32 s{sTmp2}, s{sTmp2}, 7
                s_add_u32 s{sTmp2}, s{sTmp2}, {ML_OFF}
                v_and_b32 v{vB+2}, 1, v0
                v_lshl_add_u32 v{vB+2}, v{vB+2}, 6, s{sTmp2}
                v_bfe_u32 v{vB+3}, v0, 1, 2
                v_lshl_add_u32 v{vB+2}, v{vB+3}, 12, v{vB+2}
                """)
    if p2 == cnt: verify()
    dbar()
    A(f"""
    L_lgo:
    """)
    if fb:
        E = 2
        sEx = 94
        rP = 96
        vPg = vP; vPa = vP+1; vPo = vP+2; vPv = vP+3
        A(f"""
        s_mov_b32 s{rW}, s{sWS}
        s_and_b32 s{rW+1}, s{sWS+1}, 0xffff
        s_mov_b32 s{rW+2}, {WS_BYTES}
        s_mov_b32 s{rW+3}, 0x20000
        s_mov_b64 s[{rP}:{rP+1}], s[{sDBG}:{sDBG+1}]
        v_and_b32 v{vPa}, 7, v0
        v_lshlrev_b32 v{vPa}, 5, v{vPa}
        v_mov_b32 v{vPo}, 0x7f000000
        v_mov_b32 v{vPg}, 0
        s_mov_b32 s{sEx}, -1
        s_mov_b32 s{sEx+1}, 0
        s_mov_b32 s{sS}, 0
        s_sub_u32 s{sWb}, 256, s{sTot}
        s_bitcmp1_b32 s{sH}, 0
        s_cselect_b32 s{sB}, {-pb}, {pb}
        s_mov_b32 s{sBe}, 0
        s_mov_b32 s{sBe+1}, 0
        s_add_u32 s{sGb}, s{sWS}, {GX_OFF}
        s_addc_u32 s{sGb+1}, s{sWS+1}, 0
        s_lshl_b32 s{sPr}, s{sH}, 3
        s_cmp_eq_u32 s{sJ0}, {gx if gon else 99}
        s_mov_b32 s{sCu}, -1
        s_cselect_b32 s{sTmp}, {gab}, 0
        s_add_i32 s{sB}, s{sB}, s{sTmp}
        """)
        for i in range(len(gd)): A(f"s_mov_b64 s[{sMk+2*i}:{sMk+2*i+1}], 0")
        if NCU: A(f"s_cmp_lg_u32 s{sU}, 0\ns_cbranch_scc1 L_llc")
        A(f"""
        s_branch L_lle
        L_gx:
        {"s_waitcnt lgkmcnt(0)" if gw else ""}
        s_mov_b32 s{sTmp}, 0
        """)
        for i in range(len(gd)):
            A(f"""
            s_bcnt1_i32_b64 s{sTmp2}, s[{sMk+2*i}:{sMk+2*i+1}]
            s_add_i32 s{sTmp}, s{sTmp}, s{sTmp2}
            s_bitcmp1_b64 s[{sMk+2*i}:{sMk+2*i+1}], s{sPr}
            s_cselect_b32 s{sTmp2}, 8, 0
            s_sub_i32 s{sTmp}, s{sTmp}, s{sTmp2}
            """)
        if lagprof == 2: A(f"s_mov_b32 m0, s{sU}\ns_nop 0\nv_writelane_b32 v{vQ}, s{sTmp}, m0")
        for i, d in enumerate(gd):
            A(f"s_add_u32 s{sTmp2}, s{sU}, s{sWb}\ns_sub_u32 s{sTmp2}, s{sTmp2}, {128+d}\ns_mul_i32 s{sTmp2}, s{sTmp2}, {gstr}\ns_load_dwordx2 s[{sMk+2*i}:{sMk+2*i+1}], s[{sGb}:{sGb+1}], s{sTmp2} glc")
        A(f"""
        s_mul_i32 s{sTmp}, s{sTmp}, {gk}
        s_ashr_i32 s{sTmp2}, s{sBe+1}, {gsh}
        s_sub_i32 s{sBe+1}, s{sBe+1}, s{sTmp2}
        s_add_i32 s{sBe+1}, s{sBe+1}, s{sTmp}
        s_ashr_i32 s{sBe}, s{sBe+1}, {gsh+2}
        s_min_i32 s{sBe}, s{sBe}, {gmax}
        s_max_i32 s{sBe}, s{sBe}, {-gmax}
        s_add_u32 s{sTmp}, s{sU}, {gstop}
        s_add_u32 s{sCu}, s{sU}, 2
        s_cmp_lt_u32 s{sTmp}, s{sTot}
        s_cselect_b32 s{sCu}, s{sCu}, -1
        s_branch L_gxd
        L_ltop:
        s_cmp_eq_u32 s{sU}, s{sCu}
        s_cbranch_scc1 L_gx
        L_gxd:
        v_add_u32_dpp v{vT0}, v{vPg}, v{vPg} row_ror:1 row_mask:0xf bank_mask:0xf
        v_cmp_gt_u32 vcc, 2, v{vPg}
        s_add_u32 s{sPos}, s{sU}, s{sWb}
        v_add_u32_dpp v{vT0}, v{vT0}, v{vT0} row_ror:2 row_mask:0xf bank_mask:0xf
        s_add_i32 s{sTmp2}, s{sPos}, s{sBe}
        v_mov_b32 v{vPv}, s{sTmp2}
        s_add_u32 s{sTmp2}, s{sS}, 16
        v_add_u32_dpp v{vT0}, v{vT0}, v{vT0} row_ror:4 row_mask:0xf bank_mask:0xf
        s_mov_b64 exec, 1
        buffer_store_dword v{vPv}, v{vPo}, s[{rW}:{rW+3}], 0 offen
        s_mov_b64 exec, s[{sEx}:{sEx+1}]
        global_load_dword v{vPg}, v{vPa}, s[{rP}:{rP+1}] sc1
        s_mov_b64 exec, -1
        v_add_u32_dpp v{vT0}, v{vT0}, v{vT0} row_ror:8 row_mask:0xf bank_mask:0xf
        s_lshl_b32 s{sPos}, s{sPos}, 5
        v_readlane_b32 s{sTmp}, v{vT0}, s{sS}
        v_readlane_b32 s{sTmp2}, v{vT0}, s{sTmp2}
        s_xor_b32 s{sS}, s{sS}, 32
        s_add_u32 s{sTmp}, s{sTmp}, s{sTmp2}
        s_sub_i32 s{sPos}, s{sTmp}, s{sPos}
        s_add_i32 s{sPos}, s{sPos}, s{sB}
        s_and_b64 vcc, vcc, s[{sEx}:{sEx+1}]
        s_cselect_b32 s{sPos}, {neu}, s{sPos}
        s_not_b64 s[{sEx}:{sEx+1}], s[{sEx}:{sEx+1}]
        s_cmp_lg_u32 s{sTmp}, 32
        s_cbranch_scc1 L_lsel
        s_mov_b64 s[{rP}:{rP+1}], s[{sWS}:{sWS+1}]
        s_lshl_b32 s{sTmp}, s{sH}, 8
        s_add_u32 s{sTmp}, s{sTmp}, {PG_OFF}
        v_and_b32 v{vPa}, 31, v0
        v_lshl_add_u32 v{vPa}, v{vPa}, 2, s{sTmp}
        s_lshl2_add_u32 s{sTmp}, s{sJ0}, s{sTmp}
        v_mov_b32 v{vPo}, s{sTmp}
        v_mov_b32 v{vT1}, {XL+20}
        s_add_u32 s{sTmp}, s{sU}, {gdel}
        ds_write_b32 v{vT1}, v{vT1}
        s_cmp_eq_u32 s{sJ0}, {gx if gon else 99}
        s_cselect_b32 s{sCu}, s{sTmp}, -1
        L_lsel:
        """)
        if lagprof == 1: A(f"s_mov_b32 m0, s{sU}\ns_nop 0\nv_writelane_b32 v{vQ}, s{sPos}, m0")
        if ek: A(f"s_sub_u32 s{sTmp}, s{sTot}, s{sU}\ns_cmp_le_u32 s{sTmp}, {ek}\ns_cselect_b32 s{sTmp}, {eb}, 0\ns_add_i32 s{sPos}, s{sPos}, s{sTmp}")
        variants = [(f"f{i}", W) for i, W in enumerate(fb)] + [("e", WE)] + ([("c", WE)] if NCU else [])
        for i in range(len(th)-1, -1, -1):
            A(f"s_cmp_gt_i32 s{sPos}, {th[i]}\ns_cbranch_scc1 L_llf{i+1}")
    else:
        E = 0
        variants = [("e", WE)] if WE == WO else [("e", WE), ("o", WO)]
        if len(variants) > 1: A(f"s_bitcmp1_b32 s{sH}, 0\ns_cbranch_scc1 L_llo")
        if WT:
            assert WE == WO
            variants.append(("t", WT))
            A(f"s_sub_u32 s{sTmp}, s{sU}, s{sN}\ns_add_u32 s{sTmp}, s{sTmp}, {ta}\ns_cmp_lt_u32 s{sTmp}, {ta+tb}\ns_cbranch_scc1 L_llt")
    for tag, W in variants:
        assert 17 <= W <= 48
        if tag == "e": E = 0
        A(f"""
        L_ll{tag}:
        s_add_u32 s{sI}, s{sI}, 1
        s_cmp_lg_u32 s{sI}, s{sN1}
        s_cbranch_scc1 L_ls{tag}
        s_xor_b32 s{sIsV}, s{sIsV}, 1
        s_cselect_b32 s{sN0}, s{sN0}, s{sN1}
        s_cselect_b32 s{rK}, s{sV}, s{sK}
        s_cselect_b32 s{rK+1}, s{sV+1}, s{sK+1}
        s_mov_b32 s{sI}, s{sN0}
        s_add_u32 s{sN1}, s{sN0}, {CH}
        s_min_u32 s{sN1}, s{sN1}, s{sN}
        L_ls{tag}:
        """)
        if rev:
            A(f"s_add_u32 s{sTmp}, s{sN0}, s{sN1}\ns_sub_u32 s{sTmp}, s{sTmp}, s{sI}\ns_sub_u32 s{sTmp}, s{sTmp}, 1\ns_cmp_eq_u32 s{sIsV}, 0\ns_cselect_b32 s{sTmp}, s{sI}, s{sTmp}")
        for w in range(4): A(f"v_readlane_b32 s{sO4+w}, v{vX+w}, s{sTmp if rev else sI}")
        pass
        for w in range(4):
            A(f"""
            s_add_u32 m0, s{sLB}, {w*4096}
            s_bitcmp0_b32 s{sO4+w}, 0
            s_cselect_b32 s{sO4+w}, s{sO4+w}, 0
            s_cselect_b32 s{rK+2}, {KVB}, 0
            """)
            for jl in range(4):
                c = 4*w + jl
                if tag == "c":
                    assert cb[1] >= W - 17
                    A(f"s_waitcnt vmcnt({W-1})")
                    if c in cb: A("s_barrier")
                elif c == W-17: A(f"s_cmp_lt_u32 s{sU}, 2\ns_waitcnt vmcnt({W-1+E})\ns_cbranch_scc1 L_lb{tag}\ns_barrier\nL_lb{tag}:")
                elif c % step == 0: A(f"s_waitcnt vmcnt({W-step+E*(2 if c < W-17 else 1)})")
                A(f"buffer_load_dwordx4 v{vDO+jl}, s[{rK}:{rK+3}], s{sO4+w} offen offset:{1024*jl} {pol} lds")
        if W > 32: A(f"s_cmp_lt_u32 s{sU}, 2\ns_waitcnt vmcnt({32+E})\ns_cbranch_scc1 L_lb{tag}\ns_barrier\nL_lb{tag}:")
        A(f"""
        s_add_u32 s{sLB}, s{sLB}, 16384
        s_cmp_lg_u32 s{sLB}, {RS*16384}
        s_cselect_b32 s{sLB}, s{sLB}, 0
        s_add_u32 s{sU}, s{sU}, 1
        s_cmp_lt_u32 s{sU}, s{sTot}
        """)
        if tag == "c":
            A(f"s_cmp_lt_u32 s{sU}, {RS+NCU}\ns_cbranch_scc1 L_llc\ns_branch L_lle")
            continue
        if fb and tag == "e":
            A(f"s_cbranch_scc0 {'L_lfin' if fin else 'L_lend'}\ns_cmp_lt_u32 s{sU}, {us}\ns_cbranch_scc1 L_lle\ns_branch L_ltop")
            continue
        A(f"s_cbranch_scc1 {'L_ltop' if fb else 'L_lgo' if WT else 'L_ll'+tag}")
        if lst:
            for i in range(4): A(f"v_writelane_b32 v{vQ}, s{32+2*i}, {i}")
        if lagprof: A(f"s_lshl_b32 s{sTmp}, s2, 8\ns_add_u32 s{sTmp}, s{sTmp}, {12<<20}\nv_lshl_add_u32 v{vT0}, v0, 2, s{sTmp}\nglobal_store_dword v{vT0}, v{vQ}, s[{sWS}:{sWS+1}]")
        first = tag == ("f0" if fb else "e")
        if fin and not first:
            A("s_branch L_lfin"); continue
        if fin:
            A("; last two units land; pull this workgroup's publication lines into L2 meanwhile (values unused)")
            A("L_lfin:")
            prl = f"""
                global_load_dword v{vT0}, v{vB+2 if mlonly else vB}, s[{sWS}:{sWS+1}] sc1
                global_load_dword v{vT1}, v{vB+2 if mlonly else vB+1}, s[{sWS}:{sWS+1}] sc1
                global_load_dword v{vT2}, v{vB+2}, s[{sWS}:{sWS+1}] sc1
                """
            if pre != 3: A("s_waitcnt vmcnt(16)\ns_barrier\ns_waitcnt vmcnt(0)\ns_barrier")
            elif pp > 16: A(prl); A("s_waitcnt vmcnt(19)\ns_barrier\ns_waitcnt vmcnt(3)\ns_barrier")
            elif pp > 0: A(f"s_waitcnt vmcnt(16)\ns_barrier" + (f"\ns_waitcnt vmcnt({pp})" if pp < 16 else "")); A(prl); A("s_waitcnt vmcnt(3)\ns_barrier")
            else: A("s_waitcnt vmcnt(16)\ns_barrier\ns_waitcnt vmcnt(0)\ns_barrier"); A(prl)
        if fin and wb == 1:
            A(f"""
            s_cmp_lg_u32 s{sJ0}, 0
            s_cbranch_scc1 L_lend
            s_lshl_b32 s{sTmp}, s{sH}, 10
            s_add_u32 s{sTmp}, s{sTmp}, {FL_OFF}
            s_waitcnt vmcnt(0)
            v_and_b32 v{vB+4}, 31, v0
            v_lshl_add_u32 v{vB+4}, v{vB+4}, 2, s{sTmp}
            s_mov_b32 s{sCnt}, 0
            L_wbp:
            buffer_load_dword v{vT0}, v{vB+4}, s[{rW}:{rW+3}], 0 offen sc1
            s_add_u32 s{sCnt}, s{sCnt}, 1
            s_waitcnt vmcnt(0)
            v_cmp_eq_u32 vcc, 0, v{vT0}
            s_cmp_ge_u32 s{sCnt}, 64
            s_cbranch_scc1 L_lend
            s_cbranch_vccnz L_wbp
            buffer_wbl2 sc1
            s_endpgm
            """)
        if first: A("L_lend:")
        A("s_waitcnt vmcnt(0) lgkmcnt(0)\ns_endpgm")
    A(f"""
    L_misspec:
    s_waitcnt vmcnt(0)
    s_cmp_eq_u32 s{sN}, 0
    s_cbranch_scc1 L_lend
    s_mov_b32 s{sI}, -1
    s_mov_b32 s{sU}, 0
    s_branch L_lgo
    """)
    A(f"""
    L_cons:
    v_lshl_add_u32 v{vS}, v{vT0}, 11, v{vT1}
    v_xor_b32 v{vT1}, v{vT1}, v{vT2}
    s_mov_b32 s{rT+2}, 16384
    s_mov_b32 s{rT+3}, 0x20000
    s_sub_u32 s{sB}, s{sW}, 64
    s_lshl_b32 s{sLB}, s{sB}, 6
    s_lshl_b32 s{sMk}, s{sB}, 3
    s_add_u32 s{sMk+1}, s{sMk}, {3072}
    s_add_u32 s{sMk+2}, s{sMk}, {2*3072}
    s_add_u32 s{sMk+3}, s{sMk}, {3*3072}
    s_add_u32 m0, s{sLB}, {TL}
    v_and_b32 v{vT2}, 14, v0
    v_lshlrev_b32 v{vT2}, 1, v{vT2}
    s_waitcnt lgkmcnt(0)
    s_mov_b32 s{rT}, s{sBT}
    s_and_b32 s{rT+1}, s{sBT+1}, 0xffff
    """)
    if a0: A("s_barrier")
    for j in range(4):
        A(f"buffer_load_dwordx4 v{vS}, s[{rT}:{rT+3}], s{sMk+j} offen offset:{1024*j} lds")
    A(f"global_load_dword v{vCtx}, v{vT2}, s[{sCTX}:{sCTX+1}]")
    qissue()
    stamp(1)
    A(f"""
    v_and_b32 v{vLane}, 63, v0
    s_xor_b32 s{sTmp}, s{sJ0}, {lead}
    s_or_b32 s{sTmp}, s{sTmp}, s{sW}
    s_cselect_b32 s{sReg}, 0, 1
    s_cbranch_scc0 L_clear
    L_cleared:
    s_add_u32 s{sTmp}, s{sLB}, {TL}
    v_lshl_add_u32 v{vOf}, v{vLane}, 3, s{sTmp}
    v_lshrrev_b32 v{vG}, 4, v{vLane}
    v_and_b32 v{vQi}, 15, v{vLane}
    s_lshl2_add_u32 s{sTmp}, s{sW}, {XL}
    v_mov_b32 v{vB+2}, s{sTmp}
    v_mov_b32 v{vB+3}, {XL}
    s_lshl2_add_u32 s{sTmp}, s{sW}, {OL}
    v_lshl_add_u32 v{vB+4}, v{vLane}, 4, s{sTmp}
    s_lshl_b32 s{sWb}, s{sW}, 6
    v_lshl_add_u32 v{vS}, v{vLane}, 5, s{sJ0}
    v_mov_b32 v{vDs}, 0x80000
    v_not_b32 v{vS+1}, v{vS}
    v_mov_b32 v{vBig}, 0x7fff0000
    v_lshrrev_b32 v{vB}, 1, v{vQi}
    v_lshlrev_b32 v{vB}, 16, v{vB}
    v_and_b32 v{vT0}, 7, v{vQi}
    v_lshlrev_b32 v{vT0}, 1, v{vT0}
    v_xor_b32 v{vT0}, v{vT0}, v{vG}
    v_lshlrev_b32 v{vT0}, 4, v{vT0}
    v_lshl_add_u32 v{vKA}, v{vQi}, 9, v{vT0}
    v_xor_b32 v{vKA+1}, 64, v{vKA}
    v_xor_b32 v{vKA+2}, 128, v{vKA}
    v_xor_b32 v{vKA+3}, 192, v{vKA}
    v_lshrrev_b32 v{vT0}, 2, v{vLane}
    v_lshlrev_b32 v{vT1}, 9, v{vT0}
    v_and_b32 v{vT0}, 7, v{vT0}
    v_lshlrev_b32 v{vT0}, 1, v{vT0}
    v_and_b32 v{vT2}, 3, v{vLane}
    s_lshl_b32 s{sTmp}, s{sW}, 3
    v_add_u32 v{vT2}, s{sTmp}, v{vT2}
    v_xor_b32 v{vT3}, v{vT2}, v{vT0}
    v_lshl_add_u32 v{vVA}, v{vT3}, 4, v{vT1}
    v_xor_b32 v{vVA+1}, 64, v{vVA}
    """)
    for sl in range(4): A(f"v_add_u32 v{vVF+sl}, {QL}, v{vKA+sl}")
    A(f"""
    s_and_b32 s{sTmp}, s{sW}, 1
    s_lshl_b32 s{sS}, s{sTmp}, 4
    s_lshl_b32 s{sPr}, s{sTmp}, 6
    s_add_u32 s{sPr}, s{sPr}, s{sH}
    s_lshl_b32 s{sPr}, s{sPr}, 9
    v_mov_b32 v{vT2}, 0x2000
    v_mov_b32 v{vT3}, {CSC}
    """)
    stamp(7, 2)
    A(f"s_waitcnt vmcnt(2)")
    stamp(2)
    for b in range(8):
        A(f"ds_read_b64 v[{vKF+2*b}:{vKF+2*b+1}], v{vOf} offset:{512*b}")
    A(f"""
    v_cmp_lt_i32 vcc, 0, v{vCtx}
    v_min_i32 v{vCtx}, 0x2000, v{vCtx}
    v_lshl_add_u32 v{vT0}, v{vG}, 2, s{sS}
    v_cndmask_b32 v{vCtx}, v{vT2}, v{vCtx}, vcc
    v_cndmask_b32 v{vC}, 0, v{vT3}, vcc
    v_add_u32 v{vNb}, 31, v{vCtx}
    v_lshrrev_b32 v{vNb}, 5, v{vNb}
    v_sub_u32 v{vLim}, v{vCtx}, v{vT0}
    v_subrev_u32 v{vLim+1}, 1, v{vLim}
    v_max_u32_dpp v{vT2}, v{vNb}, v{vNb} row_ror:2 row_mask:0xf bank_mask:0xf
    v_subrev_u32 v{vLim+2}, 2, v{vLim}
    v_subrev_u32 v{vLim+3}, 3, v{vLim}
    v_max_u32_dpp v{vT2}, v{vT2}, v{vT2} row_ror:4 row_mask:0xf bank_mask:0xf
    s_waitcnt lgkmcnt(0)
    """)
    for b in range(1, 8):
        A(f"v_cmp_ne_u64 s[{sMk+2*b}:{sMk+2*b+1}], v[{vKF}:{vKF+1}], v[{vKF+2*b}:{vKF+2*b+1}]")
    A(f"v_max_u32_dpp v{vT2}, v{vT2}, v{vT2} row_ror:8 row_mask:0xf bank_mask:0xf")
    for b in range(2, 8):
        A(f"s_or_b64 s[{sMk+2}:{sMk+3}], s[{sMk+2}:{sMk+3}], s[{sMk+2*b}:{sMk+2*b+1}]")
    A(f"""
    s_ff1_i32_b64 s{sTmp}, s[{sMk+2}:{sMk+3}]
    s_min_u32 s{sTmp}, s{sTmp}, 256
    s_add_u32 s{sTmp}, s{sTmp}, s{sWb}
    v_min_u32 v{vT2}, s{sTmp}, v{vT2}
    ds_write_b32 v{vB+2}, v{vT2}
    s_waitcnt lgkmcnt(0)
    """)
    stamp(8, 2)
    A("s_barrier")
    stamp(9, 2)
    A(f"""
    ds_read_b128 v[{vX}:{vX+3}], v{vB+3}
    s_waitcnt lgkmcnt(0)
    v_min3_u32 v{vT0}, v{vX}, v{vX+1}, v{vX+2}
    v_min_u32 v{vT0}, v{vT0}, v{vX+3}
    v_max_u32 v{vNb}, v{vNb}, v{vT0}
    v_sub_u32 v{vNb}, v{vNb}, v{vT0}
    v_mov_b32 v{vO}, 0
    v_mov_b32 v{vO+1}, 0
    v_add_u32_dpp v{vT1}, v{vNb}, v{vNb} row_shr:2 row_mask:0xf bank_mask:0xf bound_ctrl:0
    v_mov_b32 v{vO+2}, 0
    v_mov_b32 v{vO+3}, 0
    v_add_u32_dpp v{vT1}, v{vT1}, v{vT1} row_shr:4 row_mask:0xf bank_mask:0xf bound_ctrl:0
    v_mov_b32 v{vM}, {NEGBIG}
    v_mov_b32 v{vL}, 0
    v_add_u32_dpp v{vT1}, v{vT1}, v{vT1} row_shr:8 row_mask:0xf bank_mask:0xf bound_ctrl:0
    v_add_u32 v{vT2}, v{vT1}, v{vT0}
    v_sub_u32 v{vT1}, v{vT1}, v{vNb}
    v_readlane_b32 s{sTot}, v{vT2}, 15
    v_sub_u32 v{vT2}, v{vT2}, v{vNb}
    v_sub_u32 v{vT1}, v{vB}, v{vT1}
    s_mov_b32 s{sI}, 0
    """)
    fill = [f"v_mov_b32 v{vO+i}, 0" for i in range(4, 16)] + [f"v_mov_b32 v{vNi}, 0xff800000", f"s_mov_b32 s{sC3}, 0x00030003", f"s_mov_b32 s{sC3+1}, 0x00030003", f"s_mov_b32 s{sLt}, 0"]
    for b in range(8):
        A(f"v_add_co_u32_dpp v{vT3}, vcc, v{vT2}, v{vS+1} row_newbcast:{2*b} row_mask:0xf bank_mask:0xf")
        A(fill[2*b]); A(fill[2*b+1])
        A(f"v_cndmask_b32_dpp v{vDs}, v{vT1}, v{vDs}, vcc row_newbcast:{2*b} row_mask:0xf bank_mask:0xf")
    stamp(10, 2)
    A(f"""
    v_cmp_gt_u32 s[{sMk+2}:{sMk+3}], s{sTot}, v{vS}
    v_add_u32 v{vDs}, v{vDs}, v{vS}
    v_bfe_u32 v{vT1}, v{vDs}, 16, 3
    v_bfe_u32 v{vT2}, v{vDs}, 6, 2
    v_and_b32 v{vT0}, 0x3f, v{vDs}
    v_lshl_add_u32 v{vT2}, v{vT2}, 3, v{vT1}
    v_lshl_add_u32 v{vT0}, v{vT2}, 6, v{vT0}
    s_and_b32 s{sTmp}, s{sW}, 2
    s_lshl1_add_u32 s{sTmp}, s{sTmp}, {TL}
    v_lshl_add_u32 v{vT0}, v{vT0}, 3, s{sTmp}
    v_lshlrev_b32 v{vT1}, 3, v{vT1}
    ds_read_b32 v{vOf}, v{vT0}
    ds_bpermute_b32 v{vT1}, v{vT1}, v{vCtx}
    s_bcnt1_i32_b64 s{sN}, s[{sMk+2}:{sMk+3}]
    v_and_b32 v{vT0}, 0xff, v{vDs}
    s_lshl_b32 s{sTmp2}, s{sW}, 3
    v_lshl_add_u32 v{vT0}, v{vT0}, 5, s{sTmp2}
    v_cmp_le_u32 vcc, 0x80000, v{vDs}
    v_mov_b32 v{vT2}, s{sN}
    ds_write_b32 v{vB+3}, v{vT2} offset:16
    ds_write_b32 v{vB+3}, v{vO} offset:20
    s_waitcnt lgkmcnt(2)
    v_cmp_lt_u32 s[{sMk}:{sMk+1}], v{vT0}, v{vT1}
    v_lshl_add_u32 v{vOf}, v{vOf}, 16, s{sPr}
    s_or_b64 vcc, vcc, s[{sMk}:{sMk+1}]
    s_and_b64 vcc, vcc, s[{sMk+2}:{sMk+3}]
    v_cndmask_b32 v{vOf}, 1, v{vOf}, vcc
    ds_write_b32 v{vB+4}, v{vOf}
    s_cmp_eq_u32 s{sReg}, 1
    s_waitcnt vmcnt(0) lgkmcnt(0)
    s_barrier
    s_cbranch_scc1 L_ready
    L_readied:
    s_mov_b32 s{sPos}, 0
    s_cmp_eq_u32 s{sN}, 0
    s_cbranch_scc1 L_done
    """)
    stamp(11, 2)
    for s in range(8):
        A(f"ds_read_b128 v[{vQ+4*s}:{vQ+4*s+3}], v{vVF+(s&3)} offset:{256*(s>>2)}")
    vSW = vDO; vSR = vDO + 1; vMW = vDO + 2; vMR = vDO + 3
    A(f"""
    s_lshl_b32 s{sTmp}, s{sS}, 9
    v_add_u32 v{vKA}, s{sTmp}, v{vKA}
    v_lshlrev_b32 v{vSR}, 4, v{vLane}
    v_add_u32 v{vSR}, {SC}, v{vSR}
    s_lshl_b32 s{sTmp}, s{sS}, 6
    v_add_u32 v{vSW}, s{sTmp}, v{vSR}
    v_lshlrev_b32 v{vMR}, 4, v{vQi}
    v_add_u32 v{vMR}, {MX}, v{vMR}
    s_lshl_b32 s{sTmp}, s{sW}, 2
    v_add_u32 v{vMW}, s{sTmp}, v{vMR}
    s_mov_b32 s{sSl}, 0
    s_mov_b32 s{sN0}, 0
    s_min_u32 s{sN1}, s{sN}, {CH}
    s_lshr_b32 s{sIsV}, s{sW}, 1
    s_add_u32 s{sGb+1}, s{sH}, {GX_OFF-gstr}
    v_mov_b32 v{vGa}, 0
    v_mov_b32 v{vGa+1}, 1
    s_lshl_b32 s{sTmp}, s{sN}, 1
    s_sub_u32 s{sCu}, 128, s{sTmp}
    s_cmp_eq_u32 s{sW}, 3
    s_cselect_b32 s{sGb}, s{sJ0}, 99
    s_branch L_pass
    """)
    A(f"""
    L_clear:
    s_lshl_b32 s{sTmp}, s{sH}, 10
    s_add_u32 s{sTmp}, s{sTmp}, {FL_OFF}
    v_lshl_add_u32 v{vJk+1}, v{vLane}, 3, s{sTmp}
    v_mov_b32 v{vJk+2}, 0
    v_mov_b32 v{vJk+3}, 0
    global_store_dwordx2 v{vJk+1}, v[{vJk+2}:{vJk+3}], s[{sWS}:{sWS+1}] sc1
    global_store_dwordx2 v{vJk+1}, v[{vJk+2}:{vJk+3}], s[{sWS}:{sWS+1}] offset:512 sc1
    s_lshl_b32 s{sTmp}, s{sH}, 8
    s_add_u32 s{sTmp}, s{sTmp}, {PG_OFF}
    v_lshl_add_u32 v{vJk+1}, v{vLane}, 2, s{sTmp}
    global_store_dword v{vJk+1}, v{vJk+2}, s[{sWS}:{sWS+1}] sc1
    s_mul_i32 s{sTmp}, s{sH}, {16*gstr}
    s_add_u32 s{sTmp}, s{sTmp}, {GX_OFF}
    v_mul_u32_u24 v{vJk+1}, {gstr}, v{vLane}
    v_add_u32 v{vJk+1}, s{sTmp}, v{vJk+1}
    s_mov_b64 exec, 0xffff
    global_store_dwordx2 v{vJk+1}, v[{vJk+2}:{vJk+3}], s[{sWS}:{sWS+1}] sc1
    s_mov_b64 exec, -1
    s_branch L_cleared
    L_ready:
    s_lshl_b32 s{sTmp}, s{sH}, 5
    v_mov_b32 v{vJk+1}, s{sTmp}
    v_mov_b32 v{vJk+2}, 1
    s_mov_b64 exec, 1
    global_store_dword v{vJk+1}, v{vJk+2}, s[{sDBG}:{sDBG+1}] sc1
    s_mov_b64 exec, -1
    s_branch L_readied
    """)
    A(f"""
    L_late:
    s_mov_b32 s{rW}, s{sWS}
    s_and_b32 s{rW+1}, s{sWS+1}, 0xffff
    s_mov_b32 s{rW+2}, {WS_BYTES if not prof else 16 << 20}
    s_mov_b32 s{rW+3}, 0x20000
    s_lshl2_add_u32 s{sTmp2}, s{sH}, s{sW}
    s_lshl_b32 s{sTmp}, s{sTmp2}, {9 if cml else 5}
    s_add_u32 s{sTmp}, s{sTmp}, s{sJ0}
    s_lshl_b32 s{sTmp}, s{sTmp}, {3 if cml else 7}
    s_add_u32 s{sTmp}, s{sTmp}, {ML_OFF}
    v_lshl_add_u32 v{vMO}, v{vQi}, {8 if cml else 3}, s{sTmp}
    s_lshl_b32 s{sTmp2}, s{sTmp2}, 8
    s_lshl2_add_u32 s{sTmp2}, s{sJ0}, s{sTmp2}
    s_add_u32 s{sTmp2}, s{sTmp2}, {FL_OFF}
    v_mov_b32 v{vFo}, s{sTmp2}
    s_lshl_b32 s{sTmp}, s{sH}, 5
    v_mov_b32 v{vRd}, s{sTmp}
    s_add_u32 s{sTmp}, s{sTmp}, s{sJ0}
    s_lshl2_add_u32 s{sTmp}, s{sTmp}, s{sW}
    s_lshl_b32 s{sTmp}, s{sTmp}, 11
    v_lshl_add_u32 v{vSO}, v{vQi}, {4 if lin else 6}, s{sTmp}
    v_lshl_add_u32 v{vSO}, v{vG}, {8 if lin else 4}, v{vSO}
    """)
    A(f"""
    v_lshrrev_b32 v{vJk+2}, 2, v{vLane}
    v_and_b32 v{vJk+3}, 3, v{vLane}
    """)
    if lin:
        assert cml
        A(f"""
        s_lshr_b32 s{sTot}, s{sJ0}, 3
        s_lshl2_add_u32 s{sTot}, s{sH}, s{sTot}
        s_lshl2_add_u32 s{sTmp}, s{sTot}, s{sW}
        s_lshl_b32 s{sTmp}, s{sTmp}, 10
        s_add_u32 s{sTmp}, s{sTmp}, {ML_OFF}
        v_lshl_add_u32 v{vMd}, v{vJk+2}, 3, s{sTmp}
        v_lshl_add_u32 v{vMd}, v{vJk+3}, 8, v{vMd}
        s_lshl_b32 s{sTmp}, s{sTot}, 8
        s_add_u32 s{sTmp}, s{sTmp}, {FL_OFF}
        v_lshl_add_u32 v{vFa}, v{vLane}, 2, s{sTmp}
        s_lshl_b32 s{sTmp}, s{sH}, 18
        s_lshl2_add_u32 s{sTmp2}, s{sJ0}, s{sW}
        s_lshl_b32 s{sTmp2}, s{sTmp2}, 6
        s_add_u32 s{sTmp}, s{sTmp}, s{sTmp2}
        v_lshl_add_u32 v{vAd}, v{vJk+3}, 4, s{sTmp}
        v_lshl_add_u32 v{vAd}, v{vJk+2}, 13, v{vAd}
        v_add_u32 v{vAd+1}, {16*SB}, v{vAd}
        s_lshl4_add_u32 s{sTmp}, s{sW}, s{sH}
        s_lshl_b32 s{sTmp}, s{sTmp}, 10
        s_lshl4_add_u32 s{sTmp}, s{sJ0}, s{sTmp}
        v_lshl_add_u32 v{vOA}, v{vG}, 2, s{sTmp}
        v_and_b32 v{vJk+2}, 1, v{vLane}
        v_lshl_add_u32 v{vOA}, v{vJk+2}, 9, v{vOA}
        v_bfe_u32 v{vJk+2}, v{vLane}, 1, 1
        v_lshl_add_u32 v{vOA}, v{vJk+2}, 13, v{vOA}
        """)
    else:
        A(f"""
    s_lshr_b32 s{sB}, s{sJ0}, 2
    s_and_b32 s{sTmp}, s{sW}, 1
    s_lshl1_add_u32 s{sS}, s{sB}, s{sTmp}
    s_lshl1_add_u32 s{sWb}, s{sH}, s{sTmp}
    s_and_b32 s{sTot}, s{sJ0}, 3
    s_lshr_b32 s{sTmp2}, s{sW}, 1
    s_lshl1_add_u32 s{sPr}, s{sTot}, s{sTmp2}
    s_lshl2_add_u32 s{sTot}, s{sH}, s{sTot}
    s_lshl_b32 s{sTmp}, s{sTot}, 12
    s_lshl_b32 s{sTmp2}, s{sS}, {8 if cml else 3}
    s_add_u32 s{sTmp}, s{sTmp}, s{sTmp2}
    s_add_u32 s{sTmp}, s{sTmp}, {ML_OFF}
    v_lshl_add_u32 v{vMd}, v{vJk+2}, {3 if cml else 7}, s{sTmp}
    s_lshl_b32 s{sTmp}, s{sTot}, 8
    s_add_u32 s{sTmp}, s{sTmp}, {FL_OFF}
    v_lshl_add_u32 v{vFa}, v{vLane}, 2, s{sTmp}
    s_lshl_b32 s{sTmp}, s{sH}, 18
    s_lshl4_add_u32 s{sTmp2}, s{sPr}, s{sS}
    s_lshl_b32 s{sTmp2}, s{sTmp2}, 6
    s_add_u32 s{sTmp}, s{sTmp}, s{sTmp2}
    v_lshl_add_u32 v{vAd}, v{vJk+3}, 4, s{sTmp}
    v_lshl_add_u32 v{vAd}, v{vJk+2}, 13, v{vAd}
    v_add_u32 v{vAd+1}, {16*SB}, v{vAd}
    s_lshl4_add_u32 s{sTmp}, s{sB}, s{sWb}
    s_lshl3_add_u32 s{sTmp}, s{sTmp}, s{sPr}
    s_lshl_b32 s{sTmp}, s{sTmp}, 6
    v_lshl_add_u32 v{vOA}, v{vJk+3}, 4, s{sTmp}
    v_lshl_add_u32 v{vOA}, v{vG}, 2, v{vOA}
    """)
    A(f"""
    s_getreg_b32 s{sPl}, hwreg(HW_REG_XCC_ID, 0, 4)
    L_late_end:
    s_cmp_eq_u32 s{sLt}, 2
    s_cbranch_scc1 L_done2
    s_mov_b32 s{sLt}, 1
    s_branch L_back
    L_late2:
    s_mov_b32 s{sLt}, 2
    s_branch L_late
    """)
    hk = [0]
    def ustamp(last=False):
        if gon and not last:
            hk[0] += 1
            A(f"""
            s_and_b32 s{sTmp}, s{sCu}, 31
            s_add_u32 s{sCu}, s{sCu}, 1
            s_cmp_lg_u32 s{sTmp}, s{sGb}
            s_cbranch_scc1 L_hk{hk[0]}
            s_cmp_gt_u32 s{sCu}, {128-gstop}
            s_cbranch_scc1 L_hk{hk[0]}
            v_mov_b32 v{vGa}, {XL+20}
            ds_read_b32 v{vGa}, v{vGa}
            s_mul_i32 s{sTmp}, s{sCu}, {gstr}
            s_add_u32 s{sTmp}, s{sTmp}, s{sGb+1}
            s_waitcnt lgkmcnt(0)
            v_cmp_ne_u32 vcc, 0, v{vGa}
            s_cbranch_vccz L_hk{hk[0]}
            s_mov_b64 exec, 1
            v_mov_b32 v{vGa}, s{sTmp}
            global_store_byte v{vGa}, v{vGa+1}, s[{sWS}:{sWS+1}] sc1
            s_mov_b64 exec, -1
            L_hk{hk[0]}:
            """)
        if prof: A(f"s_memrealtime s[{sSt}:{sSt+1}]\ns_waitcnt lgkmcnt(0)\ns_lshr_b32 m0, s{sIt}, 1\ns_add_u32 s{sIt}, s{sIt}, 1\ns_min_u32 s{sIt}, s{sIt}, 121\nv_writelane_b32 v{vPf}, s{sSt}, m0")
    vA = vB + 4
    A(f"""
    .p2align 6
    L_pass:
    v_mov_b32 v{vNb}, v{vM}
    L_p1:
    s_xor_b32 s{sTmp}, s{sI}, s{sIsV}
    s_bitcmp0_b32 s{sTmp}, 0
    s_cbranch_scc1 L_mine
    s_barrier
    """)
    ustamp()
    A(f"""
    s_lshr_b32 s{sTmp}, s{sI}, 1
    s_cmp_eq_u32 s{sTmp}, {pat}
    s_cbranch_scc1 L_late
    s_branch L_back
    L_mine:
    v_readlane_b32 s{sPos}, v{vDs}, s{sI}
    v_add_u32 v{vA}, s{sSl}, v{vKA}
    v_xor_b32 v{vA+1}, 64, v{vA}
    v_xor_b32 v{vA+2}, 128, v{vA}
    v_xor_b32 v{vA+3}, 192, v{vA}
    s_lshr_b32 s{sTmp}, s{sPos}, 15
    s_lshl_b64 vcc, s[{sC3}:{sC3+1}], s{sTmp}
    s_bitcmp1_b32 s{sPos}, 19
    s_cselect_b64 vcc, -1, vcc
    s_and_b32 s{sPos}, s{sPos}, 0xff
    s_lshl_b32 s{sPos}, s{sPos}, 5
    v_mov_b32 v{vT1}, s{sPos}
    v_cndmask_b32 v{vT1}, v{vBig}, v{vT1}, vcc
    s_sub_u32 s{sTmp}, s{sI}, s{sN0}
    s_lshl_b32 s{sTmp}, s{sTmp}, 11
    """)
    for r in range(4): A(f"v_cmp_lt_i32 s[{sMk+2*r}:{sMk+2*r+1}], v{vT1}, v{vLim+r}")
    A(f"v_add_u32 v{vT2}, s{sTmp}, v{vSW}")
    A("s_barrier")
    ustamp()
    for s in range(8):
        A(f"ds_read_b128 v[{vKF+4*s}:{vKF+4*s+3}], v{vA+(s&3)} offset:{256*(s>>2)}")
    for s in range(8):
        A(f"s_waitcnt lgkmcnt({7-s})")
        c = "0" if s == 0 else f"v[{vS}:{vS+3}]"
        A(f"v_mfma_f32_16x16x32_bf16 v[{vS}:{vS+3}], v[{vKF+4*s}:{vKF+4*s+3}], v[{vQ+4*s}:{vQ+4*s+3}], {c}")
    A("s_nop 7")
    for r in range(4): A(f"v_mul_f32 v{vX+r}, v{vS+r}, v{vC}")
    for r in range(4): A(f"v_cndmask_b32 v{vX+r}, v{vNi}, v{vX+r}, s[{sMk+2*r}:{sMk+2*r+1}]")
    A(f"""
    ds_write_b128 v{vT2}, v[{vX}:{vX+3}]
    v_max3_f32 v{vNb}, v{vNb}, v{vX}, v{vX+1}
    v_max3_f32 v{vNb}, v{vNb}, v{vX+2}, v{vX+3}
    L_back:
    s_add_u32 s{sSl}, s{sSl}, 16384
    s_cmp_lg_u32 s{sSl}, {RS*16384}
    s_cselect_b32 s{sSl}, s{sSl}, 0
    s_add_u32 s{sI}, s{sI}, 1
    s_cmp_lt_u32 s{sI}, s{sN1}
    s_cbranch_scc1 L_p1
    """)
    if pre == 1: A(f"s_cmp_eq_u32 s{sLt}, 0\ns_cbranch_scc1 L_nopre\nbuffer_load_dword v{vJk}, v{vJk+1}, s[{rW}:{rW+3}], 0 offen sc1\nL_nopre:")
    A(f"""
    v_mov_b32 v{vT1}, v{vNb}
    s_mov_b32 s{sI}, s{sN0}
    s_nop 0
    v_permlane32_swap_b32 v{vNb}, v{vT1}
    v_max_f32 v{vNb}, v{vNb}, v{vT1}
    v_mov_b32 v{vT1}, v{vNb}
    s_nop 1
    v_permlane16_swap_b32 v{vNb}, v{vT1}
    v_max_f32 v{vNb}, v{vNb}, v{vT1}
    ds_write_b32 v{vMW}, v{vNb}
    s_sub_u32 s{sTmp}, s{sN1}, s{sN0}
    s_sub_u32 s{sTmp}, s{sTmp}, 1
    s_mul_i32 s{sTmp}, s{sTmp}, {2048 if rev else 0}
    v_add_u32 v{vT3}, s{sTmp}, v{vSR}
    s_waitcnt lgkmcnt(0)
    s_barrier
    """)
    ustamp()
    A(f"""
    ds_read_b128 v[{vS}:{vS+3}], v{vMR}
    s_mov_b32 s{sU}, 0
    s_waitcnt lgkmcnt(0)
    v_max3_f32 v{vT0}, v{vS}, v{vS+1}, v{vS+2}
    v_max_f32 v{vT0}, v{vT0}, v{vS+3}
    v_sub_f32 v{vAl}, v{vM}, v{vT0}
    v_exp_f32 v{vAl}, v{vAl}
    v_mov_b32 v{vM}, v{vT0}
    v_mul_f32 v{vL}, v{vL}, v{vAl}
    """)
    for i in range(8):
        A(f"v_pk_mul_f32 v[{vO+2*i}:{vO+2*i+1}], v[{vO+2*i}:{vO+2*i+1}], v[{vAl}:{vAl+1}] op_sel_hi:[1,0]")
    A(f"""
    L_p2:
    ds_read_b128 v[{vX}:{vX+3}], v{vT3}
    ds_read_b128 v[{vX+4}:{vX+7}], v{vT3} offset:1024
    v_add_u32 v{vA}, s{sSl}, v{vVA}
    v_add_u32 v{vA+1}, s{sSl}, v{vVA+1}
    v_add_u32 v{vT3}, {-2048 if rev else 2048}, v{vT3}
    s_add_u32 s{sSl}, s{sSl}, 16384
    s_cmp_lg_u32 s{sSl}, {RS*16384}
    s_cselect_b32 s{sSl}, s{sSl}, 0
    s_add_u32 s{sI}, s{sI}, 1
    s_cmp_eq_u32 s{sU}, 0
    s_mov_b32 s{sU}, 1
    s_waitcnt lgkmcnt(0)
    """)
    for r in range(8): A(f"v_sub_f32 v{vX+r}, v{vX+r}, v{vM}")
    for r in range(8): A(f"v_exp_f32 v{vX+r}, v{vX+r}")
    for j in range(4): A(f"v_cvt_pk_bf16_f32 v{vP+j}, v{vX+2*j}, v{vX+2*j+1}")
    A(f"""
    v_add_f32 v{vL}, v{vL}, v{vX}
    v_add_f32 v{vT0}, v{vX+1}, v{vX+2}
    v_add_f32 v{vT1}, v{vX+3}, v{vX+4}
    v_add_f32 v{vT2}, v{vX+5}, v{vX+6}
    v_add_f32 v{vL}, v{vL}, v{vX+7}
    v_add_f32 v{vT0}, v{vT0}, v{vT1}
    v_add_f32 v{vL}, v{vL}, v{vT2}
    v_add_f32 v{vL}, v{vL}, v{vT0}
    """)
    def pv(inter=None):
        for i in range(4):
            for h in range(2):
                r = vVF + 4*i + 2*h
                A(f"ds_read_b64_tr_b16 v[{r}:{r+1}], v{vA+(i>>1)} offset:{8192*h + 8*(i&1)}")
        if inter: A(inter)
        for i in range(4):
            A(f"s_waitcnt lgkmcnt({6-2*i})")
            A(f"v_mfma_f32_16x16x32_bf16 v[{vO+4*i}:{vO+4*i+3}], v[{vVF+4*i}:{vVF+4*i+3}], v[{vP}:{vP+3}], v[{vO+4*i}:{vO+4*i+3}]")
    vF = vT3
    A(f"""
    s_cselect_b32 s{sPos}, 1, 2
    s_cmp_eq_u32 s{sI}, s{sN}
    s_cbranch_scc1 L_done
    s_cmp_eq_u32 s{sPos}, 1
    s_cbranch_scc1 L_nb
    s_barrier
    """)
    ustamp()
    A("L_nb:")
    pv(f"s_cmp_lt_u32 s{sI}, s{sN1}")
    A(f"""
    s_cbranch_scc1 L_p2
    s_mov_b32 s{sN0}, s{sN1}
    s_add_u32 s{sN1}, s{sN1}, {CH}
    s_min_u32 s{sN1}, s{sN1}, s{sN}
    s_branch L_pass
    L_done:
    s_cmp_eq_u32 s{sLt}, 0
    s_cbranch_scc1 L_late2
    L_done2:
    global_load_dword v{vT0}, v{vRd}, s[{sDBG}:{sDBG+1}] sc1
    v_mov_b32 v{vT1}, v{vL}
    v_mov_b32 v{vAl}, v{vM}
    s_mov_b32 s{sCnt}, 0
    v_permlane32_swap_b32 v{vL}, v{vT1}
    v_add_f32 v{vL}, v{vL}, v{vT1}
    v_mov_b32 v{vT1}, v{vL}
    s_mov_b32 s{sReg}, 0
    v_mov_b32 v{vT2}, 1
    v_permlane16_swap_b32 v{vL}, v{vT1}
    v_add_f32 v{vAl+1}, v{vL}, v{vT1}
    s_cmp_lg_u32 s{sPl}, s{sH}
    s_cbranch_scc1 L_noml
    s_mov_b64 exec, 0xffff
    buffer_store_dwordx2 v[{vAl}:{vAl+1}], v{vMO}, s[{rW}:{rW+3}], 0 offen {mlp}
    s_mov_b64 exec, -1
    L_noml:
    s_cmp_eq_u32 s{sPos}, 0
    s_cbranch_scc1 L_nopv
    s_cmp_eq_u32 s{sPos}, 1
    s_cbranch_scc1 L_nb2
    s_barrier
    """)
    ustamp(True)
    A("L_nb2:")
    pv()
    A(f"L_nopv:")
    stamp(3)
    A(f"s_cmp_eq_u32 s{sPl}, s{sH}\ns_nop 2")
    for j in range(4): A(f"v_cvt_pk_bf16_f32 v{vX+j}, v{vO+2*j}, v{vO+2*j+1}")
    A("s_nop 0")
    for j in range(4, 8): A(f"v_cvt_pk_bf16_f32 v{vX+j}, v{vO+2*j}, v{vO+2*j+1}")
    A(f"s_cbranch_scc0 L_slow")
    def publish(sc, tag, foff):
        for ih in range(2):
            A(f"buffer_store_dwordx4 v[{vX+4*ih}:{vX+4*ih+3}], v{vSO}, s[{rW}:{rW+3}], s{sReg} offen offset:{1024*ih} {sc or stp}")
        if sc: A(f"s_mov_b64 exec, 0xffff\nbuffer_store_dwordx2 v[{vAl}:{vAl+1}], v{vMO}, s[{rW}:{rW+3}], s{sReg} offen {sc}")
        A(f"""
        s_mov_b64 exec, 1
        L_rdy{tag}:
        s_waitcnt vmcnt(0)
        v_cmp_eq_u32 vcc, 0, v{vT0}
        s_cbranch_vccz L_rok{tag}
        s_add_u32 s{sCnt}, s{sCnt}, 1
        s_cmp_ge_u32 s{sCnt}, 0x40000
        s_cbranch_scc1 L_rok{tag}
        global_load_dword v{vT0}, v{vRd}, s[{sDBG}:{sDBG+1}] sc1
        s_branch L_rdy{tag}
        L_rok{tag}:
        buffer_store_dword v{vT2}, v{vFo}, s[{rW}:{rW+3}], 0 offen offset:{foff} {sc}
        s_mov_b64 exec, -1
        """)
    publish("", "a", 0)
    stamp(4)
    A(f"""
    L_poll:
    buffer_load_dword v{vF}, v{vFa}, s[{rW}:{rW+3}], 0 offen sc1
    s_add_u32 s{sCnt}, s{sCnt}, 1
    s_waitcnt vmcnt(0)
    v_cmp_ne_u32 vcc, 0, v{vF}
    s_cmp_eq_u32 vcc_lo, -1
    s_cbranch_scc1 L_got
    s_cmp_lg_u32 vcc_hi, 0
    s_cbranch_scc1 L_slow
    s_cmp_lt_u32 s{sCnt}, 0x40000
    s_cbranch_scc1 L_poll
    L_got:
    """)
    stamp(5)
    vD = vKF; vML = vKF + 8; vAc = vKF + 16
    for k in range(2):
        A(f"buffer_load_dwordx2 v[{vML+2*k}:{vML+2*k+1}], v{vMd}, s[{rW}:{rW+3}], s{sReg} offen offset:{(128 if cml else 2048)*k} sc1")
    for k in range(2):
        A(f"buffer_load_dwordx4 v[{vD+4*k}:{vD+4*k+3}], v{vAd+k}, s[{rW}:{rW+3}], s{sReg} offen sc1")
    A(f"s_waitcnt vmcnt(2)")
    stamp(7)
    A(f"v_max_f32 v{vT0}, v{vML}, v{vML+2}")
    for ro in (4, 8):
        A(f"s_nop 1\nv_max_f32_dpp v{vT0}, v{vT0}, v{vT0} row_ror:{ro} row_mask:0xf bank_mask:0xf")
    A(f"""
    v_mov_b32 v{vT1}, v{vT0}
    s_nop 1
    v_permlane32_swap_b32 v{vT0}, v{vT1}
    v_max_f32 v{vT0}, v{vT0}, v{vT1}
    v_mov_b32 v{vT1}, v{vT0}
    s_nop 1
    v_permlane16_swap_b32 v{vT0}, v{vT1}
    v_max_f32 v{vT0}, v{vT0}, v{vT1}
    """)
    for k in range(2): A(f"v_sub_f32 v{vML+2*k}, v{vML+2*k}, v{vT0}")
    for k in range(2): A(f"v_exp_f32 v{vML+2*k}, v{vML+2*k}")
    vLs = vAc + 8
    A(f"v_mul_f32 v{vLs}, v{vML}, v{vML+1}\nv_fmac_f32 v{vLs}, v{vML+2}, v{vML+3}")
    for k in range(2):
        A(f"s_waitcnt vmcnt({1-k})")
        op = "v_mul_f32" if k == 0 else "v_fmac_f32"
        for j in range(4):
            A(f"v_lshlrev_b32 v{vT1}, 16, v{vD+4*k+j}\nv_and_b32 v{vT2}, 0xffff0000, v{vD+4*k+j}")
            A(f"{op} v{vAc+2*j}, v{vML+2*k}, v{vT1}\n{op} v{vAc+2*j+1}, v{vML+2*k}, v{vT2}")
    if wb == 2: A(f"s_or_b32 s{sTmp}, s{sJ0}, s{sW}\ns_cbranch_scc1 L_nowb\nbuffer_wbl2 sc1\nL_nowb:")
    stamp(8)
    A(f"v_mov_b32 v{vLs+1}, v{vLs}")
    for j in range(4): A(f"v_permlane32_swap_b32 v{vAc+j}, v{vAc+4+j}")
    A(f"v_permlane32_swap_b32 v{vLs}, v{vLs+1}")
    A(f"v_add_f32 v{vLs}, v{vLs}, v{vLs+1}")
    for j in range(4): A(f"v_add_f32 v{vAc+j}, v{vAc+j}, v{vAc+4+j}")
    A(f"v_mov_b32 v{vLs+1}, v{vLs}\ns_nop 0")
    for j in range(2): A(f"v_permlane16_swap_b32 v{vAc+j}, v{vAc+2+j}")
    A(f"v_permlane16_swap_b32 v{vLs}, v{vLs+1}")
    A(f"v_add_f32 v{vLs}, v{vLs}, v{vLs+1}")
    for j in range(2): A(f"v_add_f32 v{vAc+j}, v{vAc+j}, v{vAc+2+j}")
    for ro in (4, 8):
        for r in (vLs, vAc, vAc+1): A(f"v_add_f32_dpp v{r}, v{r}, v{r} row_ror:{ro} row_mask:0xf bank_mask:0xf")
    A(f"""
    v_rcp_f32 v{vLs}, v{vLs}
    s_mov_b32 exec_lo, 0x000f000f
    s_mov_b32 exec_hi, 0x000f000f
    v_mul_f32 v{vAc}, v{vAc}, v{vLs}
    v_mul_f32 v{vAc+1}, v{vAc+1}, v{vLs}
    v_cvt_pk_bf16_f32 v{vAc}, v{vAc}, v{vAc+1}
    global_store_dword v{vOA}, v{vAc}, s[{sOUT}:{sOUT+1}] {outpol}
    """)
    if wb == 3: A(f"s_or_b32 s{sTmp}, s{sJ0}, s{sW}\ns_cbranch_scc1 L_nowb\nbuffer_wbl2 sc1\nL_nowb:")
    stamp(9)
    if prof: A("s_mov_b64 exec, -1\ns_waitcnt vmcnt(0)")
    stamp(6)
    if prof == 2:
        a, b = diag
        A(f"""
        s_nop 1
        v_readlane_b32 s{sF}, v{vPf}, 0
        v_readlane_b32 s{sF+1}, v{vPf}, {a}
        v_readlane_b32 s{sF+2}, v{vPf}, {b}
        s_sub_u32 s{sF+1}, s{sF+2}, s{sF+1}
        s_min_u32 s{sF+1}, s{sF+1}, 20000
        s_mul_i32 s{sF+1}, s{sF+1}, {diagmul}
        """)
        if diagwg >= 0: A(f"s_cmp_eq_u32 s2, {diagwg}\ns_cselect_b32 s{sF+1}, s{sF+1}, 0")
        A(f"""
        s_add_u32 s{sF+1}, s{sF+1}, 10000
        L_spin:
        s_memrealtime s[{sSt}:{sSt+1}]
        s_waitcnt lgkmcnt(0)
        s_sub_u32 s{sF+2}, s{sSt}, s{sF}
        s_cmp_lt_u32 s{sF+2}, s{sF+1}
        s_cbranch_scc1 L_spin
        """)
    if prof == 1:
        A(f"""
        v_writelane_b32 v{vPf}, s{sPl}, 62
        v_writelane_b32 v{vPf}, s{sCnt}, 63
        s_lshl_b32 s{sTmp}, s2, 2
        s_add_u32 s{sTmp}, s{sTmp}, s{sW}
        s_lshl_b32 s{sTmp}, s{sTmp}, 8
        s_add_u32 s{sTmp}, s{sTmp}, {PROF_OFF}
        v_lshlrev_b32 v{vT0}, 2, v{vLane}
        buffer_store_dword v{vPf}, v{vT0}, s[{rW}:{rW+3}], s{sTmp} offen
        """)
    A("s_endpgm")
    A(f"L_slow:\ns_mov_b32 s{sReg}, {REG}")
    publish("sc1", "b", 128)
    A(f"""
    L_poll2:
    buffer_load_dword v{vF}, v{vFa}, s[{rW}:{rW+3}], 0 offen sc1
    s_add_u32 s{sCnt}, s{sCnt}, 1
    s_waitcnt vmcnt(0)
    v_cmp_ne_u32 vcc, 0, v{vF}
    s_cmp_eq_u32 vcc_hi, -1
    s_cbranch_scc1 L_got
    s_sleep 2
    s_cmp_lt_u32 s{sCnt}, 0x40000
    s_cbranch_scc1 L_poll2
    s_branch L_got
    """)
    A("L_end:\ns_endpgm")
    A(f""".section .rodata,"a"
.p2align 6
.amdhsa_kernel {KN}
.amdhsa_next_free_vgpr {NV}
.amdhsa_next_free_sgpr {NS}
.amdhsa_accum_offset {(NV+3)//4*4}
.amdhsa_group_segment_fixed_size 0
.amdhsa_kernarg_size 64
.amdhsa_user_sgpr_count 2
.amdhsa_user_sgpr_kernarg_segment_ptr 1
.amdhsa_system_sgpr_workgroup_id_x 1
.end_amdhsa_kernel""")
    return A.text()

if __name__ == "__main__":
    out = sys.argv[1]
    kw = {}
    for kv in sys.argv[2:]:
        k, v = kv.split("=")
        if "," in v: kw[k] = tuple(int(x) for x in v.split(","))
        else: kw[k] = int(v) if v.lstrip("-").isdigit() else v.replace("+", " ")
    open(out, "w").write(gen(**kw))
```

```python
import sys
from gen import Asm, HEADER, NAME, KN

def gen(prof=0, pol="nt", diag=None, diagwg=-1, diagmul=10, pfi=1, remap=0, pre=3, pat=2, pst=0,
        WE=21, WO=21, step=1, prio=3, W0=28, b0=0, p1=56, WT=0, ta=3, tb=0, fb=(18,20,21,23,27), th=(-110,-90,-70,-50), rev=1, lagprof=0, neu=-80, lead=31, us=9, pb=3, pk=1, fin=1, pp=16, qe=1, p2=72, RS=6, CH=30, a0=0, pbs=(72, 80, 88, 96), cml=1, early=0, lin=0, stp="", outpol="", wb=0, mlp="", mlonly=0, ek=0, eb=0, gx=30, gk=8, gd=(2,3,4), gsh=1, gmax=24, gstr=4352, gon=1, gw=0, gstop=8, gab=28, gdel=7, sp=0, spst=64, lst=None, lp=24, cb=(3, 11), tp=0, dn=1):
    NWG = 256
    SB = 8192
    ML_OFF = NWG * SB
    REG = ML_OFF + 32 * 4096
    FL_OFF = 2 * REG
    PG_OFF = FL_OFF + 32 * 256
    GX_OFF = PG_OFF + 8 * 256
    WS_BYTES = GX_OFF + 128 * gstr
    PROF_OFF = 8 << 20
    SC = RS * 16384
    TL = SC
    QL = SC + 32768
    OL = SC + 49152
    XL = SC + CH * 2048
    MX = XL + 64
    LDS = MX + 256
    KVB = 2304 * 65536
    NEGBIG = 0xFF000000
    CSC = 0x3DB8AA3B
    if diag is not None: prof = 2
    A = Asm()
    vLane, vG, vQi = 0, 1, 2
    vT0, vT1, vT2, vT3 = 3, 4, 5, 6
    vCtx, vC, vM, vL = 7, 8, 9, 10
    vPf = 11
    vAl = 12
    vOf = 14; vNb = 15
    vP = 16
    vS = 20
    vB = 28
    vX = 36
    vLim = 44
    vDs = 48; vBig = 49
    vQD = 50
    vNi = 50
    vKA = 52
    vDO = 56
    vVA = 60
    vSO = 62; vMO = 63
    vQ = 64
    vKF = 96
    vVF = 160
    vO = 176
    vAd = 192
    vMd = 194; vFa = 195; vOA = 196; vFo = 197; vRd = 198
    vJk = 200
    vGa = 204
    NV = 208
    sQ, sK, sV, sBT, sCTX, sOUT, sDBG, sWS = 4, 6, 8, 10, 12, 14, 16, 18
    rK, rV, rW, rQ, rT = 20, 24, 28, 32, 36
    sLt = 40; sReg = 41; sCnt = 42; sPl = 43
    sO4 = 44
    sCm = 48
    sN4 = 64
    sPos = 52; sU = 53; sN0 = 50; sN1 = 51; sIsV = 62; sSl = 69
    sC3 = 54
    sN = 56; sI = 57; sLB = 58; sTmp = 59; sTmp2 = 60; sS = 61; sIt = 63
    sPr = 68
    sH = 70; sJ0 = 71
    sMk = 72
    sF = 72
    sSt = 88
    sW = 90; sB = 91; sTot = 92; sWb = 93
    sBe = 98; sGb = 100; sCu = 3
    NS = 102
    def stamp(i, grp=0):
        if not prof: return
        if i >= 7 and grp != pst: return
        A(f"s_memrealtime s[{sSt}:{sSt+1}]\ns_waitcnt lgkmcnt(0)\nv_writelane_b32 v{vPf}, s{sSt}, {i}")

    A(HEADER)
    A("""
;
;
;
;
;
;
""")
    if prof == 1: A("; prof=1\n; proftile=8192")
    A(f"; @launch grid=({NWG},1,1) block=(320,1,1) lds={LDS}")
    A('.amdgcn_target "amdgcn-amd-amdhsa--gfx950"\n.text')
    A(f".globl {KN}\n.p2align 8\n.type {KN},@function\n{KN}:")
    A(f"s_cmpk_ge_u32 s2, {NWG}\ns_cbranch_scc1 L_end")
    if prof: A(f"v_mov_b32 v{vPf}, 0\ns_mov_b32 s{sIt}, 32")
    stamp(0)
    if lst: A("s_memrealtime s[32:33]")
    A("s_load_dwordx16 s[4:19], s[0:1], 0")
    if pfi:
        A(f"""
        s_getpc_b64 s[{sCm}:{sCm+1}]
        L_pf1:
        v_lshlrev_b32 v{vJk+2}, 7, v0
        v_min_u32 v{vJk+2}, L_end-L_pf1, v{vJk+2}
        global_load_dword v{vJk}, v{vJk+2}, s[{sCm}:{sCm+1}]
        """)
    if remap == 1: A("s_lshr_b32 s3, s2, 3\ns_cmp_eq_u32 s3, 5\ns_cselect_b32 s3, 1, 0\ns_xor_b32 s2, s2, s3")
    if remap == 2: A("s_lshr_b32 s3, s2, 3\ns_and_b32 s3, s3, 7\ns_xor_b32 s2, s2, s3")
    if remap == 3: A("s_xor_b32 s2, s2, 3")
    A(f"""
    v_readfirstlane_b32 s{sW}, v0
    v_bfe_u32 v{vT0}, v0, 5, 1
    v_and_b32 v{vT1}, 31, v0
    v_lshlrev_b32 v{vT1}, 4, v{vT1}
    v_lshlrev_b32 v{vT2}, 5, v{vT0}
    s_and_b32 s{sH}, s2, 7
    s_lshr_b32 s{sJ0}, s2, 3
    s_cmp_lg_u32 s{sW}, 0
    s_cbranch_scc1 L_cons
    v_xor_b32 v{vT1}, v{vT1}, v{vT2}
    v_lshl_add_u32 v{vDO}, v{vT0}, 12, v{vT1}
    s_lshl_b32 s{sPr}, s{sJ0}, {7 if dn else 8}
    s_add_u32 s{sPr}, s{sPr}, s{sH}
    s_lshl_b32 s{sTot if lp else sO4}, s{sPr}, 9
    s_mov_b32 s{rK+2}, {KVB}
    s_mov_b32 s{rK+3}, 0x20000
    """)
    for jl in range(1, 4):
        A(f"v_xor_b32 v{vDO+jl}, {64*jl}, v{vDO}\nv_add_u32 v{vDO+jl}, {7168*jl}, v{vDO+jl}")
    if lp: A(f"s_mov_b32 m0, 0\ns_movk_i32 s{sN}, 4096\ns_lshl_b32 s{sN0}, s{sN}, 3\ns_mov_b32 s{sN1}, {(2 << 20) - 32768 if dn else 64*65536 - 3*32768}")
    A(f"s_setprio {prio}\ns_waitcnt lgkmcnt(0)")
    def qissue():
        A(f"""
        s_lshr_b32 s{sW}, s{sB}, 6
        s_mov_b32 s{rQ+2}, 65536
        s_mov_b32 s{rQ+3}, 0x20000
        s_and_b32 s{sTmp}, s{sW}, 1
        s_lshl_b32 s{sTmp}, s{sTmp}, 7
        v_xor_b32 v{vT1}, s{sTmp}, v{vT1}
        v_lshl_add_u32 v{vQD}, v{vT0}, 9, v{vT1}
        v_xor_b32 v{vQD+1}, 64, v{vQD}
        s_lshl4_add_u32 s{sS}, s{sW}, s{sH}
        s_lshl_b32 s{sS}, s{sS}, 10
        s_add_u32 s{sTmp2}, s{sS}, {8192-1024}
        s_lshr_b32 s{sTmp}, s{sLB}, 1
        s_add_u32 m0, s{sTmp}, {QL}
        s_mov_b32 s{rQ}, s{sQ}
        s_and_b32 s{rQ+1}, s{sQ+1}, 0xffff
        buffer_load_dwordx4 v{vQD}, s[{rQ}:{rQ+3}], s{sS} offen lds
        buffer_load_dwordx4 v{vQD+1}, s[{rQ}:{rQ+3}], s{sTmp2} offen offset:1024 lds
        """)

    def goff(w): return (w & 1)*32768 + (w >> 1)*(2 << 20) if dn else 32768*w
    def verify():
        A(f"""
        s_barrier
        ds_read_b128 v[{vX}:{vX+3}], v{vT1}
        ds_read_b32 v{vT2}, v{vT2}
        s_mov_b32 s{sN0}, 0
        s_mov_b32 s{sIsV}, 0
        s_mov_b32 s{sI}, {RS-1}
        s_mov_b32 s{sU}, {RS}
        s_mov_b32 s{sLB}, 0
        s_waitcnt lgkmcnt(0)
        v_readfirstlane_b32 s{sN}, v{vT2}
        v_cmp_eq_u32 vcc, v{vX}, v{vT0}
        v_cmp_eq_u32 s[{sMk}:{sMk+1}], v{vX+1}, v{vS+1}
        v_cmp_eq_u32 s[{sMk+2}:{sMk+3}], v{vX+2}, v{vS+2}
        v_cmp_eq_u32 s[{sMk+4}:{sMk+5}], v{vX+3}, v{vS+3}
        s_min_u32 s{sN1}, s{sN}, {CH}
        s_lshl1_add_u32 s{sTot}, s{sN}, {0 if fin else 2}
        s_and_b32 s{sTmp}, vcc_lo, s{sMk}
        s_and_b32 s{sTmp2}, s{sMk+2}, s{sMk+4}
        s_and_b32 s{sTmp}, s{sTmp}, s{sTmp2}
        s_and_b32 s{sTmp2}, s{sTmp}, {(1 << RS) - 1}
        s_cmp_eq_u32 s{sTmp2}, {(1 << RS) - 1}
        s_cbranch_scc0 L_misspec
        """)

    cnt = 0
    NCU = RS - 2 - len(pbs)
    assert NCU >= 0 and len(pbs) >= 2
    def dbar():
        for i, pos in enumerate(pbs):
            if pos == cnt:
                assert pos >= p2 and pos >= 16*(i+1)
                A(f"s_waitcnt vmcnt({min(cnt - 16*(i+1), 63)})\ns_barrier")
    if lp:
        A(f"""
        s_mov_b64 s[{rK}:{rK+1}], s[{sK}:{sK+1}]
        L_burst:
        """)
        for jl in range(4): A(f"buffer_load_dwordx4 v{vDO+jl}, s[{rK}:{rK+3}], s{sTot} offen offset:{1024*jl} {pol} lds")
        A(f"""
        s_add_u32 m0, m0, s{sN}
        {'s_bitcmp0_b32 m0, 12' if dn else 's_cmpk_eq_u32 m0, 16384'}
        s_cselect_b32 s{sTmp}, s{sN1}, s{sN0}
        s_add_u32 s{sTot}, s{sTot}, s{sTmp}
        s_cmpk_lg_u32 m0, {lp*1024}
        s_cbranch_scc1 L_burst
        s_lshl_b32 s{sO4}, s{sPr}, 9
        """)
    for u in range(RS):
        for w in range(4):
            if cnt < lp:
                cnt += 4
                if cnt < lp or cnt != W0 // 4 * 4: continue
                raise AssertionError("lp must be below W0")
            if lst and cnt in lst: A(f"s_memrealtime s[{34+2*lst.index(cnt)}:{35+2*lst.index(cnt)}]")
            if cnt == p2: verify()
            dbar()
            if tp and cnt == tp:
                A("; touch the K, V, workspace and output pages once per XCD so that their translations are cached (values unused)")
                A(f"s_mul_i32 s{sTmp2}, s{sJ0}, {3*1572864}")
                for i in range(3):
                    A(f"s_load_dword s{sMk+2*i}, s[{sK}:{sK+1}], s{sTmp2}\ns_load_dword s{sMk+2*i+1}, s[{sV}:{sV+1}], s{sTmp2}")
                    if i < 2: A(f"s_add_u32 s{sTmp2}, s{sTmp2}, 1572864")
                A(f"s_and_b32 s{sTmp2}, s{sJ0}, 3\ns_lshl_b32 s{sTmp2}, s{sTmp2}, 21\ns_load_dword s{sMk+6}, s[{sWS}:{sWS+1}], s{sTmp2}\ns_load_dword s{sMk+7}, s[{sOUT}:{sOUT+1}], 0")
            if sp and cnt == sp - 1:
                A(f"""
                s_lshl_b32 s{sTmp}, s{sJ0}, 9
                s_add_u32 s{sGb}, s{sBT}, s{sTmp}
                s_addc_u32 s{sGb+1}, s{sBT+1}, 0
                s_lshr_b32 s{sTmp}, s{sJ0}, 2
                s_lshl3_add_u32 s{sTmp}, s{sTmp}, s{sH}
                s_and_b32 s{sTmp2}, s{sJ0}, 3
                s_lshl2_add_u32 s{sTmp}, s{sTmp}, s{sTmp2}
                s_lshl_b32 s{sTmp}, s{sTmp}, 8
                s_add_u32 s{sBe}, s{sQ}, s{sTmp}
                s_addc_u32 s{sBe+1}, s{sQ+1}, 0
                """)
                i = 0
                for o in range(0, 512, spst): A(f"s_load_dword s{sMk+i}, s[{sGb}:{sGb+1}], {o}"); i += 1
                for o in range(0, 256, spst): A(f"s_load_dword s{sMk+i}, s[{sBe}:{sBe+1}], {o}"); i += 1
                A(f"s_load_dword s{sMk+i}, s[{sCTX}:{sCTX+1}], 0")
            A(f"s_mov_b32 m0, {u*16384 + w*4096}")
            if cnt == 0: A(f"s_mov_b32 s{rK}, s{sK}\ns_and_b32 s{rK+1}, s{sK+1}, 0xffff")
            else: A(f"s_add_u32 s{sTmp}, s{sO4}, {goff(w) + u*64*65536}")
            for jl in range(4):
                if b0 and cnt == b0 - 1: A("s_barrier")
                if cnt == p1 or (a0 and cnt == a0 and a0 != W0 // 4 * 4): A("s_barrier")
                if cnt >= W0: A(f"s_waitcnt vmcnt({W0-1})")
                A(f"buffer_load_dwordx4 v{vDO+jl}, s[{rK}:{rK+3}], s{sO4 if cnt < 4 else sTmp} offen offset:{1024*jl} {pol} lds")
                cnt += 1
            if cnt == W0 // 4 * 4:
                if a0 == cnt: A('s_barrier')
                A(f"""
                s_and_b32 s{sK+1}, s{sK+1}, 0xffff
                s_and_b32 s{sV+1}, s{sV+1}, 0xffff
                v_lshl_add_u32 v{vT0}, v0, 22, s{sO4}
                v_lshlrev_b32 v{vT1}, 4, v0
                v_add_u32 v{vT1}, {OL}, v{vT1}
                v_mov_b32 v{vT2}, {XL+16}
                v_add_u32 v{vS+1}, 32768, v{vT0}
                v_add_u32 v{vS+2}, {goff(2)}, v{vT0}
                v_add_u32 v{vS+3}, {goff(3)}, v{vT0}
                """)
                if pre == 3: A(f"""
                s_lshl_b32 s{sTmp2}, s{sH}, 5
                s_add_u32 s{sTmp2}, s{sTmp2}, s{sJ0}
                s_lshl_b32 s{sTmp2}, s{sTmp2}, 13
                v_lshl_add_u32 v{vB}, v0, 6, s{sTmp2}
                v_add_u32 v{vB+1}, 4096, v{vB}
                s_lshl_b32 s{sTmp2}, s{sH}, 7
                s_add_u32 s{sTmp2}, s{sTmp2}, s{sJ0}
                s_lshl_b32 s{sTmp2}, s{sTmp2}, 7
                s_add_u32 s{sTmp2}, s{sTmp2}, {ML_OFF}
                v_and_b32 v{vB+2}, 1, v0
                v_lshl_add_u32 v{vB+2}, v{vB+2}, 6, s{sTmp2}
                v_bfe_u32 v{vB+3}, v0, 1, 2
                v_lshl_add_u32 v{vB+2}, v{vB+3}, 12, v{vB+2}
                """)
    if p2 == cnt: verify()
    dbar()
    A(f"""
    L_lgo:
    """)
    if fb:
        E = 2
        sEx = 94
        rP = 96
        vPg = vP; vPa = vP+1; vPo = vP+2; vPv = vP+3
        A(f"""
        s_mov_b32 s{rW}, s{sWS}
        s_and_b32 s{rW+1}, s{sWS+1}, 0xffff
        s_mov_b32 s{rW+2}, {WS_BYTES}
        s_mov_b32 s{rW+3}, 0x20000
        s_mov_b64 s[{rP}:{rP+1}], s[{sDBG}:{sDBG+1}]
        v_and_b32 v{vPa}, 7, v0
        v_lshlrev_b32 v{vPa}, 5, v{vPa}
        v_mov_b32 v{vPo}, 0x7f000000
        v_mov_b32 v{vPg}, 0
        s_mov_b32 s{sEx}, -1
        s_mov_b32 s{sEx+1}, 0
        s_mov_b32 s{sS}, 0
        s_sub_u32 s{sWb}, 256, s{sTot}
        s_bitcmp1_b32 s{sH}, 0
        s_cselect_b32 s{sB}, {-pb}, {pb}
        s_mov_b32 s{sBe}, 0
        s_mov_b32 s{sBe+1}, 0
        s_add_u32 s{sGb}, s{sWS}, {GX_OFF}
        s_addc_u32 s{sGb+1}, s{sWS+1}, 0
        s_lshl_b32 s{sPr}, s{sH}, 3
        s_cmp_eq_u32 s{sJ0}, {gx if gon else 99}
        s_mov_b32 s{sCu}, -1
        s_cselect_b32 s{sTmp}, {gab}, 0
        s_add_i32 s{sB}, s{sB}, s{sTmp}
        """)
        for i in range(len(gd)): A(f"s_mov_b64 s[{sMk+2*i}:{sMk+2*i+1}], 0")
        if NCU: A(f"s_cmp_lg_u32 s{sU}, 0\ns_cbranch_scc1 L_llc")
        A(f"""
        s_branch L_lle
        L_gx:
        {"s_waitcnt lgkmcnt(0)" if gw else ""}
        s_mov_b32 s{sTmp}, 0
        """)
        for i in range(len(gd)):
            A(f"""
            s_bcnt1_i32_b64 s{sTmp2}, s[{sMk+2*i}:{sMk+2*i+1}]
            s_add_i32 s{sTmp}, s{sTmp}, s{sTmp2}
            s_bitcmp1_b64 s[{sMk+2*i}:{sMk+2*i+1}], s{sPr}
            s_cselect_b32 s{sTmp2}, 8, 0
            s_sub_i32 s{sTmp}, s{sTmp}, s{sTmp2}
            """)
        if lagprof == 2: A(f"s_mov_b32 m0, s{sU}\ns_nop 0\nv_writelane_b32 v{vQ}, s{sTmp}, m0")
        for i, d in enumerate(gd):
            A(f"s_add_u32 s{sTmp2}, s{sU}, s{sWb}\ns_sub_u32 s{sTmp2}, s{sTmp2}, {128+d}\ns_mul_i32 s{sTmp2}, s{sTmp2}, {gstr}\ns_load_dwordx2 s[{sMk+2*i}:{sMk+2*i+1}], s[{sGb}:{sGb+1}], s{sTmp2} glc")
        A(f"""
        s_mul_i32 s{sTmp}, s{sTmp}, {gk}
        s_ashr_i32 s{sTmp2}, s{sBe+1}, {gsh}
        s_sub_i32 s{sBe+1}, s{sBe+1}, s{sTmp2}
        s_add_i32 s{sBe+1}, s{sBe+1}, s{sTmp}
        s_ashr_i32 s{sBe}, s{sBe+1}, {gsh+2}
        s_min_i32 s{sBe}, s{sBe}, {gmax}
        s_max_i32 s{sBe}, s{sBe}, {-gmax}
        s_add_u32 s{sTmp}, s{sU}, {gstop}
        s_add_u32 s{sCu}, s{sU}, 2
        s_cmp_lt_u32 s{sTmp}, s{sTot}
        s_cselect_b32 s{sCu}, s{sCu}, -1
        s_branch L_gxd
        L_ltop:
        s_cmp_eq_u32 s{sU}, s{sCu}
        s_cbranch_scc1 L_gx
        L_gxd:
        v_add_u32_dpp v{vT0}, v{vPg}, v{vPg} row_ror:1 row_mask:0xf bank_mask:0xf
        v_cmp_gt_u32 vcc, 2, v{vPg}
        s_add_u32 s{sPos}, s{sU}, s{sWb}
        v_add_u32_dpp v{vT0}, v{vT0}, v{vT0} row_ror:2 row_mask:0xf bank_mask:0xf
        s_add_i32 s{sTmp2}, s{sPos}, s{sBe}
        v_mov_b32 v{vPv}, s{sTmp2}
        s_add_u32 s{sTmp2}, s{sS}, 16
        v_add_u32_dpp v{vT0}, v{vT0}, v{vT0} row_ror:4 row_mask:0xf bank_mask:0xf
        s_mov_b64 exec, 1
        buffer_store_dword v{vPv}, v{vPo}, s[{rW}:{rW+3}], 0 offen
        s_mov_b64 exec, s[{sEx}:{sEx+1}]
        global_load_dword v{vPg}, v{vPa}, s[{rP}:{rP+1}] sc1
        s_mov_b64 exec, -1
        v_add_u32_dpp v{vT0}, v{vT0}, v{vT0} row_ror:8 row_mask:0xf bank_mask:0xf
        s_lshl_b32 s{sPos}, s{sPos}, 5
        v_readlane_b32 s{sTmp}, v{vT0}, s{sS}
        v_readlane_b32 s{sTmp2}, v{vT0}, s{sTmp2}
        s_xor_b32 s{sS}, s{sS}, 32
        s_add_u32 s{sTmp}, s{sTmp}, s{sTmp2}
        s_sub_i32 s{sPos}, s{sTmp}, s{sPos}
        s_add_i32 s{sPos}, s{sPos}, s{sB}
        s_and_b64 vcc, vcc, s[{sEx}:{sEx+1}]
        s_cselect_b32 s{sPos}, {neu}, s{sPos}
        s_not_b64 s[{sEx}:{sEx+1}], s[{sEx}:{sEx+1}]
        s_cmp_lg_u32 s{sTmp}, 32
        s_cbranch_scc1 L_lsel
        s_mov_b64 s[{rP}:{rP+1}], s[{sWS}:{sWS+1}]
        s_lshl_b32 s{sTmp}, s{sH}, 8
        s_add_u32 s{sTmp}, s{sTmp}, {PG_OFF}
        v_and_b32 v{vPa}, 31, v0
        v_lshl_add_u32 v{vPa}, v{vPa}, 2, s{sTmp}
        s_lshl2_add_u32 s{sTmp}, s{sJ0}, s{sTmp}
        v_mov_b32 v{vPo}, s{sTmp}
        v_mov_b32 v{vT1}, {XL+20}
        s_add_u32 s{sTmp}, s{sU}, {gdel}
        ds_write_b32 v{vT1}, v{vT1}
        s_cmp_eq_u32 s{sJ0}, {gx if gon else 99}
        s_cselect_b32 s{sCu}, s{sTmp}, -1
        L_lsel:
        """)
        if lagprof == 1: A(f"s_mov_b32 m0, s{sU}\ns_nop 0\nv_writelane_b32 v{vQ}, s{sPos}, m0")
        if ek: A(f"s_sub_u32 s{sTmp}, s{sTot}, s{sU}\ns_cmp_le_u32 s{sTmp}, {ek}\ns_cselect_b32 s{sTmp}, {eb}, 0\ns_add_i32 s{sPos}, s{sPos}, s{sTmp}")
        variants = [(f"f{i}", W) for i, W in enumerate(fb)] + [("e", WE)] + ([("c", WE)] if NCU else [])
        for i in range(len(th)-1, -1, -1):
            A(f"s_cmp_gt_i32 s{sPos}, {th[i]}\ns_cbranch_scc1 L_llf{i+1}")
    else:
        E = 0
        variants = [("e", WE)] if WE == WO else [("e", WE), ("o", WO)]
        if len(variants) > 1: A(f"s_bitcmp1_b32 s{sH}, 0\ns_cbranch_scc1 L_llo")
        if WT:
            assert WE == WO
            variants.append(("t", WT))
            A(f"s_sub_u32 s{sTmp}, s{sU}, s{sN}\ns_add_u32 s{sTmp}, s{sTmp}, {ta}\ns_cmp_lt_u32 s{sTmp}, {ta+tb}\ns_cbranch_scc1 L_llt")
    for tag, W in variants:
        assert 17 <= W <= 48
        if tag == "e": E = 0
        A(f"""
        L_ll{tag}:
        s_add_u32 s{sI}, s{sI}, 1
        s_cmp_lg_u32 s{sI}, s{sN1}
        s_cbranch_scc1 L_ls{tag}
        s_xor_b32 s{sIsV}, s{sIsV}, 1
        s_cselect_b32 s{sN0}, s{sN0}, s{sN1}
        s_cselect_b32 s{rK}, s{sV}, s{sK}
        s_cselect_b32 s{rK+1}, s{sV+1}, s{sK+1}
        s_mov_b32 s{sI}, s{sN0}
        s_add_u32 s{sN1}, s{sN0}, {CH}
        s_min_u32 s{sN1}, s{sN1}, s{sN}
        L_ls{tag}:
        """)
        if rev:
            A(f"s_add_u32 s{sTmp}, s{sN0}, s{sN1}\ns_sub_u32 s{sTmp}, s{sTmp}, s{sI}\ns_sub_u32 s{sTmp}, s{sTmp}, 1\ns_cmp_eq_u32 s{sIsV}, 0\ns_cselect_b32 s{sTmp}, s{sI}, s{sTmp}")
        for w in range(4): A(f"v_readlane_b32 s{sO4+w}, v{vX+w}, s{sTmp if rev else sI}")
        pass
        for w in range(4):
            A(f"""
            s_add_u32 m0, s{sLB}, {w*4096}
            s_bitcmp0_b32 s{sO4+w}, 0
            s_cselect_b32 s{sO4+w}, s{sO4+w}, 0
            s_cselect_b32 s{rK+2}, {KVB}, 0
            """)
            for jl in range(4):
                c = 4*w + jl
                if tag == "c":
                    assert cb[1] >= W - 17
                    A(f"s_waitcnt vmcnt({W-1})")
                    if c in cb: A("s_barrier")
                elif c == W-17: A(f"s_cmp_lt_u32 s{sU}, 2\ns_waitcnt vmcnt({W-1+E})\ns_cbranch_scc1 L_lb{tag}\ns_barrier\nL_lb{tag}:")
                elif c % step == 0: A(f"s_waitcnt vmcnt({W-step+E*(2 if c < W-17 else 1)})")
                A(f"buffer_load_dwordx4 v{vDO+jl}, s[{rK}:{rK+3}], s{sO4+w} offen offset:{1024*jl} {pol} lds")
        if W > 32: A(f"s_cmp_lt_u32 s{sU}, 2\ns_waitcnt vmcnt({32+E})\ns_cbranch_scc1 L_lb{tag}\ns_barrier\nL_lb{tag}:")
        A(f"""
        s_add_u32 s{sLB}, s{sLB}, 16384
        s_cmp_lg_u32 s{sLB}, {RS*16384}
        s_cselect_b32 s{sLB}, s{sLB}, 0
        s_add_u32 s{sU}, s{sU}, 1
        s_cmp_lt_u32 s{sU}, s{sTot}
        """)
        if tag == "c":
            A(f"s_cmp_lt_u32 s{sU}, {RS+NCU}\ns_cbranch_scc1 L_llc\ns_branch L_lle")
            continue
        if fb and tag == "e":
            A(f"s_cbranch_scc0 {'L_lfin' if fin else 'L_lend'}\ns_cmp_lt_u32 s{sU}, {us}\ns_cbranch_scc1 L_lle\ns_branch L_ltop")
            continue
        A(f"s_cbranch_scc1 {'L_ltop' if fb else 'L_lgo' if WT else 'L_ll'+tag}")
        if lst:
            for i in range(4): A(f"v_writelane_b32 v{vQ}, s{32+2*i}, {i}")
        if lagprof: A(f"s_lshl_b32 s{sTmp}, s2, 8\ns_add_u32 s{sTmp}, s{sTmp}, {12<<20}\nv_lshl_add_u32 v{vT0}, v0, 2, s{sTmp}\nglobal_store_dword v{vT0}, v{vQ}, s[{sWS}:{sWS+1}]")
        first = tag == ("f0" if fb else "e")
        if fin and not first:
            A("s_branch L_lfin"); continue
        if fin:
            A("; last two units land; pull this workgroup's publication lines into L2 meanwhile (values unused)")
            A("L_lfin:")
            prl = f"""
                global_load_dword v{vT0}, v{vB+2 if mlonly else vB}, s[{sWS}:{sWS+1}] sc1
                global_load_dword v{vT1}, v{vB+2 if mlonly else vB+1}, s[{sWS}:{sWS+1}] sc1
                global_load_dword v{vT2}, v{vB+2}, s[{sWS}:{sWS+1}] sc1
                """
            if pre != 3: A("s_waitcnt vmcnt(16)\ns_barrier\ns_waitcnt vmcnt(0)\ns_barrier")
            elif pp > 16: A(prl); A("s_waitcnt vmcnt(19)\ns_barrier\ns_waitcnt vmcnt(3)\ns_barrier")
            elif pp > 0: A(f"s_waitcnt vmcnt(16)\ns_barrier" + (f"\ns_waitcnt vmcnt({pp})" if pp < 16 else "")); A(prl); A("s_waitcnt vmcnt(3)\ns_barrier")
            else: A("s_waitcnt vmcnt(16)\ns_barrier\ns_waitcnt vmcnt(0)\ns_barrier"); A(prl)
        if fin and wb == 1:
            A(f"""
            s_cmp_lg_u32 s{sJ0}, 0
            s_cbranch_scc1 L_lend
            s_lshl_b32 s{sTmp}, s{sH}, 10
            s_add_u32 s{sTmp}, s{sTmp}, {FL_OFF}
            s_waitcnt vmcnt(0)
            v_and_b32 v{vB+4}, 31, v0
            v_lshl_add_u32 v{vB+4}, v{vB+4}, 2, s{sTmp}
            s_mov_b32 s{sCnt}, 0
            L_wbp:
            buffer_load_dword v{vT0}, v{vB+4}, s[{rW}:{rW+3}], 0 offen sc1
            s_add_u32 s{sCnt}, s{sCnt}, 1
            s_waitcnt vmcnt(0)
            v_cmp_eq_u32 vcc, 0, v{vT0}
            s_cmp_ge_u32 s{sCnt}, 64
            s_cbranch_scc1 L_lend
            s_cbranch_vccnz L_wbp
            buffer_wbl2 sc1
            s_endpgm
            """)
        if first: A("L_lend:")
        A("s_waitcnt vmcnt(0) lgkmcnt(0)\ns_endpgm")
    A(f"""
    L_misspec:
    s_waitcnt vmcnt(0)
    s_cmp_eq_u32 s{sN}, 0
    s_cbranch_scc1 L_lend
    s_mov_b32 s{sI}, -1
    s_mov_b32 s{sU}, 0
    s_branch L_lgo
    """)
    A(f"""
    L_cons:
    v_lshl_add_u32 v{vS}, v{vT0}, 11, v{vT1}
    v_xor_b32 v{vT1}, v{vT1}, v{vT2}
    s_mov_b32 s{rT+2}, 16384
    s_mov_b32 s{rT+3}, 0x20000
    s_sub_u32 s{sB}, s{sW}, 64
    s_lshl_b32 s{sLB}, s{sB}, 6
    s_lshl_b32 s{sMk}, s{sB}, 3
    s_add_u32 s{sMk+1}, s{sMk}, {3072}
    s_add_u32 s{sMk+2}, s{sMk}, {2*3072}
    s_add_u32 s{sMk+3}, s{sMk}, {3*3072}
    s_add_u32 m0, s{sLB}, {TL}
    v_and_b32 v{vT2}, 14, v0
    v_lshlrev_b32 v{vT2}, 1, v{vT2}
    s_waitcnt lgkmcnt(0)
    s_mov_b32 s{rT}, s{sBT}
    s_and_b32 s{rT+1}, s{sBT+1}, 0xffff
    """)
    if a0: A("s_barrier")
    for j in range(4):
        A(f"buffer_load_dwordx4 v{vS}, s[{rT}:{rT+3}], s{sMk+j} offen offset:{1024*j} lds")
    A(f"global_load_dword v{vCtx}, v{vT2}, s[{sCTX}:{sCTX+1}]")
    qissue()
    stamp(1)
    A(f"""
    v_and_b32 v{vLane}, 63, v0
    s_xor_b32 s{sTmp}, s{sJ0}, {lead}
    s_or_b32 s{sTmp}, s{sTmp}, s{sW}
    s_cselect_b32 s{sReg}, 0, 1
    s_cbranch_scc0 L_clear
    L_cleared:
    s_add_u32 s{sTmp}, s{sLB}, {TL}
    v_lshl_add_u32 v{vOf}, v{vLane}, 3, s{sTmp}
    v_lshrrev_b32 v{vG}, 4, v{vLane}
    v_and_b32 v{vQi}, 15, v{vLane}
    s_lshl2_add_u32 s{sTmp}, s{sW}, {XL}
    v_mov_b32 v{vB+2}, s{sTmp}
    v_mov_b32 v{vB+3}, {XL}
    """)
    if dn: A(f"s_and_b32 s{sTmp}, s{sW}, 1\ns_lshr_b32 s{sTmp2}, s{sW}, 1\ns_lshl1_add_u32 s{sTmp}, s{sTmp}, s{sTmp2}\ns_lshl2_add_u32 s{sTmp}, s{sTmp}, {OL}")
    else: A(f"s_lshl2_add_u32 s{sTmp}, s{sW}, {OL}")
    A(f"""
    v_lshl_add_u32 v{vB+4}, v{vLane}, 4, s{sTmp}
    s_lshl_b32 s{sWb}, s{sW}, 6
    """)
    if dn: A(f"v_lshl_add_u32 v{vS+2}, v{vLane}, 6, s{sJ0}\ns_and_b32 s{sTmp}, s{sW}, 1\ns_lshl_b32 s{sTmp}, s{sTmp}, 5\nv_add_u32 v{vS}, s{sTmp}, v{vS+2}")
    else: A(f"v_lshl_add_u32 v{vS}, v{vLane}, 5, s{sJ0}")
    A(f"""
    v_mov_b32 v{vDs}, 0x80000
    v_not_b32 v{vS+1}, v{vS}
    v_mov_b32 v{vBig}, 0x7fff0000
    v_lshrrev_b32 v{vB}, 1, v{vQi}
    v_lshlrev_b32 v{vB}, 16, v{vB}
    v_and_b32 v{vT0}, 7, v{vQi}
    v_lshlrev_b32 v{vT0}, 1, v{vT0}
    v_xor_b32 v{vT0}, v{vT0}, v{vG}
    v_lshlrev_b32 v{vT0}, 4, v{vT0}
    v_lshl_add_u32 v{vKA}, v{vQi}, 9, v{vT0}
    v_xor_b32 v{vKA+1}, 64, v{vKA}
    v_xor_b32 v{vKA+2}, 128, v{vKA}
    v_xor_b32 v{vKA+3}, 192, v{vKA}
    v_lshrrev_b32 v{vT0}, 2, v{vLane}
    v_lshlrev_b32 v{vT1}, 9, v{vT0}
    v_and_b32 v{vT0}, 7, v{vT0}
    v_lshlrev_b32 v{vT0}, 1, v{vT0}
    v_and_b32 v{vT2}, 3, v{vLane}
    s_lshl_b32 s{sTmp}, s{sW}, 3
    v_add_u32 v{vT2}, s{sTmp}, v{vT2}
    v_xor_b32 v{vT3}, v{vT2}, v{vT0}
    v_lshl_add_u32 v{vVA}, v{vT3}, 4, v{vT1}
    v_xor_b32 v{vVA+1}, 64, v{vVA}
    """)
    for sl in range(4): A(f"v_add_u32 v{vVF+sl}, {QL}, v{vKA+sl}")
    A(f"""
    s_and_b32 s{sTmp}, s{sW}, 1
    s_lshl_b32 s{sS}, s{sTmp}, 4
    {f"s_lshr_b32 s{sTmp}, s{sW}, 1" if dn else ""}
    s_lshl_b32 s{sPr}, s{sTmp}, 6
    s_add_u32 s{sPr}, s{sPr}, s{sH}
    s_lshl_b32 s{sPr}, s{sPr}, 9
    v_mov_b32 v{vT2}, 0x2000
    v_mov_b32 v{vT3}, {CSC}
    """)
    stamp(7, 2)
    A(f"s_waitcnt vmcnt(2)")
    stamp(2)
    for b in range(8):
        A(f"ds_read_b64 v[{vKF+2*b}:{vKF+2*b+1}], v{vOf} offset:{512*b}")
    A(f"""
    v_cmp_lt_i32 vcc, 0, v{vCtx}
    v_min_i32 v{vCtx}, 0x2000, v{vCtx}
    v_lshl_add_u32 v{vT0}, v{vG}, 2, {0 if dn else f's{sS}'}
    v_cndmask_b32 v{vCtx}, v{vT2}, v{vCtx}, vcc
    v_cndmask_b32 v{vC}, 0, v{vT3}, vcc
    v_add_u32 v{vNb}, {15 if dn else 31}, v{vCtx}
    v_lshrrev_b32 v{vNb}, {4 if dn else 5}, v{vNb}
    v_sub_u32 v{vLim}, v{vCtx}, v{vT0}
    v_subrev_u32 v{vLim+1}, 1, v{vLim}
    v_max_u32_dpp v{vT2}, v{vNb}, v{vNb} row_ror:2 row_mask:0xf bank_mask:0xf
    v_subrev_u32 v{vLim+2}, 2, v{vLim}
    v_subrev_u32 v{vLim+3}, 3, v{vLim}
    v_max_u32_dpp v{vT2}, v{vT2}, v{vT2} row_ror:4 row_mask:0xf bank_mask:0xf
    s_waitcnt lgkmcnt(0)
    """)
    for b in range(1, 8):
        A(f"v_cmp_ne_u64 s[{sMk+2*b}:{sMk+2*b+1}], v[{vKF}:{vKF+1}], v[{vKF+2*b}:{vKF+2*b+1}]")
    A(f"v_max_u32_dpp v{vT2}, v{vT2}, v{vT2} row_ror:8 row_mask:0xf bank_mask:0xf")
    for b in range(2, 8):
        A(f"s_or_b64 s[{sMk+2}:{sMk+3}], s[{sMk+2}:{sMk+3}], s[{sMk+2*b}:{sMk+2*b+1}]")
    A(f"""
    s_ff1_i32_b64 s{sTmp}, s[{sMk+2}:{sMk+3}]
    s_min_u32 s{sTmp}, s{sTmp}, 256
    s_add_u32 s{sTmp}, s{sTmp}, s{sWb}
    {f"s_lshl_b32 s{sTmp}, s{sTmp}, 1" if dn else ""}
    v_min_u32 v{vT2}, s{sTmp}, v{vT2}
    ds_write_b32 v{vB+2}, v{vT2}
    s_waitcnt lgkmcnt(0)
    """)
    stamp(8, 2)
    A("s_barrier")
    stamp(9, 2)
    A(f"""
    ds_read_b128 v[{vX}:{vX+3}], v{vB+3}
    s_waitcnt lgkmcnt(0)
    v_min3_u32 v{vT0}, v{vX}, v{vX+1}, v{vX+2}
    v_min_u32 v{vT0}, v{vT0}, v{vX+3}
    v_max_u32 v{vNb}, v{vNb}, v{vT0}
    v_sub_u32 v{vNb}, v{vNb}, v{vT0}
    v_mov_b32 v{vO}, 0
    v_mov_b32 v{vO+1}, 0
    v_add_u32_dpp v{vT1}, v{vNb}, v{vNb} row_shr:2 row_mask:0xf bank_mask:0xf bound_ctrl:0
    v_mov_b32 v{vO+2}, 0
    v_mov_b32 v{vO+3}, 0
    v_add_u32_dpp v{vT1}, v{vT1}, v{vT1} row_shr:4 row_mask:0xf bank_mask:0xf bound_ctrl:0
    v_mov_b32 v{vM}, {NEGBIG}
    v_mov_b32 v{vL}, 0
    v_add_u32_dpp v{vT1}, v{vT1}, v{vT1} row_shr:8 row_mask:0xf bank_mask:0xf bound_ctrl:0
    v_add_u32 v{vT2}, v{vT1}, v{vT0}
    v_sub_u32 v{vT1}, v{vT1}, v{vNb}
    v_readlane_b32 s{sTot}, v{vT2}, 15
    v_sub_u32 v{vT2}, v{vT2}, v{vNb}
    v_sub_u32 v{vT1}, v{vB}, v{vT1}
    s_mov_b32 s{sI}, 0
    """)
    fill = [f"v_mov_b32 v{vO+i}, 0" for i in range(4, 16)] + [f"v_mov_b32 v{vNi}, 0xff800000", f"s_mov_b32 s{sC3}, 0x00030003", f"s_mov_b32 s{sC3+1}, 0x00030003", f"s_mov_b32 s{sLt}, 0"]
    for b in range(8):
        A(f"v_add_co_u32_dpp v{vT3}, vcc, v{vT2}, v{vS+1} row_newbcast:{2*b} row_mask:0xf bank_mask:0xf")
        A(fill[2*b]); A(fill[2*b+1])
        A(f"v_cndmask_b32_dpp v{vDs}, v{vT1}, v{vDs}, vcc row_newbcast:{2*b} row_mask:0xf bank_mask:0xf")
    stamp(10, 2)
    A(f"""
    """)
    if dn:
        A(f"""
        v_cmp_gt_u32 s[{sMk+2}:{sMk+3}], s{sTot}, v{vS}
        v_cmp_gt_u32 vcc, s{sTot}, v{vS+2}
        v_add_u32 v{vDs}, v{vDs}, v{vS}
        v_mov_b32 v{vT0}, 0x3ff
        v_cndmask_b32 v{vDs}, v{vT0}, v{vDs}, s[{sMk+2}:{sMk+3}]
        v_bfe_u32 v{vT1}, v{vDs}, 16, 3
        v_bfe_u32 v{vT2}, v{vDs}, 7, 2
        v_and_b32 v{vT0}, 0x7f, v{vDs}
        v_lshl_add_u32 v{vT2}, v{vT2}, 3, v{vT1}
        v_lshl_add_u32 v{vT0}, v{vT2}, 7, v{vT0}
        v_lshlrev_b32 v{vT0}, 2, v{vT0}
        v_add_u32 v{vT0}, {TL}, v{vT0}
        v_lshlrev_b32 v{vT1}, 3, v{vT1}
        ds_read_b32 v{vOf}, v{vT0}
        ds_bpermute_b32 v{vT1}, v{vT1}, v{vCtx}
        s_bcnt1_i32_b64 s{sN}, vcc
        v_and_b32 v{vT0}, 0x3ff, v{vDs}
        s_and_b32 s{sTmp2}, s{sW}, 2
        s_lshl_b32 s{sTmp2}, s{sTmp2}, 2
        v_lshl_add_u32 v{vT0}, v{vT0}, 4, s{sTmp2}
        """)
    else:
        A(f"""
    v_cmp_gt_u32 s[{sMk+2}:{sMk+3}], s{sTot}, v{vS}
    v_add_u32 v{vDs}, v{vDs}, v{vS}
    v_bfe_u32 v{vT1}, v{vDs}, 16, 3
    v_bfe_u32 v{vT2}, v{vDs}, 6, 2
    v_and_b32 v{vT0}, 0x3f, v{vDs}
    v_lshl_add_u32 v{vT2}, v{vT2}, 3, v{vT1}
    v_lshl_add_u32 v{vT0}, v{vT2}, 6, v{vT0}
    s_and_b32 s{sTmp}, s{sW}, 2
    s_lshl1_add_u32 s{sTmp}, s{sTmp}, {TL}
    v_lshl_add_u32 v{vT0}, v{vT0}, 3, s{sTmp}
    v_lshlrev_b32 v{vT1}, 3, v{vT1}
    ds_read_b32 v{vOf}, v{vT0}
    ds_bpermute_b32 v{vT1}, v{vT1}, v{vCtx}
    s_bcnt1_i32_b64 s{sN}, s[{sMk+2}:{sMk+3}]
    v_and_b32 v{vT0}, 0xff, v{vDs}
    s_lshl_b32 s{sTmp2}, s{sW}, 3
    v_lshl_add_u32 v{vT0}, v{vT0}, 5, s{sTmp2}
    """)
    A(f"""
    v_cmp_le_u32 vcc, 0x80000, v{vDs}
    v_mov_b32 v{vT2}, s{sN}
    ds_write_b32 v{vB+3}, v{vT2} offset:16
    ds_write_b32 v{vB+3}, v{vO} offset:20
    s_waitcnt lgkmcnt(2)
    v_cmp_lt_u32 s[{sMk}:{sMk+1}], v{vT0}, v{vT1}
    v_lshl_add_u32 v{vOf}, v{vOf}, 16, s{sPr}
    s_or_b64 vcc, vcc, s[{sMk}:{sMk+1}]
    s_and_b64 vcc, vcc, s[{sMk+2}:{sMk+3}]
    v_cndmask_b32 v{vOf}, 1, v{vOf}, vcc
    ds_write_b32 v{vB+4}, v{vOf}
    s_cmp_eq_u32 s{sReg}, 1
    s_waitcnt vmcnt(0) lgkmcnt(0)
    s_barrier
    s_cbranch_scc1 L_ready
    L_readied:
    s_mov_b32 s{sPos}, 0
    s_cmp_eq_u32 s{sN}, 0
    s_cbranch_scc1 L_done
    """)
    stamp(11, 2)
    for s in range(8):
        A(f"ds_read_b128 v[{vQ+4*s}:{vQ+4*s+3}], v{vVF+(s&3)} offset:{256*(s>>2)}")
    vSW = vDO; vSR = vDO + 1; vMW = vDO + 2; vMR = vDO + 3
    A(f"""
    s_lshl_b32 s{sTmp}, s{sS}, 9
    v_add_u32 v{vKA}, s{sTmp}, v{vKA}
    v_lshlrev_b32 v{vSR}, 4, v{vLane}
    v_add_u32 v{vSR}, {SC}, v{vSR}
    s_lshl_b32 s{sTmp}, s{sS}, 6
    v_add_u32 v{vSW}, s{sTmp}, v{vSR}
    v_lshlrev_b32 v{vMR}, 4, v{vQi}
    v_add_u32 v{vMR}, {MX}, v{vMR}
    s_lshl_b32 s{sTmp}, s{sW}, 2
    v_add_u32 v{vMW}, s{sTmp}, v{vMR}
    s_mov_b32 s{sSl}, 0
    s_mov_b32 s{sN0}, 0
    s_min_u32 s{sN1}, s{sN}, {CH}
    s_lshr_b32 s{sIsV}, s{sW}, 1
    s_add_u32 s{sGb+1}, s{sH}, {GX_OFF-gstr}
    v_mov_b32 v{vGa}, 0
    v_mov_b32 v{vGa+1}, 1
    s_lshl_b32 s{sTmp}, s{sN}, 1
    s_sub_u32 s{sCu}, 128, s{sTmp}
    s_cmp_eq_u32 s{sW}, 3
    s_cselect_b32 s{sGb}, s{sJ0}, 99
    s_branch L_pass
    """)
    A(f"""
    L_clear:
    s_lshl_b32 s{sTmp}, s{sH}, 10
    s_add_u32 s{sTmp}, s{sTmp}, {FL_OFF}
    v_lshl_add_u32 v{vJk+1}, v{vLane}, 3, s{sTmp}
    v_mov_b32 v{vJk+2}, 0
    v_mov_b32 v{vJk+3}, 0
    global_store_dwordx2 v{vJk+1}, v[{vJk+2}:{vJk+3}], s[{sWS}:{sWS+1}] sc1
    global_store_dwordx2 v{vJk+1}, v[{vJk+2}:{vJk+3}], s[{sWS}:{sWS+1}] offset:512 sc1
    s_lshl_b32 s{sTmp}, s{sH}, 8
    s_add_u32 s{sTmp}, s{sTmp}, {PG_OFF}
    v_lshl_add_u32 v{vJk+1}, v{vLane}, 2, s{sTmp}
    global_store_dword v{vJk+1}, v{vJk+2}, s[{sWS}:{sWS+1}] sc1
    s_mul_i32 s{sTmp}, s{sH}, {16*gstr}
    s_add_u32 s{sTmp}, s{sTmp}, {GX_OFF}
    v_mul_u32_u24 v{vJk+1}, {gstr}, v{vLane}
    v_add_u32 v{vJk+1}, s{sTmp}, v{vJk+1}
    s_mov_b64 exec, 0xffff
    global_store_dwordx2 v{vJk+1}, v[{vJk+2}:{vJk+3}], s[{sWS}:{sWS+1}] sc1
    s_mov_b64 exec, -1
    s_branch L_cleared
    L_ready:
    s_lshl_b32 s{sTmp}, s{sH}, 5
    v_mov_b32 v{vJk+1}, s{sTmp}
    v_mov_b32 v{vJk+2}, 1
    s_mov_b64 exec, 1
    global_store_dword v{vJk+1}, v{vJk+2}, s[{sDBG}:{sDBG+1}] sc1
    s_mov_b64 exec, -1
    s_branch L_readied
    """)
    A(f"""
    L_late:
    s_mov_b32 s{rW}, s{sWS}
    s_and_b32 s{rW+1}, s{sWS+1}, 0xffff
    s_mov_b32 s{rW+2}, {WS_BYTES if not prof else 16 << 20}
    s_mov_b32 s{rW+3}, 0x20000
    s_lshl2_add_u32 s{sTmp2}, s{sH}, s{sW}
    s_lshl_b32 s{sTmp}, s{sTmp2}, {9 if cml else 5}
    s_add_u32 s{sTmp}, s{sTmp}, s{sJ0}
    s_lshl_b32 s{sTmp}, s{sTmp}, {3 if cml else 7}
    s_add_u32 s{sTmp}, s{sTmp}, {ML_OFF}
    v_lshl_add_u32 v{vMO}, v{vQi}, {8 if cml else 3}, s{sTmp}
    s_lshl_b32 s{sTmp2}, s{sTmp2}, 8
    s_lshl2_add_u32 s{sTmp2}, s{sJ0}, s{sTmp2}
    s_add_u32 s{sTmp2}, s{sTmp2}, {FL_OFF}
    v_mov_b32 v{vFo}, s{sTmp2}
    s_lshl_b32 s{sTmp}, s{sH}, 5
    v_mov_b32 v{vRd}, s{sTmp}
    s_add_u32 s{sTmp}, s{sTmp}, s{sJ0}
    s_lshl2_add_u32 s{sTmp}, s{sTmp}, s{sW}
    s_lshl_b32 s{sTmp}, s{sTmp}, 11
    v_lshl_add_u32 v{vSO}, v{vQi}, {4 if lin else 6}, s{sTmp}
    v_lshl_add_u32 v{vSO}, v{vG}, {8 if lin else 4}, v{vSO}
    """)
    A(f"""
    v_lshrrev_b32 v{vJk+2}, 2, v{vLane}
    v_and_b32 v{vJk+3}, 3, v{vLane}
    """)
    if lin:
        assert cml
        A(f"""
        s_lshr_b32 s{sTot}, s{sJ0}, 3
        s_lshl2_add_u32 s{sTot}, s{sH}, s{sTot}
        s_lshl2_add_u32 s{sTmp}, s{sTot}, s{sW}
        s_lshl_b32 s{sTmp}, s{sTmp}, 10
        s_add_u32 s{sTmp}, s{sTmp}, {ML_OFF}
        v_lshl_add_u32 v{vMd}, v{vJk+2}, 3, s{sTmp}
        v_lshl_add_u32 v{vMd}, v{vJk+3}, 8, v{vMd}
        s_lshl_b32 s{sTmp}, s{sTot}, 8
        s_add_u32 s{sTmp}, s{sTmp}, {FL_OFF}
        v_lshl_add_u32 v{vFa}, v{vLane}, 2, s{sTmp}
        s_lshl_b32 s{sTmp}, s{sH}, 18
        s_lshl2_add_u32 s{sTmp2}, s{sJ0}, s{sW}
        s_lshl_b32 s{sTmp2}, s{sTmp2}, 6
        s_add_u32 s{sTmp}, s{sTmp}, s{sTmp2}
        v_lshl_add_u32 v{vAd}, v{vJk+3}, 4, s{sTmp}
        v_lshl_add_u32 v{vAd}, v{vJk+2}, 13, v{vAd}
        v_add_u32 v{vAd+1}, {16*SB}, v{vAd}
        s_lshl4_add_u32 s{sTmp}, s{sW}, s{sH}
        s_lshl_b32 s{sTmp}, s{sTmp}, 10
        s_lshl4_add_u32 s{sTmp}, s{sJ0}, s{sTmp}
        v_lshl_add_u32 v{vOA}, v{vG}, 2, s{sTmp}
        v_and_b32 v{vJk+2}, 1, v{vLane}
        v_lshl_add_u32 v{vOA}, v{vJk+2}, 9, v{vOA}
        v_bfe_u32 v{vJk+2}, v{vLane}, 1, 1
        v_lshl_add_u32 v{vOA}, v{vJk+2}, 13, v{vOA}
        """)
    else:
        A(f"""
    s_lshr_b32 s{sB}, s{sJ0}, 2
    s_and_b32 s{sTmp}, s{sW}, 1
    s_lshl1_add_u32 s{sS}, s{sB}, s{sTmp}
    s_lshl1_add_u32 s{sWb}, s{sH}, s{sTmp}
    s_and_b32 s{sTot}, s{sJ0}, 3
    s_lshr_b32 s{sTmp2}, s{sW}, 1
    s_lshl1_add_u32 s{sPr}, s{sTot}, s{sTmp2}
    s_lshl2_add_u32 s{sTot}, s{sH}, s{sTot}
    s_lshl_b32 s{sTmp}, s{sTot}, 12
    s_lshl_b32 s{sTmp2}, s{sS}, {8 if cml else 3}
    s_add_u32 s{sTmp}, s{sTmp}, s{sTmp2}
    s_add_u32 s{sTmp}, s{sTmp}, {ML_OFF}
    v_lshl_add_u32 v{vMd}, v{vJk+2}, {3 if cml else 7}, s{sTmp}
    s_lshl_b32 s{sTmp}, s{sTot}, 8
    s_add_u32 s{sTmp}, s{sTmp}, {FL_OFF}
    v_lshl_add_u32 v{vFa}, v{vLane}, 2, s{sTmp}
    s_lshl_b32 s{sTmp}, s{sH}, 18
    s_lshl4_add_u32 s{sTmp2}, s{sPr}, s{sS}
    s_lshl_b32 s{sTmp2}, s{sTmp2}, 6
    s_add_u32 s{sTmp}, s{sTmp}, s{sTmp2}
    v_lshl_add_u32 v{vAd}, v{vJk+3}, 4, s{sTmp}
    v_lshl_add_u32 v{vAd}, v{vJk+2}, 13, v{vAd}
    v_add_u32 v{vAd+1}, {16*SB}, v{vAd}
    s_lshl4_add_u32 s{sTmp}, s{sB}, s{sWb}
    s_lshl3_add_u32 s{sTmp}, s{sTmp}, s{sPr}
    s_lshl_b32 s{sTmp}, s{sTmp}, 6
    v_lshl_add_u32 v{vOA}, v{vJk+3}, 4, s{sTmp}
    v_lshl_add_u32 v{vOA}, v{vG}, 2, v{vOA}
    """)
    A(f"""
    s_getreg_b32 s{sPl}, hwreg(HW_REG_XCC_ID, 0, 4)
    L_late_end:
    s_cmp_eq_u32 s{sLt}, 2
    s_cbranch_scc1 L_done2
    s_mov_b32 s{sLt}, 1
    s_branch L_back
    L_late2:
    s_mov_b32 s{sLt}, 2
    s_branch L_late
    """)
    hk = [0]
    def ustamp(last=False):
        if gon and not last:
            hk[0] += 1
            A(f"""
            s_and_b32 s{sTmp}, s{sCu}, 31
            s_add_u32 s{sCu}, s{sCu}, 1
            s_cmp_lg_u32 s{sTmp}, s{sGb}
            s_cbranch_scc1 L_hk{hk[0]}
            s_cmp_gt_u32 s{sCu}, {128-gstop}
            s_cbranch_scc1 L_hk{hk[0]}
            v_mov_b32 v{vGa}, {XL+20}
            ds_read_b32 v{vGa}, v{vGa}
            s_mul_i32 s{sTmp}, s{sCu}, {gstr}
            s_add_u32 s{sTmp}, s{sTmp}, s{sGb+1}
            s_waitcnt lgkmcnt(0)
            v_cmp_ne_u32 vcc, 0, v{vGa}
            s_cbranch_vccz L_hk{hk[0]}
            s_mov_b64 exec, 1
            v_mov_b32 v{vGa}, s{sTmp}
            global_store_byte v{vGa}, v{vGa+1}, s[{sWS}:{sWS+1}] sc1
            s_mov_b64 exec, -1
            L_hk{hk[0]}:
            """)
        if prof: A(f"s_memrealtime s[{sSt}:{sSt+1}]\ns_waitcnt lgkmcnt(0)\ns_lshr_b32 m0, s{sIt}, 1\ns_add_u32 s{sIt}, s{sIt}, 1\ns_min_u32 s{sIt}, s{sIt}, 121\nv_writelane_b32 v{vPf}, s{sSt}, m0")
    vA = vB + 4
    A(f"""
    .p2align 6
    L_pass:
    v_mov_b32 v{vNb}, v{vM}
    L_p1:
    s_xor_b32 s{sTmp}, s{sI}, s{sIsV}
    s_bitcmp0_b32 s{sTmp}, 0
    s_cbranch_scc1 L_mine
    s_barrier
    """)
    ustamp()
    A(f"""
    s_lshr_b32 s{sTmp}, s{sI}, 1
    s_cmp_eq_u32 s{sTmp}, {pat}
    s_cbranch_scc1 L_late
    s_branch L_back
    L_mine:
    v_readlane_b32 s{sPos}, v{vDs}, s{sI}
    v_add_u32 v{vA}, s{sSl}, v{vKA}
    v_xor_b32 v{vA+1}, 64, v{vA}
    v_xor_b32 v{vA+2}, 128, v{vA}
    v_xor_b32 v{vA+3}, 192, v{vA}
    s_lshr_b32 s{sTmp}, s{sPos}, 15
    s_lshl_b64 vcc, s[{sC3}:{sC3+1}], s{sTmp}
    s_bitcmp1_b32 s{sPos}, 19
    s_cselect_b64 vcc, -1, vcc
    s_and_b32 s{sPos}, s{sPos}, {0x3ff if dn else 0xff}
    s_lshl_b32 s{sPos}, s{sPos}, {4 if dn else 5}
    v_mov_b32 v{vT1}, s{sPos}
    v_cndmask_b32 v{vT1}, v{vBig}, v{vT1}, vcc
    s_sub_u32 s{sTmp}, s{sI}, s{sN0}
    s_lshl_b32 s{sTmp}, s{sTmp}, 11
    """)
    for r in range(4): A(f"v_cmp_lt_i32 s[{sMk+2*r}:{sMk+2*r+1}], v{vT1}, v{vLim+r}")
    A(f"v_add_u32 v{vT2}, s{sTmp}, v{vSW}")
    A("s_barrier")
    ustamp()
    for s in range(8):
        A(f"ds_read_b128 v[{vKF+4*s}:{vKF+4*s+3}], v{vA+(s&3)} offset:{256*(s>>2)}")
    for s in range(8):
        A(f"s_waitcnt lgkmcnt({7-s})")
        c = "0" if s == 0 else f"v[{vS}:{vS+3}]"
        A(f"v_mfma_f32_16x16x32_bf16 v[{vS}:{vS+3}], v[{vKF+4*s}:{vKF+4*s+3}], v[{vQ+4*s}:{vQ+4*s+3}], {c}")
    A("s_nop 7")
    for r in range(4): A(f"v_mul_f32 v{vX+r}, v{vS+r}, v{vC}")
    for r in range(4): A(f"v_cndmask_b32 v{vX+r}, v{vNi}, v{vX+r}, s[{sMk+2*r}:{sMk+2*r+1}]")
    A(f"""
    ds_write_b128 v{vT2}, v[{vX}:{vX+3}]
    v_max3_f32 v{vNb}, v{vNb}, v{vX}, v{vX+1}
    v_max3_f32 v{vNb}, v{vNb}, v{vX+2}, v{vX+3}
    L_back:
    s_add_u32 s{sSl}, s{sSl}, 16384
    s_cmp_lg_u32 s{sSl}, {RS*16384}
    s_cselect_b32 s{sSl}, s{sSl}, 0
    s_add_u32 s{sI}, s{sI}, 1
    s_cmp_lt_u32 s{sI}, s{sN1}
    s_cbranch_scc1 L_p1
    """)
    if pre == 1: A(f"s_cmp_eq_u32 s{sLt}, 0\ns_cbranch_scc1 L_nopre\nbuffer_load_dword v{vJk}, v{vJk+1}, s[{rW}:{rW+3}], 0 offen sc1\nL_nopre:")
    A(f"""
    v_mov_b32 v{vT1}, v{vNb}
    s_mov_b32 s{sI}, s{sN0}
    s_nop 0
    v_permlane32_swap_b32 v{vNb}, v{vT1}
    v_max_f32 v{vNb}, v{vNb}, v{vT1}
    v_mov_b32 v{vT1}, v{vNb}
    s_nop 1
    v_permlane16_swap_b32 v{vNb}, v{vT1}
    v_max_f32 v{vNb}, v{vNb}, v{vT1}
    ds_write_b32 v{vMW}, v{vNb}
    s_sub_u32 s{sTmp}, s{sN1}, s{sN0}
    s_sub_u32 s{sTmp}, s{sTmp}, 1
    s_mul_i32 s{sTmp}, s{sTmp}, {2048 if rev else 0}
    v_add_u32 v{vT3}, s{sTmp}, v{vSR}
    s_waitcnt lgkmcnt(0)
    s_barrier
    """)
    ustamp()
    A(f"""
    ds_read_b128 v[{vS}:{vS+3}], v{vMR}
    s_mov_b32 s{sU}, 0
    s_waitcnt lgkmcnt(0)
    v_max3_f32 v{vT0}, v{vS}, v{vS+1}, v{vS+2}
    v_max_f32 v{vT0}, v{vT0}, v{vS+3}
    v_sub_f32 v{vAl}, v{vM}, v{vT0}
    v_exp_f32 v{vAl}, v{vAl}
    v_mov_b32 v{vM}, v{vT0}
    v_mul_f32 v{vL}, v{vL}, v{vAl}
    """)
    for i in range(8):
        A(f"v_pk_mul_f32 v[{vO+2*i}:{vO+2*i+1}], v[{vO+2*i}:{vO+2*i+1}], v[{vAl}:{vAl+1}] op_sel_hi:[1,0]")
    A(f"""
    L_p2:
    ds_read_b128 v[{vX}:{vX+3}], v{vT3}
    ds_read_b128 v[{vX+4}:{vX+7}], v{vT3} offset:1024
    v_add_u32 v{vA}, s{sSl}, v{vVA}
    v_add_u32 v{vA+1}, s{sSl}, v{vVA+1}
    v_add_u32 v{vT3}, {-2048 if rev else 2048}, v{vT3}
    s_add_u32 s{sSl}, s{sSl}, 16384
    s_cmp_lg_u32 s{sSl}, {RS*16384}
    s_cselect_b32 s{sSl}, s{sSl}, 0
    s_add_u32 s{sI}, s{sI}, 1
    s_cmp_eq_u32 s{sU}, 0
    s_mov_b32 s{sU}, 1
    s_waitcnt lgkmcnt(0)
    """)
    for r in range(8): A(f"v_sub_f32 v{vX+r}, v{vX+r}, v{vM}")
    for r in range(8): A(f"v_exp_f32 v{vX+r}, v{vX+r}")
    for j in range(4): A(f"v_cvt_pk_bf16_f32 v{vP+j}, v{vX+2*j}, v{vX+2*j+1}")
    A(f"""
    v_add_f32 v{vL}, v{vL}, v{vX}
    v_add_f32 v{vT0}, v{vX+1}, v{vX+2}
    v_add_f32 v{vT1}, v{vX+3}, v{vX+4}
    v_add_f32 v{vT2}, v{vX+5}, v{vX+6}
    v_add_f32 v{vL}, v{vL}, v{vX+7}
    v_add_f32 v{vT0}, v{vT0}, v{vT1}
    v_add_f32 v{vL}, v{vL}, v{vT2}
    v_add_f32 v{vL}, v{vL}, v{vT0}
    """)
    def pv(inter=None):
        for i in range(4):
            for h in range(2):
                r = vVF + 4*i + 2*h
                A(f"ds_read_b64_tr_b16 v[{r}:{r+1}], v{vA+(i>>1)} offset:{8192*h + 8*(i&1)}")
        if inter: A(inter)
        for i in range(4):
            A(f"s_waitcnt lgkmcnt({6-2*i})")
            A(f"v_mfma_f32_16x16x32_bf16 v[{vO+4*i}:{vO+4*i+3}], v[{vVF+4*i}:{vVF+4*i+3}], v[{vP}:{vP+3}], v[{vO+4*i}:{vO+4*i+3}]")
    vF = vT3
    A(f"""
    s_cselect_b32 s{sPos}, 1, 2
    s_cmp_eq_u32 s{sI}, s{sN}
    s_cbranch_scc1 L_done
    s_cmp_eq_u32 s{sPos}, 1
    s_cbranch_scc1 L_nb
    s_barrier
    """)
    ustamp()
    A("L_nb:")
    pv(f"s_cmp_lt_u32 s{sI}, s{sN1}")
    A(f"""
    s_cbranch_scc1 L_p2
    s_mov_b32 s{sN0}, s{sN1}
    s_add_u32 s{sN1}, s{sN1}, {CH}
    s_min_u32 s{sN1}, s{sN1}, s{sN}
    s_branch L_pass
    L_done:
    s_cmp_eq_u32 s{sLt}, 0
    s_cbranch_scc1 L_late2
    L_done2:
    global_load_dword v{vT0}, v{vRd}, s[{sDBG}:{sDBG+1}] sc1
    v_mov_b32 v{vT1}, v{vL}
    v_mov_b32 v{vAl}, v{vM}
    s_mov_b32 s{sCnt}, 0
    v_permlane32_swap_b32 v{vL}, v{vT1}
    v_add_f32 v{vL}, v{vL}, v{vT1}
    v_mov_b32 v{vT1}, v{vL}
    s_mov_b32 s{sReg}, 0
    v_mov_b32 v{vT2}, 1
    v_permlane16_swap_b32 v{vL}, v{vT1}
    v_add_f32 v{vAl+1}, v{vL}, v{vT1}
    s_cmp_lg_u32 s{sPl}, s{sH}
    s_cbranch_scc1 L_noml
    s_mov_b64 exec, 0xffff
    buffer_store_dwordx2 v[{vAl}:{vAl+1}], v{vMO}, s[{rW}:{rW+3}], 0 offen {mlp}
    s_mov_b64 exec, -1
    L_noml:
    s_cmp_eq_u32 s{sPos}, 0
    s_cbranch_scc1 L_nopv
    s_cmp_eq_u32 s{sPos}, 1
    s_cbranch_scc1 L_nb2
    s_barrier
    """)
    ustamp(True)
    A("L_nb2:")
    pv()
    A(f"L_nopv:")
    stamp(3)
    A(f"s_cmp_eq_u32 s{sPl}, s{sH}\ns_nop 2")
    for j in range(4): A(f"v_cvt_pk_bf16_f32 v{vX+j}, v{vO+2*j}, v{vO+2*j+1}")
    A("s_nop 0")
    for j in range(4, 8): A(f"v_cvt_pk_bf16_f32 v{vX+j}, v{vO+2*j}, v{vO+2*j+1}")
    A(f"s_cbranch_scc0 L_slow")
    def publish(sc, tag, foff):
        for ih in range(2):
            A(f"buffer_store_dwordx4 v[{vX+4*ih}:{vX+4*ih+3}], v{vSO}, s[{rW}:{rW+3}], s{sReg} offen offset:{1024*ih} {sc or stp}")
        if sc: A(f"s_mov_b64 exec, 0xffff\nbuffer_store_dwordx2 v[{vAl}:{vAl+1}], v{vMO}, s[{rW}:{rW+3}], s{sReg} offen {sc}")
        A(f"""
        s_mov_b64 exec, 1
        L_rdy{tag}:
        s_waitcnt vmcnt(0)
        v_cmp_eq_u32 vcc, 0, v{vT0}
        s_cbranch_vccz L_rok{tag}
        s_add_u32 s{sCnt}, s{sCnt}, 1
        s_cmp_ge_u32 s{sCnt}, 0x40000
        s_cbranch_scc1 L_rok{tag}
        global_load_dword v{vT0}, v{vRd}, s[{sDBG}:{sDBG+1}] sc1
        s_branch L_rdy{tag}
        L_rok{tag}:
        buffer_store_dword v{vT2}, v{vFo}, s[{rW}:{rW+3}], 0 offen offset:{foff} {sc}
        s_mov_b64 exec, -1
        """)
    publish("", "a", 0)
    stamp(4)
    A(f"""
    L_poll:
    buffer_load_dword v{vF}, v{vFa}, s[{rW}:{rW+3}], 0 offen sc1
    s_add_u32 s{sCnt}, s{sCnt}, 1
    s_waitcnt vmcnt(0)
    v_cmp_ne_u32 vcc, 0, v{vF}
    s_cmp_eq_u32 vcc_lo, -1
    s_cbranch_scc1 L_got
    s_cmp_lg_u32 vcc_hi, 0
    s_cbranch_scc1 L_slow
    s_cmp_lt_u32 s{sCnt}, 0x40000
    s_cbranch_scc1 L_poll
    L_got:
    """)
    stamp(5)
    vD = vKF; vML = vKF + 8; vAc = vKF + 16
    for k in range(2):
        A(f"buffer_load_dwordx2 v[{vML+2*k}:{vML+2*k+1}], v{vMd}, s[{rW}:{rW+3}], s{sReg} offen offset:{(128 if cml else 2048)*k} sc1")
    for k in range(2):
        A(f"buffer_load_dwordx4 v[{vD+4*k}:{vD+4*k+3}], v{vAd+k}, s[{rW}:{rW+3}], s{sReg} offen sc1")
    A(f"s_waitcnt vmcnt(2)")
    stamp(7)
    A(f"v_max_f32 v{vT0}, v{vML}, v{vML+2}")
    for ro in (4, 8):
        A(f"s_nop 1\nv_max_f32_dpp v{vT0}, v{vT0}, v{vT0} row_ror:{ro} row_mask:0xf bank_mask:0xf")
    A(f"""
    v_mov_b32 v{vT1}, v{vT0}
    s_nop 1
    v_permlane32_swap_b32 v{vT0}, v{vT1}
    v_max_f32 v{vT0}, v{vT0}, v{vT1}
    v_mov_b32 v{vT1}, v{vT0}
    s_nop 1
    v_permlane16_swap_b32 v{vT0}, v{vT1}
    v_max_f32 v{vT0}, v{vT0}, v{vT1}
    """)
    for k in range(2): A(f"v_sub_f32 v{vML+2*k}, v{vML+2*k}, v{vT0}")
    for k in range(2): A(f"v_exp_f32 v{vML+2*k}, v{vML+2*k}")
    vLs = vAc + 8
    A(f"v_mul_f32 v{vLs}, v{vML}, v{vML+1}\nv_fmac_f32 v{vLs}, v{vML+2}, v{vML+3}")
    for k in range(2):
        A(f"s_waitcnt vmcnt({1-k})")
        op = "v_mul_f32" if k == 0 else "v_fmac_f32"
        for j in range(4):
            A(f"v_lshlrev_b32 v{vT1}, 16, v{vD+4*k+j}\nv_and_b32 v{vT2}, 0xffff0000, v{vD+4*k+j}")
            A(f"{op} v{vAc+2*j}, v{vML+2*k}, v{vT1}\n{op} v{vAc+2*j+1}, v{vML+2*k}, v{vT2}")
    if wb == 2: A(f"s_or_b32 s{sTmp}, s{sJ0}, s{sW}\ns_cbranch_scc1 L_nowb\nbuffer_wbl2 sc1\nL_nowb:")
    stamp(8)
    A(f"v_mov_b32 v{vLs+1}, v{vLs}")
    for j in range(4): A(f"v_permlane32_swap_b32 v{vAc+j}, v{vAc+4+j}")
    A(f"v_permlane32_swap_b32 v{vLs}, v{vLs+1}")
    A(f"v_add_f32 v{vLs}, v{vLs}, v{vLs+1}")
    for j in range(4): A(f"v_add_f32 v{vAc+j}, v{vAc+j}, v{vAc+4+j}")
    A(f"v_mov_b32 v{vLs+1}, v{vLs}\ns_nop 0")
    for j in range(2): A(f"v_permlane16_swap_b32 v{vAc+j}, v{vAc+2+j}")
    A(f"v_permlane16_swap_b32 v{vLs}, v{vLs+1}")
    A(f"v_add_f32 v{vLs}, v{vLs}, v{vLs+1}")
    for j in range(2): A(f"v_add_f32 v{vAc+j}, v{vAc+j}, v{vAc+2+j}")
    for ro in (4, 8):
        for r in (vLs, vAc, vAc+1): A(f"v_add_f32_dpp v{r}, v{r}, v{r} row_ror:{ro} row_mask:0xf bank_mask:0xf")
    A(f"""
    v_rcp_f32 v{vLs}, v{vLs}
    s_mov_b32 exec_lo, 0x000f000f
    s_mov_b32 exec_hi, 0x000f000f
    v_mul_f32 v{vAc}, v{vAc}, v{vLs}
    v_mul_f32 v{vAc+1}, v{vAc+1}, v{vLs}
    v_cvt_pk_bf16_f32 v{vAc}, v{vAc}, v{vAc+1}
    global_store_dword v{vOA}, v{vAc}, s[{sOUT}:{sOUT+1}] {outpol}
    """)
    if wb == 3: A(f"s_or_b32 s{sTmp}, s{sJ0}, s{sW}\ns_cbranch_scc1 L_nowb\nbuffer_wbl2 sc1\nL_nowb:")
    stamp(9)
    if prof: A("s_mov_b64 exec, -1\ns_waitcnt vmcnt(0)")
    stamp(6)
    if prof == 2:
        a, b = diag
        A(f"""
        s_nop 1
        v_readlane_b32 s{sF}, v{vPf}, 0
        v_readlane_b32 s{sF+1}, v{vPf}, {a}
        v_readlane_b32 s{sF+2}, v{vPf}, {b}
        s_sub_u32 s{sF+1}, s{sF+2}, s{sF+1}
        s_min_u32 s{sF+1}, s{sF+1}, 20000
        s_mul_i32 s{sF+1}, s{sF+1}, {diagmul}
        """)
        if diagwg >= 0: A(f"s_cmp_eq_u32 s2, {diagwg}\ns_cselect_b32 s{sF+1}, s{sF+1}, 0")
        A(f"""
        s_add_u32 s{sF+1}, s{sF+1}, 10000
        L_spin:
        s_memrealtime s[{sSt}:{sSt+1}]
        s_waitcnt lgkmcnt(0)
        s_sub_u32 s{sF+2}, s{sSt}, s{sF}
        s_cmp_lt_u32 s{sF+2}, s{sF+1}
        s_cbranch_scc1 L_spin
        """)
    if prof == 1:
        A(f"""
        v_writelane_b32 v{vPf}, s{sPl}, 62
        v_writelane_b32 v{vPf}, s{sCnt}, 63
        s_lshl_b32 s{sTmp}, s2, 2
        s_add_u32 s{sTmp}, s{sTmp}, s{sW}
        s_lshl_b32 s{sTmp}, s{sTmp}, 8
        s_add_u32 s{sTmp}, s{sTmp}, {PROF_OFF}
        v_lshlrev_b32 v{vT0}, 2, v{vLane}
        buffer_store_dword v{vPf}, v{vT0}, s[{rW}:{rW+3}], s{sTmp} offen
        """)
    A("s_endpgm")
    A(f"L_slow:\ns_mov_b32 s{sReg}, {REG}")
    publish("sc1", "b", 128)
    A(f"""
    L_poll2:
    buffer_load_dword v{vF}, v{vFa}, s[{rW}:{rW+3}], 0 offen sc1
    s_add_u32 s{sCnt}, s{sCnt}, 1
    s_waitcnt vmcnt(0)
    v_cmp_ne_u32 vcc, 0, v{vF}
    s_cmp_eq_u32 vcc_hi, -1
    s_cbranch_scc1 L_got
    s_sleep 2
    s_cmp_lt_u32 s{sCnt}, 0x40000
    s_cbranch_scc1 L_poll2
    s_branch L_got
    """)
    A("L_end:\ns_endpgm")
    A(f""".section .rodata,"a"
.p2align 6
.amdhsa_kernel {KN}
.amdhsa_next_free_vgpr {NV}
.amdhsa_next_free_sgpr {NS}
.amdhsa_accum_offset {(NV+3)//4*4}
.amdhsa_group_segment_fixed_size 0
.amdhsa_kernarg_size 64
.amdhsa_user_sgpr_count 2
.amdhsa_user_sgpr_kernarg_segment_ptr 1
.amdhsa_system_sgpr_workgroup_id_x 1
.end_amdhsa_kernel""")
    return A.text()

if __name__ == "__main__":
    out = sys.argv[1]
    kw = {}
    for kv in sys.argv[2:]:
        k, v = kv.split("=")
        if "," in v: kw[k] = tuple(int(x) for x in v.split(","))
        else: kw[k] = int(v) if v.lstrip("-").isdigit() else v.replace("+", " ")
    open(out, "w").write(gen(**kw))
```

```python
import sys
from gen import Asm, HEADER, NAME, KN

def gen(prof=0, pol="nt", diag=None, diagwg=-1, diagmul=10, pfi=1, remap=0, pre=3, pat=2, pst=0,
        WE=21, WO=21, step=1, prio=3, W0=28, b0=0, p1=56, WT=0, ta=3, tb=0, fb=(18,20,21,23,27), th=(-110,-90,-70,-50), rev=0, lagprof=0, neu=-80, lead=31, us=9, pb=3, pk=1, fin=1, pp=16, qe=1, p2=72, RS=6, CH=30, a0=0, pbs=(72, 80, 88, 96), cml=1, early=0, lin=0, stp="", outpol="", wb=0, mlp="", mlonly=0, ek=0, eb=0, gx=30, gk=8, gd=(2,3,4), gsh=1, gmax=24, gstr=4352, gon=1, gw=0, gstop=8, gab=28, gdel=7, sp=0, spst=64, lst=None, lp=24, cb=(3, 11), tp=0, dn=0):
    NWG = 256
    SB = 8192
    ML_OFF = NWG * SB
    REG = ML_OFF + 32 * 4096
    FL_OFF = 2 * REG
    PG_OFF = FL_OFF + 32 * 256
    GX_OFF = PG_OFF + 8 * 256
    WS_BYTES = GX_OFF + 128 * gstr
    PROF_OFF = 8 << 20
    SC = RS * 16384
    TL = SC
    QL = SC + 32768
    OL = SC + 49152
    XL = SC + CH * 2048
    MX = XL + 64
    LDS = MX + 256
    KVB = 2304 * 65536
    NEGBIG = 0xFF000000
    CSC = 0x3DB8AA3B
    if diag is not None: prof = 2
    A = Asm()
    vLane, vG, vQi = 0, 1, 2
    vT0, vT1, vT2, vT3 = 3, 4, 5, 6
    vCtx, vC, vM, vL = 7, 8, 9, 10
    vPf = 11
    vAl = 12
    vOf = 14; vNb = 15
    vP = 16
    vS = 20
    vB = 28
    vX = 36
    vLim = 44
    vDs = 48; vBig = 49
    vQD = 50
    vNi = 50
    vKA = 52
    vDO = 56
    vVA = 60
    vSO = 62; vMO = 63
    vQ = 64
    vKF = 96
    vVF = 160
    vO = 176
    vAd = 192
    vMd = 194; vFa = 195; vOA = 196; vFo = 197; vRd = 198
    vJk = 200
    vGa = 204
    NV = 208
    sQ, sK, sV, sBT, sCTX, sOUT, sDBG, sWS = 4, 6, 8, 10, 12, 14, 16, 18
    rK, rV, rW, rQ, rT = 20, 24, 28, 32, 36
    sLt = 40; sReg = 41; sCnt = 42; sPl = 43
    sO4 = 44
    sCm = 48
    sN4 = 64
    sPos = 52; sU = 53; sN0 = 50; sN1 = 51; sIsV = 62; sSl = 69
    sC3 = 54
    sN = 56; sI = 57; sLB = 58; sTmp = 59; sTmp2 = 60; sS = 61; sIt = 63
    sPr = 68
    sH = 70; sJ0 = 71
    sMk = 72
    sF = 72
    sSt = 88
    sW = 90; sB = 91; sTot = 92; sWb = 93
    sBe = 98; sGb = 100; sCu = 3
    NS = 102
    def stamp(i, grp=0):
        if not prof: return
        if i >= 7 and grp != pst: return
        A(f"s_memrealtime s[{sSt}:{sSt+1}]\ns_waitcnt lgkmcnt(0)\nv_writelane_b32 v{vPf}, s{sSt}, {i}")

    A(HEADER)
    A("""
;
;
;
;
;
;
""")
    if prof == 1: A("; prof=1\n; proftile=8192")
    A(f"; @launch grid=({NWG},1,1) block=(320,1,1) lds={LDS}")
    A('.amdgcn_target "amdgcn-amd-amdhsa--gfx950"\n.text')
    A(f".globl {KN}\n.p2align 8\n.type {KN},@function\n{KN}:")
    A(f"s_cmpk_ge_u32 s2, {NWG}\ns_cbranch_scc1 L_end")
    if prof: A(f"v_mov_b32 v{vPf}, 0\ns_mov_b32 s{sIt}, 32")
    stamp(0)
    if lst: A("s_memrealtime s[32:33]")
    A("s_load_dwordx16 s[4:19], s[0:1], 0")
    if pfi:
        A(f"""
        s_getpc_b64 s[{sCm}:{sCm+1}]
        L_pf1:
        v_lshlrev_b32 v{vJk+2}, 7, v0
        v_min_u32 v{vJk+2}, L_end-L_pf1, v{vJk+2}
        global_load_dword v{vJk}, v{vJk+2}, s[{sCm}:{sCm+1}]
        """)
    if remap == 1: A("s_lshr_b32 s3, s2, 3\ns_cmp_eq_u32 s3, 5\ns_cselect_b32 s3, 1, 0\ns_xor_b32 s2, s2, s3")
    if remap == 2: A("s_lshr_b32 s3, s2, 3\ns_and_b32 s3, s3, 7\ns_xor_b32 s2, s2, s3")
    if remap == 3: A("s_xor_b32 s2, s2, 3")
    A(f"""
    v_readfirstlane_b32 s{sW}, v0
    v_bfe_u32 v{vT0}, v0, 5, 1
    v_and_b32 v{vT1}, 31, v0
    v_lshlrev_b32 v{vT1}, 4, v{vT1}
    v_lshlrev_b32 v{vT2}, 5, v{vT0}
    s_and_b32 s{sH}, s2, 7
    s_lshr_b32 s{sJ0}, s2, 3
    s_cmp_lg_u32 s{sW}, 0
    s_cbranch_scc1 L_cons
    v_xor_b32 v{vT1}, v{vT1}, v{vT2}
    v_lshl_add_u32 v{vDO}, v{vT0}, 12, v{vT1}
    s_lshl_b32 s{sPr}, s{sJ0}, {7 if dn else 8}
    s_add_u32 s{sPr}, s{sPr}, s{sH}
    s_lshl_b32 s{sTot if lp else sO4}, s{sPr}, 9
    s_mov_b32 s{rK+2}, {KVB}
    s_mov_b32 s{rK+3}, 0x20000
    """)
    for jl in range(1, 4):
        A(f"v_xor_b32 v{vDO+jl}, {64*jl}, v{vDO}\nv_add_u32 v{vDO+jl}, {7168*jl}, v{vDO+jl}")
    if lp: A(f"s_mov_b32 m0, 0\ns_movk_i32 s{sN}, 4096\ns_lshl_b32 s{sN0}, s{sN}, 3\ns_mov_b32 s{sN1}, {(2 << 20) - 32768 if dn else 64*65536 - 3*32768}")
    A(f"s_setprio {prio}\ns_waitcnt lgkmcnt(0)")
    def qissue():
        A(f"""
        s_lshr_b32 s{sW}, s{sB}, 6
        s_mov_b32 s{rQ+2}, 65536
        s_mov_b32 s{rQ+3}, 0x20000
        s_and_b32 s{sTmp}, s{sW}, 1
        s_lshl_b32 s{sTmp}, s{sTmp}, 7
        v_xor_b32 v{vT1}, s{sTmp}, v{vT1}
        v_lshl_add_u32 v{vQD}, v{vT0}, 9, v{vT1}
        v_xor_b32 v{vQD+1}, 64, v{vQD}
        s_lshl4_add_u32 s{sS}, s{sW}, s{sH}
        s_lshl_b32 s{sS}, s{sS}, 10
        s_add_u32 s{sTmp2}, s{sS}, {8192-1024}
        s_lshr_b32 s{sTmp}, s{sLB}, 1
        s_add_u32 m0, s{sTmp}, {QL}
        s_mov_b32 s{rQ}, s{sQ}
        s_and_b32 s{rQ+1}, s{sQ+1}, 0xffff
        buffer_load_dwordx4 v{vQD}, s[{rQ}:{rQ+3}], s{sS} offen lds
        buffer_load_dwordx4 v{vQD+1}, s[{rQ}:{rQ+3}], s{sTmp2} offen offset:1024 lds
        """)

    def goff(w): return (w & 1)*32768 + (w >> 1)*(2 << 20) if dn else 32768*w
    def verify():
        A(f"""
        s_barrier
        ds_read_b128 v[{vX}:{vX+3}], v{vT1}
        ds_read_b32 v{vT2}, v{vT2}
        s_mov_b32 s{sN0}, 0
        s_mov_b32 s{sIsV}, 0
        s_mov_b32 s{sI}, {RS-1}
        s_mov_b32 s{sU}, {RS}
        s_mov_b32 s{sLB}, 0
        s_waitcnt lgkmcnt(0)
        v_readfirstlane_b32 s{sN}, v{vT2}
        v_cmp_eq_u32 vcc, v{vX}, v{vT0}
        v_cmp_eq_u32 s[{sMk}:{sMk+1}], v{vX+1}, v{vS+1}
        v_cmp_eq_u32 s[{sMk+2}:{sMk+3}], v{vX+2}, v{vS+2}
        v_cmp_eq_u32 s[{sMk+4}:{sMk+5}], v{vX+3}, v{vS+3}
        s_min_u32 s{sN1}, s{sN}, {CH}
        s_lshl1_add_u32 s{sTot}, s{sN}, {0 if fin else 2}
        s_and_b32 s{sTmp}, vcc_lo, s{sMk}
        s_and_b32 s{sTmp2}, s{sMk+2}, s{sMk+4}
        s_and_b32 s{sTmp}, s{sTmp}, s{sTmp2}
        s_and_b32 s{sTmp2}, s{sTmp}, {(1 << RS) - 1}
        s_cmp_eq_u32 s{sTmp2}, {(1 << RS) - 1}
        s_cbranch_scc0 L_misspec
        """)

    cnt = 0
    NCU = RS - 2 - len(pbs)
    assert NCU >= 0 and len(pbs) >= 2
    def dbar():
        for i, pos in enumerate(pbs):
            if pos == cnt:
                assert pos >= p2 and pos >= 16*(i+1)
                A(f"s_waitcnt vmcnt({min(cnt - 16*(i+1), 63)})\ns_barrier")
    if lp:
        A(f"""
        s_mov_b64 s[{rK}:{rK+1}], s[{sK}:{sK+1}]
        L_burst:
        """)
        for jl in range(4): A(f"buffer_load_dwordx4 v{vDO+jl}, s[{rK}:{rK+3}], s{sTot} offen offset:{1024*jl} {pol} lds")
        A(f"""
        s_add_u32 m0, m0, s{sN}
        {'s_bitcmp0_b32 m0, 12' if dn else 's_cmpk_eq_u32 m0, 16384'}
        s_cselect_b32 s{sTmp}, s{sN1}, s{sN0}
        s_add_u32 s{sTot}, s{sTot}, s{sTmp}
        s_cmpk_lg_u32 m0, {lp*1024}
        s_cbranch_scc1 L_burst
        s_lshl_b32 s{sO4}, s{sPr}, 9
        """)
    for u in range(RS):
        for w in range(4):
            if cnt < lp:
                cnt += 4
                if cnt < lp or cnt != W0 // 4 * 4: continue
                raise AssertionError("lp must be below W0")
            if lst and cnt in lst: A(f"s_memrealtime s[{34+2*lst.index(cnt)}:{35+2*lst.index(cnt)}]")
            if cnt == p2: verify()
            dbar()
            if tp and cnt == tp:
                A("; touch the K, V, workspace and output pages once per XCD so that their translations are cached (values unused)")
                A(f"s_mul_i32 s{sTmp2}, s{sJ0}, {3*1572864}")
                for i in range(3):
                    A(f"s_load_dword s{sMk+2*i}, s[{sK}:{sK+1}], s{sTmp2}\ns_load_dword s{sMk+2*i+1}, s[{sV}:{sV+1}], s{sTmp2}")
                    if i < 2: A(f"s_add_u32 s{sTmp2}, s{sTmp2}, 1572864")
                A(f"s_and_b32 s{sTmp2}, s{sJ0}, 3\ns_lshl_b32 s{sTmp2}, s{sTmp2}, 21\ns_load_dword s{sMk+6}, s[{sWS}:{sWS+1}], s{sTmp2}\ns_load_dword s{sMk+7}, s[{sOUT}:{sOUT+1}], 0")
            if sp and cnt == sp - 1:
                A(f"""
                s_lshl_b32 s{sTmp}, s{sJ0}, 9
                s_add_u32 s{sGb}, s{sBT}, s{sTmp}
                s_addc_u32 s{sGb+1}, s{sBT+1}, 0
                s_lshr_b32 s{sTmp}, s{sJ0}, 2
                s_lshl3_add_u32 s{sTmp}, s{sTmp}, s{sH}
                s_and_b32 s{sTmp2}, s{sJ0}, 3
                s_lshl2_add_u32 s{sTmp}, s{sTmp}, s{sTmp2}
                s_lshl_b32 s{sTmp}, s{sTmp}, 8
                s_add_u32 s{sBe}, s{sQ}, s{sTmp}
                s_addc_u32 s{sBe+1}, s{sQ+1}, 0
                """)
                i = 0
                for o in range(0, 512, spst): A(f"s_load_dword s{sMk+i}, s[{sGb}:{sGb+1}], {o}"); i += 1
                for o in range(0, 256, spst): A(f"s_load_dword s{sMk+i}, s[{sBe}:{sBe+1}], {o}"); i += 1
                A(f"s_load_dword s{sMk+i}, s[{sCTX}:{sCTX+1}], 0")
            A(f"s_mov_b32 m0, {u*16384 + w*4096}")
            if cnt == 0: A(f"s_mov_b32 s{rK}, s{sK}\ns_and_b32 s{rK+1}, s{sK+1}, 0xffff")
            else: A(f"s_add_u32 s{sTmp}, s{sO4}, {goff(w) + u*64*65536}")
            for jl in range(4):
                if b0 and cnt == b0 - 1: A("s_barrier")
                if cnt == p1 or (a0 and cnt == a0 and a0 != W0 // 4 * 4): A("s_barrier")
                if cnt >= W0: A(f"s_waitcnt vmcnt({W0-1})")
                A(f"buffer_load_dwordx4 v{vDO+jl}, s[{rK}:{rK+3}], s{sO4 if cnt < 4 else sTmp} offen offset:{1024*jl} {pol} lds")
                cnt += 1
            if cnt == W0 // 4 * 4:
                if a0 == cnt: A('s_barrier')
                A(f"""
                s_and_b32 s{sK+1}, s{sK+1}, 0xffff
                s_and_b32 s{sV+1}, s{sV+1}, 0xffff
                v_lshl_add_u32 v{vT0}, v0, 22, s{sO4}
                v_lshlrev_b32 v{vT1}, 4, v0
                v_add_u32 v{vT1}, {OL}, v{vT1}
                v_mov_b32 v{vT2}, {XL+16}
                v_add_u32 v{vS+1}, 32768, v{vT0}
                v_add_u32 v{vS+2}, {goff(2)}, v{vT0}
                v_add_u32 v{vS+3}, {goff(3)}, v{vT0}
                """)
                if pre == 3: A(f"""
                s_lshl_b32 s{sTmp2}, s{sH}, 5
                s_add_u32 s{sTmp2}, s{sTmp2}, s{sJ0}
                s_lshl_b32 s{sTmp2}, s{sTmp2}, 13
                v_lshl_add_u32 v{vB}, v0, 6, s{sTmp2}
                v_add_u32 v{vB+1}, 4096, v{vB}
                s_lshl_b32 s{sTmp2}, s{sH}, 7
                s_add_u32 s{sTmp2}, s{sTmp2}, s{sJ0}
                s_lshl_b32 s{sTmp2}, s{sTmp2}, 7
                s_add_u32 s{sTmp2}, s{sTmp2}, {ML_OFF}
                v_and_b32 v{vB+2}, 1, v0
                v_lshl_add_u32 v{vB+2}, v{vB+2}, 6, s{sTmp2}
                v_bfe_u32 v{vB+3}, v0, 1, 2
                v_lshl_add_u32 v{vB+2}, v{vB+3}, 12, v{vB+2}
                """)
    if p2 == cnt: verify()
    dbar()
    A(f"""
    L_lgo:
    """)
    if fb:
        E = 2
        sEx = 94
        rP = 96
        vPg = vP; vPa = vP+1; vPo = vP+2; vPv = vP+3
        A(f"""
        s_mov_b32 s{rW}, s{sWS}
        s_and_b32 s{rW+1}, s{sWS+1}, 0xffff
        s_mov_b32 s{rW+2}, {WS_BYTES}
        s_mov_b32 s{rW+3}, 0x20000
        s_mov_b64 s[{rP}:{rP+1}], s[{sDBG}:{sDBG+1}]
        v_and_b32 v{vPa}, 7, v0
        v_lshlrev_b32 v{vPa}, 5, v{vPa}
        v_mov_b32 v{vPo}, 0x7f000000
        v_mov_b32 v{vPg}, 0
        s_mov_b32 s{sEx}, -1
        s_mov_b32 s{sEx+1}, 0
        s_mov_b32 s{sS}, 0
        s_sub_u32 s{sWb}, 256, s{sTot}
        s_bitcmp1_b32 s{sH}, 0
        s_cselect_b32 s{sB}, {-pb}, {pb}
        s_mov_b32 s{sBe}, 0
        s_mov_b32 s{sBe+1}, 0
        s_add_u32 s{sGb}, s{sWS}, {GX_OFF}
        s_addc_u32 s{sGb+1}, s{sWS+1}, 0
        s_lshl_b32 s{sPr}, s{sH}, 3
        s_cmp_eq_u32 s{sJ0}, {gx if gon else 99}
        s_mov_b32 s{sCu}, -1
        s_cselect_b32 s{sTmp}, {gab}, 0
        s_add_i32 s{sB}, s{sB}, s{sTmp}
        """)
        for i in range(len(gd)): A(f"s_mov_b64 s[{sMk+2*i}:{sMk+2*i+1}], 0")
        if NCU: A(f"s_cmp_lg_u32 s{sU}, 0\ns_cbranch_scc1 L_llc")
        A(f"""
        s_branch L_lle
        L_gx:
        {"s_waitcnt lgkmcnt(0)" if gw else ""}
        s_mov_b32 s{sTmp}, 0
        """)
        for i in range(len(gd)):
            A(f"""
            s_bcnt1_i32_b64 s{sTmp2}, s[{sMk+2*i}:{sMk+2*i+1}]
            s_add_i32 s{sTmp}, s{sTmp}, s{sTmp2}
            s_bitcmp1_b64 s[{sMk+2*i}:{sMk+2*i+1}], s{sPr}
            s_cselect_b32 s{sTmp2}, 8, 0
            s_sub_i32 s{sTmp}, s{sTmp}, s{sTmp2}
            """)
        if lagprof == 2: A(f"s_mov_b32 m0, s{sU}\ns_nop 0\nv_writelane_b32 v{vQ}, s{sTmp}, m0")
        for i, d in enumerate(gd):
            A(f"s_add_u32 s{sTmp2}, s{sU}, s{sWb}\ns_sub_u32 s{sTmp2}, s{sTmp2}, {128+d}\ns_mul_i32 s{sTmp2}, s{sTmp2}, {gstr}\ns_load_dwordx2 s[{sMk+2*i}:{sMk+2*i+1}], s[{sGb}:{sGb+1}], s{sTmp2} glc")
        A(f"""
        s_mul_i32 s{sTmp}, s{sTmp}, {gk}
        s_ashr_i32 s{sTmp2}, s{sBe+1}, {gsh}
        s_sub_i32 s{sBe+1}, s{sBe+1}, s{sTmp2}
        s_add_i32 s{sBe+1}, s{sBe+1}, s{sTmp}
        s_ashr_i32 s{sBe}, s{sBe+1}, {gsh+2}
        s_min_i32 s{sBe}, s{sBe}, {gmax}
        s_max_i32 s{sBe}, s{sBe}, {-gmax}
        s_add_u32 s{sTmp}, s{sU}, {gstop}
        s_add_u32 s{sCu}, s{sU}, 2
        s_cmp_lt_u32 s{sTmp}, s{sTot}
        s_cselect_b32 s{sCu}, s{sCu}, -1
        s_branch L_gxd
        L_ltop:
        s_cmp_eq_u32 s{sU}, s{sCu}
        s_cbranch_scc1 L_gx
        L_gxd:
        v_add_u32_dpp v{vT0}, v{vPg}, v{vPg} row_ror:1 row_mask:0xf bank_mask:0xf
        v_cmp_gt_u32 vcc, 2, v{vPg}
        s_add_u32 s{sPos}, s{sU}, s{sWb}
        v_add_u32_dpp v{vT0}, v{vT0}, v{vT0} row_ror:2 row_mask:0xf bank_mask:0xf
        s_add_i32 s{sTmp2}, s{sPos}, s{sBe}
        v_mov_b32 v{vPv}, s{sTmp2}
        s_add_u32 s{sTmp2}, s{sS}, 16
        v_add_u32_dpp v{vT0}, v{vT0}, v{vT0} row_ror:4 row_mask:0xf bank_mask:0xf
        s_mov_b64 exec, 1
        buffer_store_dword v{vPv}, v{vPo}, s[{rW}:{rW+3}], 0 offen
        s_mov_b64 exec, s[{sEx}:{sEx+1}]
        global_load_dword v{vPg}, v{vPa}, s[{rP}:{rP+1}] sc1
        s_mov_b64 exec, -1
        v_add_u32_dpp v{vT0}, v{vT0}, v{vT0} row_ror:8 row_mask:0xf bank_mask:0xf
        s_lshl_b32 s{sPos}, s{sPos}, 5
        v_readlane_b32 s{sTmp}, v{vT0}, s{sS}
        v_readlane_b32 s{sTmp2}, v{vT0}, s{sTmp2}
        s_xor_b32 s{sS}, s{sS}, 32
        s_add_u32 s{sTmp}, s{sTmp}, s{sTmp2}
        s_sub_i32 s{sPos}, s{sTmp}, s{sPos}
        s_add_i32 s{sPos}, s{sPos}, s{sB}
        s_and_b64 vcc, vcc, s[{sEx}:{sEx+1}]
        s_cselect_b32 s{sPos}, {neu}, s{sPos}
        s_not_b64 s[{sEx}:{sEx+1}], s[{sEx}:{sEx+1}]
        s_cmp_lg_u32 s{sTmp}, 32
        s_cbranch_scc1 L_lsel
        s_mov_b64 s[{rP}:{rP+1}], s[{sWS}:{sWS+1}]
        s_lshl_b32 s{sTmp}, s{sH}, 8
        s_add_u32 s{sTmp}, s{sTmp}, {PG_OFF}
        v_and_b32 v{vPa}, 31, v0
        v_lshl_add_u32 v{vPa}, v{vPa}, 2, s{sTmp}
        s_lshl2_add_u32 s{sTmp}, s{sJ0}, s{sTmp}
        v_mov_b32 v{vPo}, s{sTmp}
        v_mov_b32 v{vT1}, {XL+20}
        s_add_u32 s{sTmp}, s{sU}, {gdel}
        ds_write_b32 v{vT1}, v{vT1}
        s_cmp_eq_u32 s{sJ0}, {gx if gon else 99}
        s_cselect_b32 s{sCu}, s{sTmp}, -1
        L_lsel:
        """)
        if lagprof == 1: A(f"s_mov_b32 m0, s{sU}\ns_nop 0\nv_writelane_b32 v{vQ}, s{sPos}, m0")
        if ek: A(f"s_sub_u32 s{sTmp}, s{sTot}, s{sU}\ns_cmp_le_u32 s{sTmp}, {ek}\ns_cselect_b32 s{sTmp}, {eb}, 0\ns_add_i32 s{sPos}, s{sPos}, s{sTmp}")
        variants = [(f"f{i}", W) for i, W in enumerate(fb)] + [("e", WE)] + ([("c", WE)] if NCU else [])
        for i in range(len(th)-1, -1, -1):
            A(f"s_cmp_gt_i32 s{sPos}, {th[i]}\ns_cbranch_scc1 L_llf{i+1}")
    else:
        E = 0
        variants = [("e", WE)] if WE == WO else [("e", WE), ("o", WO)]
        if len(variants) > 1: A(f"s_bitcmp1_b32 s{sH}, 0\ns_cbranch_scc1 L_llo")
        if WT:
            assert WE == WO
            variants.append(("t", WT))
            A(f"s_sub_u32 s{sTmp}, s{sU}, s{sN}\ns_add_u32 s{sTmp}, s{sTmp}, {ta}\ns_cmp_lt_u32 s{sTmp}, {ta+tb}\ns_cbranch_scc1 L_llt")
    for tag, W in variants:
        assert 17 <= W <= 48
        if tag == "e": E = 0
        A(f"""
        L_ll{tag}:
        s_add_u32 s{sI}, s{sI}, 1
        s_cmp_lg_u32 s{sI}, s{sN1}
        s_cbranch_scc1 L_ls{tag}
        s_xor_b32 s{sIsV}, s{sIsV}, 1
        s_cselect_b32 s{sN0}, s{sN0}, s{sN1}
        s_cselect_b32 s{rK}, s{sV}, s{sK}
        s_cselect_b32 s{rK+1}, s{sV+1}, s{sK+1}
        s_mov_b32 s{sI}, s{sN0}
        s_add_u32 s{sN1}, s{sN0}, {CH}
        s_min_u32 s{sN1}, s{sN1}, s{sN}
        L_ls{tag}:
        """)
        if rev:
            A(f"s_add_u32 s{sTmp}, s{sN0}, s{sN1}\ns_sub_u32 s{sTmp}, s{sTmp}, s{sI}\ns_sub_u32 s{sTmp}, s{sTmp}, 1\ns_cmp_eq_u32 s{sIsV}, 0\ns_cselect_b32 s{sTmp}, s{sI}, s{sTmp}")
        for w in range(4): A(f"v_readlane_b32 s{sO4+w}, v{vX+w}, s{sTmp if rev else sI}")
        pass
        for w in range(4):
            A(f"""
            s_add_u32 m0, s{sLB}, {w*4096}
            s_bitcmp0_b32 s{sO4+w}, 0
            s_cselect_b32 s{sO4+w}, s{sO4+w}, 0
            s_cselect_b32 s{rK+2}, {KVB}, 0
            """)
            for jl in range(4):
                c = 4*w + jl
                if tag == "c":
                    assert cb[1] >= W - 17
                    A(f"s_waitcnt vmcnt({W-1})")
                    if c in cb: A("s_barrier")
                elif c == W-17+E: A(f"s_cmp_lt_u32 s{sU}, 2\ns_waitcnt vmcnt({W-1+E})\ns_cbranch_scc1 L_lb{tag}\ns_barrier\nL_lb{tag}:")
                elif c % step == 0: A(f"s_waitcnt vmcnt({W-step+E*(2 if c < W-17 else 1)})")
                A(f"buffer_load_dwordx4 v{vDO+jl}, s[{rK}:{rK+3}], s{sO4+w} offen offset:{1024*jl} {pol} lds")
        assert W + E <= 32
        if W > 32: A(f"s_cmp_lt_u32 s{sU}, 2\ns_waitcnt vmcnt({32+E})\ns_cbranch_scc1 L_lb{tag}\ns_barrier\nL_lb{tag}:")
        A(f"""
        s_add_u32 s{sLB}, s{sLB}, 16384
        s_cmp_lg_u32 s{sLB}, {RS*16384}
        s_cselect_b32 s{sLB}, s{sLB}, 0
        s_add_u32 s{sU}, s{sU}, 1
        s_cmp_lt_u32 s{sU}, s{sTot}
        """)
        if tag == "c":
            A(f"s_cmp_lt_u32 s{sU}, {RS+NCU}\ns_cbranch_scc1 L_llc\ns_branch L_lle")
            continue
        if fb and tag == "e":
            A(f"s_cbranch_scc0 {'L_lfin' if fin else 'L_lend'}\ns_cmp_lt_u32 s{sU}, {us}\ns_cbranch_scc1 L_lle\ns_branch L_ltop")
            continue
        A(f"s_cbranch_scc1 {'L_ltop' if fb else 'L_lgo' if WT else 'L_ll'+tag}")
        if lst:
            for i in range(4): A(f"v_writelane_b32 v{vQ}, s{32+2*i}, {i}")
        if lagprof: A(f"s_lshl_b32 s{sTmp}, s2, 8\ns_add_u32 s{sTmp}, s{sTmp}, {12<<20}\nv_lshl_add_u32 v{vT0}, v0, 2, s{sTmp}\nglobal_store_dword v{vT0}, v{vQ}, s[{sWS}:{sWS+1}]")
        first = tag == ("f0" if fb else "e")
        if fin and not first:
            A("s_branch L_lfin"); continue
        if fin:
            A("; last two units land; pull this workgroup's publication lines into L2 meanwhile (values unused)")
            A("L_lfin:")
            prl = f"""
                global_load_dword v{vT0}, v{vB+2 if mlonly else vB}, s[{sWS}:{sWS+1}] sc1
                global_load_dword v{vT1}, v{vB+2 if mlonly else vB+1}, s[{sWS}:{sWS+1}] sc1
                global_load_dword v{vT2}, v{vB+2}, s[{sWS}:{sWS+1}] sc1
                """
            if pre != 3: A("s_waitcnt vmcnt(16)\ns_barrier\ns_waitcnt vmcnt(0)\ns_barrier")
            elif pp > 16: A(prl); A("s_waitcnt vmcnt(19)\ns_barrier\ns_waitcnt vmcnt(3)\ns_barrier")
            elif pp > 0: A(f"s_waitcnt vmcnt(16)\ns_barrier" + (f"\ns_waitcnt vmcnt({pp})" if pp < 16 else "")); A(prl); A("s_waitcnt vmcnt(3)\ns_barrier")
            else: A("s_waitcnt vmcnt(16)\ns_barrier\ns_waitcnt vmcnt(0)\ns_barrier"); A(prl)
        if fin and wb == 1:
            A(f"""
            s_cmp_lg_u32 s{sJ0}, 0
            s_cbranch_scc1 L_lend
            s_lshl_b32 s{sTmp}, s{sH}, 10
            s_add_u32 s{sTmp}, s{sTmp}, {FL_OFF}
            s_waitcnt vmcnt(0)
            v_and_b32 v{vB+4}, 31, v0
            v_lshl_add_u32 v{vB+4}, v{vB+4}, 2, s{sTmp}
            s_mov_b32 s{sCnt}, 0
            L_wbp:
            buffer_load_dword v{vT0}, v{vB+4}, s[{rW}:{rW+3}], 0 offen sc1
            s_add_u32 s{sCnt}, s{sCnt}, 1
            s_waitcnt vmcnt(0)
            v_cmp_eq_u32 vcc, 0, v{vT0}
            s_cmp_ge_u32 s{sCnt}, 64
            s_cbranch_scc1 L_lend
            s_cbranch_vccnz L_wbp
            buffer_wbl2 sc1
            s_endpgm
            """)
        if first: A("L_lend:")
        A("s_waitcnt vmcnt(0) lgkmcnt(0)\ns_endpgm")
    A(f"""
    L_misspec:
    s_waitcnt vmcnt(0)
    s_cmp_eq_u32 s{sN}, 0
    s_cbranch_scc1 L_lend
    s_mov_b32 s{sI}, -1
    s_mov_b32 s{sU}, 0
    s_branch L_lgo
    """)
    A(f"""
    L_cons:
    v_lshl_add_u32 v{vS}, v{vT0}, 11, v{vT1}
    v_xor_b32 v{vT1}, v{vT1}, v{vT2}
    s_mov_b32 s{rT+2}, 16384
    s_mov_b32 s{rT+3}, 0x20000
    s_sub_u32 s{sB}, s{sW}, 64
    s_lshl_b32 s{sLB}, s{sB}, 6
    s_lshl_b32 s{sMk}, s{sB}, 3
    s_add_u32 s{sMk+1}, s{sMk}, {3072}
    s_add_u32 s{sMk+2}, s{sMk}, {2*3072}
    s_add_u32 s{sMk+3}, s{sMk}, {3*3072}
    s_add_u32 m0, s{sLB}, {TL}
    v_and_b32 v{vT2}, 14, v0
    v_lshlrev_b32 v{vT2}, 1, v{vT2}
    s_waitcnt lgkmcnt(0)
    s_mov_b32 s{rT}, s{sBT}
    s_and_b32 s{rT+1}, s{sBT+1}, 0xffff
    """)
    if a0: A("s_barrier")
    for j in range(4):
        A(f"buffer_load_dwordx4 v{vS}, s[{rT}:{rT+3}], s{sMk+j} offen offset:{1024*j} lds")
    A(f"global_load_dword v{vCtx}, v{vT2}, s[{sCTX}:{sCTX+1}]")
    qissue()
    stamp(1)
    A(f"""
    v_and_b32 v{vLane}, 63, v0
    s_xor_b32 s{sTmp}, s{sJ0}, {lead}
    s_or_b32 s{sTmp}, s{sTmp}, s{sW}
    s_cselect_b32 s{sReg}, 0, 1
    s_cbranch_scc0 L_clear
    L_cleared:
    s_add_u32 s{sTmp}, s{sLB}, {TL}
    v_lshl_add_u32 v{vOf}, v{vLane}, 3, s{sTmp}
    v_lshrrev_b32 v{vG}, 4, v{vLane}
    v_and_b32 v{vQi}, 15, v{vLane}
    s_lshl2_add_u32 s{sTmp}, s{sW}, {XL}
    v_mov_b32 v{vB+2}, s{sTmp}
    v_mov_b32 v{vB+3}, {XL}
    """)
    if dn: A(f"s_and_b32 s{sTmp}, s{sW}, 1\ns_lshr_b32 s{sTmp2}, s{sW}, 1\ns_lshl1_add_u32 s{sTmp}, s{sTmp}, s{sTmp2}\ns_lshl2_add_u32 s{sTmp}, s{sTmp}, {OL}")
    else: A(f"s_lshl2_add_u32 s{sTmp}, s{sW}, {OL}")
    A(f"""
    v_lshl_add_u32 v{vB+4}, v{vLane}, 4, s{sTmp}
    s_lshl_b32 s{sWb}, s{sW}, 6
    """)
    if dn: A(f"v_lshl_add_u32 v{vS+2}, v{vLane}, 6, s{sJ0}\ns_and_b32 s{sTmp}, s{sW}, 1\ns_lshl_b32 s{sTmp}, s{sTmp}, 5\nv_add_u32 v{vS}, s{sTmp}, v{vS+2}")
    else: A(f"v_lshl_add_u32 v{vS}, v{vLane}, 5, s{sJ0}")
    A(f"""
    v_mov_b32 v{vDs}, 0x80000
    v_not_b32 v{vS+1}, v{vS}
    v_mov_b32 v{vBig}, 0x7fff0000
    v_lshrrev_b32 v{vB}, 1, v{vQi}
    v_lshlrev_b32 v{vB}, 16, v{vB}
    v_and_b32 v{vT0}, 7, v{vQi}
    v_lshlrev_b32 v{vT0}, 1, v{vT0}
    v_xor_b32 v{vT0}, v{vT0}, v{vG}
    v_lshlrev_b32 v{vT0}, 4, v{vT0}
    v_lshl_add_u32 v{vKA}, v{vQi}, 9, v{vT0}
    v_xor_b32 v{vKA+1}, 64, v{vKA}
    v_xor_b32 v{vKA+2}, 128, v{vKA}
    v_xor_b32 v{vKA+3}, 192, v{vKA}
    v_lshrrev_b32 v{vT0}, 2, v{vLane}
    v_lshlrev_b32 v{vT1}, 9, v{vT0}
    v_and_b32 v{vT0}, 7, v{vT0}
    v_lshlrev_b32 v{vT0}, 1, v{vT0}
    v_and_b32 v{vT2}, 3, v{vLane}
    s_lshl_b32 s{sTmp}, s{sW}, 3
    v_add_u32 v{vT2}, s{sTmp}, v{vT2}
    v_xor_b32 v{vT3}, v{vT2}, v{vT0}
    v_lshl_add_u32 v{vVA}, v{vT3}, 4, v{vT1}
    v_xor_b32 v{vVA+1}, 64, v{vVA}
    """)
    for sl in range(4): A(f"v_add_u32 v{vVF+sl}, {QL}, v{vKA+sl}")
    A(f"""
    s_and_b32 s{sTmp}, s{sW}, 1
    s_lshl_b32 s{sS}, s{sTmp}, 4
    {f"s_lshr_b32 s{sTmp}, s{sW}, 1" if dn else ""}
    s_lshl_b32 s{sPr}, s{sTmp}, 6
    s_add_u32 s{sPr}, s{sPr}, s{sH}
    s_lshl_b32 s{sPr}, s{sPr}, 9
    v_mov_b32 v{vT2}, 0x2000
    v_mov_b32 v{vT3}, {CSC}
    """)
    stamp(7, 2)
    A(f"s_waitcnt vmcnt(2)")
    stamp(2)
    for b in range(8):
        A(f"ds_read_b64 v[{vKF+2*b}:{vKF+2*b+1}], v{vOf} offset:{512*b}")
    A(f"""
    v_cmp_lt_i32 vcc, 0, v{vCtx}
    v_min_i32 v{vCtx}, 0x2000, v{vCtx}
    v_lshl_add_u32 v{vT0}, v{vG}, 2, {0 if dn else f's{sS}'}
    v_cndmask_b32 v{vCtx}, v{vT2}, v{vCtx}, vcc
    v_cndmask_b32 v{vC}, 0, v{vT3}, vcc
    v_add_u32 v{vNb}, {15 if dn else 31}, v{vCtx}
    v_lshrrev_b32 v{vNb}, {4 if dn else 5}, v{vNb}
    v_sub_u32 v{vLim}, v{vCtx}, v{vT0}
    v_subrev_u32 v{vLim+1}, 1, v{vLim}
    v_max_u32_dpp v{vT2}, v{vNb}, v{vNb} row_ror:2 row_mask:0xf bank_mask:0xf
    v_subrev_u32 v{vLim+2}, 2, v{vLim}
    v_subrev_u32 v{vLim+3}, 3, v{vLim}
    v_max_u32_dpp v{vT2}, v{vT2}, v{vT2} row_ror:4 row_mask:0xf bank_mask:0xf
    s_waitcnt lgkmcnt(0)
    """)
    for b in range(1, 8):
        A(f"v_cmp_ne_u64 s[{sMk+2*b}:{sMk+2*b+1}], v[{vKF}:{vKF+1}], v[{vKF+2*b}:{vKF+2*b+1}]")
    A(f"v_max_u32_dpp v{vT2}, v{vT2}, v{vT2} row_ror:8 row_mask:0xf bank_mask:0xf")
    for b in range(2, 8):
        A(f"s_or_b64 s[{sMk+2}:{sMk+3}], s[{sMk+2}:{sMk+3}], s[{sMk+2*b}:{sMk+2*b+1}]")
    A(f"""
    s_ff1_i32_b64 s{sTmp}, s[{sMk+2}:{sMk+3}]
    s_min_u32 s{sTmp}, s{sTmp}, 256
    s_add_u32 s{sTmp}, s{sTmp}, s{sWb}
    {f"s_lshl_b32 s{sTmp}, s{sTmp}, 1" if dn else ""}
    v_min_u32 v{vT2}, s{sTmp}, v{vT2}
    ds_write_b32 v{vB+2}, v{vT2}
    s_waitcnt lgkmcnt(0)
    """)
    stamp(8, 2)
    A("s_barrier")
    stamp(9, 2)
    A(f"""
    ds_read_b128 v[{vX}:{vX+3}], v{vB+3}
    s_waitcnt lgkmcnt(0)
    v_min3_u32 v{vT0}, v{vX}, v{vX+1}, v{vX+2}
    v_min_u32 v{vT0}, v{vT0}, v{vX+3}
    v_max_u32 v{vNb}, v{vNb}, v{vT0}
    v_sub_u32 v{vNb}, v{vNb}, v{vT0}
    v_mov_b32 v{vO}, 0
    v_mov_b32 v{vO+1}, 0
    v_add_u32_dpp v{vT1}, v{vNb}, v{vNb} row_shr:2 row_mask:0xf bank_mask:0xf bound_ctrl:0
    v_mov_b32 v{vO+2}, 0
    v_mov_b32 v{vO+3}, 0
    v_add_u32_dpp v{vT1}, v{vT1}, v{vT1} row_shr:4 row_mask:0xf bank_mask:0xf bound_ctrl:0
    v_mov_b32 v{vM}, {NEGBIG}
    v_mov_b32 v{vL}, 0
    v_add_u32_dpp v{vT1}, v{vT1}, v{vT1} row_shr:8 row_mask:0xf bank_mask:0xf bound_ctrl:0
    v_add_u32 v{vT2}, v{vT1}, v{vT0}
    v_sub_u32 v{vT1}, v{vT1}, v{vNb}
    v_readlane_b32 s{sTot}, v{vT2}, 15
    v_sub_u32 v{vT2}, v{vT2}, v{vNb}
    v_sub_u32 v{vT1}, v{vB}, v{vT1}
    s_mov_b32 s{sI}, 0
    """)
    fill = [f"v_mov_b32 v{vO+i}, 0" for i in range(4, 16)] + [f"v_mov_b32 v{vNi}, 0xff800000", f"s_mov_b32 s{sC3}, 0x00030003", f"s_mov_b32 s{sC3+1}, 0x00030003", f"s_mov_b32 s{sLt}, 0"]
    for b in range(8):
        A(f"v_add_co_u32_dpp v{vT3}, vcc, v{vT2}, v{vS+1} row_newbcast:{2*b} row_mask:0xf bank_mask:0xf")
        A(fill[2*b]); A(fill[2*b+1])
        A(f"v_cndmask_b32_dpp v{vDs}, v{vT1}, v{vDs}, vcc row_newbcast:{2*b} row_mask:0xf bank_mask:0xf")
    stamp(10, 2)
    A(f"""
    """)
    if dn:
        A(f"""
        v_cmp_gt_u32 s[{sMk+2}:{sMk+3}], s{sTot}, v{vS}
        v_cmp_gt_u32 vcc, s{sTot}, v{vS+2}
        v_add_u32 v{vDs}, v{vDs}, v{vS}
        v_mov_b32 v{vT0}, 0x3ff
        v_cndmask_b32 v{vDs}, v{vT0}, v{vDs}, s[{sMk+2}:{sMk+3}]
        v_bfe_u32 v{vT1}, v{vDs}, 16, 3
        v_bfe_u32 v{vT2}, v{vDs}, 7, 2
        v_and_b32 v{vT0}, 0x7f, v{vDs}
        v_lshl_add_u32 v{vT2}, v{vT2}, 3, v{vT1}
        v_lshl_add_u32 v{vT0}, v{vT2}, 7, v{vT0}
        v_lshlrev_b32 v{vT0}, 2, v{vT0}
        v_add_u32 v{vT0}, {TL}, v{vT0}
        v_lshlrev_b32 v{vT1}, 3, v{vT1}
        ds_read_b32 v{vOf}, v{vT0}
        ds_bpermute_b32 v{vT1}, v{vT1}, v{vCtx}
        s_bcnt1_i32_b64 s{sN}, vcc
        v_and_b32 v{vT0}, 0x3ff, v{vDs}
        s_and_b32 s{sTmp2}, s{sW}, 2
        s_lshl_b32 s{sTmp2}, s{sTmp2}, 2
        v_lshl_add_u32 v{vT0}, v{vT0}, 4, s{sTmp2}
        """)
    else:
        A(f"""
    v_cmp_gt_u32 s[{sMk+2}:{sMk+3}], s{sTot}, v{vS}
    v_add_u32 v{vDs}, v{vDs}, v{vS}
    v_bfe_u32 v{vT1}, v{vDs}, 16, 3
    v_bfe_u32 v{vT2}, v{vDs}, 6, 2
    v_and_b32 v{vT0}, 0x3f, v{vDs}
    v_lshl_add_u32 v{vT2}, v{vT2}, 3, v{vT1}
    v_lshl_add_u32 v{vT0}, v{vT2}, 6, v{vT0}
    s_and_b32 s{sTmp}, s{sW}, 2
    s_lshl1_add_u32 s{sTmp}, s{sTmp}, {TL}
    v_lshl_add_u32 v{vT0}, v{vT0}, 3, s{sTmp}
    v_lshlrev_b32 v{vT1}, 3, v{vT1}
    ds_read_b32 v{vOf}, v{vT0}
    ds_bpermute_b32 v{vT1}, v{vT1}, v{vCtx}
    s_bcnt1_i32_b64 s{sN}, s[{sMk+2}:{sMk+3}]
    v_and_b32 v{vT0}, 0xff, v{vDs}
    s_lshl_b32 s{sTmp2}, s{sW}, 3
    v_lshl_add_u32 v{vT0}, v{vT0}, 5, s{sTmp2}
    """)
    A(f"""
    v_cmp_le_u32 vcc, 0x80000, v{vDs}
    v_mov_b32 v{vT2}, s{sN}
    ds_write_b32 v{vB+3}, v{vT2} offset:16
    ds_write_b32 v{vB+3}, v{vO} offset:20
    s_waitcnt lgkmcnt(2)
    v_cmp_lt_u32 s[{sMk}:{sMk+1}], v{vT0}, v{vT1}
    v_lshl_add_u32 v{vOf}, v{vOf}, 16, s{sPr}
    s_or_b64 vcc, vcc, s[{sMk}:{sMk+1}]
    s_and_b64 vcc, vcc, s[{sMk+2}:{sMk+3}]
    v_cndmask_b32 v{vOf}, 1, v{vOf}, vcc
    ds_write_b32 v{vB+4}, v{vOf}
    s_cmp_eq_u32 s{sReg}, 1
    s_waitcnt vmcnt(0) lgkmcnt(0)
    s_barrier
    s_cbranch_scc1 L_ready
    L_readied:
    s_mov_b32 s{sPos}, 0
    s_cmp_eq_u32 s{sN}, 0
    s_cbranch_scc1 L_done
    """)
    stamp(11, 2)
    for s in range(8):
        A(f"ds_read_b128 v[{vQ+4*s}:{vQ+4*s+3}], v{vVF+(s&3)} offset:{256*(s>>2)}")
    vSW = vDO; vSR = vDO + 1; vMW = vDO + 2; vMR = vDO + 3
    A(f"""
    s_lshl_b32 s{sTmp}, s{sS}, 9
    v_add_u32 v{vKA}, s{sTmp}, v{vKA}
    v_lshlrev_b32 v{vSR}, 4, v{vLane}
    v_add_u32 v{vSR}, {SC}, v{vSR}
    s_lshl_b32 s{sTmp}, s{sS}, 6
    v_add_u32 v{vSW}, s{sTmp}, v{vSR}
    v_lshlrev_b32 v{vMR}, 4, v{vQi}
    v_add_u32 v{vMR}, {MX}, v{vMR}
    s_lshl_b32 s{sTmp}, s{sW}, 2
    v_add_u32 v{vMW}, s{sTmp}, v{vMR}
    s_mov_b32 s{sSl}, 0
    s_mov_b32 s{sN0}, 0
    s_min_u32 s{sN1}, s{sN}, {CH}
    s_lshr_b32 s{sIsV}, s{sW}, 1
    s_add_u32 s{sGb+1}, s{sH}, {GX_OFF-gstr}
    v_mov_b32 v{vGa}, 0
    v_mov_b32 v{vGa+1}, 1
    s_lshl_b32 s{sTmp}, s{sN}, 1
    s_sub_u32 s{sCu}, 128, s{sTmp}
    s_cmp_eq_u32 s{sW}, 3
    s_cselect_b32 s{sGb}, s{sJ0}, 99
    s_branch L_pass
    """)
    A(f"""
    L_clear:
    s_lshl_b32 s{sTmp}, s{sH}, 10
    s_add_u32 s{sTmp}, s{sTmp}, {FL_OFF}
    v_lshl_add_u32 v{vJk+1}, v{vLane}, 3, s{sTmp}
    v_mov_b32 v{vJk+2}, 0
    v_mov_b32 v{vJk+3}, 0
    global_store_dwordx2 v{vJk+1}, v[{vJk+2}:{vJk+3}], s[{sWS}:{sWS+1}] sc1
    global_store_dwordx2 v{vJk+1}, v[{vJk+2}:{vJk+3}], s[{sWS}:{sWS+1}] offset:512 sc1
    s_lshl_b32 s{sTmp}, s{sH}, 8
    s_add_u32 s{sTmp}, s{sTmp}, {PG_OFF}
    v_lshl_add_u32 v{vJk+1}, v{vLane}, 2, s{sTmp}
    global_store_dword v{vJk+1}, v{vJk+2}, s[{sWS}:{sWS+1}] sc1
    s_mul_i32 s{sTmp}, s{sH}, {16*gstr}
    s_add_u32 s{sTmp}, s{sTmp}, {GX_OFF}
    v_mul_u32_u24 v{vJk+1}, {gstr}, v{vLane}
    v_add_u32 v{vJk+1}, s{sTmp}, v{vJk+1}
    s_mov_b64 exec, 0xffff
    global_store_dwordx2 v{vJk+1}, v[{vJk+2}:{vJk+3}], s[{sWS}:{sWS+1}] sc1
    s_mov_b64 exec, -1
    s_branch L_cleared
    L_ready:
    s_lshl_b32 s{sTmp}, s{sH}, 5
    v_mov_b32 v{vJk+1}, s{sTmp}
    v_mov_b32 v{vJk+2}, 1
    s_mov_b64 exec, 1
    global_store_dword v{vJk+1}, v{vJk+2}, s[{sDBG}:{sDBG+1}] sc1
    s_mov_b64 exec, -1
    s_branch L_readied
    """)
    A(f"""
    L_late:
    s_mov_b32 s{rW}, s{sWS}
    s_and_b32 s{rW+1}, s{sWS+1}, 0xffff
    s_mov_b32 s{rW+2}, {WS_BYTES if not prof else 16 << 20}
    s_mov_b32 s{rW+3}, 0x20000
    s_lshl2_add_u32 s{sTmp2}, s{sH}, s{sW}
    s_lshl_b32 s{sTmp}, s{sTmp2}, {9 if cml else 5}
    s_add_u32 s{sTmp}, s{sTmp}, s{sJ0}
    s_lshl_b32 s{sTmp}, s{sTmp}, {3 if cml else 7}
    s_add_u32 s{sTmp}, s{sTmp}, {ML_OFF}
    v_lshl_add_u32 v{vMO}, v{vQi}, {8 if cml else 3}, s{sTmp}
    s_lshl_b32 s{sTmp2}, s{sTmp2}, 8
    s_lshl2_add_u32 s{sTmp2}, s{sJ0}, s{sTmp2}
    s_add_u32 s{sTmp2}, s{sTmp2}, {FL_OFF}
    v_mov_b32 v{vFo}, s{sTmp2}
    s_lshl_b32 s{sTmp}, s{sH}, 5
    v_mov_b32 v{vRd}, s{sTmp}
    s_add_u32 s{sTmp}, s{sTmp}, s{sJ0}
    s_lshl2_add_u32 s{sTmp}, s{sTmp}, s{sW}
    s_lshl_b32 s{sTmp}, s{sTmp}, 11
    v_lshl_add_u32 v{vSO}, v{vQi}, {4 if lin else 6}, s{sTmp}
    v_lshl_add_u32 v{vSO}, v{vG}, {8 if lin else 4}, v{vSO}
    """)
    A(f"""
    v_lshrrev_b32 v{vJk+2}, 2, v{vLane}
    v_and_b32 v{vJk+3}, 3, v{vLane}
    """)
    if lin:
        assert cml
        A(f"""
        s_lshr_b32 s{sTot}, s{sJ0}, 3
        s_lshl2_add_u32 s{sTot}, s{sH}, s{sTot}
        s_lshl2_add_u32 s{sTmp}, s{sTot}, s{sW}
        s_lshl_b32 s{sTmp}, s{sTmp}, 10
        s_add_u32 s{sTmp}, s{sTmp}, {ML_OFF}
        v_lshl_add_u32 v{vMd}, v{vJk+2}, 3, s{sTmp}
        v_lshl_add_u32 v{vMd}, v{vJk+3}, 8, v{vMd}
        s_lshl_b32 s{sTmp}, s{sTot}, 8
        s_add_u32 s{sTmp}, s{sTmp}, {FL_OFF}
        v_lshl_add_u32 v{vFa}, v{vLane}, 2, s{sTmp}
        s_lshl_b32 s{sTmp}, s{sH}, 18
        s_lshl2_add_u32 s{sTmp2}, s{sJ0}, s{sW}
        s_lshl_b32 s{sTmp2}, s{sTmp2}, 6
        s_add_u32 s{sTmp}, s{sTmp}, s{sTmp2}
        v_lshl_add_u32 v{vAd}, v{vJk+3}, 4, s{sTmp}
        v_lshl_add_u32 v{vAd}, v{vJk+2}, 13, v{vAd}
        v_add_u32 v{vAd+1}, {16*SB}, v{vAd}
        s_lshl4_add_u32 s{sTmp}, s{sW}, s{sH}
        s_lshl_b32 s{sTmp}, s{sTmp}, 10
        s_lshl4_add_u32 s{sTmp}, s{sJ0}, s{sTmp}
        v_lshl_add_u32 v{vOA}, v{vG}, 2, s{sTmp}
        v_and_b32 v{vJk+2}, 1, v{vLane}
        v_lshl_add_u32 v{vOA}, v{vJk+2}, 9, v{vOA}
        v_bfe_u32 v{vJk+2}, v{vLane}, 1, 1
        v_lshl_add_u32 v{vOA}, v{vJk+2}, 13, v{vOA}
        """)
    else:
        A(f"""
    s_lshr_b32 s{sB}, s{sJ0}, 2
    s_and_b32 s{sTmp}, s{sW}, 1
    s_lshl1_add_u32 s{sS}, s{sB}, s{sTmp}
    s_lshl1_add_u32 s{sWb}, s{sH}, s{sTmp}
    s_and_b32 s{sTot}, s{sJ0}, 3
    s_lshr_b32 s{sTmp2}, s{sW}, 1
    s_lshl1_add_u32 s{sPr}, s{sTot}, s{sTmp2}
    s_lshl2_add_u32 s{sTot}, s{sH}, s{sTot}
    s_lshl_b32 s{sTmp}, s{sTot}, 12
    s_lshl_b32 s{sTmp2}, s{sS}, {8 if cml else 3}
    s_add_u32 s{sTmp}, s{sTmp}, s{sTmp2}
    s_add_u32 s{sTmp}, s{sTmp}, {ML_OFF}
    v_lshl_add_u32 v{vMd}, v{vJk+2}, {3 if cml else 7}, s{sTmp}
    s_lshl_b32 s{sTmp}, s{sTot}, 8
    s_add_u32 s{sTmp}, s{sTmp}, {FL_OFF}
    v_lshl_add_u32 v{vFa}, v{vLane}, 2, s{sTmp}
    s_lshl_b32 s{sTmp}, s{sH}, 18
    s_lshl4_add_u32 s{sTmp2}, s{sPr}, s{sS}
    s_lshl_b32 s{sTmp2}, s{sTmp2}, 6
    s_add_u32 s{sTmp}, s{sTmp}, s{sTmp2}
    v_lshl_add_u32 v{vAd}, v{vJk+3}, 4, s{sTmp}
    v_lshl_add_u32 v{vAd}, v{vJk+2}, 13, v{vAd}
    v_add_u32 v{vAd+1}, {16*SB}, v{vAd}
    s_lshl4_add_u32 s{sTmp}, s{sB}, s{sWb}
    s_lshl3_add_u32 s{sTmp}, s{sTmp}, s{sPr}
    s_lshl_b32 s{sTmp}, s{sTmp}, 6
    v_lshl_add_u32 v{vOA}, v{vJk+3}, 4, s{sTmp}
    v_lshl_add_u32 v{vOA}, v{vG}, 2, v{vOA}
    """)
    A(f"""
    s_getreg_b32 s{sPl}, hwreg(HW_REG_XCC_ID, 0, 4)
    L_late_end:
    s_cmp_eq_u32 s{sLt}, 2
    s_cbranch_scc1 L_done2
    s_mov_b32 s{sLt}, 1
    s_branch L_back
    L_late2:
    s_mov_b32 s{sLt}, 2
    s_branch L_late
    """)
    hk = [0]
    def ustamp(last=False):
        if gon and not last:
            hk[0] += 1
            A(f"""
            s_and_b32 s{sTmp}, s{sCu}, 31
            s_add_u32 s{sCu}, s{sCu}, 1
            s_cmp_lg_u32 s{sTmp}, s{sGb}
            s_cbranch_scc1 L_hk{hk[0]}
            s_cmp_gt_u32 s{sCu}, {128-gstop}
            s_cbranch_scc1 L_hk{hk[0]}
            v_mov_b32 v{vGa}, {XL+20}
            ds_read_b32 v{vGa}, v{vGa}
            s_mul_i32 s{sTmp}, s{sCu}, {gstr}
            s_add_u32 s{sTmp}, s{sTmp}, s{sGb+1}
            s_waitcnt lgkmcnt(0)
            v_cmp_ne_u32 vcc, 0, v{vGa}
            s_cbranch_vccz L_hk{hk[0]}
            s_mov_b64 exec, 1
            v_mov_b32 v{vGa}, s{sTmp}
            global_store_byte v{vGa}, v{vGa+1}, s[{sWS}:{sWS+1}] sc1
            s_mov_b64 exec, -1
            L_hk{hk[0]}:
            """)
        if prof: A(f"s_memrealtime s[{sSt}:{sSt+1}]\ns_waitcnt lgkmcnt(0)\ns_lshr_b32 m0, s{sIt}, 1\ns_add_u32 s{sIt}, s{sIt}, 1\ns_min_u32 s{sIt}, s{sIt}, 121\nv_writelane_b32 v{vPf}, s{sSt}, m0")
    vA = vB + 4
    A(f"""
    .p2align 6
    L_pass:
    v_mov_b32 v{vNb}, v{vM}
    L_p1:
    s_xor_b32 s{sTmp}, s{sI}, s{sIsV}
    s_bitcmp0_b32 s{sTmp}, 0
    s_cbranch_scc1 L_mine
    s_barrier
    """)
    ustamp()
    A(f"""
    s_lshr_b32 s{sTmp}, s{sI}, 1
    s_cmp_eq_u32 s{sTmp}, {pat}
    s_cbranch_scc1 L_late
    s_branch L_back
    L_mine:
    v_readlane_b32 s{sPos}, v{vDs}, s{sI}
    v_add_u32 v{vA}, s{sSl}, v{vKA}
    v_xor_b32 v{vA+1}, 64, v{vA}
    v_xor_b32 v{vA+2}, 128, v{vA}
    v_xor_b32 v{vA+3}, 192, v{vA}
    s_lshr_b32 s{sTmp}, s{sPos}, 15
    s_lshl_b64 vcc, s[{sC3}:{sC3+1}], s{sTmp}
    s_bitcmp1_b32 s{sPos}, 19
    s_cselect_b64 vcc, -1, vcc
    s_and_b32 s{sPos}, s{sPos}, {0x3ff if dn else 0xff}
    s_lshl_b32 s{sPos}, s{sPos}, {4 if dn else 5}
    v_mov_b32 v{vT1}, s{sPos}
    v_cndmask_b32 v{vT1}, v{vBig}, v{vT1}, vcc
    s_sub_u32 s{sTmp}, s{sI}, s{sN0}
    s_lshl_b32 s{sTmp}, s{sTmp}, 11
    """)
    for r in range(4): A(f"v_cmp_lt_i32 s[{sMk+2*r}:{sMk+2*r+1}], v{vT1}, v{vLim+r}")
    A(f"v_add_u32 v{vT2}, s{sTmp}, v{vSW}")
    A("s_barrier")
    ustamp()
    for s in range(8):
        A(f"ds_read_b128 v[{vKF+4*s}:{vKF+4*s+3}], v{vA+(s&3)} offset:{256*(s>>2)}")
    for s in range(8):
        A(f"s_waitcnt lgkmcnt({7-s})")
        c = "0" if s == 0 else f"v[{vS}:{vS+3}]"
        A(f"v_mfma_f32_16x16x32_bf16 v[{vS}:{vS+3}], v[{vKF+4*s}:{vKF+4*s+3}], v[{vQ+4*s}:{vQ+4*s+3}], {c}")
    A("s_nop 7")
    for r in range(4): A(f"v_mul_f32 v{vX+r}, v{vS+r}, v{vC}")
    for r in range(4): A(f"v_cndmask_b32 v{vX+r}, v{vNi}, v{vX+r}, s[{sMk+2*r}:{sMk+2*r+1}]")
    A(f"""
    ds_write_b128 v{vT2}, v[{vX}:{vX+3}]
    v_max3_f32 v{vNb}, v{vNb}, v{vX}, v{vX+1}
    v_max3_f32 v{vNb}, v{vNb}, v{vX+2}, v{vX+3}
    L_back:
    s_add_u32 s{sSl}, s{sSl}, 16384
    s_cmp_lg_u32 s{sSl}, {RS*16384}
    s_cselect_b32 s{sSl}, s{sSl}, 0
    s_add_u32 s{sI}, s{sI}, 1
    s_cmp_lt_u32 s{sI}, s{sN1}
    s_cbranch_scc1 L_p1
    """)
    if pre == 1: A(f"s_cmp_eq_u32 s{sLt}, 0\ns_cbranch_scc1 L_nopre\nbuffer_load_dword v{vJk}, v{vJk+1}, s[{rW}:{rW+3}], 0 offen sc1\nL_nopre:")
    A(f"""
    v_mov_b32 v{vT1}, v{vNb}
    s_mov_b32 s{sI}, s{sN0}
    s_nop 0
    v_permlane32_swap_b32 v{vNb}, v{vT1}
    v_max_f32 v{vNb}, v{vNb}, v{vT1}
    v_mov_b32 v{vT1}, v{vNb}
    s_nop 1
    v_permlane16_swap_b32 v{vNb}, v{vT1}
    v_max_f32 v{vNb}, v{vNb}, v{vT1}
    ds_write_b32 v{vMW}, v{vNb}
    """)
    if rev: A(f"s_sub_u32 s{sTmp}, s{sN1}, s{sN0}\ns_sub_u32 s{sTmp}, s{sTmp}, 1\ns_mul_i32 s{sTmp}, s{sTmp}, 2048\nv_add_u32 v{vT3}, s{sTmp}, v{vSR}")
    else: A(f"v_mov_b32 v{vT3}, v{vSR}")
    A(f"""
    s_waitcnt lgkmcnt(0)
    s_barrier
    """)
    ustamp()
    A(f"""
    ds_read_b128 v[{vS}:{vS+3}], v{vMR}
    s_mov_b32 s{sU}, 0
    s_waitcnt lgkmcnt(0)
    v_max3_f32 v{vT0}, v{vS}, v{vS+1}, v{vS+2}
    v_max_f32 v{vT0}, v{vT0}, v{vS+3}
    v_sub_f32 v{vAl}, v{vM}, v{vT0}
    v_exp_f32 v{vAl}, v{vAl}
    v_mov_b32 v{vM}, v{vT0}
    v_mul_f32 v{vL}, v{vL}, v{vAl}
    """)
    for i in range(8):
        A(f"v_pk_mul_f32 v[{vO+2*i}:{vO+2*i+1}], v[{vO+2*i}:{vO+2*i+1}], v[{vAl}:{vAl+1}] op_sel_hi:[1,0]")
    A(f"""
    ; phase 2
    L_p2:
    ds_read_b128 v[{vX}:{vX+3}], v{vT3}
    ds_read_b128 v[{vX+4}:{vX+7}], v{vT3} offset:1024
    v_add_u32 v{vA}, s{sSl}, v{vVA}
    v_add_u32 v{vA+1}, s{sSl}, v{vVA+1}
    v_add_u32 v{vT3}, {-2048 if rev else 2048}, v{vT3}
    s_add_u32 s{sSl}, s{sSl}, 16384
    s_cmp_lg_u32 s{sSl}, {RS*16384}
    s_cselect_b32 s{sSl}, s{sSl}, 0
    s_add_u32 s{sI}, s{sI}, 1
    s_cmp_eq_u32 s{sU}, 0
    s_mov_b32 s{sU}, 1
    s_waitcnt lgkmcnt(0)
    """)
    for r in range(8): A(f"v_sub_f32 v{vX+r}, v{vX+r}, v{vM}")
    for r in range(8): A(f"v_exp_f32 v{vX+r}, v{vX+r}")
    for j in range(4): A(f"v_cvt_pk_bf16_f32 v{vP+j}, v{vX+2*j}, v{vX+2*j+1}")
    A(f"""
    v_add_f32 v{vL}, v{vL}, v{vX}
    v_add_f32 v{vT0}, v{vX+1}, v{vX+2}
    v_add_f32 v{vT1}, v{vX+3}, v{vX+4}
    v_add_f32 v{vT2}, v{vX+5}, v{vX+6}
    v_add_f32 v{vL}, v{vL}, v{vX+7}
    v_add_f32 v{vT0}, v{vT0}, v{vT1}
    v_add_f32 v{vL}, v{vL}, v{vT2}
    v_add_f32 v{vL}, v{vL}, v{vT0}
    """)
    def pv(inter=None):
        for i in range(4):
            for h in range(2):
                r = vVF + 4*i + 2*h
                A(f"ds_read_b64_tr_b16 v[{r}:{r+1}], v{vA+(i>>1)} offset:{8192*h + 8*(i&1)}")
        if inter: A(inter)
        for i in range(4):
            A(f"s_waitcnt lgkmcnt({6-2*i})")
            A(f"v_mfma_f32_16x16x32_bf16 v[{vO+4*i}:{vO+4*i+3}], v[{vVF+4*i}:{vVF+4*i+3}], v[{vP}:{vP+3}], v[{vO+4*i}:{vO+4*i+3}]")
    vF = vT3
    A(f"""
    s_cselect_b32 s{sPos}, 1, 2
    s_cmp_eq_u32 s{sI}, s{sN}
    s_cbranch_scc1 L_done
    s_cmp_eq_u32 s{sPos}, 1
    s_cbranch_scc1 L_nb
    s_barrier
    """)
    ustamp()
    A("L_nb:")
    pv(f"s_cmp_lt_u32 s{sI}, s{sN1}")
    A(f"""
    s_cbranch_scc1 L_p2
    s_mov_b32 s{sN0}, s{sN1}
    s_add_u32 s{sN1}, s{sN1}, {CH}
    s_min_u32 s{sN1}, s{sN1}, s{sN}
    s_branch L_pass
    L_done:
    s_cmp_eq_u32 s{sLt}, 0
    s_cbranch_scc1 L_late2
    L_done2:
    global_load_dword v{vT0}, v{vRd}, s[{sDBG}:{sDBG+1}] sc1
    v_mov_b32 v{vT1}, v{vL}
    v_mov_b32 v{vAl}, v{vM}
    s_mov_b32 s{sCnt}, 0
    v_permlane32_swap_b32 v{vL}, v{vT1}
    v_add_f32 v{vL}, v{vL}, v{vT1}
    v_mov_b32 v{vT1}, v{vL}
    s_mov_b32 s{sReg}, 0
    v_mov_b32 v{vT2}, 1
    v_permlane16_swap_b32 v{vL}, v{vT1}
    v_add_f32 v{vAl+1}, v{vL}, v{vT1}
    s_cmp_lg_u32 s{sPl}, s{sH}
    s_cbranch_scc1 L_noml
    s_mov_b64 exec, 0xffff
    buffer_store_dwordx2 v[{vAl}:{vAl+1}], v{vMO}, s[{rW}:{rW+3}], 0 offen {mlp}
    s_mov_b64 exec, -1
    L_noml:
    s_cmp_eq_u32 s{sPos}, 0
    s_cbranch_scc1 L_nopv
    s_cmp_eq_u32 s{sPos}, 1
    s_cbranch_scc1 L_nb2
    s_barrier
    """)
    ustamp(True)
    A("L_nb2:")
    pv()
    A(f"L_nopv:")
    stamp(3)
    A(f"s_cmp_eq_u32 s{sPl}, s{sH}\ns_nop 2")
    for j in range(4): A(f"v_cvt_pk_bf16_f32 v{vX+j}, v{vO+2*j}, v{vO+2*j+1}")
    A("s_nop 0")
    for j in range(4, 8): A(f"v_cvt_pk_bf16_f32 v{vX+j}, v{vO+2*j}, v{vO+2*j+1}")
    A(f"s_cbranch_scc0 L_slow")
    def publish(sc, tag, foff):
        for ih in range(2):
            A(f"buffer_store_dwordx4 v[{vX+4*ih}:{vX+4*ih+3}], v{vSO}, s[{rW}:{rW+3}], s{sReg} offen offset:{1024*ih} {sc or stp}")
        if sc: A(f"s_mov_b64 exec, 0xffff\nbuffer_store_dwordx2 v[{vAl}:{vAl+1}], v{vMO}, s[{rW}:{rW+3}], s{sReg} offen {sc}")
        A(f"""
        s_mov_b64 exec, 1
        L_rdy{tag}:
        s_waitcnt vmcnt(0)
        v_cmp_eq_u32 vcc, 0, v{vT0}
        s_cbranch_vccz L_rok{tag}
        s_add_u32 s{sCnt}, s{sCnt}, 1
        s_cmp_ge_u32 s{sCnt}, 0x40000
        s_cbranch_scc1 L_rok{tag}
        global_load_dword v{vT0}, v{vRd}, s[{sDBG}:{sDBG+1}] sc1
        s_branch L_rdy{tag}
        L_rok{tag}:
        buffer_store_dword v{vT2}, v{vFo}, s[{rW}:{rW+3}], 0 offen offset:{foff} {sc}
        s_mov_b64 exec, -1
        """)
    publish("", "a", 0)
    stamp(4)
    A(f"""
    L_poll:
    buffer_load_dword v{vF}, v{vFa}, s[{rW}:{rW+3}], 0 offen sc1
    s_add_u32 s{sCnt}, s{sCnt}, 1
    s_waitcnt vmcnt(0)
    v_cmp_ne_u32 vcc, 0, v{vF}
    s_cmp_eq_u32 vcc_lo, -1
    s_cbranch_scc1 L_got
    s_cmp_lg_u32 vcc_hi, 0
    s_cbranch_scc1 L_slow
    s_cmp_lt_u32 s{sCnt}, 0x40000
    s_cbranch_scc1 L_poll
    L_got:
    """)
    stamp(5)
    vD = vKF; vML = vKF + 8; vAc = vKF + 16
    for k in range(2):
        A(f"buffer_load_dwordx2 v[{vML+2*k}:{vML+2*k+1}], v{vMd}, s[{rW}:{rW+3}], s{sReg} offen offset:{(128 if cml else 2048)*k} sc1")
    for k in range(2):
        A(f"buffer_load_dwordx4 v[{vD+4*k}:{vD+4*k+3}], v{vAd+k}, s[{rW}:{rW+3}], s{sReg} offen sc1")
    A(f"s_waitcnt vmcnt(2)")
    stamp(7)
    A(f"v_max_f32 v{vT0}, v{vML}, v{vML+2}")
    for ro in (4, 8):
        A(f"s_nop 1\nv_max_f32_dpp v{vT0}, v{vT0}, v{vT0} row_ror:{ro} row_mask:0xf bank_mask:0xf")
    A(f"""
    v_mov_b32 v{vT1}, v{vT0}
    s_nop 1
    v_permlane32_swap_b32 v{vT0}, v{vT1}
    v_max_f32 v{vT0}, v{vT0}, v{vT1}
    v_mov_b32 v{vT1}, v{vT0}
    s_nop 1
    v_permlane16_swap_b32 v{vT0}, v{vT1}
    v_max_f32 v{vT0}, v{vT0}, v{vT1}
    """)
    for k in range(2): A(f"v_sub_f32 v{vML+2*k}, v{vML+2*k}, v{vT0}")
    for k in range(2): A(f"v_exp_f32 v{vML+2*k}, v{vML+2*k}")
    vLs = vAc + 8
    A(f"v_mul_f32 v{vLs}, v{vML}, v{vML+1}\nv_fmac_f32 v{vLs}, v{vML+2}, v{vML+3}")
    for k in range(2):
        A(f"s_waitcnt vmcnt({1-k})")
        op = "v_mul_f32" if k == 0 else "v_fmac_f32"
        for j in range(4):
            A(f"v_lshlrev_b32 v{vT1}, 16, v{vD+4*k+j}\nv_and_b32 v{vT2}, 0xffff0000, v{vD+4*k+j}")
            A(f"{op} v{vAc+2*j}, v{vML+2*k}, v{vT1}\n{op} v{vAc+2*j+1}, v{vML+2*k}, v{vT2}")
    if wb == 2: A(f"s_or_b32 s{sTmp}, s{sJ0}, s{sW}\ns_cbranch_scc1 L_nowb\nbuffer_wbl2 sc1\nL_nowb:")
    stamp(8)
    A(f"v_mov_b32 v{vLs+1}, v{vLs}")
    for j in range(4): A(f"v_permlane32_swap_b32 v{vAc+j}, v{vAc+4+j}")
    A(f"v_permlane32_swap_b32 v{vLs}, v{vLs+1}")
    A(f"v_add_f32 v{vLs}, v{vLs}, v{vLs+1}")
    for j in range(4): A(f"v_add_f32 v{vAc+j}, v{vAc+j}, v{vAc+4+j}")
    A(f"v_mov_b32 v{vLs+1}, v{vLs}\ns_nop 0")
    for j in range(2): A(f"v_permlane16_swap_b32 v{vAc+j}, v{vAc+2+j}")
    A(f"v_permlane16_swap_b32 v{vLs}, v{vLs+1}")
    A(f"v_add_f32 v{vLs}, v{vLs}, v{vLs+1}")
    for j in range(2): A(f"v_add_f32 v{vAc+j}, v{vAc+j}, v{vAc+2+j}")
    for ro in (4, 8):
        for r in (vLs, vAc, vAc+1): A(f"v_add_f32_dpp v{r}, v{r}, v{r} row_ror:{ro} row_mask:0xf bank_mask:0xf")
    A(f"""
    v_rcp_f32 v{vLs}, v{vLs}
    s_mov_b32 exec_lo, 0x000f000f
    s_mov_b32 exec_hi, 0x000f000f
    v_mul_f32 v{vAc}, v{vAc}, v{vLs}
    v_mul_f32 v{vAc+1}, v{vAc+1}, v{vLs}
    v_cvt_pk_bf16_f32 v{vAc}, v{vAc}, v{vAc+1}
    global_store_dword v{vOA}, v{vAc}, s[{sOUT}:{sOUT+1}] {outpol}
    """)
    if wb == 3: A(f"s_or_b32 s{sTmp}, s{sJ0}, s{sW}\ns_cbranch_scc1 L_nowb\nbuffer_wbl2 sc1\nL_nowb:")
    stamp(9)
    if prof: A("s_mov_b64 exec, -1\ns_waitcnt vmcnt(0)")
    stamp(6)
    if prof == 2:
        a, b = diag
        A(f"""
        s_nop 1
        v_readlane_b32 s{sF}, v{vPf}, 0
        v_readlane_b32 s{sF+1}, v{vPf}, {a}
        v_readlane_b32 s{sF+2}, v{vPf}, {b}
        s_sub_u32 s{sF+1}, s{sF+2}, s{sF+1}
        s_min_u32 s{sF+1}, s{sF+1}, 20000
        s_mul_i32 s{sF+1}, s{sF+1}, {diagmul}
        """)
        if diagwg >= 0: A(f"s_cmp_eq_u32 s2, {diagwg}\ns_cselect_b32 s{sF+1}, s{sF+1}, 0")
        A(f"""
        s_add_u32 s{sF+1}, s{sF+1}, 10000
        L_spin:
        s_memrealtime s[{sSt}:{sSt+1}]
        s_waitcnt lgkmcnt(0)
        s_sub_u32 s{sF+2}, s{sSt}, s{sF}
        s_cmp_lt_u32 s{sF+2}, s{sF+1}
        s_cbranch_scc1 L_spin
        """)
    if prof == 1:
        A(f"""
        v_writelane_b32 v{vPf}, s{sPl}, 62
        v_writelane_b32 v{vPf}, s{sCnt}, 63
        s_lshl_b32 s{sTmp}, s2, 2
        s_add_u32 s{sTmp}, s{sTmp}, s{sW}
        s_lshl_b32 s{sTmp}, s{sTmp}, 8
        s_add_u32 s{sTmp}, s{sTmp}, {PROF_OFF}
        v_lshlrev_b32 v{vT0}, 2, v{vLane}
        buffer_store_dword v{vPf}, v{vT0}, s[{rW}:{rW+3}], s{sTmp} offen
        """)
    A("s_endpgm")
    A(f"L_slow:\ns_mov_b32 s{sReg}, {REG}")
    publish("sc1", "b", 128)
    A(f"""
    L_poll2:
    buffer_load_dword v{vF}, v{vFa}, s[{rW}:{rW+3}], 0 offen sc1
    s_add_u32 s{sCnt}, s{sCnt}, 1
    s_waitcnt vmcnt(0)
    v_cmp_ne_u32 vcc, 0, v{vF}
    s_cmp_eq_u32 vcc_hi, -1
    s_cbranch_scc1 L_got
    s_sleep 2
    s_cmp_lt_u32 s{sCnt}, 0x40000
    s_cbranch_scc1 L_poll2
    s_branch L_got
    """)
    A("L_end:\ns_endpgm")
    A(f""".section .rodata,"a"
.p2align 6
.amdhsa_kernel {KN}
.amdhsa_next_free_vgpr {NV}
.amdhsa_next_free_sgpr {NS}
.amdhsa_accum_offset {(NV+3)//4*4}
.amdhsa_group_segment_fixed_size 0
.amdhsa_kernarg_size 64
.amdhsa_user_sgpr_count 2
.amdhsa_user_sgpr_kernarg_segment_ptr 1
.amdhsa_system_sgpr_workgroup_id_x 1
.end_amdhsa_kernel""")
    return A.text()

if __name__ == "__main__":
    out = sys.argv[1]
    kw = {}
    for kv in sys.argv[2:]:
        k, v = kv.split("=")
        if "," in v: kw[k] = tuple(int(x) for x in v.split(","))
        else: kw[k] = int(v) if v.lstrip("-").isdigit() else v.replace("+", " ")
    open(out, "w").write(gen(**kw))
```
